```python
import torch

def _softmax(x, axis=-1):
    return torch.softmax(x, dim=axis)
def _gelu(x):
    return torch.nn.functional.gelu(x, approximate="tanh")
def _silu(x):
    return torch.nn.functional.silu(x)
def _sigmoid(x):
    return torch.sigmoid(x)
def _layernorm(x, axis=-1, eps=1e-5):
    m = x.mean(dim=axis, keepdim=True)
    v = x.var(dim=axis, keepdim=True, unbiased=False)
    return (x - m) / torch.sqrt(v + eps)
def _scatter_add(tgt, idx, src, axis=0):
    return tgt.clone().index_add_(axis, idx, src)
def _segment_sum(src, seg, n):
    out = torch.zeros((n,) + src.shape[1:], dtype=src.dtype)
    return out.index_add_(0, seg, src)
def _pad(x, pw):
    flat = tuple(v for pair in reversed(pw) for v in pair)
    return torch.nn.functional.pad(x, flat)

kernel_name = 'recurrent_scan__gqa_block_cached__geglu_ffn__prompt'

def setup_inputs():

    _w = (lambda a: (lambda t: t.to(torch.bfloat16) if t.is_floating_point() else t)(torch.as_tensor(a)))
    def _A_setup():
        B, Sq, D = 1, 2048, 512
        Hq, Hkv, Sk, Dh = 32, 8, 2048, 128
        assert Hq % Hkv == 0, (Hq, Hkv)
        return {
            "x": _w((lambda *s: torch.randn(*s, dtype=torch.bfloat16) * 0.05)(B, Sq, D)),
            "k_cache": _w((lambda *s: torch.randn(*s, dtype=torch.bfloat16) * 0.8)(B, Hkv, Sk, Dh)),
            "v_cache": _w((lambda *s: torch.randn(*s, dtype=torch.bfloat16) * 0.2)(B, Hkv, Sk, Dh)),
            "wq": _w((lambda *s: torch.randn(*s, dtype=torch.bfloat16) * 0.8)(D, Hq * Dh) * (D ** -0.5)),
            "wo": _w((lambda *s: torch.randn(*s, dtype=torch.bfloat16) * 0.2)(Hq * Dh, D) * ((Hq * Dh) ** -0.5)),
        }
    _A_in = _A_setup()

    def _B_setup():
        B, S, D, F = 1, 2048, 512, 1792
        return {
            "x": _w((lambda *s: torch.randn(*s, dtype=torch.bfloat16) * 0.05)(B, S, D)),
            "w_gate": _w((lambda *s: torch.randn(*s, dtype=torch.bfloat16) * 0.1)(D, F)),
            "w_up": _w((lambda *s: torch.randn(*s, dtype=torch.bfloat16) * 0.1)(D, F)),
            "w_down": _w((lambda *s: torch.randn(*s, dtype=torch.bfloat16) * 0.1)(F, D)),
        }
    _B_in = _B_setup()

    return {
        "A_x": _A_in["x"],
        "A_k_cache": _A_in["k_cache"],
        "A_v_cache": _A_in["v_cache"],
        "A_wq": _A_in["wq"],
        "A_wo": _A_in["wo"],
        "B_x": _B_in["x"],
        "B_w_gate": _B_in["w_gate"],
        "B_w_up": _B_in["w_up"],
        "B_w_down": _B_in["w_down"],
    }

def reference(A_x, A_k_cache, A_v_cache, A_wq, A_wo, B_x, B_w_gate, B_w_up, B_w_down):
    def _A_ref(x, k_cache, v_cache, wq, wo):
        B, Sq, D = x.shape
        Hq, Dh = 32, 128
        Hkv = k_cache.shape[1]
        rep = Hq // Hkv
        q = (lambda x, *d: x.permute(*d))((x @ wq).reshape(B, Sq, Hq, Dh), 0, 2, 1, 3)
        k = (lambda x, n, axis: torch.repeat_interleave(x, n, dim=axis))(k_cache, rep, axis=1)
        v = (lambda x, n, axis: torch.repeat_interleave(x, n, dim=axis))(v_cache, rep, axis=1)
        scores = torch.einsum("bhqd,bhkd->bhqk", q, k) * (Dh ** -0.5)
        p = _softmax(scores, axis=-1)
        o = torch.einsum("bhqk,bhkd->bhqd", p, v)
        return (lambda x, *d: x.permute(*d))(o, 0, 2, 1, 3).reshape(B, Sq, Hq * Dh) @ wo

    def _B_ref(x, w_gate, w_up, w_down):
        return (_gelu(x @ w_gate) * (x @ w_up)) @ w_down

    x = A_x
    xn = _layernorm(x, axis=-1)
    s = _A_ref(xn, A_k_cache, A_v_cache, A_wq, A_wo)
    g = _silu(_B_ref(xn, B_w_gate, B_w_up, B_w_down))
    return x + s * g
```

```python
import re

TRANS = ('v_exp_f32', 'v_log_f32', 'v_rcp_f32', 'v_rsq_f32', 'v_sqrt_f32', 'v_sin_f32', 'v_cos_f32')

def regs_of(tok):
    tok = tok.strip()
    tok = tok.lstrip('-')
    if tok.startswith('abs(') or tok.startswith('|'):
        tok = tok.replace('abs(', '').replace(')', '').replace('|', '')
    m = re.fullmatch(r'([vas])\[(\d+):(\d+)\]', tok)
    if m:
        return [f"{m.group(1)}{i}" for i in range(int(m.group(2)), int(m.group(3)) + 1)]
    m = re.fullmatch(r'([vas])(\d+)', tok)
    if m:
        return [tok]
    if tok in ('vcc', 'exec', 'm0', 'scc'):
        return [tok]
    if tok in ('vcc_lo', 'vcc_hi'): return ['vcc']
    if tok in ('exec_lo', 'exec_hi'): return ['exec']
    return []

class Ins:
    def __init__(self, text):
        self.text = text
        t = text.split(';')[0].strip()
        self.op = t.split()[0] if t else ''
        rest = t[len(self.op):].strip()
        ops = [x.strip() for x in rest.split(',')] if rest else []
        toks = []
        for i, o in enumerate(ops):
            toks.append(o.split()[0] if o else o)
        self.mods = rest
        self.toks = toks
        op = self.op
        self.kind = 'other'; self.w = []; self.r = []; self.srcc = []; self.ab = []
        R = regs_of
        if op.startswith('v_mfma'):
            self.kind = 'mfma'
            self.w = R(toks[0]); self.ab = R(toks[1]) + R(toks[2]); self.srcc = R(toks[3]); self.r = self.ab + self.srcc
            self.passes = 8 if '32x32' in op else 4
        elif op.startswith('ds_read') or op.startswith('ds_bpermute') or op.startswith('ds_swizzle'):
            self.kind = 'dsr'; self.w = R(toks[0]); self.r = sum((R(x) for x in toks[1:]), [])
        elif op.startswith('ds_write'):
            self.kind = 'dsw'; self.r = sum((R(x) for x in toks), [])
        elif op.startswith('buffer_load') or op.startswith('global_load'):
            if ' lds' in (' ' + rest) or 'load_lds' in op:
                self.kind = 'dma'; self.r = sum((R(x) for x in toks), []) + ['m0']
            else:
                self.kind = 'vld'; self.w = R(toks[0]); self.r = sum((R(x) for x in toks[1:]), [])
        elif op.startswith('buffer_store') or op.startswith('global_store'):
            self.kind = 'vst'; self.r = sum((R(x) for x in toks), [])
            self.stdata = R(toks[0]) if op.startswith('buffer') else R(toks[1])
        elif op.startswith('buffer_atomic') or op.startswith('global_atomic'):
            self.kind = 'vst'; self.r = sum((R(x) for x in toks), []); self.stdata = []
        elif op.startswith('v_'):
            self.kind = 'valu'
            if op.startswith('v_cmp'):
                self.w = R(toks[0]); self.r = sum((R(x) for x in toks[1:]), [])
            elif op.startswith('v_permlane') and 'swap' in op:
                self.w = R(toks[0]) + R(toks[1]); self.r = list(self.w)
            elif op.startswith('v_readfirstlane') or op.startswith('v_readlane'):
                self.w = R(toks[0]); self.r = sum((R(x) for x in toks[1:]), [])
            else:
                self.w = R(toks[0]); self.r = sum((R(x) for x in toks[1:]), [])
                if op.startswith('v_fmac') or op.startswith('v_dot2c') or op.startswith('v_pk_fmac'): self.r += self.w
                if op.startswith('v_cndmask') and len(toks) == 3: self.r.append('vcc')
                if '_co_' in op and len(toks) >= 2:
                    self.w = R(toks[0]) + R(toks[1]); self.r = sum((R(x) for x in toks[2:]), [])
            self.trans = op.replace('_e32', '').replace('_e64', '') in TRANS
        elif op.startswith('s_'):
            self.kind = 'salu'
            if op in ('s_waitcnt', 's_barrier', 's_nop', 's_endpgm', 's_setprio', 's_sleep') or op.startswith('s_cbranch') or op == 's_branch':
                self.kind = 'ctl'
            elif op.startswith('s_cmp'):
                self.r = sum((R(x) for x in toks), [])
            elif op.startswith('s_load') or op.startswith('s_memtime') or op.startswith('s_memrealtime'):
                self.kind = 'smem'; self.w = R(toks[0]); self.r = sum((R(x) for x in toks[1:]), [])
            else:
                self.w = R(toks[0]); self.r = sum((R(x) for x in toks[1:]), [])
    def states(self):
        if self.op == 's_nop':
            return int(self.toks[0], 0) + 1
        return 1

def check_stream(lines, name='', lgkm_check=True):
    ins = []
    for l in lines:
        t = l.split(';')[0].strip()
        if not t or t.endswith(':') or t.startswith('.') or '@X' in l:
            continue
        ins.append(Ins(t))
    probs = []
    pos = 0
    last_valu_w = {}
    last_trans_w = {}
    last_mfma_w = {}
    last_mfma_c = {}
    last_salu_m0 = None
    last_st = {}
    pend_ds = []
    pend_vm = []
    def need(cond, i, msg):
        if not cond: probs.append(f"{name}: [{i.text}] {msg}")
    for i in ins:
        dist = lambda p: pos - p - 1
        if i.op == 's_waitcnt':
            m = re.search(r'lgkmcnt\((\d+)\)', i.text)
            if m:
                n = int(m.group(1))
                while len(pend_ds) > n: pend_ds.pop(0)
            m = re.search(r'vmcnt\((\d+)\)', i.text)
            if m:
                n = int(m.group(1))
                while len(pend_vm) > n: pend_vm.pop(0)
        touched = set(i.r) | set(i.w)
        if lgkm_check:
            for q in pend_ds:
                if touched & set(q): need(False, i, f"uses regs {sorted(touched & set(q))} of outstanding LDS/SMEM op")
        for q in pend_vm:
            if i.kind == 'vld' and set(i.w) == set(q) and not (set(i.r) & set(q)): continue
            if touched & set(q): need(False, i, f"uses regs {sorted(touched & set(q))} of outstanding VMEM load")
        if i.kind == 'mfma':
            for r in i.r:
                if r in last_valu_w: need(dist(last_valu_w[r]) >= 2, i, f"VALU write {r} -> MFMA read needs 2")
            for r in i.ab:
                if r in last_mfma_w:
                    p, ps, D = last_mfma_w[r]; need(dist(p) >= (12 if ps == 8 else 8), i, f"MFMA D {r} -> A/B needs {12 if ps==8 else 8}, have {dist(p)}")
            for r in i.srcc:
                if r in last_mfma_w:
                    p, ps, D = last_mfma_w[r]
                    if not (D == i.srcc and ps == i.passes):
                        need(dist(p) >= (10 if ps == 8 else 6), i, f"MFMA D {r} -> overlapping C")
            for r in i.w:
                if r in last_mfma_w and r not in i.srcc:
                    p, ps, D = last_mfma_w[r]; need(dist(p) >= (10 if ps == 8 else 6), i, f"MFMA D {r} WAW")
        elif i.kind in ('valu', 'dsr', 'dsw', 'vld', 'vst', 'dma'):
            for r in touched:
                if r in last_mfma_w:
                    p, ps, D = last_mfma_w[r]; need(dist(p) >= (12 if ps == 8 else 8), i, f"MFMA D {r} -> VALU/mem access needs {12 if ps==8 else 8}, have {dist(p)}")
            if i.kind == 'valu':
                for r in i.w:
                    if r in last_mfma_c:
                        p, ps = last_mfma_c[r]; need(dist(p) >= (7 if ps == 8 else 3), i, f"MFMA reads C {r} -> VALU write WAR")
                    if r in last_st: need(dist(last_st[r]) >= 2, i, f"wide store data {r} overwritten too soon")
                if not i.trans:
                    for r in i.r:
                        if r in last_trans_w: need(dist(last_trans_w[r]) >= 1, i, f"trans result {r} used immediately")
                if i.op.startswith('v_permlane') or 'dpp' in i.text or 'row_' in i.text or 'quad_perm' in i.text:
                    for r in i.r:
                        if r in last_valu_w: need(dist(last_valu_w[r]) >= 2, i, f"VALU write {r} -> permlane/dpp needs 2")
                if i.op.startswith('v_readfirstlane') or i.op.startswith('v_readlane'):
                    for r in i.r:
                        if r in last_valu_w and r[0] == 'v': need(dist(last_valu_w[r]) >= 1, i, f"VALU write {r} -> readlane needs 1")
                for r in i.r:
                    if (r[0] == 's' or r == 'vcc') and r in last_valu_w: need(dist(last_valu_w[r]) >= 2, i, f"VALU write sgpr {r} -> VALU read needs 2")
            if i.kind in ('vld', 'vst', 'dma'):
                for r in i.r:
                    if r[0] == 's' and r in last_valu_w: need(dist(last_valu_w[r]) >= 5, i, f"VALU write sgpr {r} -> VMEM needs 5")
            if i.kind in ('dsr', 'vld'):
                for r in i.w:
                    if r in last_st: need(dist(last_st[r]) >= 1, i, f"wide store data {r} overwritten too soon")
            if i.kind == 'dma' and last_salu_m0 is not None:
                need(dist(last_salu_m0) >= 1, i, "m0 write -> LDS DMA needs 1")
        if i.kind == 'valu':
            for r in i.w:
                last_valu_w[r] = pos; last_mfma_w.pop(r, None)
                if i.trans: last_trans_w[r] = pos
                else: last_trans_w.pop(r, None)
        elif i.kind == 'mfma':
            for r in i.w:
                last_mfma_w[r] = (pos, i.passes, i.w); last_valu_w.pop(r, None); last_trans_w.pop(r, None)
            for r in i.srcc: last_mfma_c[r] = (pos, i.passes)
        elif i.kind == 'salu':
            if 'm0' in i.w: last_salu_m0 = pos
            for r in i.w: last_valu_w.pop(r, None)
        if i.kind in ('dsr', 'dsw', 'smem'):
            pend_ds.append(i.w)
            if i.kind == 'smem' and ('x2' in i.op or 'x4' in i.op or 'x8' in i.op or 'x16' in i.op or 'time' in i.op): pend_ds.append(i.w)
            if len(pend_ds) > 15 : pass
            for r in i.w: last_valu_w.pop(r, None); last_trans_w.pop(r, None)
        if i.kind in ('vld', 'vst', 'dma'):
            pend_vm.append(i.w)
            for r in i.w: last_valu_w.pop(r, None); last_trans_w.pop(r, None)
        if i.kind == 'vst' and ('x4' in i.op or 'x3' in i.op):
            for r in i.stdata: last_st[r] = pos
        pos += i.states()
    return probs

def cost(text):
    op = text.split()[0]
    if op.replace('_e32', '') in TRANS or op.startswith('v_permlane'): return 2
    if op == 's_nop': return int(text.split()[1], 0) + 1
    return 1

class Gaps:
    def __init__(self, mfmas, cap):
        self.m = list(mfmas); self.f = [[] for _ in mfmas]; self.pre = [[] for _ in mfmas]; self.cap = cap
    def load(self, g): return sum(cost(x) for x in self.f[g]) + sum(cost(x) for x in (self.pre[g+1] if g+1 < len(self.m) else []))
    def put(self, g, text): self.f[g].append(text)
    def before(self, g, text): self.pre[g].append(text)
    def spread(self, ops, g0, g1, cap=None):
        cap = cap or self.cap
        n = g1 - g0 + 1
        tot = sum(cost(o) for o in ops) + sum(self.load(g) for g in range(g0, g1 + 1))
        i = 0; cum = 0
        for k, g in enumerate(range(g0, g1 + 1)):
            target = tot * (k + 1) / n
            cum += self.load(g)
            while i < len(ops) and (cum + cost(ops[i]) / 2 <= target + 1e-9 or g == g1):
                self.f[g].append(ops[i]); cum += cost(ops[i]); i += 1
    def lines(self):
        out = []
        for g, m in enumerate(self.m):
            out += self.pre[g]; out.append(m); out += self.f[g]
        return out
```

```python
import sys, re, math, struct
from asmlib import Ins, check_stream, cost

KNAME = 'recurrent_scan__gqa_block_cached__geglu_ffn__prompt'
MF = 'v_mfma_f32_16x16x32_bf16'
def f2u(x): return struct.unpack('<I', struct.pack('<f', x))[0]
def hx(x): return '0x%08x' % f2u(x)

OPT = dict(msum=2, stflags='', prefetch=1, codepf=1, timing=0, fthresh=24, filler_cap=48)

sW, sG, sRB, sNU, sU0 = 3, 4, 5, 6, 7
rK, rV, rWG, rWU, rWQ, rWD, rWO, rX, rWS = 8, 12, 16, 20, 24, 28, 32, 36, 40
sKO = 44
sKVM0, sCNT, sRING, sJ, sOFF0, sOFF1, sROT = 48, 49, 50, 51, 52, 53, 54
sCOG, sCOQ, sCOD, sCOD3, sCOO, sSLAB = 55, 56, 57, 58, 59, 60
sT = 72
sTS = 86
vFA, vL16 = 0, 1
vWA, vWI = 2, 6
vDG, vDQ, vDO = 10, 14, 18
vDK, vDV = 22, 24
vT = 26
vGB, vPF = 30, 31
vW = 32
bA, bB, bC = 64, 128, 192
vKA = 10
vVAl = [2, 3, 4, 5, 14, 15, 16, 17]
vQ = bB; vS = [bC, bC + 32]; vP = [32, 48]
vNEGM, vONES, vLM, vL = 96, 112, 116, 124
aO, aKF, aVF = 0, 192, 224
RING = 0
LB = 98304

class Prog:
    def __init__(self): self.L = []
    def __call__(self, s):
        for x in s.split('\n'):
            x = x.strip()
            if x: self.L.append(x)

def srd(a, r, lo, size, add=None, sub=None):
    a(f"s_mov_b32 s{r}, s{lo}\ns_mov_b32 s{r+1}, s{lo+1}")
    if add: a(f"s_add_u32 s{r}, s{r}, {add}\ns_addc_u32 s{r+1}, s{r+1}, 0")
    if sub: a(f"s_sub_u32 s{r}, s{r}, {sub}\ns_subb_u32 s{r+1}, s{r+1}, 0")
    a(f"s_mov_b32 s{r+2}, {size}\ns_mov_b32 s{r+3}, 0x20000")

def stamp(a, i):
    if OPT['timing']: a(f"s_memtime s[{sTS+2*i}:{sTS+2*i+1}]\ns_waitcnt lgkmcnt(0)")

def resolve_waits(lines):
    parsed = []
    for l in lines:
        t = l.split(';')[0].strip()
        parsed.append(None if (not t or t.endswith(':') or t.startswith('.')) else Ins(t))
    out = list(lines)
    vmq = []; dsq = []
    for i, l in enumerate(lines):
        I = parsed[i]
        if I is None: continue
        tag = None
        m = re.search(r'@T:(\w+)', l)
        if m: tag = m.group(1)
        if I.op == 's_waitcnt':
            parts = []
            m = re.search(r'vmcnt\(([^)]*)\)', l)
            if m:
                x = m.group(1)
                if x.startswith('@'):
                    idx = [k for k, e in enumerate(vmq) if e[0] in x[1:].split('|')]
                    n = len(vmq) - 1 - idx[-1] if idx else None
                else: n = int(x)
                if n is not None:
                    n = min(n, 63); parts.append(f"vmcnt({n})")
                    while len(vmq) > n: vmq.pop(0)
            m = re.search(r'lgkmcnt\(([^)]*)\)', l)
            if m:
                ns = []
                for x in m.group(1).split('+'):
                    if x == '@auto':
                        need = -1
                        for j in range(i + 1, len(lines)):
                            J = parsed[j]
                            if J is None: continue
                            if J.op == 's_waitcnt' and 'lgkmcnt' in lines[j]: break
                            tch = set(J.r) | set(J.w)
                            for k, e in enumerate(dsq):
                                if tch & e[1]: need = max(need, k)
                        if need >= 0: ns.append(len(dsq) - 1 - need)
                    elif x.startswith('@'):
                        idx = [k for k, e in enumerate(dsq) if e[0] == x[1:]]
                        if idx: ns.append(len(dsq) - 1 - idx[-1])
                    else: ns.append(int(x))
                if ns:
                    n = min(min(ns), 15); parts.append(f"lgkmcnt({n})")
                    while len(dsq) > n: dsq.pop(0)
            out[i] = ("s_waitcnt " + " ".join(parts)) if parts else None
        elif I.kind in ('dsr', 'dsw'): dsq.append((tag, set(I.w)))
        elif I.kind == 'smem':
            dsq.append((tag, set(I.w))); dsq.append((tag, set(I.w)))
        elif I.kind in ('vld', 'vst', 'dma'): vmq.append((tag, set(I.w)))
    return [x for x in out if x is not None]

class Panel:
    def __init__(self, name, srd, dv, rs, co, acc, first, bfrag, inter, rot, row0=0):
        self.name = name; self.srd = srd; self.dv = dv; self.rs = rs; self.co = co; self.acc = acc
        self.first = first; self.bfrag = bfrag; self.inter = inter; self.rot = rot; self.row0 = row0

def panel_dma(P, idx):
    sl = idx % 3
    s0 = []
    if P.rot:
        s0 += [f"s_add_u32 s{sJ}, s{sJ}, 1", f"s_and_b32 s{sJ}, s{sJ}, 7", f"s_mul_i32 s{sOFF0}, s{sJ}, {64*P.rs}", f"s_add_u32 s{sOFF0}, s{sOFF0}, {P.co}"]
        if P.row0: s0.append(f"s_add_u32 s{sOFF0}, s{sOFF0}, {P.row0}")
    else:
        s0 += [f"s_add_u32 s{sOFF0}, {P.co}, {P.row0}"]
    s0 += [f"s_add_u32 m0, s{sRING}, {sl*8192}"]
    s1 = [f"s_add_u32 s{sOFF1}, s{sOFF0}, {32*P.rs}", f"s_add_u32 m0, s{sRING}, {sl*8192 + 4096}"]
    d = []
    for i in range(8):
        so = sOFF0 if i < 4 else sOFF1
        off = f" offset:{1024*(i%4)}" if i % 4 else ""
        d.append(f"buffer_load_dwordx4 v{P.dv + i%4}, s[{P.srd}:{P.srd+3}], s{so} offen{off} lds ; @T:w{idx}")
    return s0, s1, d

def wreads(P, idx, nb):
    sl = idx % 3; out = []
    for ks in range(2):
        for jj in range(2):
            r = vW + nb*8 + ks*4 + jj*2
            if P.inter: ad = vWI + nb; off = sl*8192 + ks*4096 + jj*2048
            else: ad = vWA + (nb ^ (2*jj)); off = sl*8192 + ks*4096 + jj*512
            out.append(f"ds_read_b64_tr_b16 v[{r}:{r+1}], v{ad} offset:{off} ; @T:wr{idx}_{nb}")
    return out

def panel_mfmas(P):
    out = []
    for nb in range(4):
        for qb in range(4):
            for ks in range(2):
                d = P.acc + (nb*4 + qb)*4; w = vW + nb*8 + ks*4; b = P.bfrag(ks, qb)
                c = '0' if (P.first and ks == 0) else f"v[{d}:{d+3}]"
                out.append(f"{MF} v[{d}:{d+3}], v[{w}:{w+3}], a[{b}:{b+3}], {c}")
    return out

def emit_stream(a, panels, base, fillers, extra_mem, extra_shadow, nxt=None, must_empty=()):
    allp = panels + (nxt or [])
    q = []
    for pos, P in enumerate(panels):
        idx = base + pos
        if pos in must_empty: assert not q, (pos, len(q))
        q += fillers.get(pos, [])
        ms = panel_mfmas(P)
        shadow = [[] for _ in range(32)]; mem = [[] for _ in range(32)]; dma = {}
        r3 = wreads(P, idx, 3)
        mem[0] += r3[:2]; mem[1] += r3[2:]
        hasn = pos + 1 < len(allp)
        if hasn:
            N = allp[pos+1]
            shadow[7].append(f"s_waitcnt vmcnt(@w{idx+1}) lgkmcnt(@auto+@wr{idx}_3)")
            for nb in range(3):
                r = wreads(N, idx+1, nb); g = 8*nb + 8
                mem[g] += r[:2]; mem[g+2] += r[2:]
        else:
            shadow[7].append(f"s_waitcnt lgkmcnt(@auto)")
        shadow[15].append("s_waitcnt lgkmcnt(@auto)"); shadow[23].append("s_waitcnt lgkmcnt(@auto)"); shadow[31].append("s_waitcnt lgkmcnt(@auto)")
        if pos + 3 < len(allp):
            s0, s1, d = panel_dma(allp[pos+3], idx+3)
            for k, x in enumerate(s0): shadow[8 - len(s0) + k - (1 if 8 - len(s0) + k <= 7 else 0)].append(x)
            gaps = [9, 11, 13, 17, 19, 21, 25, 27]
            shadow[16].append(s1[0]); shadow[18].append(s1[1])
            for x, g in zip(d, gaps): dma[g] = x
        for (p2, g), x in extra_mem.items():
            if p2 == pos:
                assert g not in dma, (pos, g)
                mem[g] += x
        for (p2, g), x in extra_shadow.items():
            if p2 == pos: shadow[g] += x
        budget = OPT['filler_cap']
        free = [g for g in range(32) if g not in dma]
        base_room = sum(max(0, 2 - len(mem[g])) for g in free)
        want = min(budget, sum(cost(x) for x in q))
        extra = max(0, want - base_room); acc = 0.0
        for g in range(32):
            a(ms[g])
            for x in shadow[g]: a(x)
            if g in dma:
                a(dma[g]); continue
            for x in mem[g]: a(x)
            room = 2 - len(mem[g])
            acc += extra / len(free)
            while q:
                x = q[0]
                if x.startswith('ds_') or x.startswith('buffer'): break
                c = cost(x)
                if c <= room: room -= c
                elif (c - room) <= acc + (0.75 if room > 0 and extra > 0 else 0): acc -= (c - max(room, 0)); room = 0
                else: break
                a(q.pop(0))
            if q and (q[0].startswith('ds_') or q[0].startswith('buffer')) and g + 1 < 32 and (g + 1) not in dma and len(mem[g+1]) < 2:
                mem[g+1].append(q.pop(0))
    return q

def gelu_stage1(G):
    A = -2.0 * math.log2(math.e) * math.sqrt(2.0 / math.pi)
    ops = []
    for blk in range(16):
        x = [G + blk*4 + i for i in range(4)]; t = [vT + i for i in range(4)]
        ops += [f"v_mul_f32 v{t[i]}, v{x[i]}, v{x[i]}" for i in range(4)]
        ops += [f"v_fmaak_f32 v{t[i]}, v{vGB}, v{t[i]}, {hx(A)}" for i in range(4)]
        ops += [f"v_mul_f32 v{t[i]}, v{t[i]}, v{x[i]}" for i in range(4)]
        ops += [f"v_exp_f32 v{t[i]}, v{t[i]}" for i in range(4)]
        ops += [f"v_add_f32 v{t[i]}, 1.0, v{t[i]}" for i in range(4)]
        ops += [f"v_rcp_f32 v{t[i]}, v{t[i]}" for i in range(4)]
        ops += [f"v_mul_f32 v{x[i]}, v{x[i]}, v{t[i]}" for i in range(4)]
    return ops

def geglu_stage2(G, U):
    ops = []
    for sp in range(2):
        for qb in range(4):
            b0 = ((2*sp)*4 + qb)*4; b1 = ((2*sp+1)*4 + qb)*4
            for b in (b0, b1):
                ops += [f"v_mul_f32 v{G+b+i}, v{G+b+i}, v{U+b+i}" for i in range(4)]
            d = U + b0
            ops += [f"v_cvt_pk_bf16_f32 v{d}, v{G+b0}, v{G+b0+1}", f"v_cvt_pk_bf16_f32 v{d+1}, v{G+b0+2}, v{G+b0+3}",
                    f"v_cvt_pk_bf16_f32 v{d+2}, v{G+b1}, v{G+b1+1}", f"v_cvt_pk_bf16_f32 v{d+3}, v{G+b1+2}, v{G+b1+3}"]
            ops += [f"ds_write_b128 v{vPF}, v[{d}:{d+3}] offset:{(sp*4 + qb)*1024} ; @T:hw"]
    return ops

def qpack(acc, half):
    c = math.log2(math.e) / math.sqrt(128.0)
    ops = []; late = []
    for sp in range(2):
        for qb in range(4):
            b0 = acc + ((2*sp)*4 + qb)*4; b1 = acc + ((2*sp+1)*4 + qb)*4
            for b in (b0, b1):
                ops += [f"v_mul_f32 v{b+i}, {hx(c)}, v{b+i}" for i in range(4)]
            ops += late; late = []
            d = vQ + (qb*4 + 2*half + sp)*4
            ops += [f"v_cvt_pk_bf16_f32 v{d}, v{b0}, v{b0+1}", f"v_cvt_pk_bf16_f32 v{d+1}, v{b0+2}, v{b0+3}",
                    f"v_cvt_pk_bf16_f32 v{d+2}, v{b1}, v{b1+1}", f"v_cvt_pk_bf16_f32 v{d+3}, v{b1+2}, v{b1+3}"]
            late = [f"v_permlane32_swap_b32 v{d}, v{d+2}", f"v_permlane32_swap_b32 v{d+1}, v{d+3}", "s_nop 0",
                    f"v_permlane16_swap_b32 v{d}, v{d+2}", f"v_permlane16_swap_b32 v{d+1}, v{d+3}"]
    return ops + ["s_nop 1"] + late

def slab_store(acc, t, hf):
    ops = []
    for sp in range(2):
        for qb in range(4):
            b0 = acc + ((2*sp)*4 + qb)*4; b1 = acc + ((2*sp+1)*4 + qb)*4
            ops += [f"v_cvt_pk_bf16_f32 v{b0}, v{b0}, v{b0+1}", f"v_cvt_pk_bf16_f32 v{b0+1}, v{b0+2}, v{b0+3}",
                    f"v_cvt_pk_bf16_f32 v{b0+2}, v{b1}, v{b1+1}", f"v_cvt_pk_bf16_f32 v{b0+3}, v{b1+2}, v{b1+3}"]
            f = hf*8 + sp*4 + qb
            so = sT + (t*4 + f // 4)
            ops += [f"buffer_store_dwordx4 v[{b0}:{b0+3}], v{vL16}, s[{rWS}:{rWS+3}], s{so} offen offset:{(f%4)*1024}{OPT['stflags']} ; @T:st"]
    return ops

def qk(b, cinit='negm'):
    out = []
    for qb in range(4):
        for kb in range(2):
            for s in range(4):
                r = vS[b] + (qb*2 + kb)*4; d = f"v[{r}:{r+3}]"
                c = d if s else (f"v[{vNEGM+4*qb}:{vNEGM+4*qb+3}]" if cinit == 'negm' else '0')
                k = aKF + (kb*4 + s)*4; q = vQ + (qb*4 + s)*4
                out.append(f"{MF} {d}, a[{k}:{k+3}], v[{q}:{q+3}], {c}")
    return out
def pv(b, first=False, nsum=None):
    nsum = OPT['msum'] if nsum is None else nsum
    out = []
    for qb in range(4):
        p = vP[b] + qb*4
        for db in range(8):
            o = aO + (db*4 + qb)*4; v = aVF + db*4
            c = '0' if first else f"a[{o}:{o+3}]"
            out.append(f"{MF} a[{o}:{o+3}], a[{v}:{v+3}], v[{p}:{p+3}], {c}")
        if qb < nsum:
            l = vLM + 4*qb
            out.append(f"{MF} v[{l}:{l+3}], v[{vONES}:{vONES+3}], v[{p}:{p+3}], {'0' if first else f'v[{l}:{l+3}]'}")
    return out
def kreads(sl):
    return [f"ds_read_b128 a[{aKF+(kb*4+s)*4}:{aKF+(kb*4+s)*4+3}], v{vKA+s} offset:{sl*16384 + kb*8192}" for kb in range(2) for s in range(4)]
def vreads(sl):
    return [f"ds_read_b64_tr_b16 a[{aVF+db*4+2*jj}:{aVF+db*4+2*jj+1}], v{vVAl[db]} offset:{sl*16384 + jj*8192}" for db in range(8) for jj in range(2)]
def kvdma(sl, kidx, vidx, dok=True, dov=True):
    sc = [f"s_add_u32 m0, s{sKVM0}, {sl*16384}"]; d = []
    if dok:
        ks = sKO + kidx % 4; kp = sKO + (kidx - 1) % 4
        sc += [f"s_add_u32 s{ks}, s{kp}, 8192", f"s_and_b32 s{ks}, s{ks}, 0x7ffff"]
        d += [f"buffer_load_dwordx4 v{vDK}, s[{rK}:{rK+3}], s{ks} offen lds ; @T:kv{sl}",
              f"buffer_load_dwordx4 v{vDK+1}, s[{rK}:{rK+3}], s{ks} offen offset:1024 lds ; @T:kv{sl}"]
    if dov:
        vs = sKO + vidx % 4
        d += [f"buffer_load_dwordx4 v{vDV}, s[{rV}:{rV+3}], s{vs} offen offset:2048 lds ; @T:kv{sl}",
              f"buffer_load_dwordx4 v{vDV+1}, s[{rV}:{rV+3}], s{vs} offen offset:3072 lds ; @T:kv{sl}"]
    return sc, d
def smq(b):
    nsum = OPT['msum']; E = []; Sg = []
    for qb in range(4):
        for i in range(4):
            s0 = vS[b] + qb*8 + 2*i
            E += [f"v_exp_f32 v{s0}, v{s0}", f"v_exp_f32 v{s0+1}, v{s0+1}"]; k = len(E)
            if qb >= nsum:
                Sg += [(k-1, f"v_add_f32 v{vL+qb}, v{vL+qb}, v{s0}"), (k, f"v_add_f32 v{vL+qb}, v{vL+qb}, v{s0+1}")]
            Sg += [(k, f"v_cvt_pk_bf16_f32 v{vP[b]+qb*4+i}, v{s0}, v{s0+1}")]
    return E, Sg

def period(p, carry, dok=True, dov=True, first=False, kread=True, xdma=None):
    sl = p % 4
    ms = qk((p+1) % 2) + pv(p % 2, first)
    N = len(ms); H = 32
    shadow = [None]*N
    shadow[N-1] = f"s_waitcnt vmcnt(@kv{(p+1)%4}) lgkmcnt(0)"
    shadow[H-1] = "s_waitcnt lgkmcnt(0)"
    shadow[0] = "s_barrier"
    mem = []
    vr = vreads(sl)
    for i, x in enumerate(vr): mem.append((1 + (i*24) // len(vr), x))
    if kread:
        kr = kreads(sl)
        for i, x in enumerate(kr): mem.append((33 + (i*24) // len(kr), x))
    dmag = {}
    if dok or dov:
        sc, dd = kvdma((p + 3) % 4, p + 5, p + 3, dok, dov)
        for x, g in zip(sc, [2, 3, 4]): shadow[g] = x
        for x, g in zip(dd, [27, 39, 47, 59]): dmag[g] = x
    if xdma:
        for (g, x) in xdma:
            if x.startswith('buffer'):
                assert g not in dmag and not shadow[g]; dmag[g] = x
            else:
                assert not shadow[g] and g not in dmag, (g, x); shadow[g] = x
    mem.sort(key=lambda t: t[0])
    st = 34
    cE, cS, cdone = carry
    nE, nS = smq((p+1) % 2)
    lines = []
    E = list(cE); Sq = list(cS); edone = cdone
    mi = 0
    extra = max(0, 64 + len(mem) + len(nS) + 2*len(dmag) - 2*N)
    acc = 0.0; old_S = None
    for g in range(N):
        lines.append(ms[g])
        if shadow[g]: lines.append(shadow[g])
        if g == st:
            assert not E, (p, len(E))
            old_S = Sq; E = nE; Sq = nS; edone = 0
        acc += extra / N
        if g in dmag:
            lines.append(dmag[g]); continue
        room = 2
        if acc >= 1.0 - 1e-9: room += 1; acc -= 1.0
        gm = []; gv = []
        e_prev = edone
        left = (st - g) if g < st else (N - g + st)
        navail = (1 if (mi < len(mem) and mem[mi][0] <= g) else 0) + (len(old_S) if old_S else 0) + sum(1 for x in Sq if x[0] <= e_prev)
        if E and (len(E) * 2 >= left or navail < 2):
            gv.append(E.pop(0)); room -= 2; edone += 1
        while room > 0:
            if mi < len(mem) and mem[mi][0] <= g: gm.append(mem[mi][1]); mi += 1; room -= 1
            elif old_S: gv.append(old_S.pop(0)[1]); room -= 1
            elif Sq and Sq[0][0] <= e_prev: gv.append(Sq.pop(0)[1]); room -= 1
            elif mi < len(mem) and mem[mi][0] <= g + 3: gm.append(mem[mi][1]); mi += 1; room -= 1
            else: break
        lines += gm + gv
    assert mi == len(mem) and not old_S, (mi, len(mem), old_S)
    return lines, (E, Sq, edone)

def xreduce(a, reg, op, tmp):
    a(f"v_mov_b32 v{tmp}, v{reg}\ns_nop 1\nv_permlane16_swap_b32 v{reg}, v{tmp}\ns_nop 1\n{op} v{reg}, v{reg}, v{tmp}")
    a(f"v_mov_b32 v{tmp}, v{reg}\ns_nop 1\nv_permlane32_swap_b32 v{reg}, v{tmp}\ns_nop 1\n{op} v{reg}, v{reg}, v{tmp}")

def attn_addr_ops():
    o = []
    t0, t1, t2, t3 = vT, vT+1, vT+2, vT+3
    o += [f"v_bfe_u32 v{t0}, v{vL16}, 4, 4", f"v_lshrrev_b32 v{t1}, 8, v{vL16}"]
    o += [f"v_lshrrev_b32 v{t2}, 3, v{t0}", f"v_lshlrev_b32 v{t2}, 12, v{t2}", f"v_and_b32 v{t3}, 7, v{t0}", f"v_lshlrev_b32 v{t3}, 8, v{t3}",
          f"v_add_u32 v{t2}, v{t2}, v{t3}", f"v_add_u32 v{t2}, {LB}, v{t2}"]
    for s in range(4):
        o += [f"v_add_u32 v{t3}, {4*s}, v{t1}", f"v_xor_b32 v{t3}, v{t3}, v{t0}", f"v_lshl_add_u32 v{vKA+s}, v{t3}, 4, v{t2}"]
    o2 = []
    o2 += [f"v_bfe_u32 v{t0}, v{vL16}, 6, 3", f"v_lshrrev_b32 v{t2}, 9, v{vL16}", f"v_lshlrev_b32 v{t2}, 12, v{t2}",
           f"v_lshl_add_u32 v{t2}, v{t0}, 8, v{t2}", f"v_add_u32 v{t2}, {LB + 2048}, v{t2}", f"v_bfe_u32 v{t3}, v{vL16}, 4, 2", f"v_lshl_add_u32 v{t2}, v{t3}, 3, v{t2}"]
    for db in range(8):
        o2 += [f"v_xor_b32 v{t3}, {db}, v{t0}", f"v_lshl_add_u32 v{vVAl[db]}, v{t3}, 5, v{t2}"]
    return o, o2

def main_kernel():
    a = Prog()
    a(f"main_kernel:")
    a("s_cmp_ge_u32 s2, 256\ns_cbranch_scc1 L_main_end")
    stamp(a, 0)
    a("s_load_dwordx16 s[64:79], s[0:1], 0\ns_load_dwordx4 s[80:83], s[0:1], 64\ns_load_dwordx2 s[84:85], s[0:1], 88")
    a(f"v_lshrrev_b32 v2, 6, v0\nv_and_b32 v0, 63, v0\nv_readfirstlane_b32 s{sW}, v2")
    a(f"v_lshlrev_b32 v{vL16}, 4, v0")
    a(f"s_and_b32 s{sG}, s2, 7\ns_lshr_b32 s{sRB}, s2, 3")
    a(f"s_and_b32 s{sROT}, s{sRB}, 7")
    a(f"s_lshl_b32 s62, s{sRB}, 2\ns_add_u32 s62, s62, s{sW}\ns_lshl_b32 s62, s62, 5")
    a(f"v_and_b32 v3, 31, v0\nv_add_u32 v3, s62, v3\nv_lshrrev_b32 v4, 5, v0\nv_lshlrev_b32 v4, 6, v4")
    a(f"v_lshl_add_u32 v{vPF}, v3, 7, v4")
    if OPT['codepf']:
        a("s_getpc_b64 s[62:63]\nL_pc0:")
        a(f"v_min_u32 v5, L_code_end-L_pc0-4, v{vPF}")
        a(f"global_load_dword v{vGB}, v5, s[62:63] ; @T:pf")
    a("s_waitcnt lgkmcnt(0)")
    srd(a, rX, 64, 2048*1024)
    a(f"v_and_b32 v5, 15, v0\nv_lshlrev_b32 v5, 10, v5\nv_lshrrev_b32 v6, 4, v0\nv_lshl_add_u32 v5, v6, 4, v5")
    a(f"s_lshl_b32 s62, s{sRB}, 16\ns_lshl_b32 s63, s{sW}, 14\ns_add_u32 s62, s62, s63\ns_lshl_b32 s63, s{sROT}, 7")
    for k in range(16):
        a(f"s_add_u32 s61, s63, {k*64}\ns_and_b32 s61, s61, 0x3ff\ns_add_u32 s61, s61, s62")
        a(f"buffer_load_dwordx4 v[{bA+4*k}:{bA+4*k+3}], v5, s[{rX}:{rX+3}], s61 offen ; @T:x")
    a(f"s_add_u32 s62, s{sG}, s{sRB}\ns_and_b32 s62, s62, 1\ns_sub_u32 s{sNU}, 4, s62")
    a(f"s_lshr_b32 s62, s{sG}, 1\ns_mul_i32 s{sU0}, s62, 7\ns_sub_u32 s63, 7, s{sNU}\ns_and_b32 s61, s{sG}, 1\ns_mul_i32 s63, s63, s61\ns_add_u32 s{sU0}, s{sU0}, s63")
    a(f"s_add_u32 s62, s{sU0}, s{sW}\ns_lshl_b32 s{sCOG}, s62, 7\ns_cmp_lt_u32 s{sW}, s{sNU}\ns_cselect_b32 s{sCOG}, s{sCOG}, 0x40000000")
    a(f"s_lshl_b32 s62, s{sG}, 10\ns_lshl_b32 s63, s{sW}, 8\ns_add_u32 s{sCOQ}, s62, s63")
    a(f"s_lshl_b32 s62, s{sU0}, 16\ns_add_u32 s{sCOD}, s62, s63\ns_cmp_eq_u32 s{sNU}, 4\ns_cselect_b32 s{sCOD3}, s{sCOD}, 0x40000000")
    a(f"s_lshl_b32 s62, s{sG}, 19\ns_add_u32 s{sCOO}, s62, s63")
    a(f"s_mul_i32 s{sRING}, s{sW}, 24576\ns_lshl_b32 s{sKVM0}, s{sW}, 12\ns_add_u32 s{sKVM0}, s{sKVM0}, {LB}")
    srd(a, rWG, 76, 512*3584); srd(a, rWU, 78, 512*3584); srd(a, rWQ, 70, 512*8192); srd(a, rWD, 80, 1792*1024); srd(a, rWO, 72, 4096*1024)
    a("v_lshrrev_b32 v6, 3, v0\nv_bfe_u32 v7, v0, 4, 1\nv_lshlrev_b32 v7, 1, v7\nv_bfe_u32 v8, v0, 5, 1\nv_lshl_add_u32 v7, v8, 2, v7\nv_and_b32 v8, 7, v0\nv_xor_b32 v7, v7, v8")
    a("v_lshlrev_b32 v7, 4, v7\nv_xor_b32 v8, 64, v7")
    for dv, rs in ((vDG, 3584), (vDQ, 8192), (vDO, 1024)):
        a(f"v_mul_u32_u24 v9, {rs}, v6")
        for j in range(4):
            a(f"v_add_u32 v{dv+j}, v9, v{7 + (j & 1)}")
            if j: a(f"v_add_u32 v{dv+j}, {j*(8*rs - 1024)}, v{dv+j}")
    X = lambda ks0: (lambda ks, qb: ((ks0 + ks)*4 + qb)*4)
    mk = lambda name, r, dv, rs, co, acc, n, inter, rot, row0: [Panel(name, r, dv, rs, co(j), acc, j == 0, X(2*j), inter, rot, row0(j)) for j in range(n)]
    pG = mk('G', rWG, vDG, 3584, lambda j: f"s{sCOG}", bA, 8, False, True, lambda j: 0)
    pU = mk('U', rWU, vDG, 3584, lambda j: f"s{sCOG}", bB, 8, False, True, lambda j: 0)
    pQa = mk('Qa', rWQ, vDQ, 8192, lambda j: f"s{sCOQ}", bC, 8, False, True, lambda j: 0)
    pQb = mk('Qb', rWQ, vDQ, 8192, lambda j: f"s{sCOQ}", bA, 8, False, True, lambda j: 128)
    pD0 = mk('D0', rWD, vDO, 1024, lambda j: f"s{sCOD3 if j == 3 else sCOD}", bC, 4, True, False, lambda j: j*65536)
    pD1 = mk('D1', rWD, vDO, 1024, lambda j: f"s{sCOD3 if j == 3 else sCOD}", bA, 4, True, False, lambda j: j*65536 + 128)
    pO0 = mk('O0', rWO, vDO, 1024, lambda j: f"s{sCOO}", bC, 8, True, False, lambda j: j*65536)
    pO1 = mk('O1', rWO, vDO, 1024, lambda j: f"s{sCOO}", bA, 8, True, False, lambda j: j*65536 + 128)
    S1 = pG + pU + pQa + pQb + pD0 + pD1
    a(f"s_sub_u32 s{sJ}, s{sROT}, 1")
    for i in range(3):
        s0, s1, d = panel_dma(S1[i], i)
        for x in s0 + ["s_nop 0"] + d[:4] + s1 + ["s_nop 0"] + d[4:]: a(x)
    if OPT['prefetch']:
        a(f"s_lshr_b32 s62, s{sG}, 1\ns_mul_i32 s62, s62, 7\ns_and_b32 s61, s{sG}, 1\ns_mul_i32 s61, s61, 3\ns_add_u32 s62, s62, s61")
        a(f"s_lshl_b32 s63, s62, 7")
        a("v_lshrrev_b32 v9, 2, v3\nv_mul_u32_u24 v9, 3584, v9\nv_and_b32 v5, 3, v3\nv_lshl_add_u32 v9, v5, 7, v9\nv_add_u32 v9, v9, v4")
        a(f"buffer_load_dword v{vGB}, v9, s[{rWU}:{rWU+3}], s63 offen ; @T:pf")
        a("v_lshrrev_b32 v9, 3, v3\nv_lshlrev_b32 v9, 13, v9\nv_and_b32 v5, 7, v3\nv_lshl_add_u32 v9, v5, 7, v9\nv_add_u32 v9, v9, v4")
        a(f"s_lshl_b32 s63, s{sG}, 10")
        a(f"buffer_load_dword v{vGB}, v9, s[{rWQ}:{rWQ+3}], s63 offen ; @T:pf")
        a(f"s_lshl_b32 s61, s62, 16")
    a(f"s_lshl_b32 s62, s{sG}, 19")
    srd(a, rK, 66, 0x80000, add='s62'); srd(a, rV, 68, 0x80800, add='s62', sub=2048)
    srd(a, rWS, 84, 0x2000000)
    a(f"s_lshl_b32 s{sSLAB}, s{sG}, 5\ns_add_u32 s{sSLAB}, s{sSLAB}, s{sRB}\ns_lshl_b32 s{sSLAB}, s{sSLAB}, 2\ns_add_u32 s{sSLAB}, s{sSLAB}, s{sW}\ns_lshl_b32 s{sSLAB}, s{sSLAB}, 14")
    a(f"s_mov_b32 s70, s61")
    for t in range(2):
        for k in range(4): a(f"s_add_u32 s{sT+t*4+k}, s{sSLAB}, {t*0x1000000 + k*4096}")
    a("v_bfe_u32 v5, v0, 2, 2\nv_lshrrev_b32 v6, 4, v0\nv_and_b32 v7, 3, v0\nv_lshlrev_b32 v7, 3, v7")
    a(f"v_add_u32 v7, s{sRING}, v7")
    a("v_lshrrev_b32 v8, 1, v5\nv_and_b32 v9, 1, v6\nv_lshl_add_u32 v9, v9, 1, v8")
    a("v_lshl_add_u32 v26, v6, 3, v5\nv_lshl_add_u32 v26, v26, 7, v7")
    a("v_lshrrev_b32 v27, 1, v6\nv_xor_b32 v27, v27, v6\nv_and_b32 v27, 1, v27\nv_lshl_add_u32 v27, v27, 1, v8")
    a("v_lshl_add_u32 v28, v6, 2, v5\nv_lshl_add_u32 v28, v28, 7, v7")
    a(f"s_lshl_b32 s62, s{sW}, 3\nv_add_u32 v29, s62, v6\nv_and_b32 v5, 15, v0")
    for i in range(2):
        a(f"v_add_u32 v8, {4*i}, v29\nv_and_b32 v8, 15, v8\nv_xor_b32 v8, v8, v5\nv_lshlrev_b32 v8, 4, v8\nv_lshl_add_u32 v{vDK+i}, v29, 8, v8")
        a(f"v_add_u32 v8, {4*i}, v6\nv_lshlrev_b32 v8, 1, v8\nv_xor_b32 v8, v8, v5\nv_lshlrev_b32 v8, 4, v8\nv_lshl_add_u32 v{vDV+i}, v29, 8, v8")
    a("v_mov_b32 v29, v9")
    for nb in range(4):
        a(f"v_xor_b32 v{vWA+nb}, {nb}, v29\nv_lshl_add_u32 v{vWA+nb}, v{vWA+nb}, 5, v26")
        a(f"v_xor_b32 v{vWI+nb}, {nb}, v27\nv_lshl_add_u32 v{vWI+nb}, v{vWI+nb}, 5, v28")
    a(f"v_add_u32 v{vFA}, {LB}, v{vL16}")
    a("s_waitcnt vmcnt(@x)")
    stamp(a, 1)
    if OPT['timing']: a("s_memrealtime s[80:81]\ns_waitcnt lgkmcnt(0)")
    F = bB
    for i in range(64):
        a(f"v_lshlrev_b32 v{F+2*i}, 16, v{bA+i}\nv_and_b32 v{F+2*i+1}, 0xffff0000, v{bA+i}")
    for k in range(4): a(f"v_pk_add_f32 v[{32+2*k}:{33+2*k}], v[{F+4*k}:{F+4*k+1}], v[{F+4*k+2}:{F+4*k+3}]")
    for i in range(8, 64): a(f"v_pk_add_f32 v[{32+2*(i%4)}:{33+2*(i%4)}], v[{32+2*(i%4)}:{33+2*(i%4)}], v[{F+2*i}:{F+2*i+1}]")
    a("v_pk_add_f32 v[32:33], v[32:33], v[34:35]\nv_pk_add_f32 v[36:37], v[36:37], v[38:39]\nv_pk_add_f32 v[32:33], v[32:33], v[36:37]\nv_add_f32 v32, v32, v33")
    xreduce(a, 32, 'v_add_f32', 33)
    a(f"v_mul_f32 v32, {hx(1/512)}, v32\nv_cvt_pk_bf16_f32 v33, v32, v32\nv_lshlrev_b32 v34, 16, v33\nv_sub_f32 v40, v32, v34")
    for i in range(64): a(f"v_pk_add_f32 v[{F+2*i}:{F+2*i+1}], v[{F+2*i}:{F+2*i+1}], v[34:35] op_sel_hi:[1,0] neg_lo:[0,1] neg_hi:[0,1]")
    for k in range(4): a(f"v_pk_mul_f32 v[{42+2*k}:{43+2*k}], v[{F+2*k}:{F+2*k+1}], v[{F+2*k}:{F+2*k+1}]")
    for i in range(4, 64): a(f"v_pk_fma_f32 v[{42+2*(i%4)}:{43+2*(i%4)}], v[{F+2*i}:{F+2*i+1}], v[{F+2*i}:{F+2*i+1}], v[{42+2*(i%4)}:{43+2*(i%4)}]")
    a("v_pk_add_f32 v[42:43], v[42:43], v[44:45]\nv_pk_add_f32 v[46:47], v[46:47], v[48:49]\nv_pk_add_f32 v[42:43], v[42:43], v[46:47]\nv_add_f32 v42, v42, v43")
    xreduce(a, 42, 'v_add_f32', 43)
    a(f"v_mul_f32 v42, {hx(1/512)}, v42\nv_fma_f32 v42, -v40, v40, v42\nv_max_f32 v42, 0, v42")
    rb16 = lambda r: f"v_cvt_pk_bf16_f32 v{r}, v{r}, v{r}\nv_lshlrev_b32 v{r}, 16, v{r}"
    a(rb16(42)); a(f"v_add_f32 v42, {hx(1e-5)}, v42"); a(rb16(42)); a("v_sqrt_f32 v42, v42\ns_nop 0"); a(rb16(42)); a("v_rcp_f32 v42, v42\ns_nop 0")
    a(f"s_lshl_b32 s62, s{sW}, 14\nv_add_u32 v44, s62, v{vFA}")
    for k in range(16):
        for i in range(4*k, 4*k+4): a(f"v_pk_mul_f32 v[{F+2*i}:{F+2*i+1}], v[{F+2*i}:{F+2*i+1}], v[42:43] op_sel_hi:[1,0]")
        for i in range(4*k, 4*k+4): a(f"v_cvt_pk_bf16_f32 v{bA+i}, v{F+2*i}, v{F+2*i+1}")
        a(f"ds_write_b128 v44, v[{bA+4*k}:{bA+4*k+3}] offset:{k*1024}")
    a(f"s_lshl_b32 s71, s{sW}, 13")
    a("s_waitcnt vmcnt(@w0) lgkmcnt(0)\ns_barrier")
    for nb in range(3):
        for x in wreads(S1[0], 0, nb): a(x)
    for ks in range(16):
        for qb in range(4):
            r = (ks*4 + qb)*4
            a(f"ds_read_b128 a[{r}:{r+3}], v{vFA} offset:{(qb*16 + ks)*1024} ; @T:xr{ks}")
        if ks % 2 == 1 and ks > 1: a(f"s_waitcnt lgkmcnt(@xr{ks-2})")
    a("s_waitcnt lgkmcnt(0)")
    stamp(a, 2)
    fill = {}; xm = {}; xs = {}
    o1, o2 = attn_addr_ops()
    pfops = []
    if OPT['prefetch']:
        pfops = [f"buffer_load_dword v{vT}, v{vPF}, s[{rWD}:{rWD+3}], s70 offen ; @T:pf",
                 f"buffer_load_dword v{vT+1}, v{vPF}, s[{rK}:{rK+3}], 0 offen ; @T:pf",
                 f"buffer_load_dword v{vT+2}, v{vPF}, s[{rV}:{rV+3}], 0 offen offset:2048 ; @T:pf",
                 f"s_lshl_b32 s70, s{sG}, 19",
                 f"buffer_load_dword v{vT+3}, v{vPF}, s[{rWO}:{rWO+3}], s70 offen ; @T:pf"]
        xm[(1, 3)] = [pfops[0]]; xm[(2, 3)] = [pfops[1]]; xm[(3, 3)] = [pfops[2]]; xs[(4, 0)] = [pfops[3]]; xm[(4, 3)] = [pfops[4]]
    fill[7] = [f"v_add_u32 v{vPF}, s71, v{vFA}", f"v_mov_b32 v{vGB}, {hx(-2.0 * math.log2(math.e) * math.sqrt(2.0 / math.pi) * 0.044715)}"]
    xs[(0, 20)] = ["s_barrier"]
    fill[8] = gelu_stage1(bA)
    fill[16] = geglu_stage2(bA, bB)
    fill[24] = qpack(bC, 0) + o1
    xs[(26, 3)] = ["s_waitcnt lgkmcnt(@hw)", "s_barrier"]
    for j in range(4):
        for k in range(8):
            ks = 2*j + k // 4; qb = k % 4; r = (ks*4 + qb)*4
            xm.setdefault((28 + j, [2, 3, 4, 5, 6, 12, 14, 20][k]), []).append(f"ds_read_b128 a[{r}:{r+3}], v{vFA} offset:{(ks*4 + qb)*1024} ; @T:hr")
    fill[32] = qpack(bA, 1) + o2
    fill[36] = slab_store(bC, 1, 0)
    xs[(32, 3)] = ["s_waitcnt lgkmcnt(@hr)", "s_barrier"]
    kvs = [kvdma(2, 0, 0, True, False), kvdma(3, 1, 0, True, False), kvdma(0, 2, 0), kvdma(1, 3, 1)]
    xs[(33, 0)] = [f"s_lshl_b32 s{sKO+3}, s{sRB}, 14"]; xs[(33, 1)] = [f"s_sub_u32 s{sKO+3}, s{sKO+3}, 8192"]
    for i, (sc, dd) in enumerate(kvs):
        pos = 34 + i
        xs.setdefault((pos, 28), []).extend(sc)
        for x, g in zip(dd, [29, 30, 31, 31]): xm.setdefault((pos, g), []).append(x)
    left = emit_stream(a, S1, 0, fill, xm, xs, must_empty=(24, 32, 36))
    for x in left: a(x)
    stamp(a, 3)
    a("s_waitcnt vmcnt(@kv2)\ns_barrier")
    for x in kreads(2): a(x)
    a("s_nop 7")
    st = slab_store(bA, 1, 1)
    for x in st: a(x)
    a("s_waitcnt lgkmcnt(0)")
    for x in qk(0, '0'): a(x)
    a("s_waitcnt vmcnt(@kv3)\ns_barrier")
    for x in kreads(3): a(x)
    sc, dd = kvdma(2, 4, 2)
    for x in sc + dd: a(x)
    for i in range(4): a(f"v_mov_b32 v{vONES+i}, 0x3f803f80\nv_mov_b32 v{vL+i}, 0")
    for qb in range(4):
        b = vS[0] + qb*8; T = vT
        a(f"v_max3_f32 v{T}, v{b}, v{b+1}, v{b+2}\nv_max3_f32 v{T}, v{T}, v{b+3}, v{b+4}\nv_max3_f32 v{T}, v{T}, v{b+5}, v{b+6}\nv_max_f32 v{T}, v{T}, v{b+7}")
        xreduce(a, T, 'v_max_f32', T+1)
        for i in range(4): a(f"v_sub_f32 v{vNEGM+qb*4+i}, 0, v{T}")
        for i in range(8): a(f"v_sub_f32 v{b+i}, v{b+i}, v{T}")
    c = ([], [], 32)
    for p in (1, 2, 3, 4, 5): _, c = period(p, c)
    E0, S0 = smq(0)
    rem = set(c[0]) | set(x[1] for x in c[1])
    for x in E0:
        if x not in rem: a(x)
    a("s_nop 0")
    for x in S0:
        if x[1] not in rem: a(x[1])
    cp = lambda c: (list(c[0]), list(c[1]), c[2])
    a("s_waitcnt vmcnt(@kv0) lgkmcnt(0)")
    body, carry = period(0, cp(c), first=True)
    for x in body: a(x)
    a(f"s_mov_b32 s{sCNT}, 14")
    a(".p2align 6\nL_attn_loop:")
    c0 = cp(carry); loop = []
    for p in range(1, 5):
        body, carry = period(p, carry); loop += body
    assert cp(carry) == c0
    a.loop = (len(a.L), len(a.L) + len(loop))
    for x in loop: a(x)
    a(f"s_sub_u32 s{sCNT}, s{sCNT}, 1\ns_cmp_lg_u32 s{sCNT}, 0\ns_cbranch_scc1 L_attn_loop")
    S2 = pO0 + pO1; base2 = len(S1)
    for p in range(57, 63):
        xd = None
        if p >= 60:
            s0, s1, d = panel_dma(S2[p-60], base2 + p - 60)
            xd = [(5, s0[0]), (6, s0[1])] + list(zip([8, 11, 14, 17], d[:4])) + [(18, s1[0]), (19, s1[1])] + list(zip([21, 24], d[4:6]))
            xd += list(zip([d2 for d2 in (43, 51)], d[6:]))
            if p == 60:
                pass
        body, carry = period(p, carry, dok=(p + 5 <= 63), dov=(p + 3 <= 63) and p != 60, kread=(p + 2 <= 63), xdma=xd)
        if p == 59:
            pass
        for x in body: a(x)
        if p == 60:
            sc, dd = kvdma(3, 0, 63, False, True)
            for x in sc + ["s_nop 0"] + dd: a(x)
    a("s_barrier")
    for x in vreads(3): a(x)
    for x in carry[0]: a(x)
    a("s_nop 0")
    for x in carry[1]: a(x[1])
    a("s_waitcnt lgkmcnt(0)\ns_barrier")
    for x in pv(1): a(x)
    stamp(a, 4)
    for qb in range(4):
        if qb >= OPT['msum']: xreduce(a, vL + qb, 'v_add_f32', vT)
    a("s_nop 7")
    for qb in range(OPT['msum']): a(f"v_mov_b32 v{vL+qb}, v{vLM+4*qb}")
    for qb in range(4): a(f"v_rcp_f32 v{vL+qb}, v{vL+qb}")
    a(f"s_lshl_b32 s70, s{sW}, 14\nv_add_u32 v{vPF}, s70, v{vFA}")
    for sp in range(4):
        for qb in range(4):
            t = bC + ((sp*4 + qb) % 4)*16
            for e in range(2):
                o = aO + ((2*sp + e)*4 + qb)*4
                for i in range(4): a(f"v_accvgpr_read_b32 v{t+4*e+i}, a{o+i}")
            lq = vL + qb
            for i in range(4):
                sel = "op_sel_hi:[1,0]" if lq % 2 == 0 else "op_sel:[0,1]"
                a(f"v_pk_mul_f32 v[{t+2*i}:{t+2*i+1}], v[{t+2*i}:{t+2*i+1}], v[{lq - lq%2}:{lq - lq%2 + 1}] {sel}")
            for i in range(4): a(f"v_cvt_pk_bf16_f32 v{t+8+i}, v{t+2*i}, v{t+2*i+1}")
            a(f"ds_write_b128 v{vPF}, v[{t+8}:{t+11}] offset:{(sp*4 + qb)*1024}")
    a(f"s_waitcnt vmcnt(@w{base2}) lgkmcnt(0)\ns_barrier")
    for nb in range(3):
        for x in wreads(S2[0], base2, nb): a(x)
    for ks in range(16):
        for qb in range(4):
            r = (ks*4 + qb)*4
            a(f"ds_read_b128 a[{r}:{r+3}], v{vFA} offset:{(ks*4 + qb)*1024} ; @T:or{ks}")
        if ks % 2 == 1 and ks > 1: a(f"s_waitcnt lgkmcnt(@or{ks-2})")
    a("s_waitcnt lgkmcnt(0)")
    stamp(a, 5)
    left = emit_stream(a, S2, base2, {8: slab_store(bC, 0, 0)}, {}, {})
    for x in left: a(x)
    a("s_nop 7")
    for x in slab_store(bA, 0, 1): a(x)
    stamp(a, 6)
    if OPT['timing']:
        a("s_waitcnt vmcnt(0)")
        stamp(a, 7)
        a("s_memrealtime s[64:65]\ns_waitcnt lgkmcnt(0)")
        a(f"s_lshl_b32 s62, s2, 2\ns_add_u32 s62, s62, s{sW}\ns_lshl_b32 s62, s62, 6\ns_add_u32 s62, s62, 0x3000000")
        a(f"s_mov_b32 s{rWS+2}, 0x4000000")
        for i in range(8): a(f"v_mov_b32 v3, s{sTS+2*i}\nv_mov_b32 v4, {4*i}\nbuffer_store_dword v3, v4, s[{rWS}:{rWS+3}], s62 offen")
        a(f"v_mov_b32 v3, s80\nv_mov_b32 v4, 36\nbuffer_store_dword v3, v4, s[{rWS}:{rWS+3}], s62 offen")
        a(f"v_mov_b32 v3, s64\nv_mov_b32 v4, 32\nbuffer_store_dword v3, v4, s[{rWS}:{rWS+3}], s62 offen")
    a("L_main_end:\ns_endpgm")
    return a

def final_kernel():
    a = Prog()
    a("final_kernel:")
    a("s_cmp_ge_u32 s2, 512\ns_cbranch_scc1 L_fin_end")
    a("s_load_dwordx2 s[4:5], s[0:1], 0\ns_load_dwordx2 s[6:7], s[0:1], 72\ns_load_dwordx2 s[8:9], s[0:1], 88")
    a("v_lshrrev_b32 v2, 6, v0\nv_and_b32 v0, 63, v0\nv_readfirstlane_b32 s3, v2\nv_lshlrev_b32 v1, 4, v0")
    a("s_lshl_b32 s10, s2, 2\ns_nop 2\ns_add_u32 s10, s10, s3")
    a("s_waitcnt lgkmcnt(0)")
    srd(a, 12, 4, 2048*1024); srd(a, 16, 6, 2048*1024); srd(a, 20, 8, 0x2000000)
    a("s_lshl_b32 s11, s10, 10")
    for t in range(2):
        for g in range(8):
            a(f"s_add_u32 s24, s11, {t*0x1000000 + g*0x200000}")
            r = 8 + (t*8 + g)*4
            a(f"buffer_load_dwordx4 v[{r}:{r+3}], v1, s[20:23], s24 offen ; @T:l{t}{g}")
    a("s_lshr_b32 s25, s10, 6\ns_lshl_b32 s25, s25, 16\ns_and_b32 s26, s10, 3\ns_lshl_b32 s26, s26, 14\ns_add_u32 s25, s25, s26")
    a("s_bfe_u32 s26, s10, 0x40002\ns_lshl_b32 s26, s26, 6\ns_add_u32 s25, s25, s26")
    a("v_and_b32 v2, 15, v0\nv_lshlrev_b32 v2, 10, v2\nv_lshrrev_b32 v3, 4, v0\nv_lshl_add_u32 v2, v3, 3, v2")
    a("buffer_load_dwordx2 v[4:5], v2, s[12:15], s25 offen ; @T:x\nbuffer_load_dwordx2 v[6:7], v2, s[12:15], s25 offen offset:32 ; @T:x")
    acc = [72, 80]
    for t in range(2):
        for g in range(8):
            r = 8 + (t*8 + g)*4
            a(f"s_waitcnt vmcnt(@l{t}{g})")
            for i in range(4):
                if g == 0:
                    a(f"v_lshlrev_b32 v{acc[t]+2*i}, 16, v{r+i}\nv_and_b32 v{acc[t]+2*i+1}, 0xffff0000, v{r+i}")
                else:
                    a(f"v_lshlrev_b32 v88, 16, v{r+i}\nv_and_b32 v89, 0xffff0000, v{r+i}\nv_pk_add_f32 v[{acc[t]+2*i}:{acc[t]+2*i+1}], v[{acc[t]+2*i}:{acc[t]+2*i+1}], v[88:89]")
    for i in range(8): a(f"v_mul_f32 v{8+i}, {hx(-math.log2(math.e))}, v{80+i}")
    for i in range(8): a(f"v_exp_f32 v{8+i}, v{8+i}")
    for i in range(8): a(f"v_add_f32 v{8+i}, 1.0, v{8+i}")
    for i in range(8): a(f"v_rcp_f32 v{8+i}, v{8+i}")
    for i in range(8): a(f"v_mul_f32 v{8+i}, v{8+i}, v{80+i}")
    a("s_waitcnt vmcnt(@x)")
    for i in range(4): a(f"v_lshlrev_b32 v{16+2*i}, 16, v{4+i}\nv_and_b32 v{17+2*i}, 0xffff0000, v{4+i}")
    for i in range(8): a(f"v_fmac_f32 v{16+i}, v{8+i}, v{72+i}")
    for i in range(4): a(f"v_cvt_pk_bf16_f32 v{4+i}, v{16+2*i}, v{17+2*i}")
    a("buffer_store_dwordx2 v[4:5], v2, s[16:19], s25 offen\nbuffer_store_dwordx2 v[6:7], v2, s[16:19], s25 offen offset:32")
    a("L_fin_end:\ns_endpgm")
    return a

def kd(name, vgpr, acc):
    return f""".section .rodata,"a"
.p2align 6
.amdhsa_kernel {name}
  .amdhsa_next_free_vgpr {vgpr}
  .amdhsa_next_free_sgpr 102
  .amdhsa_accum_offset {acc}
  .amdhsa_group_segment_fixed_size 0
  .amdhsa_kernarg_size 96
  .amdhsa_user_sgpr_count 2
  .amdhsa_user_sgpr_kernarg_segment_ptr 1
  .amdhsa_system_sgpr_workgroup_id_x 1
.end_amdhsa_kernel
"""

def build(opts=None):
    if opts: OPT.update(opts)
    m = main_kernel(); f = final_kernel()
    lo, hi = m.loop
    L1 = resolve_waits(m.L)
    dbl = m.L[:hi] + m.L[lo:hi] + m.L[hi:]
    L2 = resolve_waits(dbl)
    def loopseg(L, k):
        idx = [i for i, x in enumerate(L) if x.startswith('L_attn_loop')][0] + 1
        n = len(L2) - len(L1)
        return L[idx + k*n: idx + (k+1)*n]
    assert loopseg(L2, 0) == loopseg(L2, 1), "loop waits differ between trips"
    assert L2[-200:] == L1[-200:]
    probs = check_stream(L2, 'main')
    F1 = resolve_waits(f.L); probs += check_stream(F1, 'final')
    hdr = open('cdna_kernels/' + KNAME + '.s.ref').read().split('; Override')[0] if False else "; fused LN + GQA attention + GEGLU FFN (generated)\n"
    txt = hdr + "; @launch kernel=main_kernel grid=(256,1,1) block=(256,1,1) lds=163840\n; @launch kernel=final_kernel grid=(512,1,1) block=(256,1,1) lds=0\n"
    txt += '.amdgcn_target "amdgcn-amd-amdhsa--gfx950"\n.text\n'
    strip = lambda L: [re.sub(r'\s*;.*', '', x) for x in L]
    txt += ".globl main_kernel\n.p2align 8\n.type main_kernel,@function\n" + "\n".join(strip(L1)) + "\n"
    txt += ".globl final_kernel\n.p2align 8\n.type final_kernel,@function\n" + "\n".join(strip(F1)) + "\nL_code_end:\n"
    txt += kd('main_kernel', 512, 256) + kd('final_kernel', 96, 96)
    return txt, probs

if __name__ == '__main__':
    opts = eval(sys.argv[2]) if len(sys.argv) > 2 else None
    txt, probs = build(opts)
    open(sys.argv[1], 'w').write(txt)
    print(len(txt), 'bytes;', len(probs), 'hazard problems')
    for p in probs[:30]: print(p)
```

```python
import sys, re, math, struct
from asmlib import Ins, check_stream, cost

KNAME = 'recurrent_scan__gqa_block_cached__geglu_ffn__prompt'
MF = 'v_mfma_f32_16x16x32_bf16'
def f2u(x): return struct.unpack('<I', struct.pack('<f', x))[0]
def hx(x): return '0x%08x' % f2u(x)

OPT = dict(single=1, spin=200000, msum=2, stflags=' sc1', prefetch=1, codepf=1, timing=0, stamps=[0,1,2,3,4,5,6,7], fthresh=24, filler_cap=48)

sW, sG, sRB, sNU, sU0 = 3, 4, 5, 6, 7
sRBX = sRB
rK, rV, rWG, rWU, rWQ, rWD, rWO, rX, rWS = 8, 12, 16, 20, 24, 28, 32, 36, 40
rOUT, rDBG = 64, 68
sLATE, sSHOFF, sXOFF, sDONE, sTODO, sBITS = 61, 62, 63, 84, 85, 1
sKO = 44
sKVM0, sCNT, sRING, sJ, sOFF0, sOFF1, sROT = 48, 49, 50, 51, 52, 53, 54
sCOG, sCOQ, sCOD, sCOD3, sCOO, sSLAB = 55, 56, 57, 58, 59, 60
sT = 72
sTS = 86
vFA, vL16 = 0, 1
vWA, vWI = 2, 6
vDG, vDQ, vDO = 10, 14, 18
vDK, vDV = 22, 24
vT = 26
vGB, vPF = 30, 31
vW = 32
bA, bB, bC = 64, 128, 192
vKA = 10
vVAl = [2, 3, 4, 5, 14, 15, 16, 17]
vQ = bB; vS = [bC, bC + 32]; vP = [32, 48]
vNEGM, vONES, vLM, vL = 96, 112, 116, 124
aO, aKF, aVF = 0, 192, 224
RING = 0
LB = 98304

class Prog:
    def __init__(self): self.L = []
    def __call__(self, s):
        for x in s.split('\n'):
            x = x.strip()
            if x: self.L.append(x)

def srd(a, r, lo, size, add=None, sub=None):
    a(f"s_mov_b32 s{r}, s{lo}\ns_mov_b32 s{r+1}, s{lo+1}")
    if add: a(f"s_add_u32 s{r}, s{r}, {add}\ns_addc_u32 s{r+1}, s{r+1}, 0")
    if sub: a(f"s_sub_u32 s{r}, s{r}, {sub}\ns_subb_u32 s{r+1}, s{r+1}, 0")
    a(f"s_mov_b32 s{r+2}, {size}\ns_mov_b32 s{r+3}, 0x20000")

def stampl(name):
    if OPT['timing'] and name in OPT['stamps']:
        i = OPT['stamps'].index(name)
        return [f"s_memtime s[{sTS+2*i}:{sTS+2*i+1}]", "s_waitcnt lgkmcnt(0)"]
    return []
def stamp(a, name):
    for x in stampl(name): a(x)

def resolve_waits(lines):
    parsed = []
    for l in lines:
        t = l.split(';')[0].strip()
        parsed.append(None if (not t or t.endswith(':') or t.startswith('.')) else Ins(t))
    out = list(lines)
    vmq = []; dsq = []
    for i, l in enumerate(lines):
        I = parsed[i]
        if I is None: continue
        tag = None
        m = re.search(r'@T:(\w+)', l)
        if m: tag = m.group(1)
        if I.op == 's_waitcnt':
            parts = []
            m = re.search(r'vmcnt\(([^)]*)\)', l)
            if m:
                x = m.group(1)
                if x.startswith('@'):
                    idx = [k for k, e in enumerate(vmq) if e[0] in x[1:].split('|')]
                    n = len(vmq) - 1 - idx[-1] if idx else None
                else: n = int(x)
                if n is not None:
                    n = min(n, 63); parts.append(f"vmcnt({n})")
                    while len(vmq) > n: vmq.pop(0)
            m = re.search(r'lgkmcnt\(([^)]*)\)', l)
            if m:
                ns = []
                for x in m.group(1).split('+'):
                    if x == '@auto':
                        need = -1
                        for j in range(i + 1, len(lines)):
                            J = parsed[j]
                            if J is None: continue
                            if J.op == 's_waitcnt' and ('@auto' in lines[j] or 'lgkmcnt(0)' in lines[j]): break
                            tch = set(J.r) | set(J.w)
                            for k, e in enumerate(dsq):
                                if tch & e[1]: need = max(need, k)
                        if need >= 0: ns.append(len(dsq) - 1 - need)
                    elif x.startswith('@'):
                        idx = [k for k, e in enumerate(dsq) if e[0] == x[1:]]
                        if idx: ns.append(len(dsq) - 1 - idx[-1])
                    else: ns.append(int(x))
                if ns:
                    n = min(min(ns), 15); parts.append(f"lgkmcnt({n})")
                    while len(dsq) > n: dsq.pop(0)
            out[i] = ("s_waitcnt " + " ".join(parts)) if parts else None
        elif I.kind in ('dsr', 'dsw'): dsq.append((tag, set(I.w)))
        elif I.kind == 'smem':
            dsq.append((tag, set(I.w))); dsq.append((tag, set(I.w)))
        elif I.kind in ('vld', 'vst', 'dma') and '@X' not in l: vmq.append((tag, set(I.w)))
    return [x for x in out if x is not None]

class Panel:
    def __init__(self, name, srd, dv, rs, co, acc, first, bfrag, inter, rot, row0=0):
        self.name = name; self.srd = srd; self.dv = dv; self.rs = rs; self.co = co; self.acc = acc
        self.first = first; self.bfrag = bfrag; self.inter = inter; self.rot = rot; self.row0 = row0

def panel_dma(P, idx):
    sl = idx % 3
    s0 = []
    if P.rot:
        s0 += [f"s_add_u32 s{sJ}, s{sJ}, 1", f"s_and_b32 s{sJ}, s{sJ}, 7", f"s_mul_i32 s{sOFF0}, s{sJ}, {64*P.rs}", f"s_add_u32 s{sOFF0}, s{sOFF0}, {P.co}"]
        if P.row0: s0.append(f"s_add_u32 s{sOFF0}, s{sOFF0}, {P.row0}")
    else:
        s0 += [f"s_add_u32 s{sOFF0}, {P.co}, {P.row0}"]
    s0 += [f"s_add_u32 m0, s{sRING}, {sl*8192}"]
    s1 = [f"s_add_u32 s{sOFF1}, s{sOFF0}, {32*P.rs}", f"s_add_u32 m0, s{sRING}, {sl*8192 + 4096}"]
    d = []
    for i in range(8):
        so = sOFF0 if i < 4 else sOFF1
        off = f" offset:{1024*(i%4)}" if i % 4 else ""
        d.append(f"buffer_load_dwordx4 v{P.dv + i%4}, s[{P.srd}:{P.srd+3}], s{so} offen{off} lds ; @T:w{idx}")
    return s0, s1, d

def wreads(P, idx, nb):
    sl = idx % 3; out = []
    for ks in range(2):
        for jj in range(2):
            r = vW + nb*8 + ks*4 + jj*2
            if P.inter: ad = vWI + nb; off = sl*8192 + ks*4096 + jj*2048
            else: ad = vWA + (nb ^ (2*jj)); off = sl*8192 + ks*4096 + jj*512
            out.append(f"ds_read_b64_tr_b16 v[{r}:{r+1}], v{ad} offset:{off} ; @T:wr{idx}_{nb}")
    return out

def panel_mfmas(P):
    out = []
    for nb in range(4):
        for qb in range(4):
            for ks in range(2):
                d = P.acc + (nb*4 + qb)*4; w = vW + nb*8 + ks*4; b = P.bfrag(ks, qb)
                c = '0' if (P.first and ks == 0) else f"v[{d}:{d+3}]"
                out.append(f"{MF} v[{d}:{d+3}], v[{w}:{w+3}], a[{b}:{b+3}], {c}")
    return out

def emit_stream(a, panels, base, fillers, extra_mem, extra_shadow, nxt=None, must_empty=()):
    allp = panels + (nxt or [])
    q = []; pend = []
    for pos, P in enumerate(panels):
        idx = base + pos
        if pos in must_empty: assert not q, (pos, len(q))
        q += fillers.get(pos, [])
        stamp(a, f'p{idx}')
        ms = panel_mfmas(P)
        shadow = [[] for _ in range(32)]; mem = [[] for _ in range(32)]; dma = {}
        r3 = wreads(P, idx, 3)
        mem[0] += r3[:2]; mem[1] += r3[2:]
        hasn = pos + 1 < len(allp)
        if hasn:
            N = allp[pos+1]
            shadow[7].append(f"s_waitcnt vmcnt(@w{idx+1}) lgkmcnt(@auto+@wr{idx}_3)")
            for nb in range(3):
                r = wreads(N, idx+1, nb); g = 8*nb + 8
                mem[g] += r[:2]; mem[g+2] += r[2:]
        else:
            shadow[7].append(f"s_waitcnt lgkmcnt(@auto)")
        shadow[15].append("s_waitcnt lgkmcnt(@auto)"); shadow[23].append("s_waitcnt lgkmcnt(@auto)"); shadow[31].append("s_waitcnt lgkmcnt(@auto)")
        if pos + 3 < len(allp):
            s0, s1, d = panel_dma(allp[pos+3], idx+3)
            for k, x in enumerate(s0): shadow[8 - len(s0) + k - (1 if 8 - len(s0) + k <= 7 else 0)].append(x)
            gaps = [9, 11, 13, 17, 19, 21, 25, 27]
            shadow[16].append(s1[0]); shadow[18].append(s1[1])
            for x, g in zip(d, gaps): dma[g] = x
        for (p2, g), x in extra_mem.items():
            if p2 == pos:
                assert g not in dma, (pos, g)
                mem[g] += x
        for (p2, g), x in extra_shadow.items():
            if p2 == pos: shadow[g] += x
        budget = OPT['filler_cap']
        free = [g for g in range(32) if g not in dma]
        base_room = sum(max(0, 2 - len(mem[g])) for g in free)
        want = min(budget, sum(cost(x) for x in q))
        extra = max(0, want - base_room); acc = 0.0
        for g in range(32):
            a(ms[g])
            for x in shadow[g]: a(x)
            if g in dma:
                a(dma[g]); continue
            for x in mem[g]: a(x)
            room = 2 - len(mem[g])
            acc += extra / len(free)
            while q:
                x = q[0]
                if x.startswith('ds_') or x.startswith('buffer'):
                    pend.append(q.pop(0)); continue
                c = cost(x)
                if pend and (set(Ins(x.split(';')[0]).w) & set(sum((Ins(y.split(';')[0]).r for y in pend), []))): break
                if c <= room: room -= c
                elif (c - room) <= acc + (0.75 if room > 0 and extra > 0 else 0): acc -= (c - max(room, 0)); room = 0
                else: break
                a(q.pop(0))
            if pend and g + 1 < 32 and (g + 1) not in dma and len(mem[g+1]) < (2 if pend[0].startswith('ds_') else 1):
                mem[g+1].append(pend.pop(0))
        q = pend + q; pend = []
    return q

def gelu_stage1(G):
    A = -2.0 * math.log2(math.e) * math.sqrt(2.0 / math.pi)
    ops = []
    for blk in range(16):
        x = [G + blk*4 + i for i in range(4)]; t = [vT + i for i in range(4)]
        ops += [f"v_mul_f32 v{t[i]}, v{x[i]}, v{x[i]}" for i in range(4)]
        ops += [f"v_fmaak_f32 v{t[i]}, v{vGB}, v{t[i]}, {hx(A)}" for i in range(4)]
        ops += [f"v_mul_f32 v{t[i]}, v{t[i]}, v{x[i]}" for i in range(4)]
        ops += [f"v_exp_f32 v{t[i]}, v{t[i]}" for i in range(4)]
        ops += [f"v_add_f32 v{t[i]}, 1.0, v{t[i]}" for i in range(4)]
        ops += [f"v_rcp_f32 v{t[i]}, v{t[i]}" for i in range(4)]
        ops += [f"v_mul_f32 v{x[i]}, v{x[i]}, v{t[i]}" for i in range(4)]
    return ops

def geglu_stage2(G, U):
    ops = []
    for sp in range(2):
        for qb in range(4):
            b0 = ((2*sp)*4 + qb)*4; b1 = ((2*sp+1)*4 + qb)*4
            for b in (b0, b1):
                ops += [f"v_mul_f32 v{G+b+i}, v{G+b+i}, v{U+b+i}" for i in range(4)]
            d = U + b0
            ops += [f"v_cvt_pk_bf16_f32 v{d}, v{G+b0}, v{G+b0+1}", f"v_cvt_pk_bf16_f32 v{d+1}, v{G+b0+2}, v{G+b0+3}",
                    f"v_cvt_pk_bf16_f32 v{d+2}, v{G+b1}, v{G+b1+1}", f"v_cvt_pk_bf16_f32 v{d+3}, v{G+b1+2}, v{G+b1+3}"]
            ops += [f"ds_write_b128 v{vPF}, v[{d}:{d+3}] offset:{(sp*4 + qb)*1024} ; @T:hw"]
    return ops

def qpack(acc, half):
    c = math.log2(math.e) / math.sqrt(128.0)
    ops = []; late = []
    for sp in range(2):
        for qb in range(4):
            b0 = acc + ((2*sp)*4 + qb)*4; b1 = acc + ((2*sp+1)*4 + qb)*4
            for b in (b0, b1):
                ops += [f"v_mul_f32 v{b+i}, {hx(c)}, v{b+i}" for i in range(4)]
            ops += late; late = []
            d = vQ + (qb*4 + 2*half + sp)*4
            ops += [f"v_cvt_pk_bf16_f32 v{d}, v{b0}, v{b0+1}", f"v_cvt_pk_bf16_f32 v{d+1}, v{b0+2}, v{b0+3}",
                    f"v_cvt_pk_bf16_f32 v{d+2}, v{b1}, v{b1+1}", f"v_cvt_pk_bf16_f32 v{d+3}, v{b1+2}, v{b1+3}"]
            late = [f"v_permlane32_swap_b32 v{d}, v{d+2}", f"v_permlane32_swap_b32 v{d+1}, v{d+3}", "s_nop 0",
                    f"v_permlane16_swap_b32 v{d}, v{d+2}", f"v_permlane16_swap_b32 v{d+1}, v{d+3}"]
    return ops + ["s_nop 1"] + late

def slab_store(acc, t, hf):
    ops = []
    for sp in range(2):
        for qb in range(4):
            b0 = acc + ((2*sp)*4 + qb)*4; b1 = acc + ((2*sp+1)*4 + qb)*4
            ops += [f"v_cvt_pk_bf16_f32 v{b0}, v{b0}, v{b0+1}", f"v_cvt_pk_bf16_f32 v{b0+1}, v{b0+2}, v{b0+3}",
                    f"v_cvt_pk_bf16_f32 v{b0+2}, v{b1}, v{b1+1}", f"v_cvt_pk_bf16_f32 v{b0+3}, v{b1+2}, v{b1+3}"]
            f = hf*8 + sp*4 + qb
            so = sT + (t*4 + f // 4)
            ops += [f"buffer_store_dwordx4 v[{b0}:{b0+3}], v{vL16}, s[{rWS}:{rWS+3}], s{so} offen offset:{(f%4)*1024}{OPT['stflags']} ; @T:st"]
    return ops

def qk(b, cinit='negm'):
    out = []
    for qb in range(4):
        for kb in range(2):
            for s in range(4):
                r = vS[b] + (qb*2 + kb)*4; d = f"v[{r}:{r+3}]"
                c = d if s else (f"v[{vNEGM+4*qb}:{vNEGM+4*qb+3}]" if cinit == 'negm' else '0')
                k = aKF + (kb*4 + s)*4; q = vQ + (qb*4 + s)*4
                out.append(f"{MF} {d}, a[{k}:{k+3}], v[{q}:{q+3}], {c}")
    return out
def pv(b, first=False, nsum=None):
    nsum = OPT['msum'] if nsum is None else nsum
    out = []
    for qb in range(4):
        p = vP[b] + qb*4
        for db in range(8):
            o = aO + (db*4 + qb)*4; v = aVF + db*4
            c = '0' if first else f"a[{o}:{o+3}]"
            out.append(f"{MF} a[{o}:{o+3}], a[{v}:{v+3}], v[{p}:{p+3}], {c}")
        if qb < nsum:
            l = vLM + 4*qb
            out.append(f"{MF} v[{l}:{l+3}], v[{vONES}:{vONES+3}], v[{p}:{p+3}], {'0' if first else f'v[{l}:{l+3}]'}")
    return out
def kreads(sl):
    return [f"ds_read_b128 a[{aKF+(kb*4+s)*4}:{aKF+(kb*4+s)*4+3}], v{vKA+s} offset:{sl*16384 + kb*8192}" for kb in range(2) for s in range(4)]
def vreads(sl):
    return [f"ds_read_b64_tr_b16 a[{aVF+db*4+2*jj}:{aVF+db*4+2*jj+1}], v{vVAl[db]} offset:{sl*16384 + jj*8192}" for db in range(8) for jj in range(2)]
def kvdma(sl, kidx, vidx, dok=True, dov=True):
    sc = [f"s_add_u32 m0, s{sKVM0}, {sl*16384}"]; d = []
    if dok:
        ks = sKO + kidx % 4; kp = sKO + (kidx - 1) % 4
        sc += [f"s_add_u32 s{ks}, s{kp}, 8192", f"s_and_b32 s{ks}, s{ks}, 0x7ffff"]
        d += [f"buffer_load_dwordx4 v{vDK}, s[{rK}:{rK+3}], s{ks} offen lds ; @T:kv{sl}",
              f"buffer_load_dwordx4 v{vDK+1}, s[{rK}:{rK+3}], s{ks} offen offset:1024 lds ; @T:kv{sl}"]
    if dov:
        vs = sKO + vidx % 4
        d += [f"buffer_load_dwordx4 v{vDV}, s[{rV}:{rV+3}], s{vs} offen offset:2048 lds ; @T:kv{sl}",
              f"buffer_load_dwordx4 v{vDV+1}, s[{rV}:{rV+3}], s{vs} offen offset:3072 lds ; @T:kv{sl}"]
    return sc, d
def smq(b):
    nsum = OPT['msum']; E = []; Sg = []
    for qb in range(4):
        for i in range(4):
            s0 = vS[b] + qb*8 + 2*i
            E += [f"v_exp_f32 v{s0}, v{s0}", f"v_exp_f32 v{s0+1}, v{s0+1}"]; k = len(E)
            if qb >= nsum:
                Sg += [(k-1, f"v_add_f32 v{vL+qb}, v{vL+qb}, v{s0}"), (k, f"v_add_f32 v{vL+qb}, v{vL+qb}, v{s0+1}")]
            Sg += [(k, f"v_cvt_pk_bf16_f32 v{vP[b]+qb*4+i}, v{s0}, v{s0+1}")]
    return E, Sg

def period(p, carry, dok=True, dov=True, first=False, kread=True, xdma=None):
    sl = p % 4
    ms = qk((p+1) % 2) + pv(p % 2, first)
    N = len(ms); H = 32
    shadow = [None]*N
    shadow[N-1] = f"s_waitcnt vmcnt(@kv{(p+1)%4}) lgkmcnt(0)"
    shadow[H-1] = "s_waitcnt lgkmcnt(0)"
    shadow[0] = "s_barrier"
    mem = []
    vr = vreads(sl)
    for i, x in enumerate(vr): mem.append((1 + (i*24) // len(vr), x))
    if kread:
        kr = kreads(sl)
        for i, x in enumerate(kr): mem.append((33 + (i*24) // len(kr), x))
    dmag = {}
    if dok or dov:
        sc, dd = kvdma((p + 3) % 4, p + 5, p + 3, dok, dov)
        for x, g in zip(sc, [2, 3, 4]): shadow[g] = x
        for x, g in zip(dd, [27, 39, 47, 59]): dmag[g] = x
    if xdma:
        for (g, x) in xdma:
            if x.startswith('buffer'):
                assert g not in dmag and not shadow[g]; dmag[g] = x
            else:
                assert not shadow[g] and g not in dmag, (g, x); shadow[g] = x
    mem.sort(key=lambda t: t[0])
    st = 34
    cE, cS, cdone = carry
    nE, nS = smq((p+1) % 2)
    lines = []
    E = list(cE); Sq = list(cS); edone = cdone
    mi = 0
    extra = max(0, 64 + len(mem) + len(nS) + 2*len(dmag) - 2*N)
    acc = 0.0; old_S = None
    for g in range(N):
        lines.append(ms[g])
        if shadow[g]: lines.append(shadow[g])
        if g == st:
            assert not E, (p, len(E))
            old_S = Sq; E = nE; Sq = nS; edone = 0
        acc += extra / N
        if g in dmag:
            lines.append(dmag[g]); continue
        room = 2
        if acc >= 1.0 - 1e-9: room += 1; acc -= 1.0
        gm = []; gv = []
        e_prev = edone
        left = (st - g) if g < st else (N - g + st)
        navail = (1 if (mi < len(mem) and mem[mi][0] <= g) else 0) + (len(old_S) if old_S else 0) + sum(1 for x in Sq if x[0] <= e_prev)
        if E and (len(E) * 2 >= left or navail < 2):
            gv.append(E.pop(0)); room -= 2; edone += 1
        while room > 0:
            if mi < len(mem) and mem[mi][0] <= g: gm.append(mem[mi][1]); mi += 1; room -= 1
            elif old_S: gv.append(old_S.pop(0)[1]); room -= 1
            elif Sq and Sq[0][0] <= e_prev: gv.append(Sq.pop(0)[1]); room -= 1
            elif mi < len(mem) and mem[mi][0] <= g + 3: gm.append(mem[mi][1]); mi += 1; room -= 1
            else: break
        lines += gm + gv
    assert mi == len(mem) and not old_S, (mi, len(mem), old_S)
    return lines, (E, Sq, edone)

def xreduce(a, reg, op, tmp):
    a(f"v_mov_b32 v{tmp}, v{reg}\ns_nop 1\nv_permlane16_swap_b32 v{reg}, v{tmp}\ns_nop 1\n{op} v{reg}, v{reg}, v{tmp}")
    a(f"v_mov_b32 v{tmp}, v{reg}\ns_nop 1\nv_permlane32_swap_b32 v{reg}, v{tmp}\ns_nop 1\n{op} v{reg}, v{reg}, v{tmp}")

def attn_addr_ops():
    o = []
    t0, t1, t2, t3 = vT, vT+1, vT+2, vT+3
    o += [f"v_bfe_u32 v{t0}, v{vL16}, 4, 4", f"v_lshrrev_b32 v{t1}, 8, v{vL16}"]
    o += [f"v_lshrrev_b32 v{t2}, 3, v{t0}", f"v_lshlrev_b32 v{t2}, 12, v{t2}", f"v_and_b32 v{t3}, 7, v{t0}", f"v_lshlrev_b32 v{t3}, 8, v{t3}",
          f"v_add_u32 v{t2}, v{t2}, v{t3}", f"v_add_u32 v{t2}, {LB}, v{t2}"]
    for s in range(4):
        o += [f"v_add_u32 v{t3}, {4*s}, v{t1}", f"v_xor_b32 v{t3}, v{t3}, v{t0}", f"v_lshl_add_u32 v{vKA+s}, v{t3}, 4, v{t2}"]
    o2 = []
    o2 += [f"v_bfe_u32 v{t0}, v{vL16}, 6, 3", f"v_lshrrev_b32 v{t2}, 9, v{vL16}", f"v_lshlrev_b32 v{t2}, 12, v{t2}",
           f"v_lshl_add_u32 v{t2}, v{t0}, 8, v{t2}", f"v_add_u32 v{t2}, {LB + 2048}, v{t2}", f"v_bfe_u32 v{t3}, v{vL16}, 4, 2", f"v_lshl_add_u32 v{t2}, v{t3}, 3, v{t2}"]
    for db in range(8):
        o2 += [f"v_xor_b32 v{t3}, {db}, v{t0}", f"v_lshl_add_u32 v{vVAl[db]}, v{t3}, 5, v{t2}"]
    return o, o2

def interleave(a, base, extra, every):
    k = 0
    for n, x in enumerate(base):
        a(x)
        if (n + 1) % every == 0 and k < len(extra):
            for y in extra[k]: a(y)
            k += 1
    for g in extra[k:]:
        for y in g: a(y)

def unpack_sum(dst, srcs, t0):
    ops = []
    for n, r in enumerate(srcs):
        for i in range(4):
            if n == 0:
                ops += [f"v_lshlrev_b32 v{dst+2*i}, 16, v{r+i}", f"v_and_b32 v{dst+2*i+1}, 0xffff0000, v{r+i}"]
            else:
                ta, tb = t0 + 2*(i % 2), t0 + 2*(i % 2) + 1
                ops += [f"v_lshlrev_b32 v{ta}, 16, v{r+i}", f"v_and_b32 v{tb}, 0xffff0000, v{r+i}",
                        f"v_add_f32 v{dst+2*i}, v{dst+2*i}, v{ta}", f"v_add_f32 v{dst+2*i+1}, v{dst+2*i+1}, v{tb}"]
    return ops

def silu_ops(r, n, tmp):
    ops = []
    for b in range(0, n, 4):
        ops += [f"v_mul_f32 v{tmp+i}, {hx(-math.log2(math.e))}, v{r+b+i}" for i in range(4)]
        ops += [f"v_exp_f32 v{tmp+i}, v{tmp+i}" for i in range(4)]
        ops += [f"v_add_f32 v{tmp+i}, 1.0, v{tmp+i}" for i in range(4)]
        ops += [f"v_rcp_f32 v{tmp+i}, v{tmp+i}" for i in range(4)]
        ops += [f"v_mul_f32 v{r+b+i}, v{r+b+i}, v{tmp+i}" for i in range(4)]
    return ops

def share_offsets(sh):
    return [f"s_lshl_b32 s{sSHOFF}, s{sRB}, 3", f"s_add_u32 s{sSHOFF}, s{sSHOFF}, {sh}", f"s_lshl_b32 s{sSHOFF}, s{sSHOFF}, 2", f"s_add_u32 s{sSHOFF}, s{sSHOFF}, s{sW}", f"s_lshl_b32 s{sSHOFF}, s{sSHOFF}, 11",
            f"s_lshl_b32 s{sXOFF}, {sh}, 1", f"s_lshr_b32 s0, s{sW}, 1", f"s_add_u32 s{sXOFF}, s{sXOFF}, s0", f"s_lshl_b32 s{sXOFF}, s{sXOFF}, 6",
            f"s_and_b32 s0, s{sW}, 1", f"s_lshl_b32 s0, s0, 15", f"s_add_u32 s{sXOFF}, s{sXOFF}, s0", f"s_lshl_b32 s0, s{sRB}, 16", f"s_add_u32 s{sXOFF}, s{sXOFF}, s0"]

def ploads(dst, t, g, base):
    return [f"s_add_u32 s0, {base}, {t*0x1000000 + g*0x200000}",
            f"buffer_load_dwordx4 v[{dst[0]+g*4}:{dst[0]+g*4+3}], v{vL16}, s[{rWS}:{rWS+3}], s0 offen sc1 ; @T:pl",
            f"buffer_load_dwordx4 v[{dst[1]+g*4}:{dst[1]+g*4+3}], v{vL16}, s[{rWS}:{rWS+3}], s0 offen offset:1024 sc1 ; @T:pl"]
FPE, FPL, SPR = (192, 64), (192, 96), (128, 160)

vXO, vSIG, vXD, vGV = 10, 11, 2, 128
xregs = [2, 4, 12, 14]
def xloads():
    o = []
    for i in range(2):
        o.append(f"s_add_u32 s0, s{sXOFF}, {i*16384}")
        for e in range(2):
            r = xregs[2*i+e]
            o.append(f"buffer_load_dwordx2 v[{r}:{r+1}], v{vXO}, s[{rX}:{rX+3}], s0 offen offset:{32*e} ; @T:xl")
    return o
def f_reduce_ops():
    ops = []
    ops += unpack_sum(vGA, [128 + 4*g for g in range(8)], vT)
    ops += unpack_sum(vGA + 8, [160 + 4*g for g in range(8)], vT)
    ops += silu_ops(vGA, 16, vT)
    return ops
vGA = 96

def main_kernel():
    global vGA
    a = Prog()
    a(f"main_kernel:")
    a("s_cmp_ge_u32 s2, 256\ns_cbranch_scc1 L_main_end")
    stamp(a, 0)
    if OPT['timing']: a("s_memrealtime s[100:101]\ns_waitcnt lgkmcnt(0)")
    a("s_load_dwordx16 s[64:79], s[0:1], 0\ns_load_dwordx8 s[80:87], s[0:1], 64") if not OPT['timing'] else a("s_load_dwordx16 s[64:79], s[0:1], 0\ns_load_dwordx4 s[80:83], s[0:1], 64\ns_load_dwordx2 s[84:85], s[0:1], 80\ns_load_dwordx2 s[44:45], s[0:1], 88")
    WSP = 86 if not OPT['timing'] else 44
    a(f"v_lshrrev_b32 v2, 6, v0\nv_and_b32 v0, 63, v0\nv_readfirstlane_b32 s{sW}, v2")
    a(f"v_lshlrev_b32 v{vL16}, 4, v0")
    a(f"s_and_b32 s{sG}, s2, 7\ns_lshr_b32 s{sRB}, s2, 3")
    a(f"s_and_b32 s{sROT}, s{sRB}, 7")
    a(f"v_and_b32 v5, 15, v0\nv_lshlrev_b32 v5, 10, v5\nv_lshrrev_b32 v6, 4, v0\nv_lshl_add_u32 v5, v6, 4, v5")
    a(f"s_lshl_b32 s62, s{sRB}, 16\ns_lshl_b32 s63, s{sW}, 14\ns_add_u32 s62, s62, s63\ns_lshl_b32 s63, s{sROT}, 7")
    a(f"s_lshl_b32 s61, s{sRB}, 2\ns_add_u32 s61, s61, s{sW}\ns_lshl_b32 s61, s61, 5")
    a(f"v_and_b32 v3, 31, v0\nv_add_u32 v3, s61, v3\nv_lshrrev_b32 v4, 5, v0\nv_lshlrev_b32 v4, 6, v4")
    a(f"v_lshl_add_u32 v{vPF}, v3, 7, v4")
    if OPT['codepf']:
        a("s_getpc_b64 s[46:47]\nL_pc0:")
        a(f"v_min_u32 v7, L_code_end-L_pc0-4, v{vPF}")
        a(f"global_load_dword v{vGB}, v7, s[46:47] ; @T:pf")
    a("s_waitcnt lgkmcnt(0)")
    stamp(a, 'karg')
    srd(a, rX, 64, 2048*1024)
    for k in range(16):
        a(f"s_add_u32 s61, s63, {k*64}\ns_and_b32 s61, s61, 0x3ff\ns_add_u32 s61, s61, s62")
        a(f"buffer_load_dwordx4 v[{bA+4*k}:{bA+4*k+3}], v5, s[{rX}:{rX+3}], s61 offen ; @T:x{k}")
    stamp(a, 'xissued')
    a(f"s_add_u32 s62, s{sG}, s{sRB}\ns_and_b32 s62, s62, 1\ns_sub_u32 s{sNU}, 4, s62")
    a(f"s_lshr_b32 s62, s{sG}, 1\ns_mul_i32 s{sU0}, s62, 7\ns_sub_u32 s63, 7, s{sNU}\ns_and_b32 s61, s{sG}, 1\ns_mul_i32 s63, s63, s61\ns_add_u32 s{sU0}, s{sU0}, s63")
    a(f"s_add_u32 s62, s{sU0}, s{sW}\ns_lshl_b32 s{sCOG}, s62, 7\ns_cmp_lt_u32 s{sW}, s{sNU}\ns_cselect_b32 s{sCOG}, s{sCOG}, 0x40000000")
    a(f"s_lshl_b32 s62, s{sG}, 10\ns_lshl_b32 s63, s{sW}, 8\ns_add_u32 s{sCOQ}, s62, s63")
    a(f"s_lshl_b32 s62, s{sU0}, 16\ns_add_u32 s{sCOD}, s62, s63\ns_cmp_eq_u32 s{sNU}, 4\ns_cselect_b32 s{sCOD3}, s{sCOD}, 0x40000000")
    a(f"s_lshl_b32 s62, s{sG}, 19\ns_add_u32 s{sCOO}, s62, s63")
    a(f"s_mul_i32 s{sRING}, s{sW}, 24576\ns_lshl_b32 s{sKVM0}, s{sW}, 12\ns_add_u32 s{sKVM0}, s{sKVM0}, {LB}")
    srd(a, rWG, 76, 512*3584)
    a("v_lshrrev_b32 v6, 3, v0\nv_bfe_u32 v7, v0, 4, 1\nv_lshlrev_b32 v7, 1, v7\nv_bfe_u32 v8, v0, 5, 1\nv_lshl_add_u32 v7, v8, 2, v7\nv_and_b32 v8, 7, v0\nv_xor_b32 v7, v7, v8")
    a("v_lshlrev_b32 v7, 4, v7\nv_xor_b32 v8, 64, v7")
    for dv, rs in ((vDG, 3584), (vDQ, 8192), (vDO, 1024)):
        a(f"v_mul_u32_u24 v9, {rs}, v6")
        for j in range(4):
            a(f"v_add_u32 v{dv+j}, v9, v{7 + (j & 1)}")
            if j: a(f"v_add_u32 v{dv+j}, {j*(8*rs - 1024)}, v{dv+j}")
    X = lambda ks0: (lambda ks, qb: ((ks0 + ks)*4 + qb)*4)
    mk = lambda name, r, dv, rs, co, acc, n, inter, rot, row0: [Panel(name, r, dv, rs, co(j), acc, j == 0, X(2*j), inter, rot, row0(j)) for j in range(n)]
    pG = mk('G', rWG, vDG, 3584, lambda j: f"s{sCOG}", bA, 8, False, True, lambda j: 0)
    pU = mk('U', rWU, vDG, 3584, lambda j: f"s{sCOG}", bB, 8, False, True, lambda j: 0)
    pQa = mk('Qa', rWQ, vDQ, 8192, lambda j: f"s{sCOQ}", bC, 8, False, True, lambda j: 0)
    pQb = mk('Qb', rWQ, vDQ, 8192, lambda j: f"s{sCOQ}", bA, 8, False, True, lambda j: 128)
    pD0 = mk('D0', rWD, vDO, 1024, lambda j: f"s{sCOD3 if j == 3 else sCOD}", bC, 4, True, False, lambda j: j*65536)
    pD1 = mk('D1', rWD, vDO, 1024, lambda j: f"s{sCOD3 if j == 3 else sCOD}", bA, 4, True, False, lambda j: j*65536 + 128)
    pO0 = mk('O0', rWO, vDO, 1024, lambda j: f"s{sCOO}", bB, 8, True, False, lambda j: j*65536)
    pO1 = mk('O1', rWO, vDO, 1024, lambda j: f"s{sCOO}", bA, 8, True, False, lambda j: j*65536 + 128)
    S1 = pG + pU + pQa + pQb + pD0 + pD1
    a(f"s_sub_u32 s{sJ}, s{sROT}, 1")
    s0, s1, d = panel_dma(S1[0], 0)
    for x in s0 + ["s_nop 0"] + d[:4] + s1 + ["s_nop 0"] + d[4:]: a(x)
    if OPT['prefetch']:
        srd(a, rWD, 80, 1792*1024)
        a(f"s_lshr_b32 s62, s{sG}, 1\ns_mul_i32 s62, s62, 7\ns_and_b32 s61, s{sG}, 1\ns_mul_i32 s61, s61, 3\ns_add_u32 s62, s62, s61\ns_lshl_b32 s62, s62, 16")
        a(f"v_cmp_gt_u32 vcc, 0x40000, v{vPF}\nv_mov_b32 v9, 0x40000000\ns_nop 0\nv_cndmask_b32 v9, v9, v{vPF}, vcc")
        a(f"buffer_load_dword v{vGB}, v9, s[{rWD}:{rWD+3}], s62 offen ; @T:pf")
    lndma = []
    for i in (1, 2):
        s0, s1, d = panel_dma(S1[i], i)
        lndma += [s0 + ["s_nop 0", d[0]]] + [[x] for x in d[1:4]] + [s1 + ["s_nop 0", d[4]]] + [[x] for x in d[5:]]
    stamp(a, 'dmaissued')
    srd(a, rWU, 78, 512*3584); srd(a, rWQ, 70, 512*8192); srd(a, rWO, 72, 4096*1024)
    if not OPT['prefetch']: srd(a, rWD, 80, 1792*1024)
    a(f"s_lshl_b32 s62, s{sG}, 19")
    srd(a, rK, 66, 0x80000, add='s62'); srd(a, rV, 68, 0x80800, add='s62', sub=2048)
    srd(a, rWS, WSP, 0x2000000)
    srd(a, rOUT, 82, 2048*1024); srd(a, rDBG, 84, 256)
    a(f"s_lshl_b32 s81, s{sG}, 19\ns_lshl_b32 s82, s{sW}, 13\ns_lshl_b32 s83, s{sW}, 14")
    a(f"s_lshl_b32 s{sSLAB}, s{sG}, 5\ns_add_u32 s{sSLAB}, s{sSLAB}, s{sRB}\ns_lshl_b32 s{sSLAB}, s{sSLAB}, 2\ns_add_u32 s{sSLAB}, s{sSLAB}, s{sW}\ns_lshl_b32 s{sSLAB}, s{sSLAB}, 14")
    for t in range(2):
        for k in range(4): a(f"s_add_u32 s{sT+t*4+k}, s{sSLAB}, {t*0x1000000 + k*4096}")
    a("v_bfe_u32 v5, v0, 2, 2\nv_lshrrev_b32 v6, 4, v0\nv_and_b32 v7, 3, v0\nv_lshlrev_b32 v7, 3, v7")
    a(f"v_add_u32 v7, s{sRING}, v7")
    a("v_lshrrev_b32 v8, 1, v5\nv_and_b32 v9, 1, v6\nv_lshl_add_u32 v9, v9, 1, v8")
    a("v_lshl_add_u32 v26, v6, 3, v5\nv_lshl_add_u32 v26, v26, 7, v7")
    a("v_lshrrev_b32 v27, 1, v6\nv_xor_b32 v27, v27, v6\nv_and_b32 v27, 1, v27\nv_lshl_add_u32 v27, v27, 1, v8")
    a("v_lshl_add_u32 v28, v6, 2, v5\nv_lshl_add_u32 v28, v28, 7, v7")
    a(f"s_lshl_b32 s62, s{sW}, 3\nv_add_u32 v29, s62, v6\nv_and_b32 v5, 15, v0")
    for i in range(2):
        a(f"v_add_u32 v8, {4*i}, v29\nv_and_b32 v8, 15, v8\nv_xor_b32 v8, v8, v5\nv_lshlrev_b32 v8, 4, v8\nv_lshl_add_u32 v{vDK+i}, v29, 8, v8")
        a(f"v_add_u32 v8, {4*i}, v6\nv_lshlrev_b32 v8, 1, v8\nv_xor_b32 v8, v8, v5\nv_lshlrev_b32 v8, 4, v8\nv_lshl_add_u32 v{vDV+i}, v29, 8, v8")
    a("v_mov_b32 v29, v9")
    for nb in range(4):
        a(f"v_xor_b32 v{vWA+nb}, {nb}, v29\nv_lshl_add_u32 v{vWA+nb}, v{vWA+nb}, 5, v26")
        a(f"v_xor_b32 v{vWI+nb}, {nb}, v27\nv_lshl_add_u32 v{vWI+nb}, v{vWI+nb}, 5, v28")
    a(f"v_add_u32 v{vFA}, {LB}, v{vL16}")
    a(f"v_add_u32 v44, s83, v{vFA}")
    stamp(a, 'setup')
    F = bB
    for k in range(16):
        a(f"s_waitcnt vmcnt(@x{k})")
        for i in range(4*k, 4*k+4):
            a(f"v_lshlrev_b32 v{F+2*i}, 16, v{bA+i}\nv_and_b32 v{F+2*i+1}, 0xffff0000, v{bA+i}")
        for i in range(4*k, 4*k+4):
            if k == 0: a(f"v_mov_b32 v{32+2*i}, v{F+2*i}\nv_mov_b32 v{33+2*i}, v{F+2*i+1}")
            else: a(f"v_pk_add_f32 v[{32+2*(i%4)}:{33+2*(i%4)}], v[{32+2*(i%4)}:{33+2*(i%4)}], v[{F+2*i}:{F+2*i+1}]")
    stamp(a, 1)
    b = Prog()
    b("v_pk_add_f32 v[32:33], v[32:33], v[34:35]\nv_pk_add_f32 v[36:37], v[36:37], v[38:39]\nv_pk_add_f32 v[32:33], v[32:33], v[36:37]\nv_add_f32 v32, v32, v33")
    xreduce(b, 32, 'v_add_f32', 33)
    b(f"v_mul_f32 v32, {hx(1/512)}, v32\nv_cvt_pk_bf16_f32 v33, v32, v32\nv_lshlrev_b32 v34, 16, v33\nv_sub_f32 v40, v32, v34")
    for i in range(64):
        b(f"v_pk_add_f32 v[{F+2*i}:{F+2*i+1}], v[{F+2*i}:{F+2*i+1}], v[34:35] op_sel_hi:[1,0] neg_lo:[0,1] neg_hi:[0,1]")
        if i >= 2:
            j = i - 2; r = 46 + 2*(j % 4)
            b(f"v_pk_mul_f32 v[{r}:{r+1}], v[{F+2*j}:{F+2*j+1}], v[{F+2*j}:{F+2*j+1}]" if j < 4 else f"v_pk_fma_f32 v[{r}:{r+1}], v[{F+2*j}:{F+2*j+1}], v[{F+2*j}:{F+2*j+1}], v[{r}:{r+1}]")
    for j in (62, 63):
        r = 46 + 2*(j % 4); b(f"v_pk_fma_f32 v[{r}:{r+1}], v[{F+2*j}:{F+2*j+1}], v[{F+2*j}:{F+2*j+1}], v[{r}:{r+1}]")
    b("v_pk_add_f32 v[46:47], v[46:47], v[48:49]\nv_pk_add_f32 v[50:51], v[50:51], v[52:53]\nv_pk_add_f32 v[46:47], v[46:47], v[50:51]\nv_add_f32 v42, v46, v47")
    xreduce(b, 42, 'v_add_f32', 43)
    b(f"v_mul_f32 v42, {hx(1/512)}, v42\nv_fma_f32 v42, -v40, v40, v42\nv_max_f32 v42, 0, v42")
    rb16 = lambda r: f"v_cvt_pk_bf16_f32 v{r}, v{r}, v{r}\nv_lshlrev_b32 v{r}, 16, v{r}"
    b(rb16(42)); b(f"v_add_f32 v42, {hx(1e-5)}, v42"); b(rb16(42)); b("v_sqrt_f32 v42, v42\ns_nop 0"); b(rb16(42)); b("v_rcp_f32 v42, v42\ns_nop 0")
    interleave(a, b.L, lndma, 10)
    for k in range(16):
        for i in range(4*k, 4*k+4): a(f"v_pk_mul_f32 v[{F+2*i}:{F+2*i+1}], v[{F+2*i}:{F+2*i+1}], v[42:43] op_sel_hi:[1,0]")
        if k: a(f"ds_write_b128 v44, v[{bA+4*k-4}:{bA+4*k-1}] offset:{(k-1)*1024}")
        for i in range(4*k, 4*k+4): a(f"v_cvt_pk_bf16_f32 v{bA+i}, v{F+2*i}, v{F+2*i+1}")
    a(f"ds_write_b128 v44, v[{bA+60}:{bA+63}] offset:{15*1024}")
    stamp(a, 'lndone')
    a("s_waitcnt vmcnt(@w0) lgkmcnt(0)\ns_barrier")
    stamp(a, 'lnbar')
    xr = lambda ks, qb, tag, lay: f"ds_read_b128 a[{(ks*4+qb)*4}:{(ks*4+qb)*4+3}], v{vFA} offset:{lay(ks, qb)*1024} ; @T:{tag}"
    layX = lambda ks, qb: qb*16 + ks
    layF = lambda ks, qb: ks*4 + qb
    def stream_head(P, idx, tag, lay):
        for x in wreads(P, idx, 0): a(x)
        for ks in range(2):
            for qb in range(4): a(xr(ks, qb, tag, lay))
        for nb in (1, 2):
            for x in wreads(P, idx, nb): a(x)
        a("s_waitcnt lgkmcnt(@auto)")
    RG = [2, 3, 4, 5, 6, 12, 14, 20]
    def frag_reads(xm, pos, ks0, tag, lay):
        for k in range(8): xm.setdefault((pos, RG[k]), []).append(xr(ks0 + k % 2, k // 2, tag, lay))
    stream_head(S1[0], 0, 'xr', layX)
    stamp(a, 2)
    fill = {}; xm = {}; xs = {}
    for j in range(7): frag_reads(xm, j, 2*j + 2, 'xr', layX)
    o1, o2 = attn_addr_ops()
    xs[(9, 0)] = ["s_barrier"]
    fill[8] = [f"v_add_u32 v{vPF}, s82, v{vFA}", f"v_mov_b32 v{vGB}, {hx(-2.0 * math.log2(math.e) * math.sqrt(2.0 / math.pi) * 0.044715)}"] + gelu_stage1(bA)
    fill[16] = geglu_stage2(bA, bB)
    fill[24] = qpack(bC, 0) + o1
    xs[(26, 0)] = ["s_waitcnt lgkmcnt(@hw)", "s_barrier"]
    for j in range(4): frag_reads(xm, 28 + j, 2*j, 'hr', layF)
    fill[32] = qpack(bA, 1) + o2
    fill[37] = slab_store(bC, 1, 0)
    xs[(32, 3)] = ["s_waitcnt lgkmcnt(@hr)", "s_barrier"]
    kvs = [kvdma(2, 0, 0, True, False), kvdma(3, 1, 0, True, False), kvdma(0, 2, 0), kvdma(1, 3, 1)]
    xs[(32, 10)] = [f"s_lshl_b32 s{sKO+3}, s{sRB}, 14"]; xs[(32, 12)] = [f"s_sub_u32 s{sKO+3}, s{sKO+3}, 8192"]
    for i, (sc, dd) in enumerate(kvs):
        pos = 33 + i
        xs.setdefault((pos, 20), []).append(sc[1]); xs.setdefault((pos, 22), []).append(sc[2]); xs.setdefault((pos, 28), []).append(sc[0])
        for x, g in zip(dd, [29, 30, 31, 31]): xm.setdefault((pos, g), []).append(x)
    xs[(39, 3)] = ["s_waitcnt vmcnt(@kv3)", "s_barrier"]
    for x, g in zip(kreads(2), [8, 9, 10, 11, 12, 13, 14, 16]): xm.setdefault((39, g), []).append(x)
    left = emit_stream(a, S1, 0, fill, xm, xs, must_empty=(24, 32, 36))
    assert not left
    stamp(a, 3)
    st = slab_store(bA, 1, 1)
    m0s = qk(0, '0')
    kr = kreads(3)
    for g, m in enumerate(m0s):
        a(m)
        if g == 27:
            a("s_barrier")
        if g >= 24 and (g - 24) < 8:
            pass
        if g >= 4:
            n = 0
            while st and n < 2:
                if st[0].startswith('buffer') and n: break
                x = st.pop(0); a(x); n += 2 if x.startswith('buffer') else 1
    for x in st: a(x)
    for x in kr: a(x)
    sc, dd = kvdma(2, 4, 2)
    for x in sc + dd: a(x)
    for i in range(4): a(f"v_mov_b32 v{vONES+i}, 0x3f803f80\nv_mov_b32 v{vL+i}, 0")
    T = [64 + 2*qb for qb in range(4)]
    for k in range(4):
        for qb in range(4):
            b0 = vS[0] + qb*8
            a([f"v_max3_f32 v{T[qb]}, v{b0}, v{b0+1}, v{b0+2}", f"v_max3_f32 v{T[qb]}, v{T[qb]}, v{b0+3}, v{b0+4}", f"v_max3_f32 v{T[qb]}, v{T[qb]}, v{b0+5}, v{b0+6}", f"v_max_f32 v{T[qb]}, v{T[qb]}, v{b0+7}"][k])
    for sw in ('v_permlane16_swap_b32', 'v_permlane32_swap_b32'):
        for qb in range(4): a(f"v_mov_b32 v{T[qb]+1}, v{T[qb]}")
        for qb in range(4): a(f"{sw} v{T[qb]}, v{T[qb]+1}")
        for qb in range(4): a(f"v_max_f32 v{T[qb]}, v{T[qb]}, v{T[qb]+1}")
    for qb in range(4):
        for i in range(8): a(f"v_sub_f32 v{vS[0]+qb*8+i}, v{vS[0]+qb*8+i}, v{T[qb]}")
    for qb in range(4):
        for i in range(4): a(f"v_sub_f32 v{vNEGM+qb*4+i}, 0, v{T[qb]}")
    a(f"s_lshl_b32 s0, s{sRB}, 3\nv_mov_b32 v{vT}, s0\ns_lshl_b32 s0, 0x100, s{sG}\nv_mov_b32 v{vT+1}, s0")
    a(f"s_lshl_b32 s0, s{sRBX}, 2\ns_add_u32 s0, s0, s{sW}\ns_lshl_b32 s0, s0, 12\nv_and_b32 v{vPF}, 0x1f0, v{vL16}\nv_lshlrev_b32 v{vPF}, 3, v{vPF}\nv_lshrrev_b32 v{vT+3}, 9, v{vL16}\nv_lshl_add_u32 v{vPF}, v{vT+3}, 6, v{vPF}\nv_add_u32 v{vPF}, s0, v{vPF}")
    c = ([], [], 32)
    for p in (1, 2, 3, 4, 5): _, c = period(p, c)
    E0, S0 = smq(0)
    rem = set(c[0]) | set(x[1] for x in c[1])
    for x in E0:
        if x not in rem: a(x)
    for x in S0:
        if x[1] not in rem: a(x[1])
    cp = lambda c: (list(c[0]), list(c[1]), c[2])
    a("s_waitcnt vmcnt(@kv0) lgkmcnt(0)")
    body, carry = period(0, cp(c), first=True)
    for x in body: a(x)
    stamp(a, 'loop0')
    a(f"s_mov_b32 s{sCNT}, 14")
    a(".p2align 6\nL_attn_loop:")
    c0 = cp(carry); loop = []
    for p in range(1, 5):
        body, carry = period(p, carry)
        if p == 3:
            idx = [i for i, x in enumerate(body) if x.startswith('v_mfma')]
            blk = []
            if OPT['prefetch']: blk += [f"buffer_load_dword v{vT+3}, v{vPF}, s[{rWO}:{rWO+3}], s81 offen ; @X"]
            if OPT['single']: blk += [f"s_cmp_eq_u32 s{sW}, 0", "s_cbranch_scc0 L_nosigf", "s_mov_b64 exec, 1", f"buffer_atomic_or v{vT+1}, v{vT}, s[{rDBG}:{rDBG+3}], 0 offen ; @X", "s_mov_b64 exec, -1"]
            body = body[:idx[6]+1] + [f"s_cmp_eq_u32 s{sCNT}, 14"] + body[idx[6]+1:idx[7]+1] + ["s_cbranch_scc0 L_nosigf"] + blk + ["L_nosigf:"] + body[idx[7]+1:]
        loop += body
    assert cp(carry) == c0
    a.loop = (len(a.L), len(a.L) + len(loop))
    for x in loop: a(x)
    a(f"s_sub_u32 s{sCNT}, s{sCNT}, 1\ns_cmp_lg_u32 s{sCNT}, 0\ns_cbranch_scc1 L_attn_loop")
    stamp(a, 'loop1')
    S2 = pO0 + pO1; base2 = len(S1)
    for p in range(57, 63):
        xd = None
        if p >= 60:
            s0, s1, d = panel_dma(S2[p-60], base2 + p - 60)
            xd = [(5, s0[0]), (6, s0[1])] + list(zip([8, 11, 14, 17], d[:4])) + [(18, s1[0]), (19, s1[1])] + list(zip([21, 24, 43, 51], d[4:]))
        if p == 59 and OPT['single']:
            xd = [(5, f"s_lshl_b32 s0, s{sRB}, 3"), (8, f"buffer_load_dword v{vT+2}, off, s[{rDBG}:{rDBG+3}], s0 sc1 ; @T:poll")]
        body, carry = period(p, carry, dok=(p + 5 <= 63), dov=(p + 3 <= 63) and p != 60, kread=(p + 2 <= 63), xdma=xd)
        for x in body: a(x)
        if p == 60:
            sc, dd = kvdma(3, 0, 63, False, True)
            for x in sc + ["s_nop 0"] + dd: a(x)
    a("s_barrier")
    for x in vreads(3): a(x)
    if OPT['single']:
        a(f"v_readfirstlane_b32 s{sBITS}, v{vT+2}\nv_mov_b32 v{vSIG}, v{vT}")
        for x in share_offsets(f"s{sG}"): a(x)
        a(f"s_bfe_u32 s{sBITS}, s{sBITS}, 0x80008\ns_cmp_lg_u32 s{sBITS}, 0xff\ns_cselect_b32 s{sLATE}, 1, 0\ns_cselect_b32 s{sBITS}, 0x40000000, s{sSHOFF}")
        for g in range(8):
            for x in ploads(FPE, 1, g, f"s{sBITS}"): a(x)
        a(f"v_bfe_u32 v{vXO}, v{vL16}, 4, 4\nv_lshlrev_b32 v{vXO}, 10, v{vXO}\nv_lshrrev_b32 v{vT+3}, 8, v{vL16}\nv_lshl_add_u32 v{vXO}, v{vT+3}, 3, v{vXO}")
    for x in carry[0]: a(x)
    for x in carry[1]: a(x[1])
    lq = [qb for qb in range(4) if qb >= OPT['msum']]
    for sw in ('v_permlane16_swap_b32', 'v_permlane32_swap_b32'):
        for qb in lq: a(f"v_mov_b32 v{96+qb}, v{vL+qb}")
        a("s_nop 1")
        for qb in lq: a(f"{sw} v{vL+qb}, v{96+qb}")
        for qb in lq: a(f"v_add_f32 v{vL+qb}, v{vL+qb}, v{96+qb}")
    a("s_waitcnt lgkmcnt(0)\ns_barrier")
    if OPT['single']:
        for x in xloads(): a(x)
    for x in pv(1): a(x)
    stamp(a, 4)
    a(f"v_add_u32 v{vPF}, s83, v{vFA}")
    a("s_nop 6")
    for qb in range(OPT['msum']): a(f"v_mov_b32 v{vL+qb}, v{vLM+4*qb}")
    a(f"v_add_f32 v{vT+1}, v{vL}, v{vL+1}\nv_add_f32 v{vT+2}, v{vL+2}, v{vL+3}\nv_add_f32 v{vT+1}, v{vT+1}, v{vT+2}")
    a(f"v_cmp_nge_f32 vcc, {hx(2.0**OPT['fthresh'])}, v{vT+1}\ns_nop 1\ns_cbranch_vccnz L_fallback\nL_fb_ret:")
    for qb in range(4): a(f"v_rcp_f32 v{vL+qb}, v{vL+qb}")
    prev = None
    for sp in range(4):
        for qb in range(4):
            t = 224 + ((sp*4 + qb) % 2)*16
            for e in range(2):
                o = aO + ((2*sp + e)*4 + qb)*4
                for i in range(4): a(f"v_accvgpr_read_b32 v{t+4*e+i}, a{o+i}")
            l = vL + qb
            for i in range(4):
                sel = "op_sel_hi:[1,0]" if l % 2 == 0 else "op_sel:[0,1]"
                a(f"v_pk_mul_f32 v[{t+2*i}:{t+2*i+1}], v[{t+2*i}:{t+2*i+1}], v[{l - l%2}:{l - l%2 + 1}] {sel}")
            for i in range(4): a(f"v_cvt_pk_bf16_f32 v{t+8+i}, v{t+2*i}, v{t+2*i+1}")
            a(f"ds_write_b128 v{vPF}, v[{t+8}:{t+11}] offset:{(sp*4 + qb)*1024}")
    stamp(a, 'owritten')
    a(f"s_waitcnt vmcnt(@w{base2}) lgkmcnt(0)\ns_barrier")
    stamp(a, 'obar')
    stream_head(S2[0], base2, 'or', layF)
    stamp(a, 5)
    fill = {13: slab_store(bB, 0, 0)}; xm = {}; xs = {}
    for j in range(7): frag_reads(xm, j, 2*j + 2, 'or', layF)
    vGA = 16
    if OPT['single']:
        xs[(1, 0)] = ["s_waitcnt vmcnt(@pl)"]
        fill[1] = ["s_nop 0"] + fred_fill(FPE, (1,)); fill[6] = fred_fill(FPE, (0,))
    left = emit_stream(a, S2, base2, fill, xm, xs, must_empty=(6, 13))
    for x in left: a(x)
    a("s_nop 7")
    for x in slab_store(bA, 0, 1): a(x)
    stamp(a, 6)
    if OPT['timing']: a("s_memrealtime s[80:81]\ns_waitcnt lgkmcnt(0)")
    if OPT['single']:
        end_phase(a)
    if OPT['timing']:
        a("s_waitcnt vmcnt(0)")
        a("s_memtime s[44:45]\ns_memrealtime s[46:47]\ns_waitcnt lgkmcnt(0)")
        a(f"s_lshl_b32 s62, s2, 2\ns_add_u32 s62, s62, s{sW}\ns_lshl_b32 s62, s62, 6\ns_add_u32 s62, s62, 0x3000000")
        a(f"s_mov_b32 s{rWS+2}, 0x4000000")
        for i in range(8): a(f"v_mov_b32 v3, s{sTS+2*i if i < 7 else 44}\nv_mov_b32 v4, {4*i}\nbuffer_store_dword v3, v4, s[{rWS}:{rWS+3}], s62 offen")
        a(f"v_mov_b32 v3, s46\nv_mov_b32 v4, 32\nbuffer_store_dword v3, v4, s[{rWS}:{rWS+3}], s62 offen")
        a(f"v_mov_b32 v3, s80\nv_mov_b32 v4, 40\nbuffer_store_dword v3, v4, s[{rWS}:{rWS+3}], s62 offen")
        a(f"v_mov_b32 v3, s100\nv_mov_b32 v4, 36\nbuffer_store_dword v3, v4, s[{rWS}:{rWS+3}], s62 offen")
    a("L_main_end:\ns_endpgm")
    a.fb = fallback()
    return a

GV = [224 + i for i in range(16)]
def fred_fill(FP, which=(0, 1)):
    ops = []
    for fr in which:
        base = FP[fr]
        acc = [16, 17, 22, 23, 24, 25, 30, 31]
        for n in range(8):
            r = base + 4*n
            for i in range(4):
                if n == 0: ops += [f"v_lshlrev_b32 v{acc[2*i]}, 16, v{r+i}", f"v_and_b32 v{acc[2*i+1]}, 0xffff0000, v{r+i}"]
                else:
                    ta, tb = vT + 2*(i % 2), vT + 2*(i % 2) + 1
                    ops += [f"v_lshlrev_b32 v{ta}, 16, v{r+i}", f"v_and_b32 v{tb}, 0xffff0000, v{r+i}", f"v_add_f32 v{acc[2*i]}, v{acc[2*i]}, v{ta}", f"v_add_f32 v{acc[2*i+1]}, v{acc[2*i+1]}, v{tb}"]
        for b in range(0, 8, 4):
            ops += [f"v_mul_f32 v{vT+i}, {hx(-math.log2(math.e))}, v{acc[b+i]}" for i in range(4)]
            ops += [f"v_exp_f32 v{vT+i}, v{vT+i}" for i in range(4)]
            ops += [f"v_add_f32 v{vT+i}, 1.0, v{vT+i}" for i in range(4)]
            ops += [f"v_rcp_f32 v{vT+i}, v{vT+i}" for i in range(4)]
            ops += [f"v_mul_f32 v{GV[8*fr+b+i]}, v{acc[b+i]}, v{vT+i}" for i in range(4)]
    return ops

def end_phase(a):
    a("v_mov_b32 v32, 0\nv_mov_b32 v33, 0")
    a(f"s_cmp_lg_u32 s{sW}, 0\ns_cbranch_scc1 L_e_nz\nds_write_b32 v32, v33\nL_e_nz:")
    a("s_waitcnt vmcnt(0) lgkmcnt(0)\ns_barrier")
    stamp(a, 'drained')
    a(f"s_mov_b32 s{sDONE}, 0\ns_mov_b32 s{sTODO}, 0\ns_mov_b32 s{sCNT}, 0\ns_lshl_b32 s46, s{sRB}, 3")
    a(f"s_cmp_lg_u32 s{sW}, 0\ns_cbranch_scc1 L_e_other")
    a(f"s_lshl_b32 s47, 1, s{sG}\nv_mov_b32 v34, s47\ns_mov_b64 exec, 1\nbuffer_atomic_or v34, v{vSIG}, s[{rDBG}:{rDBG+3}], 0 offen sc0\ns_waitcnt vmcnt(0)\nv_readfirstlane_b32 s{sBITS}, v34\ns_mov_b64 exec, -1")
    a(f"s_or_b32 s{sBITS}, s{sBITS}, s47\ns_and_b32 s47, s{sBITS}, 0xff\ns_cmp_eq_u32 s47, 0xff\ns_cbranch_scc1 L_e_pub")
    a(f"L_e_w0:\ns_and_b32 s{sBITS}, s{sBITS}, 0xff")
    a(f"L_e_pub:\ns_and_b32 s{sBITS}, s{sBITS}, 0xff00ff\nv_mov_b32 v33, s{sBITS}\nds_write_b32 v32, v33\ns_branch L_e_have")
    a(f"L_e_other:\nds_read_b32 v33, v32\ns_waitcnt lgkmcnt(0)\nv_readfirstlane_b32 s{sBITS}, v33\ns_nop 0\ns_bitcmp1_b32 s{sBITS}, 31\ns_cbranch_scc1 L_e_exit")
    a(f"L_e_have:\ns_andn2_b32 s47, s{sBITS}, s{sDONE}")
    for g in range(8):
        a(f"s_bitcmp1_b32 s47, {g}\ns_cbranch_scc0 L_e_s{g}")
        for x in ploads(SPR, 0, g, f"s{sSHOFF}"): a(x)
        a(f"L_e_s{g}:")
    a(f"s_or_b32 s{sDONE}, s{sDONE}, s{sBITS}\ns_and_b32 s47, s{sDONE}, 0xff\ns_cmp_eq_u32 s47, 0xff\ns_cbranch_scc1 L_e_all")
    a(f"s_cmp_lg_u32 s{sW}, 0\ns_cbranch_scc0 L_e_poll\ns_sleep 1\ns_branch L_e_other")
    a(f"L_e_poll:\ns_add_u32 s{sCNT}, s{sCNT}, 1\ns_cmp_gt_u32 s{sCNT}, {OPT['spin']}\ns_cbranch_scc1 L_e_abandon")
    a(f"s_sleep {OPT.get('psleep', 2)}\nbuffer_load_dword v34, off, s[{rDBG}:{rDBG+3}], s46 sc1\ns_waitcnt vmcnt(0)\nv_readfirstlane_b32 s{sBITS}, v34\ns_branch L_e_w0")
    a(f"L_e_abandon:\ns_lshl_b32 s47, 0x10000, s{sG}\nv_mov_b32 v34, s47\ns_mov_b64 exec, 1\nbuffer_atomic_or v34, v{vSIG}, s[{rDBG}:{rDBG+3}], 0 offen sc0\ns_waitcnt vmcnt(0)\nv_readfirstlane_b32 s{sBITS}, v34\ns_mov_b64 exec, -1")
    a(f"s_nop 0\ns_and_b32 s47, s{sBITS}, 0xff\ns_cmp_eq_u32 s47, 0xff\ns_cbranch_scc1 L_e_w0")
    a(f"v_mov_b32 v33, 0x80000000\nds_write_b32 v32, v33\ns_waitcnt lgkmcnt(0)\ns_branch L_e_exit")
    a(f"L_e_all:\ns_lshr_b32 s{sTODO}, s{sBITS}, 16")
    stamp(a, 'allseen')
    a(f"L_e_fin:\ns_cmp_eq_u32 s{sLATE}, 0\ns_cbranch_scc1 L_e_nolate")
    for g in range(8):
        for x in ploads(FPL, 1, g, f"s{sSHOFF}"): a(x)
    for x in xloads(): a(x)
    a("s_waitcnt vmcnt(0)")
    for x in fred_fill(FPL): a(x)
    a("L_e_nolate:\ns_waitcnt vmcnt(0)")
    for fr in range(2):
        d = 64 + 8*fr
        for n in range(8):
            r = SPR[fr] + 4*n
            for i in range(4):
                if n == 0: a(f"v_lshlrev_b32 v{d+2*i}, 16, v{r+i}\nv_and_b32 v{d+2*i+1}, 0xffff0000, v{r+i}")
                else: a(f"v_lshlrev_b32 v{80+2*i}, 16, v{r+i}\nv_and_b32 v{81+2*i}, 0xffff0000, v{r+i}")
            if n:
                for i in range(4): a(f"v_pk_add_f32 v[{d+2*i}:{d+2*i+1}], v[{d+2*i}:{d+2*i+1}], v[{80+2*i}:{81+2*i}]")
        a(f"s_add_u32 s0, s{sXOFF}, {fr*16384}")
        for e in range(2):
            xr_ = xregs[2*fr+e]
            for i in range(2): a(f"v_lshlrev_b32 v{80+2*i}, 16, v{xr_+i}\nv_and_b32 v{81+2*i}, 0xffff0000, v{xr_+i}")
            for i in range(4): a(f"v_fmac_f32 v{80+i}, v{d+4*e+i}, v{GV[8*fr+4*e+i]}")
            a(f"v_cvt_pk_bf16_f32 v{88+4*fr+2*e}, v80, v81\nv_cvt_pk_bf16_f32 v{89+4*fr+2*e}, v82, v83")
            a(f"buffer_store_dwordx2 v[{88+4*fr+2*e}:{89+4*fr+2*e}], v{vXO}, s[{rOUT}:{rOUT+3}], s0 offen offset:{32*e}")
    a(f"s_cmp_eq_u32 s{sTODO}, 0\ns_cbranch_scc1 L_e_exit")
    a(f"s_ff1_i32_b32 s47, s{sTODO}\ns_bitset0_b32 s{sTODO}, s47\ns_mov_b32 s{sLATE}, 1")
    for x in share_offsets("s47"): a(x)
    for g in range(8):
        for x in ploads(SPR, 0, g, f"s{sSHOFF}"): a(x)
    a("s_branch L_e_fin\nL_e_exit:")

def fallback():
    a = Prog()
    a("L_fallback:")
    M = [64 + qb for qb in range(4)]; AL = [68 + qb for qb in range(4)]; TM = [72 + 2*qb for qb in range(4)]
    FK, FV = 80, 88
    a(f"s_waitcnt vmcnt(0) lgkmcnt(0)\ns_mov_b32 s{sLATE}, 1")
    o1, o2 = attn_addr_ops()
    KA2 = 96; VA2 = [100 + i for i in range(8)]
    for x in o1:
        for s in range(4): x = x.replace(f"v_lshl_add_u32 v{vKA+s},", f"v_lshl_add_u32 v{KA2+s},")
        a(x)
    for x in o2:
        for db in range(8): x = x.replace(f"v_lshl_add_u32 v{vVAl[db]}, v{vT+3}, 5", f"v_lshl_add_u32 v{VA2[db]}, v{vT+3}, 5")
        a(x)
    for r in [KA2 + s for s in range(4)] + VA2: a(f"v_add_u32 v{r}, s83, v{r}")
    a(f"v_lshrrev_b32 v{vT}, 8, v{vL16}\nv_bfe_u32 v{vT+1}, v{vL16}, 4, 4")
    for part in range(4):
        for i in range(2):
            a(f"v_add_u32 v{vT+2}, {8*part + 4*i}, v{vT}\nv_and_b32 v{vT+2}, 15, v{vT+2}\nv_xor_b32 v{vT+2}, v{vT+2}, v{vT+1}\nv_lshlrev_b32 v{vT+2}, 4, v{vT+2}\nv_add_u32 v{vT+3}, {8*part}, v{vT}\nv_lshl_add_u32 v{FK+2*part+i}, v{vT+3}, 8, v{vT+2}")
            a(f"v_add_u32 v{vT+2}, {4*i}, v{vT}\nv_lshlrev_b32 v{vT+2}, 1, v{vT+2}\nv_xor_b32 v{vT+2}, v{vT+2}, v{vT+1}\nv_lshlrev_b32 v{vT+2}, 4, v{vT+2}\nv_lshl_add_u32 v{FV+2*part+i}, v{vT+3}, 8, v{vT+2}")
    for qb in range(4): a(f"v_mov_b32 v{M[qb]}, 0xff7fffff\nv_mov_b32 v{vL+qb}, 0")
    for i in range(128): a(f"v_accvgpr_write_b32 a{aO+i}, 0")
    a(f"s_mov_b32 s46, 0\ns_add_u32 s47, s83, {LB}")
    a("L_fb_loop:")
    for part in range(4):
        a(f"s_add_u32 m0, s47, {part*4096}\ns_nop 0")
        a(f"buffer_load_dwordx4 v{FK+2*part}, s[{rK}:{rK+3}], s46 offen lds\nbuffer_load_dwordx4 v{FK+2*part+1}, s[{rK}:{rK+3}], s46 offen offset:1024 lds")
        a(f"buffer_load_dwordx4 v{FV+2*part}, s[{rV}:{rV+3}], s46 offen offset:2048 lds\nbuffer_load_dwordx4 v{FV+2*part+1}, s[{rV}:{rV+3}], s46 offen offset:3072 lds")
    a("s_waitcnt vmcnt(0)")
    for x in kreads(0):
        for s in range(4): x = x.replace(f", v{vKA+s} ", f", v{KA2+s} ")
        a(x)
    a("s_waitcnt lgkmcnt(0)")
    for db in range(8):
        for jj in range(2): a(f"ds_read_b64_tr_b16 a[{aVF+db*4+2*jj}:{aVF+db*4+2*jj+1}], v{VA2[db]} offset:{jj*8192}")
    for x in qk(0, '0'): a(x)
    a("s_nop 7\ns_waitcnt lgkmcnt(0)")
    for qb in range(4):
        b0 = vS[0] + qb*8; T = TM[qb]
        a(f"v_max3_f32 v{T}, v{b0}, v{b0+1}, v{b0+2}\nv_max3_f32 v{T}, v{T}, v{b0+3}, v{b0+4}\nv_max3_f32 v{T}, v{T}, v{b0+5}, v{b0+6}\nv_max3_f32 v{T}, v{T}, v{b0+7}, v{M[qb]}")
        xreduce(a, T, 'v_max_f32', T + 1)
        a(f"v_sub_f32 v{AL[qb]}, v{M[qb]}, v{T}\nv_mov_b32 v{M[qb]}, v{T}\nv_exp_f32 v{AL[qb]}, v{AL[qb]}")
        for i in range(8): a(f"v_sub_f32 v{b0+i}, v{b0+i}, v{T}")
        for i in range(8): a(f"v_exp_f32 v{b0+i}, v{b0+i}")
        a(f"v_mul_f32 v{vL+qb}, v{vL+qb}, v{AL[qb]}")
        for i in range(8): a(f"v_add_f32 v{vL+qb}, v{vL+qb}, v{b0+i}")
        for i in range(4): a(f"v_cvt_pk_bf16_f32 v{vP[0]+qb*4+i}, v{b0+2*i}, v{b0+2*i+1}")
        for db in range(8):
            o = aO + (db*4 + qb)*4
            for i in range(4): a(f"v_accvgpr_read_b32 v{vT+i}, a{o+i}")
            for i in range(4): a(f"v_mul_f32 v{vT+i}, v{vT+i}, v{AL[qb]}")
            for i in range(4): a(f"v_accvgpr_write_b32 a{o+i}, v{vT+i}")
    a("s_nop 1")
    for x in pv(0, False, 0): a(x)
    a("s_nop 7\ns_add_u32 s46, s46, 8192\ns_cmp_lt_u32 s46, 0x80000\ns_cbranch_scc1 L_fb_loop")
    for qb in range(4): xreduce(a, vL + qb, 'v_add_f32', vT)
    a("s_branch L_fb_ret")
    return a

def final_kernel():
    a = Prog()
    a("final_kernel:")
    a("s_cmp_ge_u32 s2, 512\ns_cbranch_scc1 L_fin_end")
    if OPT['timing']: a("s_memrealtime s[30:31]")
    a("s_load_dwordx2 s[4:5], s[0:1], 0\ns_load_dwordx2 s[6:7], s[0:1], 72\ns_load_dwordx2 s[8:9], s[0:1], 88")
    a("v_lshrrev_b32 v2, 6, v0\nv_and_b32 v0, 63, v0\nv_readfirstlane_b32 s3, v2\nv_lshlrev_b32 v1, 4, v0")
    a("s_lshl_b32 s10, s2, 2\ns_nop 2\ns_add_u32 s10, s10, s3")
    a("s_waitcnt lgkmcnt(0)")
    srd(a, 12, 4, 2048*1024); srd(a, 16, 6, 2048*1024); srd(a, 20, 8, 0x2000000)
    a("s_lshl_b32 s11, s10, 10")
    for t in range(2):
        for g in range(8):
            a(f"s_add_u32 s24, s11, {t*0x1000000 + g*0x200000}")
            r = 8 + (t*8 + g)*4
            a(f"buffer_load_dwordx4 v[{r}:{r+3}], v1, s[20:23], s24 offen ; @T:l{t}{g}")
    a("s_lshr_b32 s25, s10, 6\ns_lshl_b32 s25, s25, 16\ns_and_b32 s26, s10, 3\ns_lshl_b32 s26, s26, 14\ns_add_u32 s25, s25, s26")
    a("s_bfe_u32 s26, s10, 0x40002\ns_lshl_b32 s26, s26, 6\ns_add_u32 s25, s25, s26")
    a("v_and_b32 v2, 15, v0\nv_lshlrev_b32 v2, 10, v2\nv_lshrrev_b32 v3, 4, v0\nv_lshl_add_u32 v2, v3, 3, v2")
    a("buffer_load_dwordx2 v[4:5], v2, s[12:15], s25 offen ; @T:x\nbuffer_load_dwordx2 v[6:7], v2, s[12:15], s25 offen offset:32 ; @T:x")
    acc = [72, 80]
    for t in range(2):
        for g in range(8):
            r = 8 + (t*8 + g)*4
            a(f"s_waitcnt vmcnt(@l{t}{g})")
            for i in range(4):
                if g == 0:
                    a(f"v_lshlrev_b32 v{acc[t]+2*i}, 16, v{r+i}\nv_and_b32 v{acc[t]+2*i+1}, 0xffff0000, v{r+i}")
                else:
                    a(f"v_lshlrev_b32 v88, 16, v{r+i}\nv_and_b32 v89, 0xffff0000, v{r+i}\nv_pk_add_f32 v[{acc[t]+2*i}:{acc[t]+2*i+1}], v[{acc[t]+2*i}:{acc[t]+2*i+1}], v[88:89]")
    for i in range(8): a(f"v_mul_f32 v{8+i}, {hx(-math.log2(math.e))}, v{80+i}")
    for i in range(8): a(f"v_exp_f32 v{8+i}, v{8+i}")
    for i in range(8): a(f"v_add_f32 v{8+i}, 1.0, v{8+i}")
    for i in range(8): a(f"v_rcp_f32 v{8+i}, v{8+i}")
    for i in range(8): a(f"v_mul_f32 v{8+i}, v{8+i}, v{80+i}")
    a("s_waitcnt vmcnt(@x)")
    for i in range(4): a(f"v_lshlrev_b32 v{16+2*i}, 16, v{4+i}\nv_and_b32 v{17+2*i}, 0xffff0000, v{4+i}")
    for i in range(8): a(f"v_fmac_f32 v{16+i}, v{8+i}, v{72+i}")
    for i in range(4): a(f"v_cvt_pk_bf16_f32 v{4+i}, v{16+2*i}, v{17+2*i}")
    a("buffer_store_dwordx2 v[4:5], v2, s[16:19], s25 offen\nbuffer_store_dwordx2 v[6:7], v2, s[16:19], s25 offen offset:32")
    if OPT['timing']:
        a("s_waitcnt vmcnt(0)\ns_memrealtime s[32:33]\ns_waitcnt lgkmcnt(0)\ns_mov_b32 s22, 0x4000000\ns_lshl_b32 s11, s10, 3\ns_add_u32 s11, s11, 0x3100000")
        a("v_mov_b32 v4, s30\nv_mov_b32 v5, s32\nv_mov_b32 v2, 0\nbuffer_store_dwordx2 v[4:5], v2, s[20:23], s11 offen")
    a("L_fin_end:\ns_endpgm")
    return a

def kd(name, vgpr, acc):
    return f""".section .rodata,"a"
.p2align 6
.amdhsa_kernel {name}
  .amdhsa_next_free_vgpr {vgpr}
  .amdhsa_next_free_sgpr 102
  .amdhsa_accum_offset {acc}
  .amdhsa_group_segment_fixed_size 0
  .amdhsa_kernarg_size 96
  .amdhsa_user_sgpr_count 2
  .amdhsa_user_sgpr_kernarg_segment_ptr 1
  .amdhsa_system_sgpr_workgroup_id_x 1
.end_amdhsa_kernel
"""

def build(opts=None):
    if opts: OPT.update(opts)
    m = main_kernel(); f = final_kernel()
    lo, hi = m.loop
    L1 = resolve_waits(m.L)
    dbl = m.L[:hi] + m.L[lo:hi] + m.L[hi:]
    L2 = resolve_waits(dbl)
    def loopseg(L, k):
        idx = [i for i, x in enumerate(L) if x.startswith('L_attn_loop')][0] + 1
        n = len(L2) - len(L1)
        return L[idx + k*n: idx + (k+1)*n]
    assert loopseg(L2, 0) == loopseg(L2, 1), "loop waits differ between trips"
    assert L2[-200:] == L1[-200:]
    probs = check_stream(L2, 'main')
    FB = resolve_waits(m.fb.L); probs += check_stream(FB + FB, 'fallback')
    F1 = resolve_waits(f.L); probs += check_stream(F1, 'final')
    strip = lambda L: [re.sub(r'\s*;.*', '', x) for x in L]
    txt = "; fused LN + GQA attention + GEGLU FFN (generated by my own script)\n"
    if OPT['single']:
        name = KNAME + '_kernel'
        txt += "; @launch grid=(256,1,1) block=(256,1,1) lds=163840\n"
    else:
        name = 'main_kernel'
        txt += "; @launch kernel=main_kernel grid=(256,1,1) block=(256,1,1) lds=163840\n; @launch kernel=final_kernel grid=(512,1,1) block=(256,1,1) lds=0\n"
    txt += '.amdgcn_target "amdgcn-amd-amdhsa--gfx950"\n.text\n'
    L1[0] = name + ':'
    txt += f".globl {name}\n.p2align 8\n.type {name},@function\n" + "\n".join(strip(L1)) + "\nL_code_end:\n" + "\n".join(strip(FB)) + "\n"
    if not OPT['single']:
        txt += ".globl final_kernel\n.p2align 8\n.type final_kernel,@function\n" + "\n".join(strip(F1)) + "\n"
    txt += kd(name, 512, 256) + ('' if OPT['single'] else kd('final_kernel', 96, 96))
    return txt, probs

if __name__ == '__main__':
    opts = eval(sys.argv[2]) if len(sys.argv) > 2 else None
    txt, probs = build(opts)
    open(sys.argv[1], 'w').write(txt)
    print(len(txt), 'bytes;', len(probs), 'hazard problems')
    for p in probs[:30]: print(p)
```

```python
import sys, re, math, struct
from asmlib import Ins, check_stream, cost

KNAME = 'recurrent_scan__gqa_block_cached__geglu_ffn__prompt'
MF = 'v_mfma_f32_16x16x32_bf16'
def f2u(x): return struct.unpack('<I', struct.pack('<f', x))[0]
def hx(x): return '0x%08x' % f2u(x)

OPT = dict(late2=1, npre=14, ocap=16, lnm=1, early=0, lnevery=16, map=4, xdma=1, psleep=8, single=1, spin=200000, msum=2, stflags=' sc1', prefetch=1, codepf=1, timing=0, stamps=[0,1,2,3,4,5,6,7], fthresh=24, filler_cap=48)

sW, sG, sRB, sNU, sU0 = 3, 4, 5, 6, 7
sRBX = sRB
rK, rV, rWG, rWU, rWQ, rWD, rWO, rX, rWS = 8, 12, 16, 20, 24, 28, 32, 36, 40
rOUT, rDBG = 64, 68
sLATE, sSHOFF, sXOFF, sDONE, sTODO, sBITS = 61, 62, 63, 84, 85, 1
sKO = 44
sKVM0, sCNT, sRING, sJ, sOFF0, sOFF1, sROT = 48, 49, 50, 51, 52, 53, 54
sCOG, sCOQ, sCOD, sCOD3, sCOO, sSLAB = 55, 56, 57, 58, 59, 60
sT = 72
sTS = 86
vFA, vL16 = 0, 1
vWA, vWI = 2, 6
vDG, vDQ, vDO = 10, 14, 18
vDK, vDV = 22, 24
vT = 26
vGB, vPF = 30, 31
vW = 32
bA, bB, bC = 64, 128, 192
vKA = 10
vVAl = [2, 3, 4, 5, 14, 15, 16, 17]
vQ = bB; vS = [bC, bC + 32]; vP = [32, 48]
vNEGM, vONES, vLM, vL = 96, 112, 116, 124
aO, aKF, aVF = 0, 192, 224
RING = 0
LB = 98304

class Prog:
    def __init__(self): self.L = []
    def __call__(self, s):
        for x in s.split('\n'):
            x = x.strip()
            if x: self.L.append(x)

def srd(a, r, lo, size, add=None, sub=None):
    a(f"s_mov_b32 s{r}, s{lo}\ns_mov_b32 s{r+1}, s{lo+1}")
    if add: a(f"s_add_u32 s{r}, s{r}, {add}\ns_addc_u32 s{r+1}, s{r+1}, 0")
    if sub: a(f"s_sub_u32 s{r}, s{r}, {sub}\ns_subb_u32 s{r+1}, s{r+1}, 0")
    a(f"s_mov_b32 s{r+2}, {size}\ns_mov_b32 s{r+3}, 0x20000")

def stampl(name):
    if OPT['timing'] and name in OPT['stamps']:
        i = OPT['stamps'].index(name)
        return [f"s_memtime s[{sTS+2*i}:{sTS+2*i+1}]", "s_waitcnt lgkmcnt(0)"]
    return []
def stamp(a, name):
    for x in stampl(name): a(x)

def resolve_waits(lines):
    parsed = []
    for l in lines:
        t = l.split(';')[0].strip()
        parsed.append(None if (not t or t.endswith(':') or t.startswith('.')) else Ins(t))
    out = list(lines)
    vmq = []; dsq = []
    for i, l in enumerate(lines):
        I = parsed[i]
        if I is None: continue
        tag = None
        m = re.search(r'@T:(\w+)', l)
        if m: tag = m.group(1)
        if I.op == 's_waitcnt':
            parts = []
            m = re.search(r'vmcnt\(([^)]*)\)', l)
            if m:
                x = m.group(1)
                if x.startswith('@'):
                    idx = [k for k, e in enumerate(vmq) if e[0] in x[1:].split('|')]
                    n = len(vmq) - 1 - idx[-1] if idx else None
                else: n = int(x)
                if n is not None:
                    n = min(n, 63); parts.append(f"vmcnt({n})")
                    while len(vmq) > n: vmq.pop(0)
            m = re.search(r'lgkmcnt\(([^)]*)\)', l)
            if m:
                ns = []
                for x in m.group(1).split('+'):
                    if x == '@auto':
                        need = -1
                        for j in range(i + 1, len(lines)):
                            J = parsed[j]
                            if J is None: continue
                            if J.op == 's_waitcnt' and ('@auto' in lines[j] or 'lgkmcnt(0)' in lines[j]): break
                            tch = set(J.r) | set(J.w)
                            for k, e in enumerate(dsq):
                                if tch & e[1]: need = max(need, k)
                        if need >= 0: ns.append(len(dsq) - 1 - need)
                    elif x.startswith('@'):
                        idx = [k for k, e in enumerate(dsq) if e[0] == x[1:]]
                        if idx: ns.append(len(dsq) - 1 - idx[-1])
                    else: ns.append(int(x))
                if ns:
                    n = min(min(ns), 15); parts.append(f"lgkmcnt({n})")
                    while len(dsq) > n: dsq.pop(0)
            out[i] = ("s_waitcnt " + " ".join(parts)) if parts else None
        elif I.kind in ('dsr', 'dsw'): dsq.append((tag, set(I.w)))
        elif I.kind == 'smem':
            dsq.append((tag, set(I.w))); dsq.append((tag, set(I.w)))
        elif I.kind in ('vld', 'vst', 'dma') and '@X' not in l: vmq.append((tag, set(I.w)))
    return [x for x in out if x is not None]

class Panel:
    def __init__(self, name, srd, dv, rs, co, acc, first, bfrag, inter, rot, row0=0):
        self.name = name; self.srd = srd; self.dv = dv; self.rs = rs; self.co = co; self.acc = acc
        self.first = first; self.bfrag = bfrag; self.inter = inter; self.rot = rot; self.row0 = row0

def panel_dma(P, idx):
    sl = idx % 3
    s0 = []
    if P.rot:
        s0 += [f"s_add_u32 s{sJ}, s{sJ}, 1", f"s_and_b32 s{sJ}, s{sJ}, 7", f"s_mul_i32 s{sOFF0}, s{sJ}, {64*P.rs}", f"s_add_u32 s{sOFF0}, s{sOFF0}, {P.co}"]
        if P.row0: s0.append(f"s_add_u32 s{sOFF0}, s{sOFF0}, {P.row0}")
    elif P.name[0] == 'O':
        s0 += [f"s_add_u32 s{sOFF0}, s{44 + P.j % 4}, {P.row0}"]
    else:
        s0 += [f"s_add_u32 s{sOFF0}, {P.co}, {P.row0}"]
    s0 += [f"s_add_u32 m0, s{sRING}, {sl*8192}"]
    s1 = [f"s_add_u32 s{sOFF1}, s{sOFF0}, {32*P.rs}", f"s_add_u32 m0, s{sRING}, {sl*8192 + 4096}"]
    d = []
    for i in range(8):
        so = sOFF0 if i < 4 else sOFF1
        off = f" offset:{1024*(i%4)}" if i % 4 else ""
        d.append(f"buffer_load_dwordx4 v{P.dv + i%4}, s[{P.srd}:{P.srd+3}], s{so} offen{off} lds ; @T:w{idx}")
    return s0, s1, d

def wreads(P, idx, nb):
    sl = idx % 3; out = []
    for ks in range(2):
        for jj in range(2):
            r = vW + nb*8 + ks*4 + jj*2
            if P.inter: ad = vWI + nb; off = sl*8192 + ks*4096 + jj*2048
            else: ad = vWA + (nb ^ (2*jj)); off = sl*8192 + ks*4096 + jj*512
            out.append(f"ds_read_b64_tr_b16 v[{r}:{r+1}], v{ad} offset:{off} ; @T:wr{idx}_{nb}")
    return out

def panel_mfmas(P):
    out = []
    for nb in range(4):
        for qb in range(4):
            for ks in range(2):
                d = P.acc + (nb*4 + qb)*4; w = vW + nb*8 + ks*4; b = P.bfrag(ks, qb)
                c = '0' if (P.first and ks == 0) else f"v[{d}:{d+3}]"
                out.append(f"{MF} v[{d}:{d+3}], v[{w}:{w+3}], a[{b}:{b+3}], {c}")
    return out

def emit_stream(a, panels, base, fillers, extra_mem, extra_shadow, nxt=None, must_empty=(), quiet=None, cap=None):
    allp = panels + (nxt or [])
    q = []; pend = []
    for pos, P in enumerate(panels):
        idx = base + pos
        if pos in must_empty: assert not q, (pos, len(q))
        q += fillers.get(pos, [])
        stamp(a, f'p{idx}')
        ms = panel_mfmas(P)
        shadow = [[] for _ in range(32)]; mem = [[] for _ in range(32)]; dma = {}
        r3 = wreads(P, idx, 3)
        mem[0] += r3[:2]; mem[1] += r3[2:]
        hasn = pos + 1 < len(allp)
        if hasn:
            N = allp[pos+1]
            shadow[7].append(f"s_waitcnt vmcnt(@w{idx+1}) lgkmcnt(@auto+@wr{idx}_3)")
            for nb in range(3):
                r = wreads(N, idx+1, nb); g = 8*nb + 8
                mem[g] += r[:2]; mem[g+2] += r[2:]
        else:
            shadow[7].append(f"s_waitcnt lgkmcnt(@auto)")
        shadow[15].append("s_waitcnt lgkmcnt(@auto)"); shadow[23].append("s_waitcnt lgkmcnt(@auto)"); shadow[31].append("s_waitcnt lgkmcnt(@auto)")
        if pos + 3 < len(allp):
            s0, s1, d = panel_dma(allp[pos+3], idx+3)
            for k, x in enumerate(s0): shadow[8 - len(s0) + k - (1 if 8 - len(s0) + k <= 7 else 0)].append(x)
            gaps = [9, 11, 13, 17, 19, 21, 25, 27]
            shadow[16].append(s1[0]); shadow[18].append(s1[1])
            for x, g in zip(d, gaps): dma[g] = x
        for (p2, g), x in extra_mem.items():
            if p2 == pos:
                assert g not in dma, (pos, g)
                mem[g] += x
        for (p2, g), x in extra_shadow.items():
            if p2 == pos: shadow[g] += x
        budget = (cap or {}).get(pos, OPT['filler_cap'])
        free = [g for g in range(32) if g not in dma]
        base_room = sum(max(0, 2 - len(mem[g])) for g in free)
        want = min(budget, sum(cost(x) for x in q))
        extra = max(0, want - base_room); acc = 0.0
        for g in range(32):
            a(ms[g])
            for x in shadow[g]: a(x)
            if g in dma:
                a(dma[g]); continue
            for x in mem[g]:
                if x: a(x)
            room = 2 - len(mem[g])
            acc += extra / len(free)
            while q:
                x = q[0]
                if x.startswith('ds_') or x.startswith('buffer'):
                    pend.append(q.pop(0)); continue
                c = cost(x)
                if pend and (set(Ins(x.split(';')[0]).w) & set(sum((Ins(y.split(';')[0]).r for y in pend), []))): break
                if c <= room: room -= c
                elif (c - room) <= acc + (0.75 if room > 0 and extra > 0 else 0): acc -= (c - max(room, 0)); room = 0
                else: break
                a(q.pop(0))
            if pend and g + 1 < 32 and (g + 1) not in dma and len(mem[g+1]) <= (1 if quiet else 0) and ((g + 1) in (quiet or OPT.get('quiet', (4, 6, 22, 28, 30))) or not dma):
                mem[g+1] += [pend.pop(0), None]
        if (pos + 1) in must_empty and not q:
            for x in pend: a(x)
            pend = []
        q = pend + q; pend = []
    return q

def gelu_stage1(G):
    A = -2.0 * math.log2(math.e) * math.sqrt(2.0 / math.pi)
    ops = []
    for blk in range(16):
        x = [G + blk*4 + i for i in range(4)]; t = [vT + i for i in range(4)]
        ops += [f"v_mul_f32 v{t[i]}, v{x[i]}, v{x[i]}" for i in range(4)]
        ops += [f"v_fmaak_f32 v{t[i]}, v{vGB}, v{t[i]}, {hx(A)}" for i in range(4)]
        ops += [f"v_mul_f32 v{t[i]}, v{t[i]}, v{x[i]}" for i in range(4)]
        ops += [f"v_exp_f32 v{t[i]}, v{t[i]}" for i in range(4)]
        ops += [f"v_add_f32 v{t[i]}, 1.0, v{t[i]}" for i in range(4)]
        ops += [f"v_rcp_f32 v{t[i]}, v{t[i]}" for i in range(4)]
        ops += [f"v_mul_f32 v{x[i]}, v{x[i]}, v{t[i]}" for i in range(4)]
    return ops

def geglu_stage2(G, U):
    ops = []
    for sp in range(2):
        for qb in range(4):
            b0 = ((2*sp)*4 + qb)*4; b1 = ((2*sp+1)*4 + qb)*4
            for b in (b0, b1):
                ops += [f"v_mul_f32 v{G+b+i}, v{G+b+i}, v{U+b+i}" for i in range(4)]
            d = U + b0
            ops += [f"v_cvt_pk_bf16_f32 v{d}, v{G+b0}, v{G+b0+1}", f"v_cvt_pk_bf16_f32 v{d+1}, v{G+b0+2}, v{G+b0+3}",
                    f"v_cvt_pk_bf16_f32 v{d+2}, v{G+b1}, v{G+b1+1}", f"v_cvt_pk_bf16_f32 v{d+3}, v{G+b1+2}, v{G+b1+3}"]
            ops += [f"ds_write_b128 v{vPF}, v[{d}:{d+3}] offset:{(sp*4 + qb)*1024} ; @T:hw"]
    return ops

def qpack(acc, half):
    c = math.log2(math.e) / math.sqrt(128.0)
    ops = []; late = []
    for sp in range(2):
        for qb in range(4):
            b0 = acc + ((2*sp)*4 + qb)*4; b1 = acc + ((2*sp+1)*4 + qb)*4
            for b in (b0, b1):
                ops += [f"v_mul_f32 v{b+i}, {hx(c)}, v{b+i}" for i in range(4)]
            ops += late; late = []
            d = vQ + (qb*4 + 2*half + sp)*4
            ops += [f"v_cvt_pk_bf16_f32 v{d}, v{b0}, v{b0+1}", f"v_cvt_pk_bf16_f32 v{d+1}, v{b0+2}, v{b0+3}",
                    f"v_cvt_pk_bf16_f32 v{d+2}, v{b1}, v{b1+1}", f"v_cvt_pk_bf16_f32 v{d+3}, v{b1+2}, v{b1+3}"]
            late = [f"v_permlane32_swap_b32 v{d}, v{d+2}", f"v_permlane32_swap_b32 v{d+1}, v{d+3}", "s_nop 0",
                    f"v_permlane16_swap_b32 v{d}, v{d+2}", f"v_permlane16_swap_b32 v{d+1}, v{d+3}"]
    return ops + ["s_nop 1"] + late

def slab_store(acc, t, hf):
    ops = []
    for sp in range(2):
        for qb in range(4):
            b0 = acc + ((2*sp)*4 + qb)*4; b1 = acc + ((2*sp+1)*4 + qb)*4
            ops += [f"v_cvt_pk_bf16_f32 v{b0}, v{b0}, v{b0+1}", f"v_cvt_pk_bf16_f32 v{b0+1}, v{b0+2}, v{b0+3}",
                    f"v_cvt_pk_bf16_f32 v{b0+2}, v{b1}, v{b1+1}", f"v_cvt_pk_bf16_f32 v{b0+3}, v{b1+2}, v{b1+3}"]
            f = hf*8 + sp*4 + qb
            so = sT + (t*4 + f // 4)
            ops += [f"buffer_store_dwordx4 v[{b0}:{b0+3}], v{vL16}, s[{rWS}:{rWS+3}], s{so} offen offset:{(f%4)*1024}{OPT['stflags']} ; @T:st"]
    return ops

def park_d0(acc):
    ops = []
    for sp in range(2):
        for qb in range(4):
            b0 = acc + ((2*sp)*4 + qb)*4; b1 = acc + ((2*sp+1)*4 + qb)*4
            ops += [f"v_cvt_pk_bf16_f32 v{b0}, v{b0}, v{b0+1}", f"v_cvt_pk_bf16_f32 v{b0+1}, v{b0+2}, v{b0+3}",
                    f"v_cvt_pk_bf16_f32 v{b0+2}, v{b1}, v{b1+1}", f"v_cvt_pk_bf16_f32 v{b0+3}, v{b1+2}, v{b1+3}"]
            ops += [f"v_accvgpr_write_b32 a{128 + (sp*4+qb)*4 + i}, v{b0+i}" for i in range(4)]
    return ops
def park_d1(acc):
    ops = []
    for sp in range(2):
        for qb in range(4):
            b0 = acc + ((2*sp)*4 + qb)*4; b1 = acc + ((2*sp+1)*4 + qb)*4; d = 64 + (sp*4 + qb)*4
            ops += [f"v_cvt_pk_bf16_f32 v{d}, v{b0}, v{b0+1}", f"v_cvt_pk_bf16_f32 v{d+1}, v{b0+2}, v{b0+3}",
                    f"v_cvt_pk_bf16_f32 v{d+2}, v{b1}, v{b1+1}", f"v_cvt_pk_bf16_f32 v{d+3}, v{b1+2}, v{b1+3}"]
    return ops
def parked_store(f):
    r = f"a[{128+4*f}:{131+4*f}]" if f < 8 else f"v[{64+4*(f-8)}:{67+4*(f-8)}]"
    if OPT.get('nofst'): return "s_nop 0"
    return f"buffer_store_dwordx4 {r}, v{vL16}, s[{rWS}:{rWS+3}], s{sT + 4 + f//4} offen offset:{(f%4)*1024}{OPT.get('fstflags', OPT['stflags'])}"

def qk(b, cinit='negm'):
    out = []
    for qb in range(4):
        for kb in range(2):
            for s in range(4):
                r = vS[b] + (qb*2 + kb)*4; d = f"v[{r}:{r+3}]"
                c = d if s else (f"v[{vNEGM+4*qb}:{vNEGM+4*qb+3}]" if cinit == 'negm' else '0')
                k = aKF + (kb*4 + s)*4; q = vQ + (qb*4 + s)*4
                out.append(f"{MF} {d}, a[{k}:{k+3}], v[{q}:{q+3}], {c}")
    return out
def pv(b, first=False, nsum=None, aVF=aVF):
    nsum = OPT['msum'] if nsum is None else nsum
    out = []
    for qb in range(4):
        p = vP[b] + qb*4
        for db in range(8):
            o = aO + (db*4 + qb)*4; v = aVF + db*4
            c = '0' if first else f"a[{o}:{o+3}]"
            out.append(f"{MF} a[{o}:{o+3}], a[{v}:{v+3}], v[{p}:{p+3}], {c}")
        if qb < nsum:
            l = vLM + 4*qb
            out.append(f"{MF} v[{l}:{l+3}], v[{vONES}:{vONES+3}], v[{p}:{p+3}], {'0' if first else f'v[{l}:{l+3}]'}")
    return out
def kreads(sl):
    return [f"ds_read_b128 a[{aKF+(kb*4+s)*4}:{aKF+(kb*4+s)*4+3}], v{vKA+s} offset:{sl*16384 + kb*8192}" for kb in range(2) for s in range(4)]
def vreads(sl, aVF=aVF):
    return [f"ds_read_b64_tr_b16 a[{aVF+db*4+2*jj}:{aVF+db*4+2*jj+1}], v{vVAl[db]} offset:{sl*16384 + jj*8192}" for db in range(8) for jj in range(2)]
def kvdma(sl, kidx, vidx, dok=True, dov=True):
    sc = [f"s_add_u32 m0, s{sKVM0}, {sl*16384}"]; d = []
    if dok:
        ks = sKO + kidx % 4; kp = sKO + (kidx - 1) % 4
        sc += [f"s_add_u32 s{ks}, s{kp}, 8192", f"s_and_b32 s{ks}, s{ks}, 0x7ffff"]
        d += [f"buffer_load_dwordx4 v{vDK}, s[{rK}:{rK+3}], s{ks} offen lds ; @T:kv{sl}",
              f"buffer_load_dwordx4 v{vDK+1}, s[{rK}:{rK+3}], s{ks} offen offset:1024 lds ; @T:kv{sl}"]
    if dov:
        vs = sKO + vidx % 4
        d += [f"buffer_load_dwordx4 v{vDV}, s[{rV}:{rV+3}], s{vs} offen offset:2048 lds ; @T:kv{sl}",
              f"buffer_load_dwordx4 v{vDV+1}, s[{rV}:{rV+3}], s{vs} offen offset:3072 lds ; @T:kv{sl}"]
    return sc, d
def smq(b):
    nsum = OPT['msum']; E = []; Sg = []
    for qb in range(4):
        for i in range(4):
            s0 = vS[b] + qb*8 + 2*i
            E += [f"v_exp_f32 v{s0}, v{s0}", f"v_exp_f32 v{s0+1}, v{s0+1}"]; k = len(E)
            if qb >= nsum:
                Sg += [(k-1, f"v_add_f32 v{vL+qb}, v{vL+qb}, v{s0}"), (k, f"v_add_f32 v{vL+qb}, v{vL+qb}, v{s0+1}")]
            Sg += [(k, f"v_cvt_pk_bf16_f32 v{vP[b]+qb*4+i}, v{s0}, v{s0+1}")]
    return E, Sg

def check_p(m, *queues):
    rd = set(Ins(m).ab)
    for q in queues:
        for x in (q or []): assert not (set(Ins(x[1]).w) & rd), (m, x)

def period(p, carry, dok=True, dov=True, first=False, kread=True, xdma=None, alsowait=None, nofill=(), kvg=([2, 3, 4], [27, 39, 47, 59]), vnext=None):
    sl = p % 4
    ms = qk((p+1) % 2) + pv(p % 2, first)
    N = len(ms); H = 32
    shadow = [None]*N
    shadow[N-1] = f"s_waitcnt vmcnt(@kv{(p+1)%4}{'|' + alsowait if alsowait else ''}) lgkmcnt(0)"
    shadow[H-1] = "s_waitcnt lgkmcnt(0)"
    shadow[0] = "s_barrier"
    mem = []
    vr = vreads(sl)
    for i, x in enumerate(vr): mem.append((1 + (i*24) // len(vr), x))
    if kread:
        kr = kreads(sl)
        for i, x in enumerate(kr): mem.append((33 + (i*24) // len(kr), x))
    if vnext:
        for i, x in enumerate(vnext): mem.append((33 + (i*26) // len(vnext), x))
    dmag = {}
    if dok or dov:
        sc, dd = kvdma((p + 3) % 4, p + 5, p + 3, dok, dov)
        for x, g in zip(sc, kvg[0]): shadow[g] = x
        for x, g in zip(dd, kvg[1]): dmag[g] = x
    if xdma:
        for (g, x) in xdma:
            if x.startswith('buffer'):
                assert g not in dmag and not shadow[g]; dmag[g] = x
            else:
                assert not shadow[g] and g not in dmag, (g, x); shadow[g] = x
    mem.sort(key=lambda t: t[0])
    st = 34
    cE, cS, cdone = carry
    nE, nS = smq((p+1) % 2)
    lines = []
    E = list(cE); Sq = list(cS); edone = cdone
    mi = 0
    extra = max(0, 64 + len(mem) + len(nS) + 2*len(dmag) + 2*len(nofill) - 2*N)
    acc = 0.0; old_S = None
    for g in range(N):
        check_p(ms[g], old_S, Sq if g <= st else None)
        lines.append(ms[g])
        if shadow[g]: lines.append(shadow[g])
        if g == st:
            assert not E, (p, len(E))
            old_S = Sq; E = nE; Sq = nS; edone = 0
        acc += extra / N
        if g in dmag:
            lines.append(dmag[g]); continue
        if g in nofill: continue
        room = 2
        if acc >= 1.0 - 1e-9: room += 1; acc -= 1.0
        gm = []; gv = []
        e_prev = edone
        left = (st - g) if g < st else (N - g + st)
        navail = (1 if (mi < len(mem) and mem[mi][0] <= g) else 0) + (len(old_S) if old_S else 0) + sum(1 for x in Sq if x[0] <= e_prev)
        if E and (len(E) * 2 >= left or navail < 2):
            gv.append(E.pop(0)); room -= 2; edone += 1
        while room > 0:
            if mi < len(mem) and mem[mi][0] <= g: gm.append(mem[mi][1]); mi += 1; room -= 1
            elif old_S: gv.append(old_S.pop(0)[1]); room -= 1
            elif Sq and Sq[0][0] <= e_prev: gv.append(Sq.pop(0)[1]); room -= 1
            elif mi < len(mem) and mem[mi][0] <= g + 3: gm.append(mem[mi][1]); mi += 1; room -= 1
            else: break
        lines += gm + gv
    assert mi == len(mem) and not old_S, (mi, len(mem), old_S)
    return lines, (E, Sq, edone)

def xreduce(a, reg, op, tmp):
    a(f"v_mov_b32 v{tmp}, v{reg}\ns_nop 1\nv_permlane16_swap_b32 v{reg}, v{tmp}\ns_nop 1\n{op} v{reg}, v{reg}, v{tmp}")
    a(f"v_mov_b32 v{tmp}, v{reg}\ns_nop 1\nv_permlane32_swap_b32 v{reg}, v{tmp}\ns_nop 1\n{op} v{reg}, v{reg}, v{tmp}")

def attn_addr_ops():
    o = []
    t0, t1, t2, t3 = vT, vT+1, vT+2, vT+3
    o += [f"v_bfe_u32 v{t0}, v{vL16}, 4, 4", f"v_lshrrev_b32 v{t1}, 8, v{vL16}"]
    o += [f"v_lshrrev_b32 v{t2}, 3, v{t0}", f"v_lshlrev_b32 v{t2}, 12, v{t2}", f"v_and_b32 v{t3}, 7, v{t0}", f"v_lshlrev_b32 v{t3}, 8, v{t3}",
          f"v_add_u32 v{t2}, v{t2}, v{t3}", f"v_add_u32 v{t2}, {LB}, v{t2}"]
    for s in range(4):
        o += [f"v_add_u32 v{t3}, {4*s}, v{t1}", f"v_xor_b32 v{t3}, v{t3}, v{t0}", f"v_lshl_add_u32 v{vKA+s}, v{t3}, 4, v{t2}"]
    o2 = []
    o2 += [f"v_bfe_u32 v{t0}, v{vL16}, 6, 3", f"v_lshrrev_b32 v{t2}, 9, v{vL16}", f"v_lshlrev_b32 v{t2}, 12, v{t2}",
           f"v_lshl_add_u32 v{t2}, v{t0}, 8, v{t2}", f"v_add_u32 v{t2}, {LB + 2048}, v{t2}", f"v_bfe_u32 v{t3}, v{vL16}, 4, 2", f"v_lshl_add_u32 v{t2}, v{t3}, 3, v{t2}"]
    for db in range(8):
        o2 += [f"v_xor_b32 v{t3}, {db}, v{t0}", f"v_lshl_add_u32 v{vVAl[db]}, v{t3}, 5, v{t2}"]
    return o, o2

def pf_addr(st, vt):
    if OPT['map'] == 8:
        return [f"s_lshl_b32 {st}, s{sRB}, 2", f"s_add_u32 {st}, {st}, s{sW}", f"s_lshl_b32 {st}, {st}, 12", f"v_and_b32 v{vPF}, 0x1f0, v{vL16}", f"v_lshlrev_b32 v{vPF}, 3, v{vPF}",
                f"v_lshrrev_b32 v{vt}, 9, v{vL16}", f"v_lshl_add_u32 v{vPF}, v{vt}, 6, v{vPF}", f"v_add_u32 v{vPF}, {st}, v{vPF}"]
    return [f"s_and_b32 {st}, s{sRB}, 15", f"s_lshl_b32 {st}, {st}, 2", f"s_add_u32 {st}, {st}, s{sW}", f"s_lshl_b32 {st}, {st}, 13", f"v_lshlrev_b32 v{vPF}, 3, v{vL16}", f"v_add_u32 v{vPF}, {st}, v{vPF}"]

def interleave(a, base, extra, every, start=0):
    k = 0
    for n, x in enumerate(base):
        a(x)
        if n >= start and (n + 1 - start) % every == 0 and k < len(extra) and not x.startswith('s_memtime'):
            for y in extra[k]: a(y)
            k += 1
    for g in extra[k:]:
        for y in g: a(y)

def unpack_sum(dst, srcs, t0):
    ops = []
    for n, r in enumerate(srcs):
        for i in range(4):
            if n == 0:
                ops += [f"v_lshlrev_b32 v{dst+2*i}, 16, v{r+i}", f"v_and_b32 v{dst+2*i+1}, 0xffff0000, v{r+i}"]
            else:
                ta, tb = t0 + 2*(i % 2), t0 + 2*(i % 2) + 1
                ops += [f"v_lshlrev_b32 v{ta}, 16, v{r+i}", f"v_and_b32 v{tb}, 0xffff0000, v{r+i}",
                        f"v_add_f32 v{dst+2*i}, v{dst+2*i}, v{ta}", f"v_add_f32 v{dst+2*i+1}, v{dst+2*i+1}, v{tb}"]
    return ops

def silu_ops(r, n, tmp):
    ops = []
    for b in range(0, n, 4):
        ops += [f"v_mul_f32 v{tmp+i}, {hx(-math.log2(math.e))}, v{r+b+i}" for i in range(4)]
        ops += [f"v_exp_f32 v{tmp+i}, v{tmp+i}" for i in range(4)]
        ops += [f"v_add_f32 v{tmp+i}, 1.0, v{tmp+i}" for i in range(4)]
        ops += [f"v_rcp_f32 v{tmp+i}, v{tmp+i}" for i in range(4)]
        ops += [f"v_mul_f32 v{r+b+i}, v{r+b+i}, v{tmp+i}" for i in range(4)]
    return ops

def share_offsets(sh):
    return [f"s_lshl_b32 s{sSHOFF}, s{sRB}, 3", f"s_add_u32 s{sSHOFF}, s{sSHOFF}, {sh}", f"s_lshl_b32 s{sSHOFF}, s{sSHOFF}, 2", f"s_add_u32 s{sSHOFF}, s{sSHOFF}, s{sW}", f"s_lshl_b32 s{sSHOFF}, s{sSHOFF}, 11",
            f"s_lshl_b32 s{sXOFF}, {sh}, 1", f"s_lshr_b32 s0, s{sW}, 1", f"s_add_u32 s{sXOFF}, s{sXOFF}, s0", f"s_lshl_b32 s{sXOFF}, s{sXOFF}, 6",
            f"s_and_b32 s0, s{sW}, 1", f"s_lshl_b32 s0, s0, 15", f"s_add_u32 s{sXOFF}, s{sXOFF}, s0", f"s_lshl_b32 s0, s{sRB}, 16", f"s_add_u32 s{sXOFF}, s{sXOFF}, s0"]

def ploads(dst, t, g, base):
    return [f"s_add_u32 s0, {base}, {t*0x1000000 + g*0x200000}",
            f"buffer_load_dwordx4 v[{dst[0]+g*4}:{dst[0]+g*4+3}], v{vL16}, s[{rWS}:{rWS+3}], s0 offen sc1 ; @T:pl",
            f"buffer_load_dwordx4 v[{dst[1]+g*4}:{dst[1]+g*4+3}], v{vL16}, s[{rWS}:{rWS+3}], s0 offen offset:1024 sc1 ; @T:pl"]
FPE, FPL, SPR = (192, 64), (192, 96), (128, 160)

vOA = 248
vXO, vSIG, vXD, vGV = 10, 11, 2, 128
xregs = [2, 4, 12, 14]
def xloads():
    o = []
    for i in range(2):
        o.append(f"s_add_u32 s0, s{sXOFF}, {i*16384}")
        for e in range(2):
            r = xregs[2*i+e]
            o.append(f"buffer_load_dwordx2 v[{r}:{r+1}], v{vXO}, s[{rX}:{rX+3}], s0 offen offset:{32*e} ; @T:xl")
    return o
def f_reduce_ops():
    ops = []
    ops += unpack_sum(vGA, [128 + 4*g for g in range(8)], vT)
    ops += unpack_sum(vGA + 8, [160 + 4*g for g in range(8)], vT)
    ops += silu_ops(vGA, 16, vT)
    return ops
vGA = 96

def main_kernel():
    global vGA
    a = Prog()
    a(f"main_kernel:")
    a("s_cmp_ge_u32 s2, 256\ns_cbranch_scc1 L_main_end")
    stamp(a, 0)
    if OPT['timing']: a("s_memrealtime s[100:101]\ns_waitcnt lgkmcnt(0)")
    a("s_load_dwordx16 s[64:79], s[0:1], 0\ns_load_dwordx8 s[80:87], s[0:1], 64") if not OPT['timing'] else a("s_load_dwordx16 s[64:79], s[0:1], 0\ns_load_dwordx4 s[80:83], s[0:1], 64\ns_load_dwordx2 s[84:85], s[0:1], 80\ns_load_dwordx2 s[44:45], s[0:1], 88")
    WSP = 86 if not OPT['timing'] else 44
    a(f"v_lshrrev_b32 v2, 6, v0\nv_and_b32 v0, 63, v0\nv_readfirstlane_b32 s{sW}, v2")
    a(f"v_lshlrev_b32 v{vL16}, 4, v0")
    if OPT['map'] == 8:
        a(f"s_and_b32 s{sG}, s2, 7\ns_lshr_b32 s{sRB}, s2, 3")
    else:
        a(f"s_and_b32 s{sG}, s2, 3\ns_lshl_b32 s{sG}, s{sG}, 1\ns_bfe_u32 s{sRB}, s2, 0x10003\ns_add_u32 s{sG}, s{sG}, s{sRB}")
        a(f"s_bfe_u32 s{sRB}, s2, 0x10002\ns_lshl_b32 s{sRB}, s{sRB}, 4\ns_lshr_b32 s{sROT}, s2, 4\ns_add_u32 s{sRB}, s{sRB}, s{sROT}")
    if OPT['xdma']:
        a(f"s_and_b32 s{sROT}, s{sRB}, 3\ns_lshl_b32 s{sROT}, s{sROT}, 1")
        a(f"v_lshrrev_b32 v6, 4, v0\nv_and_b32 v5, 15, v0")
        for rg in range(4):
            a(f"v_add_u32 v7, {4*rg}, v6\nv_xor_b32 v7, v7, v5\nv_lshlrev_b32 v7, 4, v7\nv_add_u32 v8, {3*rg}, v6\nv_lshl_add_u32 v{32+rg}, v8, 10, v7")
        a(f"s_lshl_b32 s62, s{sRB}, 16\ns_lshl_b32 s63, s{sW}, 14\ns_add_u32 s62, s62, s63\ns_add_u32 s60, s63, {LB}\ns_lshl_b32 s63, s{sROT}, 7")
    else:
        a(f"s_and_b32 s{sROT}, s{sRB}, 7")
        a(f"v_and_b32 v5, 15, v0\nv_lshlrev_b32 v5, 10, v5\nv_lshrrev_b32 v6, 4, v0\nv_lshl_add_u32 v5, v6, 4, v5")
        a(f"s_lshl_b32 s62, s{sRB}, 16\ns_lshl_b32 s63, s{sW}, 14\ns_add_u32 s62, s62, s63\ns_lshl_b32 s63, s{sROT}, 7")
    for x in pf_addr('s61', 3): a(x)
    if OPT['codepf']:
        a("s_getpc_b64 s[46:47]\nL_pc0:")
        a(f"v_min_u32 v7, L_code_end-L_pc0-4, v{vPF}")
        a(f"global_load_dword v{vGB}, v7, s[46:47] ; @T:pf")
    a("s_waitcnt lgkmcnt(0)")
    stamp(a, 'karg')
    srd(a, rX, 64, 2048*1024)
    if OPT['xdma']:
        for c4 in range(4):
            a(f"s_add_u32 s61, s63, {c4*256}\ns_and_b32 s61, s61, 0x3ff\ns_add_u32 m0, s60, {c4*4096}\ns_add_u32 s61, s61, s62")
            for rg in range(4): a(f"buffer_load_dwordx4 v{32+rg}, s[{rX}:{rX+3}], s61 offen offset:{rg*1024} lds ; @T:x{c4}")
        for sx in range(4):
            a(f"v_add_u32 v7, {4*sx}, v6\nv_xor_b32 v7, v7, v5\nv_lshlrev_b32 v7, 4, v7\nv_lshl_add_u32 v7, v5, 8, v7\nv_add_u32 v{50+sx}, s60, v7")
    else:
        for k in range(16):
            a(f"s_add_u32 s61, s63, {k*64}\ns_and_b32 s61, s61, 0x3ff\ns_add_u32 s61, s61, s62")
            a(f"buffer_load_dwordx4 v[{bA+4*k}:{bA+4*k+3}], v5, s[{rX}:{rX+3}], s61 offen ; @T:x{k}")
    stamp(a, 'xissued')
    a(f"s_add_u32 s62, s{sG}, s{sRB}\ns_and_b32 s62, s62, 1\ns_sub_u32 s{sNU}, 4, s62")
    a(f"s_lshr_b32 s62, s{sG}, 1\ns_mul_i32 s{sU0}, s62, 7\ns_sub_u32 s63, 7, s{sNU}\ns_and_b32 s61, s{sG}, 1\ns_mul_i32 s63, s63, s61\ns_add_u32 s{sU0}, s{sU0}, s63")
    a(f"s_add_u32 s62, s{sU0}, s{sW}\ns_lshl_b32 s{sCOG}, s62, 7\ns_cmp_lt_u32 s{sW}, s{sNU}\ns_cselect_b32 s{sCOG}, s{sCOG}, 0x40000000")
    a(f"s_lshl_b32 s62, s{sG}, 10\ns_lshl_b32 s63, s{sW}, 8\ns_add_u32 s{sCOQ}, s62, s63")
    a(f"s_lshl_b32 s62, s{sU0}, 16\ns_add_u32 s{sCOD}, s62, s63\ns_cmp_eq_u32 s{sNU}, 4\ns_cselect_b32 s{sCOD3}, s{sCOD}, 0x40000000")
    a(f"s_lshl_b32 s62, s{sG}, 19\ns_add_u32 s{sCOO}, s62, s63")
    a(f"s_mul_i32 s{sRING}, s{sW}, 24576\ns_lshl_b32 s{sKVM0}, s{sW}, 12\ns_add_u32 s{sKVM0}, s{sKVM0}, {LB}")
    srd(a, rWG, 76, 512*3584)
    a("v_lshrrev_b32 v6, 3, v0\nv_bfe_u32 v7, v0, 4, 1\nv_lshlrev_b32 v7, 1, v7\nv_bfe_u32 v8, v0, 5, 1\nv_lshl_add_u32 v7, v8, 2, v7\nv_and_b32 v8, 7, v0\nv_xor_b32 v7, v7, v8")
    a("v_lshlrev_b32 v7, 4, v7\nv_xor_b32 v8, 64, v7")
    for dv, rs in ((vDG, 3584), (vDQ, 8192), (vDO, 1024)):
        a(f"v_mul_u32_u24 v9, {rs}, v6")
        for j in range(4):
            a(f"v_add_u32 v{dv+j}, v9, v{7 + (j & 1)}")
            if j: a(f"v_add_u32 v{dv+j}, {j*(8*rs - 1024)}, v{dv+j}")
    X = lambda ks0: (lambda ks, qb: ((ks0 + ks)*4 + qb)*4)
    mk = lambda name, r, dv, rs, co, acc, n, inter, rot, row0: [Panel(name, r, dv, rs, co(j), acc, j == 0, X(2*j), inter, rot, row0(j)) for j in range(n)]
    pG = mk('G', rWG, vDG, 3584, lambda j: f"s{sCOG}", bA, 8, False, True, lambda j: 0)
    pU = mk('U', rWU, vDG, 3584, lambda j: f"s{sCOG}", bB, 8, False, True, lambda j: 0)
    pQa = mk('Qa', rWQ, vDQ, 8192, lambda j: f"s{sCOQ}", bC, 8, False, True, lambda j: 0)
    pQb = mk('Qb', rWQ, vDQ, 8192, lambda j: f"s{sCOQ}", bA, 8, False, True, lambda j: 128)
    pD0 = mk('D0', rWD, vDO, 1024, lambda j: f"s{sCOD3 if j == 3 else sCOD}", bC, 4, True, False, lambda j: j*65536)
    pD1 = mk('D1', rWD, vDO, 1024, lambda j: f"s{sCOD3 if j == 3 else sCOD}", bA, 4, True, False, lambda j: j*65536 + 128)
    pO0 = mk('O0', rWO, vDO, 1024, lambda j: None, bB, 8, True, False, lambda j: (j//4)*65536)
    pO1 = mk('O1', rWO, vDO, 1024, lambda j: None, bA, 8, True, False, lambda j: (j//4)*65536 + 128)
    oreg = lambda j, ks, qb: ((32*j + 128) % 256) + (ks*4 + qb)*4
    for j in range(8):
        for P in (pO0[j], pO1[j]): P.j = j; P.bfrag = (lambda j: (lambda ks, qb: oreg(j, ks, qb)))(j)
    S1 = pG + pU + pQa + pQb + pD0 + pD1
    a(f"s_sub_u32 s{sJ}, s{sROT}, 1")
    for i in range(OPT.get('early', 1)):
        s0, s1, d = panel_dma(S1[i], i)
        for x in s0 + ["s_nop 0"] + d[:4] + s1 + ["s_nop 0"] + d[4:]: a(x)
    if OPT['prefetch']:
        srd(a, rWD, 80, 1792*1024)
        a(f"s_lshr_b32 s62, s{sG}, 1\ns_mul_i32 s62, s62, 7\ns_and_b32 s61, s{sG}, 1\ns_mul_i32 s61, s61, 3\ns_add_u32 s62, s62, s61\ns_lshl_b32 s62, s62, 16")
        a(f"v_cmp_gt_u32 vcc, 0x40000, v{vPF}\nv_mov_b32 v9, 0x40000000\ns_nop 0\nv_cndmask_b32 v9, v9, v{vPF}, vcc")
        a(f"v_mov_b32 v54, v9\ns_mov_b32 s44, s62") if not OPT['timing'] else a(f"v_mov_b32 v54, v9\ns_mov_b32 s46, s62")
    lndma = []
    late_dma = []
    if OPT.get('late2'):
        pass
    for i in range(OPT.get('early', 1), 3):
        s0, s1, d = panel_dma(S1[i], i)
        if i >= 3 - OPT.get('late2', 0):
            late_dma += s0 + ['s_nop 0'] + d[:4] + s1 + ['s_nop 0'] + d[4:]; continue
        lndma += [s0 + ["s_nop 0", d[0]]] + [[x] for x in d[1:4]] + [s1 + ["s_nop 0", d[4]]] + [[x] for x in d[5:]]
    if OPT['prefetch']: lndma.append([f"buffer_load_dword v{vGB}, v54, s[{rWD}:{rWD+3}], s{44 if not OPT['timing'] else 46} offen ; @T:pf"])
    stamp(a, 'dmaissued')
    srd(a, rWU, 78, 512*3584); srd(a, rWQ, 70, 512*8192); srd(a, rWO, 72, 4096*1024)
    if not OPT['prefetch']: srd(a, rWD, 80, 1792*1024)
    a(f"s_lshl_b32 s62, s{sG}, 19")
    srd(a, rK, 66, 0x80000, add='s62'); srd(a, rV, 68, 0x80800, add='s62', sub=2048)
    srd(a, rWS, WSP, 0x2000000)
    srd(a, rOUT, 82, 2048*1024); srd(a, rDBG, 84, 256)
    a(f"s_lshl_b32 s81, s{sG}, 19\ns_lshl_b32 s82, s{sW}, 13\ns_lshl_b32 s83, s{sW}, 14")
    a(f"s_lshl_b32 s{sSLAB}, s{sG}, 5\ns_add_u32 s{sSLAB}, s{sSLAB}, s{sRB}\ns_lshl_b32 s{sSLAB}, s{sSLAB}, 2\ns_add_u32 s{sSLAB}, s{sSLAB}, s{sW}\ns_lshl_b32 s{sSLAB}, s{sSLAB}, 14")
    for t in range(2):
        for k in range(4): a(f"s_add_u32 s{sT+t*4+k}, s{sSLAB}, {t*0x1000000 + k*4096}")
    a("v_bfe_u32 v5, v0, 2, 2\nv_lshrrev_b32 v6, 4, v0\nv_and_b32 v7, 3, v0\nv_lshlrev_b32 v7, 3, v7")
    a(f"v_add_u32 v7, s{sRING}, v7")
    a("v_lshrrev_b32 v8, 1, v5\nv_and_b32 v9, 1, v6\nv_lshl_add_u32 v9, v9, 1, v8")
    a("v_lshl_add_u32 v26, v6, 3, v5\nv_lshl_add_u32 v26, v26, 7, v7")
    a("v_lshrrev_b32 v27, 1, v6\nv_xor_b32 v27, v27, v6\nv_and_b32 v27, 1, v27\nv_lshl_add_u32 v27, v27, 1, v8")
    a("v_lshl_add_u32 v28, v6, 2, v5\nv_lshl_add_u32 v28, v28, 7, v7")
    a(f"s_lshl_b32 s62, s{sW}, 3\nv_add_u32 v29, s62, v6\nv_and_b32 v5, 15, v0")
    for i in range(2):
        a(f"v_add_u32 v8, {4*i}, v29\nv_and_b32 v8, 15, v8\nv_xor_b32 v8, v8, v5\nv_lshlrev_b32 v8, 4, v8\nv_lshl_add_u32 v{vDK+i}, v29, 8, v8")
        a(f"v_add_u32 v8, {4*i}, v6\nv_lshlrev_b32 v8, 1, v8\nv_xor_b32 v8, v8, v5\nv_lshlrev_b32 v8, 4, v8\nv_lshl_add_u32 v{vDV+i}, v29, 8, v8")
    a("v_mov_b32 v29, v9")
    for nb in range(4):
        a(f"v_xor_b32 v{vWA+nb}, {nb}, v29\nv_lshl_add_u32 v{vWA+nb}, v{vWA+nb}, 5, v26")
        a(f"v_xor_b32 v{vWI+nb}, {nb}, v27\nv_lshl_add_u32 v{vWI+nb}, v{vWI+nb}, 5, v28")
    a(f"v_add_u32 v{vFA}, {LB}, v{vL16}")
    a(f"v_add_u32 v44, s83, v{vFA}")
    stamp(a, 'setup')
    F = bB
    if OPT['lnm']:
        b = Prog()
        b("s_mov_b32 s45, 0xffff0000" if not OPT['timing'] else "s_mov_b32 s47, 0xffff0000")
        MK = 45 if not OPT['timing'] else 47
        for i in range(4): b(f"v_mov_b32 v{32+i}, 0x3f803f80")
        b(f"v_bfe_u32 v45, v{vL16}, 4, 2\nv_bfe_u32 v46, v{vL16}, 6, 2\nv_lshrrev_b32 v47, 8, v{vL16}")
        b("s_waitcnt vmcnt(@x0)")
        for sx in range(4): b(f"ds_read_b128 v[{bA+4*sx}:{bA+4*sx+3}], v{50+sx} ; @T:q0")
        for c4 in range(4):
            if c4 < 3:
                b(f"s_waitcnt vmcnt(@x{c4+1})")
                for sx in range(4): b(f"ds_read_b128 v[{bA+16*(c4+1)+4*sx}:{bA+16*(c4+1)+4*sx+3}], v{50+sx} offset:{(c4+1)*4096} ; @T:q{c4+1}")
            b(f"s_waitcnt lgkmcnt(@q{c4})")
            for k in range(4*c4, 4*c4 + 4):
                x = f"v[{bA+4*k}:{bA+4*k+3}]"
                un = [[f"v_lshlrev_b32 v{F+2*i}, 16, v{bA+i}", f"v_and_b32 v{F+2*i+1}, s{MK}, v{bA+i}"] for i in range(4*k, 4*k+4)]
                last = (c4 == 3)
                b(f"{MF} v[36:39], v[32:35], {x}, {'0' if k == 0 else 'v[36:39]'}")
                if not last:
                    for y in un[0] + un[1]: b(y)
                b(f"{MF} v[40:43], {x}, {x}, {'0' if k == 0 else 'v[40:43]'}")
                if not last:
                    for y in un[2] + un[3]: b(y)
        late = [y for i in range(48, 64) for y in (f"v_lshlrev_b32 v{F+2*i}, 16, v{bA+i}", f"v_and_b32 v{F+2*i+1}, s{MK}, v{bA+i}")]
        for x in stampl(1): b(x)
        st = []
        st += ["v_cmp_eq_u32 vcc, 1, v45", None, None, "v_cndmask_b32 v40, v40, v41, vcc", "v_cmp_eq_u32 vcc, 2, v45", None, None, "v_cndmask_b32 v40, v40, v42, vcc",
               "v_cmp_eq_u32 vcc, 3, v45", None, None, "v_cndmask_b32 v40, v40, v43, vcc", "v_cmp_eq_u32 vcc, v46, v47", None, None, "v_cndmask_b32 v40, 0, v40, vcc"]
        st += [f"v_mul_f32 v36, {hx(1/512)}, v36", "v_mov_b32 v41, v40", "v_cvt_pk_bf16_f32 v37, v36, v36", None, "v_permlane16_swap_b32 v40, v41", "v_lshlrev_b32 v37, 16, v37", "v_add_f32 v40, v40, v41",
               "v_mov_b32 v41, v40", None, None, "v_permlane32_swap_b32 v40, v41", None, "v_add_f32 v40, v40, v41",
               f"v_mul_f32 v40, {hx(1/512)}, v40", "v_fma_f32 v40, -v36, v36, v40", "v_max_f32 v40, 0, v40",
               "v_cvt_pk_bf16_f32 v40, v40, v40", "v_lshlrev_b32 v40, 16, v40", f"v_add_f32 v40, {hx(1e-5)}, v40", "v_cvt_pk_bf16_f32 v40, v40, v40", "v_lshlrev_b32 v40, 16, v40",
               "v_sqrt_f32 v40, v40", None, "v_cvt_pk_bf16_f32 v40, v40, v40", "v_lshlrev_b32 v40, 16, v40", "v_rcp_f32 v42, v40", None, "v_mul_f32 v43, v37, v42"]
        for y in late[:10]: b(y)
        late = late[10:]
        for y in st:
            if y is None: b(late.pop(0) if late else "s_nop 0")
            else: b(y)
        for y in late: b(y)
        for k in range(16):
            for i in range(4*k, 4*k+4): b(f"v_pk_fma_f32 v[{F+2*i}:{F+2*i+1}], v[{F+2*i}:{F+2*i+1}], v[42:43], v[42:43] op_sel:[0,0,1] op_sel_hi:[1,0,1] neg_lo:[0,0,1] neg_hi:[0,0,1]")
            if k: b(f"ds_write_b128 v44, v[{bA+4*k-4}:{bA+4*k-1}] offset:{(k-1)*1024}")
            for i in range(4*k, 4*k+4): b(f"v_cvt_pk_bf16_f32 v{bA+i}, v{F+2*i}, v{F+2*i+1}")
        b(f"ds_write_b128 v44, v[{bA+60}:{bA+63}] offset:{15*1024}")
    else:
        b = Prog()
        for k in range(16):
            if OPT['xdma']:
                if k == 0:
                    b("s_waitcnt vmcnt(@x0)")
                    for sx in range(4): b(f"ds_read_b128 v[{bA+4*sx}:{bA+4*sx+3}], v{50+sx} ; @T:q0")
                if k % 4 == 0:
                    c4 = k // 4
                    if c4 < 3:
                        b(f"s_waitcnt vmcnt(@x{c4+1})")
                        for sx in range(4): b(f"ds_read_b128 v[{bA+16*(c4+1)+4*sx}:{bA+16*(c4+1)+4*sx+3}], v{50+sx} offset:{(c4+1)*4096} ; @T:q{c4+1}")
                    b(f"s_waitcnt lgkmcnt(@q{c4})")
            else: b(f"s_waitcnt vmcnt(@x{k})")
            for i in range(4*k, 4*k+4):
                b(f"v_lshlrev_b32 v{F+2*i}, 16, v{bA+i}\nv_and_b32 v{F+2*i+1}, 0xffff0000, v{bA+i}")
            for i in range(4*k, 4*k+4):
                if k == 0: b(f"v_mov_b32 v{32+2*i}, v{F+2*i}\nv_mov_b32 v{33+2*i}, v{F+2*i+1}")
                else: b(f"v_pk_add_f32 v[{32+2*(i%4)}:{33+2*(i%4)}], v[{32+2*(i%4)}:{33+2*(i%4)}], v[{F+2*i}:{F+2*i+1}]")
        for x in stampl(1): b(x)
        b("v_pk_add_f32 v[32:33], v[32:33], v[34:35]\nv_pk_add_f32 v[36:37], v[36:37], v[38:39]\nv_pk_add_f32 v[32:33], v[32:33], v[36:37]\nv_add_f32 v32, v32, v33")
        xreduce(b, 32, 'v_add_f32', 33)
        b(f"v_mul_f32 v32, {hx(1/512)}, v32\nv_cvt_pk_bf16_f32 v33, v32, v32\nv_lshlrev_b32 v34, 16, v33\nv_sub_f32 v40, v32, v34")
        for i in range(64):
            b(f"v_pk_add_f32 v[{F+2*i}:{F+2*i+1}], v[{F+2*i}:{F+2*i+1}], v[34:35] op_sel_hi:[1,0] neg_lo:[0,1] neg_hi:[0,1]")
            if i >= 2:
                j = i - 2; r = 46 + 2*(j % 4)
                b(f"v_pk_mul_f32 v[{r}:{r+1}], v[{F+2*j}:{F+2*j+1}], v[{F+2*j}:{F+2*j+1}]" if j < 4 else f"v_pk_fma_f32 v[{r}:{r+1}], v[{F+2*j}:{F+2*j+1}], v[{F+2*j}:{F+2*j+1}], v[{r}:{r+1}]")
        for j in (62, 63):
            r = 46 + 2*(j % 4); b(f"v_pk_fma_f32 v[{r}:{r+1}], v[{F+2*j}:{F+2*j+1}], v[{F+2*j}:{F+2*j+1}], v[{r}:{r+1}]")
        b("v_pk_add_f32 v[46:47], v[46:47], v[48:49]\nv_pk_add_f32 v[50:51], v[50:51], v[52:53]\nv_pk_add_f32 v[46:47], v[46:47], v[50:51]\nv_add_f32 v42, v46, v47")
        xreduce(b, 42, 'v_add_f32', 43)
        b(f"v_mul_f32 v42, {hx(1/512)}, v42\nv_fma_f32 v42, -v40, v40, v42\nv_max_f32 v42, 0, v42")
        rb16 = lambda r: f"v_cvt_pk_bf16_f32 v{r}, v{r}, v{r}\nv_lshlrev_b32 v{r}, 16, v{r}"
        b(rb16(42)); b(f"v_add_f32 v42, {hx(1e-5)}, v42"); b(rb16(42)); b("v_sqrt_f32 v42, v42\ns_nop 0"); b(rb16(42)); b("v_rcp_f32 v42, v42\ns_nop 0")
        for k in range(16):
            for i in range(4*k, 4*k+4): b(f"v_pk_mul_f32 v[{F+2*i}:{F+2*i+1}], v[{F+2*i}:{F+2*i+1}], v[42:43] op_sel_hi:[1,0]")
            if k: b(f"ds_write_b128 v44, v[{bA+4*k-4}:{bA+4*k-1}] offset:{(k-1)*1024}")
            for i in range(4*k, 4*k+4): b(f"v_cvt_pk_bf16_f32 v{bA+i}, v{F+2*i}, v{F+2*i+1}")
        b(f"ds_write_b128 v44, v[{bA+60}:{bA+63}] offset:{15*1024}")
    interleave(a, b.L, lndma, OPT.get('lnevery', 10), OPT.get('lnstart', 0))
    stamp(a, 'lndone')
    a("s_waitcnt vmcnt(@w0) lgkmcnt(0)\ns_barrier")
    stamp(a, 'lnbar')
    xr = lambda ks, qb, tag, lay: f"ds_read_b128 a[{(ks*4+qb)*4}:{(ks*4+qb)*4+3}], v{vFA} offset:{lay(ks, qb)*1024} ; @T:{tag}"
    layX = lambda ks, qb: qb*16 + ks
    layF = lambda ks, qb: ks*4 + qb
    def stream_head(P, idx, tag, lay, extra=()):
        for x in wreads(P, idx, 0): a(x)
        for ks in range(2):
            for qb in range(4): a(xr(ks, qb, tag, lay))
        for nb in (1, 2):
            for x in wreads(P, idx, nb): a(x)
        for x in extra: a(x)
        a("s_waitcnt lgkmcnt(@auto)")
    RG = [2, 3, 4, 5, 6, 12, 14, 20]
    def frag_reads(xm, pos, ks0, tag, lay):
        for k in range(8): xm.setdefault((pos, RG[k]), []).append(xr(ks0 + k % 2, k // 2, tag, lay))
    stream_head(S1[0], 0, 'xr', layX, late_dma)
    stamp(a, 2)
    fill = {}; xm = {}; xs = {}
    for j in range(7): frag_reads(xm, j, 2*j + 2, 'xr', layX)
    o1, o2 = attn_addr_ops()
    xs[(9, 0)] = ["s_barrier"]
    fill[8] = [f"v_add_u32 v{vPF}, s82, v{vFA}", f"v_mov_b32 v{vGB}, {hx(-2.0 * math.log2(math.e) * math.sqrt(2.0 / math.pi) * 0.044715)}"] + gelu_stage1(bA)
    fill[16] = geglu_stage2(bA, bB)
    fill[24] = qpack(bC, 0) + o1
    xs[(26, 0)] = ["s_waitcnt lgkmcnt(@hw)", "s_barrier"]
    for j in range(4): frag_reads(xm, 28 + j, 2*j, 'hr', layF)
    fill[32] = qpack(bA, 1)
    fill[36] = park_d0(bC) + o2
    xs[(32, 3)] = ["s_waitcnt lgkmcnt(@hr)", "s_barrier"]
    kvs = [kvdma(2, 0, 0, True, False), kvdma(3, 1, 0, True, False), kvdma(0, 2, 0), kvdma(1, 3, 1)]
    xs[(32, 10)] = [f"s_lshl_b32 s{sKO+3}, s{sRB}, {14 if OPT['map'] == 8 else 15}"]; xs[(32, 12)] = [f"s_sub_u32 s{sKO+3}, s{sKO+3}, 8192"]
    for i, (sc, dd) in enumerate(kvs):
        pos = [33, 34, 37, 38][i]
        if i < 2:
            xs.setdefault((pos, 20), []).append(sc[1]); xs.setdefault((pos, 22), []).append(sc[2]); xs.setdefault((pos, 28), []).append(sc[0])
            for x, g in zip(dd, [29, 30]): xm.setdefault((pos, g), []).extend([x, None])
        else:
            xs.setdefault((pos, 9), []).append(sc[1]); xs.setdefault((pos, 10), []).append(sc[2]); xs.setdefault((pos, 11), []).append(sc[0])
            for x, g in zip(dd, [13, 17, 21, 27]): xm.setdefault((pos, g), []).extend([x, None])
    xs[(39, 3)] = ["s_waitcnt vmcnt(@kv3)", "s_barrier"]
    for x, g in zip(kreads(2), [8, 9, 10, 11, 12, 13, 14, 16]): xm.setdefault((39, g), []).append(x)
    left = emit_stream(a, S1, 0, fill, xm, xs, must_empty=(24, 32, 36))
    assert not left
    stamp(a, 3)
    st = park_d1(bA)
    m0s = qk(0, '0')
    kr = kreads(3)
    for g, m in enumerate(m0s):
        a(m)
        if g == 27:
            a("s_barrier")
        if g >= 24 and (g - 24) < 8:
            pass
        if g >= 4:
            n = 0
            while st and n < 2:
                if st[0].startswith('buffer') and n: break
                x = st.pop(0); a(x); n += 2 if x.startswith('buffer') else 1
    for x in st: a(x)
    for x in kr: a(x)
    sc, dd = kvdma(2, 4, 2)
    for x in sc + dd: a(x)
    for i in range(4): a(f"v_mov_b32 v{vONES+i}, 0x3f803f80\nv_mov_b32 v{vL+i}, 0")
    T = [56 + 2*qb for qb in range(4)]
    for k in range(4):
        for qb in range(4):
            b0 = vS[0] + qb*8
            a([f"v_max3_f32 v{T[qb]}, v{b0}, v{b0+1}, v{b0+2}", f"v_max3_f32 v{T[qb]}, v{T[qb]}, v{b0+3}, v{b0+4}", f"v_max3_f32 v{T[qb]}, v{T[qb]}, v{b0+5}, v{b0+6}", f"v_max_f32 v{T[qb]}, v{T[qb]}, v{b0+7}"][k])
    for sw in ('v_permlane16_swap_b32', 'v_permlane32_swap_b32'):
        for qb in range(4): a(f"v_mov_b32 v{T[qb]+1}, v{T[qb]}")
        for qb in range(4): a(f"{sw} v{T[qb]}, v{T[qb]+1}")
        for qb in range(4): a(f"v_max_f32 v{T[qb]}, v{T[qb]}, v{T[qb]+1}")
    for qb in range(4):
        for i in range(8): a(f"v_sub_f32 v{vS[0]+qb*8+i}, v{vS[0]+qb*8+i}, v{T[qb]}")
    for qb in range(4):
        for i in range(4): a(f"v_sub_f32 v{vNEGM+qb*4+i}, 0, v{T[qb]}")
    a(f"s_lshl_b32 s0, s{sRB}, 3\nv_mov_b32 v{vT}, s0\ns_lshl_b32 s0, 0x100, s{sG}\nv_mov_b32 v{vT+1}, s0")
    for x in pf_addr('s0', vT+3): a(x)
    c = ([], [], 32)
    for p in (1, 2, 3, 4, 5): _, c = period(p, c)
    E0, S0 = smq(0)
    rem = set(c[0]) | set(x[1] for x in c[1])
    for x in E0:
        if x not in rem: a(x)
    for x in S0:
        if x[1] not in rem: a(x[1])
    cp = lambda c: (list(c[0]), list(c[1]), c[2])
    a("s_waitcnt vmcnt(@kv0) lgkmcnt(0)")
    body, carry = period(0, cp(c), first=True)
    for x in body: a(x)
    a(f"s_cmp_eq_u32 s{sW}, 0\ns_cselect_b32 s0, 1, 0\ns_mov_b32 s1, 0")
    nst = OPT.get('nst', [4, 3, 3, 3, 3]); f = 0
    NP = OPT.get('npeel', 8)
    for p in range(1, NP + 1):
        xd = []
        if p <= len(nst):
            for g in [9, 15, 21, 35][:nst[p-1]]:
                xd.append((g, parked_store(f) + " ; @T:st")); f += 1
        if p == NP - 2 and OPT['prefetch']: xd.append((9, f"buffer_load_dword v{vT+3}, v{vPF}, s[{rWO}:{rWO+3}], s81 offen ; @X"))
        if p == NP and OPT['single']:
            xd += [(8, f"s_mov_b64 exec, s[0:1]\nbuffer_atomic_or v{vT+1}, v{vT}, s[{rDBG}:{rDBG+3}], 0 offen ; @X\ns_mov_b64 exec, -1")]
        body, carry = period(p, carry, xdma=xd, alsowait=('st' if p == NP - 1 else None), nofill=((8,) if p == NP and OPT['single'] else ()))
        for x in body: a(x)
    assert f == 16
    stamp(a, 'loop0')
    a(f"s_mov_b32 s{sCNT}, {(56 - NP)//4}")
    a(".p2align 6")
    for i in range(OPT.get('shift', 0)): a("s_nop 0")
    a("L_attn_loop:")
    c0 = cp(carry); loop = []
    for p in range(NP + 1, NP + 5):
        body, carry = period(p, carry)
        loop += body
    assert cp(carry) == c0
    a.loop = (len(a.L), len(a.L) + len(loop))
    for x in loop: a(x)
    a(f"s_sub_u32 s{sCNT}, s{sCNT}, 1\ns_cmp_lg_u32 s{sCNT}, 0\ns_cbranch_scc1 L_attn_loop")
    stamp(a, 'loop1')
    S2 = pO0 + pO1; base2 = len(S1)
    AV2 = 128
    for p in range(57, 63):
        xd = None; kw = {}
        if p >= 60:
            s0, s1, d = panel_dma(S2[p-60], base2 + p - 60)
            xd = [(9, s0[0]), (10, s0[1])] + list(zip([12, 15, 18, 21], d[:4])) + [(22, s1[0]), (23, s1[1])] + list(zip([25, 28, 43, 51], d[4:]))
        if p == 60:
            kw['kvg'] = ([2], [4, 6])
            a.pending = [f"s_add_u32 s0, s{sW}, {h}\ns_and_b32 s0, s0, 3\ns_lshl_b32 s0, s0, 17\ns_add_u32 s{44+h}, s0, s{sCOO}" for h in range(4)]
            xd = [(7, a.pending[0]), (8, a.pending[1])] + xd + [(30, a.pending[2]), (32, a.pending[3])]
        if p == 61: kw['alsowait'] = 'kv3'
        if p == 62: kw['vnext'] = vreads(3, AV2)
        if p == 57 and OPT['single']:
            xd = [(5, f"s_lshl_b32 s0, s{sRB}, 3"), (8, f"buffer_load_dword v{vT+2}, off, s[{rDBG}:{rDBG+3}], s0 sc1 ; @T:poll")]
        if p == 59 and OPT['single']:
            so = share_offsets(f"s{sG}") + [f"s_bfe_u32 s{sBITS}, s{sBITS}, 0x80008", f"s_cmp_lg_u32 s{sBITS}, 0xff", f"s_cselect_b32 s{sLATE}, 1, 0", f"s_cselect_b32 s{sBITS}, 0x40000000, s{sSHOFF}"]
            a(f"s_waitcnt vmcnt(@poll)\nv_readfirstlane_b32 s{sBITS}, v{vT+2}")
            xd = list(zip(range(5, 5 + len(so)), so))
            for g in range(8):
                pl = ploads(FPE, 1, g, f"s{sBITS}")
                xd += [(33 + 4*g - (1 if g in (1, 3) else 0), pl[0]), (34 + 4*g - (1 if g in (1, 3) else 0), pl[2])]
        body, carry = period(p, carry, dok=(p + 5 <= 63), dov=(p + 3 <= 63), kread=(p + 2 <= 63), xdma=xd, **kw)
        for x in body: a(x)
    E, Sq, edone = list(carry[0]), list(carry[1]), carry[2]
    post = []
    lq = [qb for qb in range(4) if qb >= OPT['msum']]
    for sw in ('v_permlane16_swap_b32', 'v_permlane32_swap_b32'):
        post += [f"v_mov_b32 v{96+qb}, v{vL+qb}" for qb in lq] + ["s_nop 1"] + [f"{sw} v{vL+qb}, v{96+qb}" for qb in lq] + [f"v_add_f32 v{vL+qb}, v{vL+qb}, v{96+qb}" for qb in lq]
    post += [f"v_add_u32 v{vPF}, s83, v{vFA}"]
    if OPT['single']:
        post += [f"v_mov_b32 v{vSIG}, v{vT}", f"v_bfe_u32 v{vXO}, v{vL16}, 4, 4", f"v_lshlrev_b32 v{vXO}, 10, v{vXO}", f"v_lshrrev_b32 v{vT+3}, 8, v{vL16}", f"v_lshl_add_u32 v{vXO}, v{vT+3}, 3, v{vXO}"]
    for g, m in enumerate(pv(1, aVF=AV2)):
        a(m)
        if g == 0: a("s_barrier")
        check_p(m, Sq)
        rem = 2*len(E) + len(Sq)
        behind = rem > 2*(21 - g)
        room = 3 if behind and rem else 2; e_prev = edone
        nav = sum(1 for x in Sq if x[0] <= e_prev)
        if E and (nav < room or g % 2 == 0): a(E.pop(0)); edone += 1; room -= 2
        while room > 0:
            if Sq and Sq[0][0] <= e_prev: a(Sq.pop(0)[1]); room -= 1
            elif not E and not Sq and post: x = post.pop(0); a(x); room -= cost(x)
            else: break
    assert not E and not Sq
    for x in post: a(x)
    stamp(a, 4)
    for h in range(4): a(f"s_add_u32 s0, s{sW}, {h}\ns_and_b32 s0, s0, 3\ns_lshl_b32 s0, s0, 14\nv_add_u32 v{vOA+h}, s0, v{vFA}")
    for qb in range(OPT['msum']): a(f"v_mov_b32 v{vL+qb}, v{vLM+4*qb}")
    a(f"v_add_f32 v{vT+1}, v{vL}, v{vL+1}\nv_add_f32 v{vT+2}, v{vL+2}, v{vL+3}\nv_add_f32 v{vT+1}, v{vT+1}, v{vT+2}")
    a(f"v_cmp_nge_f32 vcc, {hx(2.0**OPT['fthresh'])}, v{vT+1}\ns_nop 1\ns_cbranch_vccnz L_fallback\nL_fb_ret:")
    for qb in range(4): a(f"v_rcp_f32 v{vL+qb}, v{vL+qb}")
    def norm(sp, qb, pk):
        o_ = []; t = [224, 236, 96, 108][(sp*4 + qb) % 4]; l = vL + qb
        for e in range(2):
            o = aO + ((2*sp + e)*4 + qb)*4
            o_ += [f"v_accvgpr_read_b32 v{t+4*e+i}, a{o+i}" for i in range(4)]
        if pk:
            sel = "op_sel_hi:[1,0]" if l % 2 == 0 else "op_sel:[0,1]"
            o_ += [f"v_pk_mul_f32 v[{t+2*i}:{t+2*i+1}], v[{t+2*i}:{t+2*i+1}], v[{l - l%2}:{l - l%2 + 1}] {sel}" for i in range(4)]
        else: o_ += [f"v_mul_f32 v{t+i}, v{t+i}, v{l}" for i in range(8)]
        o_ += [f"v_cvt_pk_bf16_f32 v{t+8+i}, v{t+2*i}, v{t+2*i+1}" for i in range(4)]
        o_ += [f"ds_write_b128 v{vPF}, v[{t+8}:{t+11}] offset:{(sp*4 + qb)*1024} ; @T:ow{sp//2}"]
        return o_
    ex = []
    if OPT['single']:
        for g in range(8):
            pl = ploads(FPE, 1, g, f"s{sBITS}"); ex.append([pl[0], pl[1]])
        xl = xloads(); ex[0] += xl[:3]; ex[1] += xl[3:]
    NPRE = OPT.get('npre', 16)
    for k in range(NPRE):
        for x in norm(k // 4, k % 4, True): a(x)
        if ex:
            for x in ex.pop(0): a(x)
    stamp(a, 'owritten')
    ord_ = lambda j, ks, qb: f"ds_read_b128 a[{oreg(j, ks, qb)}:{oreg(j, ks, qb)+3}], v{vOA + j % 4} offset:{((2*(j//4) + ks)*4 + qb)*1024}"
    a(f"s_waitcnt vmcnt(@w{base2})")
    for x in wreads(S2[0], base2, 0): a(x)
    for ks in range(2):
        for qb in range(4): a(ord_(0, ks, qb))
    for nb in (1, 2):
        for x in wreads(S2[0], base2, nb): a(x)
    a("s_waitcnt lgkmcnt(@auto)")
    stamp(a, 5)
    fill = {13: slab_store(bB, 0, 0)}; xm = {}; xs = {}
    fill[0] = sum((norm(k // 4, k % 4, False) for k in range(NPRE, 16)), [])
    xs[(0, 10)] = ["s_waitcnt lgkmcnt(@ow0)", "s_barrier"]
    if NPRE < 16: xs[(3, 28)] = ["s_waitcnt lgkmcnt(@ow1)", "s_barrier"]
    else: xs[(0, 10)] = ["s_waitcnt lgkmcnt(@ow1)", "s_barrier"]
    for j in range(7):
        gaps = [12, 14, 15, 20, 22, 23, 28, 29] if j == 0 else RG
        for k in range(8): xm.setdefault((j, gaps[k]), []).append(ord_(j + 1, k % 2, k // 2))
    if OPT['single']:
        fp = 3 if NPRE < 16 else 2
        xs[(fp, 8)] = ["s_waitcnt vmcnt(@pl)"]
        fill[fp + 1] = fred_fill(FPE, (1,)); fill[8] = fred_fill(FPE, (0,))
    left = emit_stream(a, S2, base2, fill, xm, xs, must_empty=(3, 8, 13), quiet=range(32), cap={0: OPT.get('ocap', 30), 1: OPT.get('ocap', 30), 2: OPT.get('ocap', 30), 4: 52, 5: 52, 6: 52, 7: 52})
    for x in left: a(x)
    a("s_nop 7")
    for x in slab_store(bA, 0, 1): a(x)
    stamp(a, 6)
    if OPT['timing']: a("s_memrealtime s[80:81]\ns_waitcnt lgkmcnt(0)")
    if OPT['single']:
        end_phase(a)
    if OPT['timing'] and not OPT.get('dbgtime'):
        a("s_waitcnt vmcnt(0)")
        a("s_memtime s[44:45]\ns_memrealtime s[46:47]\ns_waitcnt lgkmcnt(0)")
        a(f"s_lshl_b32 s62, s2, 2\ns_add_u32 s62, s62, s{sW}\ns_lshl_b32 s62, s62, 6\ns_add_u32 s62, s62, 0x3000000")
        a(f"s_mov_b32 s{rWS+2}, 0x4000000")
        for i in range(8): a(f"v_mov_b32 v3, s{sTS+2*i if i < 7 else 44}\nv_mov_b32 v4, {4*i}\nbuffer_store_dword v3, v4, s[{rWS}:{rWS+3}], s62 offen")
        a(f"v_mov_b32 v3, s46\nv_mov_b32 v4, 32\nbuffer_store_dword v3, v4, s[{rWS}:{rWS+3}], s62 offen")
        a(f"v_mov_b32 v3, s80\nv_mov_b32 v4, 40\nbuffer_store_dword v3, v4, s[{rWS}:{rWS+3}], s62 offen")
        for k, r in enumerate((82, 98, 96)): a(f"v_mov_b32 v3, s{r}\nv_mov_b32 v4, {44+4*k}\nbuffer_store_dword v3, v4, s[{rWS}:{rWS+3}], s62 offen")
        a(f"v_mov_b32 v3, s100\nv_mov_b32 v4, 36\nbuffer_store_dword v3, v4, s[{rWS}:{rWS+3}], s62 offen")
    if OPT.get('dbgtime'):
        a("s_waitcnt vmcnt(0)\ns_memrealtime s[46:47]\ns_memtime s[44:45]\ns_waitcnt lgkmcnt(0)\ns_mov_b64 exec, 1")
        a(f"v_mov_b32 v3, s46\nv_mov_b32 v4, 4\nbuffer_atomic_umax v3, v4, s[{rDBG}:{rDBG+3}], 0 offen")
        a(f"s_not_b32 s100, s100\nv_mov_b32 v3, s100\nv_mov_b32 v4, 12\nbuffer_atomic_umax v3, v4, s[{rDBG}:{rDBG+3}], 0 offen")
        st = [sTS + 2*i for i in range(7)] + [44]
        for i in range(6):
            a(f"s_sub_u32 s0, s{st[i+1]}, s{st[i]}\nv_mov_b32 v3, s0\nv_mov_b32 v4, {20 + 8*i}\nbuffer_atomic_umax v3, v4, s[{rDBG}:{rDBG+3}], 0 offen")
    a("L_main_end:\ns_endpgm")
    a.fb = fallback()
    return a

GV = [224 + i for i in range(16)]
def fred_fill(FP, which=(0, 1)):
    ops = []
    for fr in which:
        base = FP[fr]
        acc = [16, 17, 22, 23, 24, 25, 30, 31]
        for n in range(8):
            r = base + 4*n
            for i in range(4):
                if n == 0: ops += [f"v_lshlrev_b32 v{acc[2*i]}, 16, v{r+i}", f"v_and_b32 v{acc[2*i+1]}, 0xffff0000, v{r+i}"]
                else:
                    ta, tb = vT + 2*(i % 2), vT + 2*(i % 2) + 1
                    ops += [f"v_lshlrev_b32 v{ta}, 16, v{r+i}", f"v_and_b32 v{tb}, 0xffff0000, v{r+i}", f"v_add_f32 v{acc[2*i]}, v{acc[2*i]}, v{ta}", f"v_add_f32 v{acc[2*i+1]}, v{acc[2*i+1]}, v{tb}"]
        for b in range(0, 8, 4):
            ops += [f"v_mul_f32 v{vT+i}, {hx(-math.log2(math.e))}, v{acc[b+i]}" for i in range(4)]
            ops += [f"v_exp_f32 v{vT+i}, v{vT+i}" for i in range(4)]
            ops += [f"v_add_f32 v{vT+i}, 1.0, v{vT+i}" for i in range(4)]
            ops += [f"v_rcp_f32 v{vT+i}, v{vT+i}" for i in range(4)]
            ops += [f"v_mul_f32 v{GV[8*fr+b+i]}, v{acc[b+i]}, v{vT+i}" for i in range(4)]
    return ops

def end_phase(a):
    a("v_mov_b32 v32, 0\nv_mov_b32 v33, 0")
    a(f"s_cmp_lg_u32 s{sW}, 0\ns_cbranch_scc1 L_e_nz\nds_write_b32 v32, v33\nL_e_nz:")
    a("s_waitcnt vmcnt(0) lgkmcnt(0)\ns_barrier")
    stamp(a, 'drained')
    if OPT.get('rt2'): a('s_memrealtime s[82:83]\ns_waitcnt lgkmcnt(0)')
    a(f"s_mov_b32 s{sDONE}, 0\ns_mov_b32 s{sTODO}, 0\ns_mov_b32 s{sCNT}, 0\ns_lshl_b32 s46, s{sRB}, 3")
    a(f"s_cmp_lg_u32 s{sW}, 0\ns_cbranch_scc1 L_e_other")
    a(f"s_lshl_b32 s47, 1, s{sG}\nv_mov_b32 v34, s47\ns_mov_b64 exec, 1\nbuffer_atomic_or v34, v{vSIG}, s[{rDBG}:{rDBG+3}], 0 offen sc0\ns_waitcnt vmcnt(0)\nv_readfirstlane_b32 s{sBITS}, v34\ns_mov_b64 exec, -1")
    a(f"s_or_b32 s{sBITS}, s{sBITS}, s47\ns_and_b32 s47, s{sBITS}, 0xff\ns_cmp_eq_u32 s47, 0xff\ns_cbranch_scc1 L_e_pub")
    a(f"L_e_w0:\ns_and_b32 s{sBITS}, s{sBITS}, 0xff")
    a(f"L_e_pub:\ns_and_b32 s{sBITS}, s{sBITS}, 0xff00ff\nv_mov_b32 v33, s{sBITS}\nds_write_b32 v32, v33\ns_branch L_e_have")
    a(f"L_e_other:\nds_read_b32 v33, v32\ns_waitcnt lgkmcnt(0)\nv_readfirstlane_b32 s{sBITS}, v33\ns_nop 0\ns_bitcmp1_b32 s{sBITS}, 31\ns_cbranch_scc1 L_e_exit")
    a(f"L_e_have:\ns_andn2_b32 s47, s{sBITS}, s{sDONE}")
    for g in range(8):
        a(f"s_bitcmp1_b32 s47, {g}\ns_cbranch_scc0 L_e_s{g}")
        for x in ploads(SPR, 0, g, f"s{sSHOFF}"): a(x)
        a(f"L_e_s{g}:")
    a(f"s_or_b32 s{sDONE}, s{sDONE}, s{sBITS}\ns_and_b32 s47, s{sDONE}, 0xff\ns_cmp_eq_u32 s47, 0xff\ns_cbranch_scc1 L_e_all")
    a(f"s_cmp_lg_u32 s{sW}, 0\ns_cbranch_scc0 L_e_poll\ns_sleep 1\ns_branch L_e_other")
    a(f"L_e_poll:\ns_add_u32 s{sCNT}, s{sCNT}, 1\ns_cmp_gt_u32 s{sCNT}, {OPT['spin']}\ns_cbranch_scc1 L_e_abandon")
    a(f"s_sleep {OPT.get('psleep', 2)}\nbuffer_load_dword v34, off, s[{rDBG}:{rDBG+3}], s46 sc1\ns_waitcnt vmcnt(0)\nv_readfirstlane_b32 s{sBITS}, v34\ns_branch L_e_w0")
    a(f"L_e_abandon:\ns_lshl_b32 s47, 0x10000, s{sG}\nv_mov_b32 v34, s47\ns_mov_b64 exec, 1\nbuffer_atomic_or v34, v{vSIG}, s[{rDBG}:{rDBG+3}], 0 offen sc0\ns_waitcnt vmcnt(0)\nv_readfirstlane_b32 s{sBITS}, v34\ns_mov_b64 exec, -1")
    a(f"s_nop 0\ns_and_b32 s47, s{sBITS}, 0xff\ns_cmp_eq_u32 s47, 0xff\ns_cbranch_scc1 L_e_w0")
    a(f"v_mov_b32 v33, 0x80000000\nds_write_b32 v32, v33\ns_waitcnt lgkmcnt(0)\ns_branch L_e_exit")
    a(f"L_e_all:\ns_lshr_b32 s{sTODO}, s{sBITS}, 16")
    stamp(a, 'allseen')
    if OPT.get('rt2'): a('s_memrealtime s[98:99]\ns_waitcnt lgkmcnt(0)')
    a(f"L_e_fin:\ns_cmp_eq_u32 s{sLATE}, 0\ns_cbranch_scc1 L_e_nolate")
    for g in range(8):
        for x in ploads(FPL, 1, g, f"s{sSHOFF}"): a(x)
    for x in xloads(): a(x)
    a("s_waitcnt vmcnt(0)")
    for x in fred_fill(FPL): a(x)
    a("L_e_nolate:\ns_waitcnt vmcnt(0)")
    if OPT.get('rt2'): a('s_memrealtime s[96:97]\ns_waitcnt lgkmcnt(0)')
    for fr in range(2):
        d = 64 + 8*fr
        for n in range(8):
            r = SPR[fr] + 4*n
            for i in range(4):
                if n == 0: a(f"v_lshlrev_b32 v{d+2*i}, 16, v{r+i}\nv_and_b32 v{d+2*i+1}, 0xffff0000, v{r+i}")
                else: a(f"v_lshlrev_b32 v{80+2*i}, 16, v{r+i}\nv_and_b32 v{81+2*i}, 0xffff0000, v{r+i}")
            if n:
                for i in range(4): a(f"v_pk_add_f32 v[{d+2*i}:{d+2*i+1}], v[{d+2*i}:{d+2*i+1}], v[{80+2*i}:{81+2*i}]")
        a(f"s_add_u32 s0, s{sXOFF}, {fr*16384}")
        for e in range(2):
            xr_ = xregs[2*fr+e]
            for i in range(2): a(f"v_lshlrev_b32 v{80+2*i}, 16, v{xr_+i}\nv_and_b32 v{81+2*i}, 0xffff0000, v{xr_+i}")
            for i in range(4): a(f"v_fmac_f32 v{80+i}, v{d+4*e+i}, v{GV[8*fr+4*e+i]}")
            a(f"v_cvt_pk_bf16_f32 v{88+4*fr+2*e}, v80, v81\nv_cvt_pk_bf16_f32 v{89+4*fr+2*e}, v82, v83")
            a(f"buffer_store_dwordx2 v[{88+4*fr+2*e}:{89+4*fr+2*e}], v{vXO}, s[{rOUT}:{rOUT+3}], s0 offen offset:{32*e}{OPT.get('outflags', '')}")
    a(f"s_cmp_eq_u32 s{sTODO}, 0\ns_cbranch_scc1 L_e_exit")
    a(f"s_ff1_i32_b32 s47, s{sTODO}\ns_bitset0_b32 s{sTODO}, s47\ns_mov_b32 s{sLATE}, 1")
    for x in share_offsets("s47"): a(x)
    for g in range(8):
        for x in ploads(SPR, 0, g, f"s{sSHOFF}"): a(x)
    a("s_branch L_e_fin\nL_e_exit:")

def fallback():
    a = Prog()
    a("L_fallback:")
    M = [64 + qb for qb in range(4)]; AL = [68 + qb for qb in range(4)]; TM = [72 + 2*qb for qb in range(4)]
    FK, FV = 80, 88
    a(f"s_waitcnt vmcnt(0) lgkmcnt(0)\ns_mov_b32 s{sLATE}, 1")
    o1, o2 = attn_addr_ops()
    KA2 = 96; VA2 = [100 + i for i in range(8)]
    for x in o1:
        for s in range(4): x = x.replace(f"v_lshl_add_u32 v{vKA+s},", f"v_lshl_add_u32 v{KA2+s},")
        a(x)
    for x in o2:
        for db in range(8): x = x.replace(f"v_lshl_add_u32 v{vVAl[db]}, v{vT+3}, 5", f"v_lshl_add_u32 v{VA2[db]}, v{vT+3}, 5")
        a(x)
    for r in [KA2 + s for s in range(4)] + VA2: a(f"v_add_u32 v{r}, s83, v{r}")
    a(f"v_lshrrev_b32 v{vT}, 8, v{vL16}\nv_bfe_u32 v{vT+1}, v{vL16}, 4, 4")
    for part in range(4):
        for i in range(2):
            a(f"v_add_u32 v{vT+2}, {8*part + 4*i}, v{vT}\nv_and_b32 v{vT+2}, 15, v{vT+2}\nv_xor_b32 v{vT+2}, v{vT+2}, v{vT+1}\nv_lshlrev_b32 v{vT+2}, 4, v{vT+2}\nv_add_u32 v{vT+3}, {8*part}, v{vT}\nv_lshl_add_u32 v{FK+2*part+i}, v{vT+3}, 8, v{vT+2}")
            a(f"v_add_u32 v{vT+2}, {4*i}, v{vT}\nv_lshlrev_b32 v{vT+2}, 1, v{vT+2}\nv_xor_b32 v{vT+2}, v{vT+2}, v{vT+1}\nv_lshlrev_b32 v{vT+2}, 4, v{vT+2}\nv_lshl_add_u32 v{FV+2*part+i}, v{vT+3}, 8, v{vT+2}")
    for qb in range(4): a(f"v_mov_b32 v{M[qb]}, 0xff7fffff\nv_mov_b32 v{vL+qb}, 0")
    for i in range(128): a(f"v_accvgpr_write_b32 a{aO+i}, 0")
    a(f"s_mov_b32 s80, 0\ns_add_u32 s81, s83, {LB}")
    a("L_fb_loop:")
    for part in range(4):
        a(f"s_add_u32 m0, s81, {part*4096}\ns_nop 0")
        a(f"buffer_load_dwordx4 v{FK+2*part}, s[{rK}:{rK+3}], s80 offen lds\nbuffer_load_dwordx4 v{FK+2*part+1}, s[{rK}:{rK+3}], s80 offen offset:1024 lds")
        a(f"buffer_load_dwordx4 v{FV+2*part}, s[{rV}:{rV+3}], s80 offen offset:2048 lds\nbuffer_load_dwordx4 v{FV+2*part+1}, s[{rV}:{rV+3}], s80 offen offset:3072 lds")
    a("s_waitcnt vmcnt(0)")
    for x in kreads(0):
        for s in range(4): x = x.replace(f", v{vKA+s} ", f", v{KA2+s} ")
        a(x)
    a("s_waitcnt lgkmcnt(0)")
    for db in range(8):
        for jj in range(2): a(f"ds_read_b64_tr_b16 a[{aVF+db*4+2*jj}:{aVF+db*4+2*jj+1}], v{VA2[db]} offset:{jj*8192}")
    for x in qk(0, '0'): a(x)
    a("s_nop 7\ns_waitcnt lgkmcnt(0)")
    for qb in range(4):
        b0 = vS[0] + qb*8; T = TM[qb]
        a(f"v_max3_f32 v{T}, v{b0}, v{b0+1}, v{b0+2}\nv_max3_f32 v{T}, v{T}, v{b0+3}, v{b0+4}\nv_max3_f32 v{T}, v{T}, v{b0+5}, v{b0+6}\nv_max3_f32 v{T}, v{T}, v{b0+7}, v{M[qb]}")
        xreduce(a, T, 'v_max_f32', T + 1)
        a(f"v_sub_f32 v{AL[qb]}, v{M[qb]}, v{T}\nv_mov_b32 v{M[qb]}, v{T}\nv_exp_f32 v{AL[qb]}, v{AL[qb]}")
        for i in range(8): a(f"v_sub_f32 v{b0+i}, v{b0+i}, v{T}")
        for i in range(8): a(f"v_exp_f32 v{b0+i}, v{b0+i}")
        a(f"v_mul_f32 v{vL+qb}, v{vL+qb}, v{AL[qb]}")
        for i in range(8): a(f"v_add_f32 v{vL+qb}, v{vL+qb}, v{b0+i}")
        for i in range(4): a(f"v_cvt_pk_bf16_f32 v{vP[0]+qb*4+i}, v{b0+2*i}, v{b0+2*i+1}")
        for db in range(8):
            o = aO + (db*4 + qb)*4
            for i in range(4): a(f"v_accvgpr_read_b32 v{vT+i}, a{o+i}")
            for i in range(4): a(f"v_mul_f32 v{vT+i}, v{vT+i}, v{AL[qb]}")
            for i in range(4): a(f"v_accvgpr_write_b32 a{o+i}, v{vT+i}")
    a("s_nop 1")
    for x in pv(0, False, 0): a(x)
    a("s_nop 7\ns_add_u32 s80, s80, 8192\ns_cmp_lt_u32 s80, 0x80000\ns_cbranch_scc1 L_fb_loop")
    for qb in range(4): xreduce(a, vL + qb, 'v_add_f32', vT)
    a("s_branch L_fb_ret")
    return a

def final_kernel():
    a = Prog()
    a("final_kernel:")
    a("s_cmp_ge_u32 s2, 512\ns_cbranch_scc1 L_fin_end")
    if OPT['timing']: a("s_memrealtime s[30:31]")
    a("s_load_dwordx2 s[4:5], s[0:1], 0\ns_load_dwordx2 s[6:7], s[0:1], 72\ns_load_dwordx2 s[8:9], s[0:1], 88")
    a("v_lshrrev_b32 v2, 6, v0\nv_and_b32 v0, 63, v0\nv_readfirstlane_b32 s3, v2\nv_lshlrev_b32 v1, 4, v0")
    a("s_lshl_b32 s10, s2, 2\ns_nop 2\ns_add_u32 s10, s10, s3")
    a("s_waitcnt lgkmcnt(0)")
    srd(a, 12, 4, 2048*1024); srd(a, 16, 6, 2048*1024); srd(a, 20, 8, 0x2000000)
    a("s_lshl_b32 s11, s10, 10")
    for t in range(2):
        for g in range(8):
            a(f"s_add_u32 s24, s11, {t*0x1000000 + g*0x200000}")
            r = 8 + (t*8 + g)*4
            a(f"buffer_load_dwordx4 v[{r}:{r+3}], v1, s[20:23], s24 offen ; @T:l{t}{g}")
    a("s_lshr_b32 s25, s10, 6\ns_lshl_b32 s25, s25, 16\ns_and_b32 s26, s10, 3\ns_lshl_b32 s26, s26, 14\ns_add_u32 s25, s25, s26")
    a("s_bfe_u32 s26, s10, 0x40002\ns_lshl_b32 s26, s26, 6\ns_add_u32 s25, s25, s26")
    a("v_and_b32 v2, 15, v0\nv_lshlrev_b32 v2, 10, v2\nv_lshrrev_b32 v3, 4, v0\nv_lshl_add_u32 v2, v3, 3, v2")
    a("buffer_load_dwordx2 v[4:5], v2, s[12:15], s25 offen ; @T:x\nbuffer_load_dwordx2 v[6:7], v2, s[12:15], s25 offen offset:32 ; @T:x")
    acc = [72, 80]
    for t in range(2):
        for g in range(8):
            r = 8 + (t*8 + g)*4
            a(f"s_waitcnt vmcnt(@l{t}{g})")
            for i in range(4):
                if g == 0:
                    a(f"v_lshlrev_b32 v{acc[t]+2*i}, 16, v{r+i}\nv_and_b32 v{acc[t]+2*i+1}, 0xffff0000, v{r+i}")
                else:
                    a(f"v_lshlrev_b32 v88, 16, v{r+i}\nv_and_b32 v89, 0xffff0000, v{r+i}\nv_pk_add_f32 v[{acc[t]+2*i}:{acc[t]+2*i+1}], v[{acc[t]+2*i}:{acc[t]+2*i+1}], v[88:89]")
    for i in range(8): a(f"v_mul_f32 v{8+i}, {hx(-math.log2(math.e))}, v{80+i}")
    for i in range(8): a(f"v_exp_f32 v{8+i}, v{8+i}")
    for i in range(8): a(f"v_add_f32 v{8+i}, 1.0, v{8+i}")
    for i in range(8): a(f"v_rcp_f32 v{8+i}, v{8+i}")
    for i in range(8): a(f"v_mul_f32 v{8+i}, v{8+i}, v{80+i}")
    a("s_waitcnt vmcnt(@x)")
    for i in range(4): a(f"v_lshlrev_b32 v{16+2*i}, 16, v{4+i}\nv_and_b32 v{17+2*i}, 0xffff0000, v{4+i}")
    for i in range(8): a(f"v_fmac_f32 v{16+i}, v{8+i}, v{72+i}")
    for i in range(4): a(f"v_cvt_pk_bf16_f32 v{4+i}, v{16+2*i}, v{17+2*i}")
    a("buffer_store_dwordx2 v[4:5], v2, s[16:19], s25 offen\nbuffer_store_dwordx2 v[6:7], v2, s[16:19], s25 offen offset:32")
    if OPT['timing']:
        a("s_waitcnt vmcnt(0)\ns_memrealtime s[32:33]\ns_waitcnt lgkmcnt(0)\ns_mov_b32 s22, 0x4000000\ns_lshl_b32 s11, s10, 3\ns_add_u32 s11, s11, 0x3100000")
        a("v_mov_b32 v4, s30\nv_mov_b32 v5, s32\nv_mov_b32 v2, 0\nbuffer_store_dwordx2 v[4:5], v2, s[20:23], s11 offen")
    a("L_fin_end:\ns_endpgm")
    return a

def kd(name, vgpr, acc):
    return f""".section .rodata,"a"
.p2align 6
.amdhsa_kernel {name}
  .amdhsa_next_free_vgpr {vgpr}
  .amdhsa_next_free_sgpr 102
  .amdhsa_accum_offset {acc}
  .amdhsa_group_segment_fixed_size 0
  .amdhsa_kernarg_size 96
  .amdhsa_user_sgpr_count 2
  .amdhsa_user_sgpr_kernarg_segment_ptr 1
  .amdhsa_system_sgpr_workgroup_id_x 1
.end_amdhsa_kernel
"""

def build(opts=None):
    if opts: OPT.update(opts)
    m = main_kernel(); f = final_kernel()
    lo, hi = m.loop
    L1 = resolve_waits(m.L)
    dbl = m.L[:hi] + m.L[lo:hi] + m.L[hi:]
    L2 = resolve_waits(dbl)
    def loopseg(L, k):
        idx = [i for i, x in enumerate(L) if x.startswith('L_attn_loop')][0] + 1
        n = len(L2) - len(L1)
        return L[idx + k*n: idx + (k+1)*n]
    assert loopseg(L2, 0) == loopseg(L2, 1), "loop waits differ between trips"
    assert L2[-200:] == L1[-200:]
    probs = check_stream(L2, 'main')
    FB = resolve_waits(m.fb.L); probs += check_stream(FB + FB, 'fallback')
    F1 = resolve_waits(f.L); probs += check_stream(F1, 'final')
    strip = lambda L: [re.sub(r'\s*;.*', '', x) for x in L]
    txt = "; fused LN + GQA attention + GEGLU FFN (generated by my own script)\n"
    if OPT['single']:
        name = KNAME + '_kernel'
        txt += "; @launch grid=(256,1,1) block=(256,1,1) lds=163840\n"
    else:
        name = 'main_kernel'
        txt += "; @launch kernel=main_kernel grid=(256,1,1) block=(256,1,1) lds=163840\n; @launch kernel=final_kernel grid=(512,1,1) block=(256,1,1) lds=0\n"
    txt += '.amdgcn_target "amdgcn-amd-amdhsa--gfx950"\n.text\n'
    L1[0] = name + ':'
    txt += f".globl {name}\n.p2align 8\n.type {name},@function\n" + "\n".join(strip(L1)) + "\nL_code_end:\n" + "\n".join(strip(FB)) + "\n"
    if not OPT['single']:
        txt += ".globl final_kernel\n.p2align 8\n.type final_kernel,@function\n" + "\n".join(strip(F1)) + "\n"
    txt += kd(name, 512, 256) + ('' if OPT['single'] else kd('final_kernel', 96, 96))
    return txt, probs

if __name__ == '__main__':
    opts = eval(sys.argv[2]) if len(sys.argv) > 2 else None
    txt, probs = build(opts)
    open(sys.argv[1], 'w').write(txt)
    print(len(txt), 'bytes;', len(probs), 'hazard problems')
    for p in probs[:30]: print(p)
```

```python
from asmlib import Ins, cost
MF = 'v_mfma_f32_16x16x32_bf16'

class SP:
    def __init__(self, R, opt):
        self.R = R; self.o = opt
    def sblk(self, b, kb, qb): return self.R['S'][b] + (qb*2 + kb)*4
    def qk(self, b, cinit='negm'):
        R = self.R; out = []
        for kb in range(2):
            for qb in range(4):
                for s in range(4):
                    r = self.sblk(b, kb, qb); d = f"v[{r}:{r+3}]"
                    c = d if s else (f"v[{R['NEGM']+4*qb}:{R['NEGM']+4*qb+3}]" if cinit == 'negm' else '0')
                    k = R['KF'] + (kb*4 + s)*4; q = R['Q'] + (qb*4 + s)*4
                    out.append(f"{MF} {d}, a[{k}:{k+3}], {R['Qf']}[{q}:{q+3}], {c}")
        return out
    def mm(self, o, v, p, c):
        if self.o.get('swap'): return f"{MF} a[{o}:{o+3}], v[{p}:{p+3}], a[{v}:{v+3}], {c}"
        return f"{MF} a[{o}:{o+3}], a[{v}:{v+3}], v[{p}:{p+3}], {c}"
    def ms(self, l, p, c):
        on = self.R['ONES']
        if self.o.get('swap'): return f"{MF} v[{l}:{l+3}], v[{p}:{p+3}], v[{on}:{on+3}], {c}"
        return f"{MF} v[{l}:{l+3}], v[{on}:{on+3}], v[{p}:{p+3}], {c}"
    def vreg(self, db, h): return self.R['VF'] + (db % 4)*8 + h*4
    def pv2(self, pa, pb, first=False):
        R = self.R; out = []; start = []
        nsum = self.o['msum']
        for db in range(8):
            start.append(len(out))
            for qb in range(4):
                o = R['O'] + (db*4 + qb)*4
                out.append(self.mm(o, self.vreg(db, 0), R['P'][pa] + 4*qb, '0' if first else f"a[{o}:{o+3}]"))
                out.append(self.mm(o, self.vreg(db, 1), R['P'][pb] + 4*qb, f"a[{o}:{o+3}]"))
            if db in (1, 3, 5, 6)[:nsum]:
                qb = (1, 3, 5, 6).index(db); l = R['LM'] + 4*qb
                out.append(self.ms(l, R['P'][pa] + 4*qb, '0' if first else f"v[{l}:{l+3}]"))
                out.append(self.ms(l, R['P'][pb] + 4*qb, f"v[{l}:{l+3}]"))
        return out, start
    def pv1(self, p, vbase):
        R = self.R; out = []
        for qb in range(4):
            for db in range(8):
                o = R['O'] + (db*4 + qb)*4
                out.append(self.mm(o, vbase + db*4, R['P'][p] + 4*qb, f"a[{o}:{o+3}]"))
            if qb < self.o['msum']:
                l = R['LM'] + 4*qb; out.append(self.ms(l, R['P'][p] + 4*qb, f"v[{l}:{l+3}]"))
        return out
    def kreads(self, sl, kb):
        R = self.R
        return [f"ds_read_b128 a[{R['KF']+(kb*4+s)*4}:{R['KF']+(kb*4+s)*4+3}], v{R['KA']+s} offset:{sl*16384 + kb*8192}" for s in range(4)]
    def vreads(self, sl, db, reg):
        return [f"ds_read_b64_tr_b16 a[{reg+2*jj}:{reg+2*jj+1}], v{self.R['VA'][db]} offset:{sl*16384 + jj*8192}" for jj in range(2)]
    def smq(self, b, pbuf):
        R = self.R; nsum = self.o['msum']; E = []; Sg = []
        for kb in range(2):
            for qb in range(4):
                for i in range(2):
                    s0 = self.sblk(b, kb, qb) + 2*i
                    E += [f"v_exp_f32 v{s0}, v{s0}", f"v_exp_f32 v{s0+1}, v{s0+1}"]; k = len(E)
                    if qb >= nsum: Sg += [(k-1, f"v_add_f32 v{R['L']+qb}, v{R['L']+qb}, v{s0}"), (k, f"v_add_f32 v{R['L']+qb}, v{R['L']+qb}, v{s0+1}")]
                    Sg += [(k, f"v_cvt_pk_bf16_f32 v{R['P'][pbuf]+qb*4+kb*2+i}, v{s0}, v{s0+1}")]
        return E, Sg

    def sp(self, j, carry, kvdma, first=False, knext=True, dma=(True, True, True, True), xd=None, alsowait=None, nofill=(), vlast=None, xauto=None, postbar=None):
        o = self.o
        sx, sy = (2*j) % 4, (2*j + 1) % 4
        pa, pb = (2*j) % 4, (2*j + 1) % 4; pc, pd = (2*j + 2) % 4, (2*j + 3) % 4
        pv, st = self.pv2(pa, pb, first)
        ms = self.qk(0) + self.qk(1) + pv
        N = len(ms); st = [64 + x for x in st]
        GB = st[5] + o.get('gb', 1)
        shadow = [None]*N; dmag = {}; mem = []
        for g in [15, 31, 47] + [x - 1 for x in st]: shadow[g] = "s_waitcnt lgkmcnt(@auto)"
        shadow[N-1] = "s_waitcnt lgkmcnt(0)"
        shadow[GB-1] = f"s_waitcnt vmcnt(@kv{(sy+2)%4}{'|' + alsowait if alsowait else ''}) lgkmcnt(0)"
        shadow[GB] = "s_barrier" if not o.get('nobar') else None
        for i, x in enumerate(self.kreads(sy, 0)): mem.append((o.get('k0', 17) + o.get('kst', 2)*i, x))
        for i, x in enumerate(self.kreads(sy, 1)): mem.append((o.get('k0', 17) + 16 + o.get('kst', 2)*i, x))
        for db in range(8):
            g0 = o.get('v0', 41) + o.get('vst', 5)*db if db < 4 else st[db-3]
            for i, x in enumerate(self.vreads(sx, db, self.vreg(db, 0)) + self.vreads(sy, db, self.vreg(db, 1))): mem.append((g0 + i, x))
        if knext:
            for i, x in enumerate(self.kreads((sx+2) % 4, 0) + self.kreads((sx+2) % 4, 1)): mem.append((GB + 1 + i + (i > 3), x))
        if vlast:
            for i, x in enumerate(vlast): mem.append((GB + 1 + i // 2, x))
        if dma[0] or dma[1]:
            sc, dd = kvdma((sy + 2) % 4, 2*j + 5, 2*j + 3, dma[0], dma[1])
            for x, g in zip(sc, [1, 2, 3]): shadow[g] = x
            for x, g in zip(dd, o.get('dg1', [5, 10, 22, 28])): dmag[g] = x
        if dma[2] or dma[3]:
            sc, dd = kvdma(sx, 2*j + 6, 2*j + 4, dma[2], dma[3])
            fr = [g for g in range(GB + 1, N - 1) if not shadow[g]]
            for x, g in zip(sc, fr[:3]): shadow[g] = x
            fr = [g for g in range(GB + 8, N - 1) if not shadow[g]]
            k_ = max(1, (len(fr) - 1) // 3)
            for x, g in zip(dd, [fr[0], fr[k_], fr[2*k_], fr[3*k_]]): dmag[g] = x
        for (g, x) in (xd or []):
            if x.startswith('buffer'):
                assert g not in dmag and not shadow[g], (g, x); dmag[g] = x
            else:
                assert not shadow[g] and g not in dmag, (g, x); shadow[g] = x
        nofill = set(nofill)
        if o.get('barnofill'): nofill.add(GB)
        for lo, hi, ops in (xauto or []):
            memg = set(t[0] for t in mem)
            fr = [g for g in range(lo, hi) if not shadow[g] and g not in dmag]
            step = len(fr) / len(ops)
            assert step >= 1, (lo, hi, len(ops))
            for k, x in enumerate(ops):
                g = fr[int(k*step)]
                if x.startswith('buffer'): dmag[g] = x
                else: shadow[g] = x
        if postbar:
            g = [g for g in range(GB + 1, N - 1) if not shadow[g] and g not in dmag][0]
            shadow[g] = postbar; nofill.add(g)
        mem.sort(key=lambda t: t[0])
        s1 = o.get('s1', 34); s2 = s1 + N // 2
        new = {s1: self.smq(0, pc), s2: self.smq(1, pd)}
        E = list(carry[0]); Sq = list(carry[1]); edone = carry[2]
        lines = []; mi = 0; old_S = None; acc = 0.0
        extra = max(0, 128 + len(mem) + 2*len(new[s1][1]) + 2*len(dmag) + 2*len(nofill) - 2*N + o.get('xs', 0))
        self.loads = []
        for g in range(N):
            I = Ins(ms[g]); rd = set(I.ab)
            for q in (old_S, Sq):
                for x in (q or []):
                    J = Ins(x[1])
                    assert not (set(J.w) & rd), (j, g, ms[g], x)
                    assert not (set(J.r) & set(I.w)), (j, g, ms[g], x)
            for x in E: assert not (set(Ins(x).r) & set(I.w)), (j, g, ms[g], x)
            lines.append(ms[g])
            if shadow[g]: lines.append(shadow[g])
            if g in new:
                assert not E and not old_S, (j, g, len(E))
                old_S = Sq; E, Sq = list(new[g][0]), list(new[g][1]); edone = 0
            acc += extra / N
            if g in dmag: lines.append(dmag[g]); self.loads.append(2); continue
            if g in nofill: continue
            room = 2
            if acc >= 1.0 - 1e-9: room += 1; acc -= 1.0
            gm = []; gv = []; e_prev = edone
            left = (s1 - g) if g < s1 else (s2 - g) if g < s2 else (N - g + s1)
            due = sum(1 for t in mem[mi:mi+2] if t[0] <= g)
            navail = due + (len(old_S) if old_S else 0) + sum(1 for x in Sq if x[0] <= e_prev)
            if E and (len(E)*2 >= left or navail < 2) and not (due >= 2 and mem[mi][0] <= g - 2):
                gv.append(E.pop(0)); room -= 2; edone += 1
            while room > 0:
                if mi < len(mem) and mem[mi][0] <= g: gm.append(mem[mi][1]); mi += 1; room -= 1
                elif old_S: gv.append(old_S.pop(0)[1]); room -= 1
                elif Sq and Sq[0][0] <= e_prev: gv.append(Sq.pop(0)[1]); room -= 1
                else: break
            lines += gm + gv
            self.loads.append(sum(cost(x) for x in gm + gv))
        assert mi == len(mem) and not old_S, (mi, len(mem), old_S)
        return lines, (E, Sq, edone)
```

```python
import sys, re, math, struct
from asmlib import Ins, check_stream, cost
from sp import SP

KNAME = 'recurrent_scan__gqa_block_cached__geglu_ffn__prompt'
MF = 'v_mfma_f32_16x16x32_bf16'
def f2u(x): return struct.unpack('<I', struct.pack('<f', x))[0]
def hx(x): return '0x%08x' % f2u(x)

OPT = dict(late2=1, npre=16, ocap=16, lnm=1, early=0, lnevery=16, map=4, xdma=1, psleep=8, single=1, spin=200000, msum=2, stflags=' sc1', prefetch=1, codepf=1, timing=0, stamps=[0,1,2,3,4,5,6,7], fthresh=24, filler_cap=48)

sW, sG, sRB, sNU, sU0 = 3, 4, 5, 6, 7
sRBX = sRB
rK, rV, rWG, rWU, rWQ, rWD, rWO, rX, rWS = 8, 12, 16, 20, 24, 28, 32, 36, 40
rOUT, rDBG = 64, 68
sLATE, sSHOFF, sXOFF, sDONE, sTODO, sBITS = 61, 62, 63, 84, 85, 1
sKO = 44
sKVM0, sCNT, sRING, sJ, sOFF0, sOFF1, sROT = 48, 49, 50, 51, 52, 53, 54
sCOG, sCOQ, sCOD, sCOD3, sCOO, sSLAB = 55, 56, 57, 58, 59, 60
sT = 72
sTS = 86
vFA, vL16 = 0, 1
vWA, vWI = 2, 6
vDG, vDQ, vDO = 10, 14, 18
vDK, vDV = 22, 24
vT = 26
vGB, vPF = 30, 31
vW = 32
bA, bB, bC = 64, 128, 192
vKA = 10
vVAl = [2, 3, 4, 5, 14, 15, 16, 17]
vQ = bB; vS = [bC, bC + 32]; vP = [32, 48]
vNEGM, vONES, vLM, vL = 96, 112, 116, 124
aO, aKF, aVF = 0, 192, 224
RING = 0
LB = 98304

class Prog:
    def __init__(self): self.L = []
    def __call__(self, s):
        for x in s.split('\n'):
            x = x.strip()
            if x: self.L.append(x)

def srd(a, r, lo, size, add=None, sub=None):
    a(f"s_mov_b32 s{r}, s{lo}\ns_mov_b32 s{r+1}, s{lo+1}")
    if add: a(f"s_add_u32 s{r}, s{r}, {add}\ns_addc_u32 s{r+1}, s{r+1}, 0")
    if sub: a(f"s_sub_u32 s{r}, s{r}, {sub}\ns_subb_u32 s{r+1}, s{r+1}, 0")
    a(f"s_mov_b32 s{r+2}, {size}\ns_mov_b32 s{r+3}, 0x20000")

def stampl(name):
    if OPT['timing'] and name in OPT['stamps']:
        i = OPT['stamps'].index(name)
        return [f"s_memtime s[{sTS+2*i}:{sTS+2*i+1}]", "s_waitcnt lgkmcnt(0)"]
    return []
def stamp(a, name):
    for x in stampl(name): a(x)

def resolve_waits(lines):
    parsed = []
    for l in lines:
        t = l.split(';')[0].strip()
        parsed.append(None if (not t or t.endswith(':') or t.startswith('.')) else Ins(t))
    out = list(lines)
    vmq = []; dsq = []
    for i, l in enumerate(lines):
        I = parsed[i]
        if I is None: continue
        tag = None
        m = re.search(r'@T:(\w+)', l)
        if m: tag = m.group(1)
        if I.op == 's_waitcnt':
            parts = []
            m = re.search(r'vmcnt\(([^)]*)\)', l)
            if m:
                x = m.group(1)
                if x.startswith('@'):
                    idx = [k for k, e in enumerate(vmq) if e[0] in x[1:].split('|')]
                    n = len(vmq) - 1 - idx[-1] if idx else None
                else: n = int(x)
                if n is not None:
                    n = min(n, 63); parts.append(f"vmcnt({n})")
                    while len(vmq) > n: vmq.pop(0)
            m = re.search(r'lgkmcnt\(([^)]*)\)', l)
            if m:
                ns = []
                for x in m.group(1).split('+'):
                    if x == '@auto':
                        need = -1
                        for j in range(i + 1, len(lines)):
                            J = parsed[j]
                            if J is None: continue
                            if J.op == 's_waitcnt' and ('@auto' in lines[j] or 'lgkmcnt(0)' in lines[j]): break
                            tch = set(J.r) | set(J.w)
                            for k, e in enumerate(dsq):
                                if tch & e[1]: need = max(need, k)
                        if need >= 0: ns.append(len(dsq) - 1 - need)
                    elif x.startswith('@'):
                        idx = [k for k, e in enumerate(dsq) if e[0] == x[1:]]
                        if idx: ns.append(len(dsq) - 1 - idx[-1])
                    else: ns.append(int(x))
                if ns:
                    n = min(min(ns), 15); parts.append(f"lgkmcnt({n})")
                    while len(dsq) > n: dsq.pop(0)
            out[i] = ("s_waitcnt " + " ".join(parts)) if parts else None
        elif I.kind in ('dsr', 'dsw'): dsq.append((tag, set(I.w)))
        elif I.kind == 'smem':
            dsq.append((tag, set(I.w))); dsq.append((tag, set(I.w)))
        elif I.kind in ('vld', 'vst', 'dma') and '@X' not in l: vmq.append((tag, set(I.w)))
    return [x for x in out if x is not None]

class Panel:
    def __init__(self, name, srd, dv, rs, co, acc, first, bfrag, inter, rot, row0=0):
        self.name = name; self.srd = srd; self.dv = dv; self.rs = rs; self.co = co; self.acc = acc
        self.first = first; self.bfrag = bfrag; self.inter = inter; self.rot = rot; self.row0 = row0

def panel_dma(P, idx):
    sl = idx % 3
    s0 = []
    if P.rot:
        s0 += [f"s_add_u32 s{sJ}, s{sJ}, 1", f"s_and_b32 s{sJ}, s{sJ}, 7", f"s_mul_i32 s{sOFF0}, s{sJ}, {64*P.rs}", f"s_add_u32 s{sOFF0}, s{sOFF0}, {P.co}"]
        if P.row0: s0.append(f"s_add_u32 s{sOFF0}, s{sOFF0}, {P.row0}")
    elif P.name[0] == 'O':
        s0 += [f"s_add_u32 s{sOFF0}, s{44 + P.j % 4}, {P.row0}"]
    else:
        s0 += [f"s_add_u32 s{sOFF0}, {P.co}, {P.row0}"]
    s0 += [f"s_add_u32 m0, s{sRING}, {sl*8192}"]
    s1 = [f"s_add_u32 s{sOFF1}, s{sOFF0}, {32*P.rs}", f"s_add_u32 m0, s{sRING}, {sl*8192 + 4096}"]
    d = []
    for i in range(8):
        so = sOFF0 if i < 4 else sOFF1
        off = f" offset:{1024*(i%4)}" if i % 4 else ""
        d.append(f"buffer_load_dwordx4 v{P.dv + i%4}, s[{P.srd}:{P.srd+3}], s{so} offen{off} lds ; @T:w{idx}")
    return s0, s1, d

def wreads(P, idx, nb):
    sl = idx % 3; out = []
    for ks in range(2):
        for jj in range(2):
            r = vW + nb*8 + ks*4 + jj*2
            if P.inter: ad = vWI + nb; off = sl*8192 + ks*4096 + jj*2048
            else: ad = vWA + (nb ^ (2*jj)); off = sl*8192 + ks*4096 + jj*512
            out.append(f"ds_read_b64_tr_b16 v[{r}:{r+1}], v{ad} offset:{off} ; @T:wr{idx}_{nb}")
    return out

def panel_mfmas(P):
    out = []
    for nb in range(4):
        for qb in range(4):
            for ks in range(2):
                d = P.acc + (nb*4 + qb)*4; w = vW + nb*8 + ks*4; b = P.bfrag(ks, qb)
                c = '0' if (P.first and ks == 0) else f"v[{d}:{d+3}]"
                out.append(f"{MF} v[{d}:{d+3}], v[{w}:{w+3}], a[{b}:{b+3}], {c}")
    return out

def emit_stream(a, panels, base, fillers, extra_mem, extra_shadow, nxt=None, must_empty=(), quiet=None, cap=None):
    allp = panels + (nxt or [])
    q = []; pend = []
    for pos, P in enumerate(panels):
        idx = base + pos
        if pos in must_empty: assert not q, (pos, len(q))
        q += fillers.get(pos, [])
        stamp(a, f'p{idx}')
        ms = panel_mfmas(P)
        shadow = [[] for _ in range(32)]; mem = [[] for _ in range(32)]; dma = {}
        r3 = wreads(P, idx, 3)
        mem[0] += r3[:2]; mem[1] += r3[2:]
        hasn = pos + 1 < len(allp)
        if hasn:
            N = allp[pos+1]
            shadow[7].append(f"s_waitcnt vmcnt(@w{idx+1}) lgkmcnt(@auto+@wr{idx}_3)")
            for nb in range(3):
                r = wreads(N, idx+1, nb); g = 8*nb + 8
                mem[g] += r[:2]; mem[g+2] += r[2:]
        else:
            shadow[7].append(f"s_waitcnt lgkmcnt(@auto)")
        shadow[15].append("s_waitcnt lgkmcnt(@auto)"); shadow[23].append("s_waitcnt lgkmcnt(@auto)"); shadow[31].append("s_waitcnt lgkmcnt(@auto)")
        if pos + 3 < len(allp):
            s0, s1, d = panel_dma(allp[pos+3], idx+3)
            for k, x in enumerate(s0): shadow[8 - len(s0) + k - (1 if 8 - len(s0) + k <= 7 else 0)].append(x)
            gaps = [9, 11, 13, 17, 19, 21, 25, 27]
            shadow[16].append(s1[0]); shadow[18].append(s1[1])
            for x, g in zip(d, gaps): dma[g] = x
        for (p2, g), x in extra_mem.items():
            if p2 == pos:
                assert g not in dma, (pos, g)
                mem[g] += x
        for (p2, g), x in extra_shadow.items():
            if p2 == pos: shadow[g] += x
        budget = (cap or {}).get(pos, OPT['filler_cap'])
        free = [g for g in range(32) if g not in dma]
        base_room = sum(max(0, 2 - len(mem[g])) for g in free)
        want = min(budget, sum(cost(x) for x in q))
        extra = max(0, want - base_room); acc = 0.0
        for g in range(32):
            a(ms[g])
            for x in shadow[g]: a(x)
            if g in dma:
                a(dma[g]); continue
            for x in mem[g]:
                if x: a(x)
            room = 2 - len(mem[g])
            acc += extra / len(free)
            while q:
                x = q[0]
                if x.startswith('ds_') or x.startswith('buffer'):
                    pend.append(q.pop(0)); continue
                c = cost(x)
                if pend and (set(Ins(x.split(';')[0]).w) & set(sum((Ins(y.split(';')[0]).r for y in pend), []))): break
                if c <= room: room -= c
                elif (c - room) <= acc + (0.75 if room > 0 and extra > 0 else 0): acc -= (c - max(room, 0)); room = 0
                else: break
                a(q.pop(0))
            if pend and g + 1 < 32 and (g + 1) not in dma and len(mem[g+1]) <= (1 if quiet else 0) and ((g + 1) in (quiet or OPT.get('quiet', (4, 6, 22, 28, 30))) or not dma):
                mem[g+1] += [pend.pop(0), None]
        if (pos + 1) in must_empty and not q:
            for x in pend: a(x)
            pend = []
        q = pend + q; pend = []
    return q

def gelu_stage1(G):
    A = -2.0 * math.log2(math.e) * math.sqrt(2.0 / math.pi)
    ops = []
    for blk in range(16):
        x = [G + blk*4 + i for i in range(4)]; t = [vT + i for i in range(4)]
        ops += [f"v_mul_f32 v{t[i]}, v{x[i]}, v{x[i]}" for i in range(4)]
        ops += [f"v_fmaak_f32 v{t[i]}, v{vGB}, v{t[i]}, {hx(A)}" for i in range(4)]
        ops += [f"v_mul_f32 v{t[i]}, v{t[i]}, v{x[i]}" for i in range(4)]
        ops += [f"v_exp_f32 v{t[i]}, v{t[i]}" for i in range(4)]
        ops += [f"v_add_f32 v{t[i]}, 1.0, v{t[i]}" for i in range(4)]
        ops += [f"v_rcp_f32 v{t[i]}, v{t[i]}" for i in range(4)]
        ops += [f"v_mul_f32 v{x[i]}, v{x[i]}, v{t[i]}" for i in range(4)]
    return ops

def geglu_stage2(G, U):
    ops = []
    for sp in range(2):
        for qb in range(4):
            b0 = ((2*sp)*4 + qb)*4; b1 = ((2*sp+1)*4 + qb)*4
            for b in (b0, b1):
                ops += [f"v_mul_f32 v{G+b+i}, v{G+b+i}, v{U+b+i}" for i in range(4)]
            d = U + b0
            ops += [f"v_cvt_pk_bf16_f32 v{d}, v{G+b0}, v{G+b0+1}", f"v_cvt_pk_bf16_f32 v{d+1}, v{G+b0+2}, v{G+b0+3}",
                    f"v_cvt_pk_bf16_f32 v{d+2}, v{G+b1}, v{G+b1+1}", f"v_cvt_pk_bf16_f32 v{d+3}, v{G+b1+2}, v{G+b1+3}"]
            ops += [f"ds_write_b128 v{vPF}, v[{d}:{d+3}] offset:{(sp*4 + qb)*1024} ; @T:hw"]
    return ops

def qpack(acc, half):
    c = math.log2(math.e) / math.sqrt(128.0)
    ops = []; late = []
    for sp in range(2):
        for qb in range(4):
            b0 = acc + ((2*sp)*4 + qb)*4; b1 = acc + ((2*sp+1)*4 + qb)*4
            for b in (b0, b1):
                ops += [f"v_mul_f32 v{b+i}, {hx(c)}, v{b+i}" for i in range(4)]
            ops += late; late = []
            d = vQ + (qb*4 + 2*half + sp)*4
            ops += [f"v_cvt_pk_bf16_f32 v{d}, v{b0}, v{b0+1}", f"v_cvt_pk_bf16_f32 v{d+1}, v{b0+2}, v{b0+3}",
                    f"v_cvt_pk_bf16_f32 v{d+2}, v{b1}, v{b1+1}", f"v_cvt_pk_bf16_f32 v{d+3}, v{b1+2}, v{b1+3}"]
            late = [f"v_permlane32_swap_b32 v{d}, v{d+2}", f"v_permlane32_swap_b32 v{d+1}, v{d+3}", "s_nop 0",
                    f"v_permlane16_swap_b32 v{d}, v{d+2}", f"v_permlane16_swap_b32 v{d+1}, v{d+3}"]
    return ops + ["s_nop 1"] + late

def slab_store(acc, t, hf):
    ops = []
    for sp in range(2):
        for qb in range(4):
            b0 = acc + ((2*sp)*4 + qb)*4; b1 = acc + ((2*sp+1)*4 + qb)*4
            ops += [f"v_cvt_pk_bf16_f32 v{b0}, v{b0}, v{b0+1}", f"v_cvt_pk_bf16_f32 v{b0+1}, v{b0+2}, v{b0+3}",
                    f"v_cvt_pk_bf16_f32 v{b0+2}, v{b1}, v{b1+1}", f"v_cvt_pk_bf16_f32 v{b0+3}, v{b1+2}, v{b1+3}"]
            f = hf*8 + sp*4 + qb
            so = sT + (t*4 + f // 4)
            ops += [f"buffer_store_dwordx4 v[{b0}:{b0+3}], v{vL16}, s[{rWS}:{rWS+3}], s{so} offen offset:{(f%4)*1024}{OPT['stflags']} ; @T:st"]
    return ops

def park(acc, dst):
    ops = []
    for sp in range(2):
        for qb in range(4):
            b0 = acc + ((2*sp)*4 + qb)*4; b1 = acc + ((2*sp+1)*4 + qb)*4
            ops += [f"v_cvt_pk_bf16_f32 v{b0}, v{b0}, v{b0+1}", f"v_cvt_pk_bf16_f32 v{b0+1}, v{b0+2}, v{b0+3}",
                    f"v_cvt_pk_bf16_f32 v{b0+2}, v{b1}, v{b1+1}", f"v_cvt_pk_bf16_f32 v{b0+3}, v{b1+2}, v{b1+3}"]
            ops += [f"v_accvgpr_write_b32 a{dst + (sp*4+qb)*4 + i}, v{b0+i}" for i in range(4)]
    return ops
def parked_store(f):
    return f"buffer_store_dwordx4 a[{128+4*f}:{131+4*f}], v{vL16}, s[{rWS}:{rWS+3}], s{sT + 4 + f//4} offen offset:{(f%4)*1024}{OPT['stflags']}"

def qk(b, cinit='negm'):
    out = []
    for qb in range(4):
        for kb in range(2):
            for s in range(4):
                r = vS[b] + (qb*2 + kb)*4; d = f"v[{r}:{r+3}]"
                c = d if s else (f"v[{vNEGM+4*qb}:{vNEGM+4*qb+3}]" if cinit == 'negm' else '0')
                k = aKF + (kb*4 + s)*4; q = vQ + (qb*4 + s)*4
                out.append(f"{MF} {d}, a[{k}:{k+3}], v[{q}:{q+3}], {c}")
    return out
def pv(b, first=False, nsum=None, aVF=aVF):
    nsum = OPT['msum'] if nsum is None else nsum
    out = []
    for qb in range(4):
        p = vP[b] + qb*4
        for db in range(8):
            o = aO + (db*4 + qb)*4; v = aVF + db*4
            c = '0' if first else f"a[{o}:{o+3}]"
            out.append(f"{MF} a[{o}:{o+3}], a[{v}:{v+3}], v[{p}:{p+3}], {c}")
        if qb < nsum:
            l = vLM + 4*qb
            out.append(f"{MF} v[{l}:{l+3}], v[{vONES}:{vONES+3}], v[{p}:{p+3}], {'0' if first else f'v[{l}:{l+3}]'}")
    return out
def kreads(sl):
    return [f"ds_read_b128 a[{aKF+(kb*4+s)*4}:{aKF+(kb*4+s)*4+3}], v{vKA+s} offset:{sl*16384 + kb*8192}" for kb in range(2) for s in range(4)]
def vreads(sl, aVF=aVF):
    return [f"ds_read_b64_tr_b16 a[{aVF+db*4+2*jj}:{aVF+db*4+2*jj+1}], v{vVAl[db]} offset:{sl*16384 + jj*8192}" for db in range(8) for jj in range(2)]
def kvdma(sl, kidx, vidx, dok=True, dov=True):
    sc = [f"s_add_u32 m0, s{sKVM0}, {sl*16384}"]; d = []
    if dok:
        ks = sKO + kidx % 4; kp = sKO + (kidx - 1) % 4
        sc += [f"s_add_u32 s{ks}, s{kp}, 8192", f"s_and_b32 s{ks}, s{ks}, 0x7ffff"]
        d += [f"buffer_load_dwordx4 v{vDK}, s[{rK}:{rK+3}], s{ks} offen lds ; @T:kv{sl}",
              f"buffer_load_dwordx4 v{vDK+1}, s[{rK}:{rK+3}], s{ks} offen offset:1024 lds ; @T:kv{sl}"]
    if dov:
        vs = sKO + vidx % 4
        d += [f"buffer_load_dwordx4 v{vDV}, s[{rV}:{rV+3}], s{vs} offen offset:2048 lds ; @T:kv{sl}",
              f"buffer_load_dwordx4 v{vDV+1}, s[{rV}:{rV+3}], s{vs} offen offset:3072 lds ; @T:kv{sl}"]
    return sc, d
def smq(b):
    nsum = OPT['msum']; E = []; Sg = []
    for qb in range(4):
        for i in range(4):
            s0 = vS[b] + qb*8 + 2*i
            E += [f"v_exp_f32 v{s0}, v{s0}", f"v_exp_f32 v{s0+1}, v{s0+1}"]; k = len(E)
            if qb >= nsum:
                Sg += [(k-1, f"v_add_f32 v{vL+qb}, v{vL+qb}, v{s0}"), (k, f"v_add_f32 v{vL+qb}, v{vL+qb}, v{s0+1}")]
            Sg += [(k, f"v_cvt_pk_bf16_f32 v{vP[b]+qb*4+i}, v{s0}, v{s0+1}")]
    return E, Sg

def check_p(m, *queues):
    rd = set(Ins(m).ab)
    for q in queues:
        for x in (q or []): assert not (set(Ins(x[1]).w) & rd), (m, x)

def period(p, carry, dok=True, dov=True, first=False, kread=True, xdma=None, alsowait=None, nofill=(), kvg=([2, 3, 4], [27, 39, 47, 59]), vnext=None):
    sl = p % 4
    ms = qk((p+1) % 2) + pv(p % 2, first)
    N = len(ms); H = 32
    shadow = [None]*N
    shadow[N-1] = f"s_waitcnt vmcnt(@kv{(p+1)%4}{'|' + alsowait if alsowait else ''}) lgkmcnt(0)"
    shadow[H-1] = "s_waitcnt lgkmcnt(0)"
    shadow[0] = "s_barrier"
    mem = []
    vr = vreads(sl)
    for i, x in enumerate(vr): mem.append((1 + (i*24) // len(vr), x))
    if kread:
        kr = kreads(sl)
        for i, x in enumerate(kr): mem.append((33 + (i*24) // len(kr), x))
    if vnext:
        for i, x in enumerate(vnext): mem.append((33 + (i*26) // len(vnext), x))
    dmag = {}
    if dok or dov:
        sc, dd = kvdma((p + 3) % 4, p + 5, p + 3, dok, dov)
        for x, g in zip(sc, kvg[0]): shadow[g] = x
        for x, g in zip(dd, kvg[1]): dmag[g] = x
    if xdma:
        for (g, x) in xdma:
            if x.startswith('buffer'):
                assert g not in dmag and not shadow[g]; dmag[g] = x
            else:
                assert not shadow[g] and g not in dmag, (g, x); shadow[g] = x
    mem.sort(key=lambda t: t[0])
    st = 34
    cE, cS, cdone = carry
    nE, nS = smq((p+1) % 2)
    lines = []
    E = list(cE); Sq = list(cS); edone = cdone
    mi = 0
    extra = max(0, 64 + len(mem) + len(nS) + 2*len(dmag) + 2*len(nofill) - 2*N)
    acc = 0.0; old_S = None
    for g in range(N):
        check_p(ms[g], old_S, Sq if g <= st else None)
        lines.append(ms[g])
        if shadow[g]: lines.append(shadow[g])
        if g == st:
            assert not E, (p, len(E))
            old_S = Sq; E = nE; Sq = nS; edone = 0
        acc += extra / N
        if g in dmag:
            lines.append(dmag[g]); continue
        if g in nofill: continue
        room = 2
        if acc >= 1.0 - 1e-9: room += 1; acc -= 1.0
        gm = []; gv = []
        e_prev = edone
        left = (st - g) if g < st else (N - g + st)
        navail = (1 if (mi < len(mem) and mem[mi][0] <= g) else 0) + (len(old_S) if old_S else 0) + sum(1 for x in Sq if x[0] <= e_prev)
        if E and (len(E) * 2 >= left or navail < 2):
            gv.append(E.pop(0)); room -= 2; edone += 1
        while room > 0:
            if mi < len(mem) and mem[mi][0] <= g: gm.append(mem[mi][1]); mi += 1; room -= 1
            elif old_S: gv.append(old_S.pop(0)[1]); room -= 1
            elif Sq and Sq[0][0] <= e_prev: gv.append(Sq.pop(0)[1]); room -= 1
            elif mi < len(mem) and mem[mi][0] <= g + 3: gm.append(mem[mi][1]); mi += 1; room -= 1
            else: break
        lines += gm + gv
    assert mi == len(mem) and not old_S, (mi, len(mem), old_S)
    return lines, (E, Sq, edone)

def xreduce(a, reg, op, tmp):
    a(f"v_mov_b32 v{tmp}, v{reg}\ns_nop 1\nv_permlane16_swap_b32 v{reg}, v{tmp}\ns_nop 1\n{op} v{reg}, v{reg}, v{tmp}")
    a(f"v_mov_b32 v{tmp}, v{reg}\ns_nop 1\nv_permlane32_swap_b32 v{reg}, v{tmp}\ns_nop 1\n{op} v{reg}, v{reg}, v{tmp}")

def attn_addr_ops():
    o = []
    t0, t1, t2, t3 = vT, vT+1, vT+2, vT+3
    o += [f"v_bfe_u32 v{t0}, v{vL16}, 4, 4", f"v_lshrrev_b32 v{t1}, 8, v{vL16}"]
    o += [f"v_lshrrev_b32 v{t2}, 3, v{t0}", f"v_lshlrev_b32 v{t2}, 12, v{t2}", f"v_and_b32 v{t3}, 7, v{t0}", f"v_lshlrev_b32 v{t3}, 8, v{t3}",
          f"v_add_u32 v{t2}, v{t2}, v{t3}", f"v_add_u32 v{t2}, {LB}, v{t2}"]
    for s in range(4):
        o += [f"v_add_u32 v{t3}, {4*s}, v{t1}", f"v_xor_b32 v{t3}, v{t3}, v{t0}", f"v_lshl_add_u32 v{vKA+s}, v{t3}, 4, v{t2}"]
    o2 = []
    o2 += [f"v_bfe_u32 v{t0}, v{vL16}, 6, 3", f"v_lshrrev_b32 v{t2}, 9, v{vL16}", f"v_lshlrev_b32 v{t2}, 12, v{t2}",
           f"v_lshl_add_u32 v{t2}, v{t0}, 8, v{t2}", f"v_add_u32 v{t2}, {LB + 2048}, v{t2}", f"v_bfe_u32 v{t3}, v{vL16}, 4, 2", f"v_lshl_add_u32 v{t2}, v{t3}, 3, v{t2}"]
    for db in range(8):
        o2 += [f"v_xor_b32 v{t3}, {db}, v{t0}", f"v_lshl_add_u32 v{vVAl[db]}, v{t3}, 5, v{t2}"]
    return o, o2

def pf_addr(st, vt):
    if OPT['map'] == 8:
        return [f"s_lshl_b32 {st}, s{sRB}, 2", f"s_add_u32 {st}, {st}, s{sW}", f"s_lshl_b32 {st}, {st}, 12", f"v_and_b32 v{vPF}, 0x1f0, v{vL16}", f"v_lshlrev_b32 v{vPF}, 3, v{vPF}",
                f"v_lshrrev_b32 v{vt}, 9, v{vL16}", f"v_lshl_add_u32 v{vPF}, v{vt}, 6, v{vPF}", f"v_add_u32 v{vPF}, {st}, v{vPF}"]
    return [f"s_and_b32 {st}, s{sRB}, 15", f"s_lshl_b32 {st}, {st}, 2", f"s_add_u32 {st}, {st}, s{sW}", f"s_lshl_b32 {st}, {st}, 13", f"v_lshlrev_b32 v{vPF}, 3, v{vL16}", f"v_add_u32 v{vPF}, {st}, v{vPF}"]

def interleave(a, base, extra, every, start=0):
    k = 0
    for n, x in enumerate(base):
        a(x)
        if n >= start and (n + 1 - start) % every == 0 and k < len(extra) and not x.startswith('s_memtime'):
            for y in extra[k]: a(y)
            k += 1
    for g in extra[k:]:
        for y in g: a(y)

def unpack_sum(dst, srcs, t0):
    ops = []
    for n, r in enumerate(srcs):
        for i in range(4):
            if n == 0:
                ops += [f"v_lshlrev_b32 v{dst+2*i}, 16, v{r+i}", f"v_and_b32 v{dst+2*i+1}, 0xffff0000, v{r+i}"]
            else:
                ta, tb = t0 + 2*(i % 2), t0 + 2*(i % 2) + 1
                ops += [f"v_lshlrev_b32 v{ta}, 16, v{r+i}", f"v_and_b32 v{tb}, 0xffff0000, v{r+i}",
                        f"v_add_f32 v{dst+2*i}, v{dst+2*i}, v{ta}", f"v_add_f32 v{dst+2*i+1}, v{dst+2*i+1}, v{tb}"]
    return ops

def silu_ops(r, n, tmp):
    ops = []
    for b in range(0, n, 4):
        ops += [f"v_mul_f32 v{tmp+i}, {hx(-math.log2(math.e))}, v{r+b+i}" for i in range(4)]
        ops += [f"v_exp_f32 v{tmp+i}, v{tmp+i}" for i in range(4)]
        ops += [f"v_add_f32 v{tmp+i}, 1.0, v{tmp+i}" for i in range(4)]
        ops += [f"v_rcp_f32 v{tmp+i}, v{tmp+i}" for i in range(4)]
        ops += [f"v_mul_f32 v{r+b+i}, v{r+b+i}, v{tmp+i}" for i in range(4)]
    return ops

def share_offsets(sh):
    return [f"s_lshl_b32 s{sSHOFF}, s{sRB}, 3", f"s_add_u32 s{sSHOFF}, s{sSHOFF}, {sh}", f"s_lshl_b32 s{sSHOFF}, s{sSHOFF}, 2", f"s_add_u32 s{sSHOFF}, s{sSHOFF}, s{sW}", f"s_lshl_b32 s{sSHOFF}, s{sSHOFF}, 11",
            f"s_lshl_b32 s{sXOFF}, {sh}, 1", f"s_lshr_b32 s0, s{sW}, 1", f"s_add_u32 s{sXOFF}, s{sXOFF}, s0", f"s_lshl_b32 s{sXOFF}, s{sXOFF}, 6",
            f"s_and_b32 s0, s{sW}, 1", f"s_lshl_b32 s0, s0, 15", f"s_add_u32 s{sXOFF}, s{sXOFF}, s0", f"s_lshl_b32 s0, s{sRB}, 16", f"s_add_u32 s{sXOFF}, s{sXOFF}, s0"]

def ploads(dst, t, g, base):
    return [f"s_add_u32 s0, {base}, {t*0x1000000 + g*0x200000}",
            f"buffer_load_dwordx4 v[{dst[0]+g*4}:{dst[0]+g*4+3}], v{vL16}, s[{rWS}:{rWS+3}], s0 offen sc1 ; @T:pl",
            f"buffer_load_dwordx4 v[{dst[1]+g*4}:{dst[1]+g*4+3}], v{vL16}, s[{rWS}:{rWS+3}], s0 offen offset:1024 sc1 ; @T:pl"]
FPE, FPL, SPR = (192, 224), (192, 224), (128, 160)

vOA = 120
vXO, vSIG, vXD, vGV = 10, 11, 2, 128
xregs = [2, 4, 12, 14]
def xloads():
    o = []
    for i in range(2):
        o.append(f"s_add_u32 s0, s{sXOFF}, {i*16384}")
        for e in range(2):
            r = xregs[2*i+e]
            o.append(f"buffer_load_dwordx2 v[{r}:{r+1}], v{vXO}, s[{rX}:{rX+3}], s0 offen offset:{32*e} ; @T:xl")
    return o
def f_reduce_ops():
    ops = []
    ops += unpack_sum(vGA, [128 + 4*g for g in range(8)], vT)
    ops += unpack_sum(vGA + 8, [160 + 4*g for g in range(8)], vT)
    ops += silu_ops(vGA, 16, vT)
    return ops
vGA = 96

def main_kernel():
    global vGA
    a = Prog()
    a(f"main_kernel:")
    a("s_cmp_ge_u32 s2, 256\ns_cbranch_scc1 L_main_end")
    stamp(a, 0)
    if OPT['timing']: a("s_memrealtime s[100:101]\ns_waitcnt lgkmcnt(0)")
    a("s_load_dwordx16 s[64:79], s[0:1], 0\ns_load_dwordx8 s[80:87], s[0:1], 64") if not OPT['timing'] else a("s_load_dwordx16 s[64:79], s[0:1], 0\ns_load_dwordx4 s[80:83], s[0:1], 64\ns_load_dwordx2 s[84:85], s[0:1], 80\ns_load_dwordx2 s[44:45], s[0:1], 88")
    WSP = 86 if not OPT['timing'] else 44
    a(f"v_lshrrev_b32 v2, 6, v0\nv_and_b32 v0, 63, v0\nv_readfirstlane_b32 s{sW}, v2")
    a(f"v_lshlrev_b32 v{vL16}, 4, v0")
    if OPT['map'] == 8:
        a(f"s_and_b32 s{sG}, s2, 7\ns_lshr_b32 s{sRB}, s2, 3")
    else:
        a(f"s_and_b32 s{sG}, s2, 3\ns_lshl_b32 s{sG}, s{sG}, 1\ns_bfe_u32 s{sRB}, s2, 0x10003\ns_add_u32 s{sG}, s{sG}, s{sRB}")
        a(f"s_bfe_u32 s{sRB}, s2, 0x10002\ns_lshl_b32 s{sRB}, s{sRB}, 4\ns_lshr_b32 s{sROT}, s2, 4\ns_add_u32 s{sRB}, s{sRB}, s{sROT}")
    if OPT['xdma']:
        a(f"s_and_b32 s{sROT}, s{sRB}, 3\ns_lshl_b32 s{sROT}, s{sROT}, 1")
        a(f"v_lshrrev_b32 v6, 4, v0\nv_and_b32 v5, 15, v0")
        for rg in range(4):
            a(f"v_add_u32 v7, {4*rg}, v6\nv_xor_b32 v7, v7, v5\nv_lshlrev_b32 v7, 4, v7\nv_add_u32 v8, {3*rg}, v6\nv_lshl_add_u32 v{32+rg}, v8, 10, v7")
        a(f"s_lshl_b32 s62, s{sRB}, 16\ns_lshl_b32 s63, s{sW}, 14\ns_add_u32 s62, s62, s63\ns_add_u32 s60, s63, {LB}\ns_lshl_b32 s63, s{sROT}, 7")
    else:
        a(f"s_and_b32 s{sROT}, s{sRB}, 7")
        a(f"v_and_b32 v5, 15, v0\nv_lshlrev_b32 v5, 10, v5\nv_lshrrev_b32 v6, 4, v0\nv_lshl_add_u32 v5, v6, 4, v5")
        a(f"s_lshl_b32 s62, s{sRB}, 16\ns_lshl_b32 s63, s{sW}, 14\ns_add_u32 s62, s62, s63\ns_lshl_b32 s63, s{sROT}, 7")
    for x in pf_addr('s61', 3): a(x)
    if OPT['codepf']:
        a("s_getpc_b64 s[46:47]\nL_pc0:")
        a(f"v_min_u32 v7, L_code_end-L_pc0-4, v{vPF}")
        a(f"global_load_dword v{vGB}, v7, s[46:47] ; @T:pf")
    a("s_waitcnt lgkmcnt(0)")
    stamp(a, 'karg')
    srd(a, rX, 64, 2048*1024)
    if OPT['xdma']:
        for c4 in range(4):
            a(f"s_add_u32 s61, s63, {c4*256}\ns_and_b32 s61, s61, 0x3ff\ns_add_u32 m0, s60, {c4*4096}\ns_add_u32 s61, s61, s62")
            for rg in range(4): a(f"buffer_load_dwordx4 v{32+rg}, s[{rX}:{rX+3}], s61 offen offset:{rg*1024} lds ; @T:x{c4}")
        for sx in range(4):
            a(f"v_add_u32 v7, {4*sx}, v6\nv_xor_b32 v7, v7, v5\nv_lshlrev_b32 v7, 4, v7\nv_lshl_add_u32 v7, v5, 8, v7\nv_add_u32 v{50+sx}, s60, v7")
    else:
        for k in range(16):
            a(f"s_add_u32 s61, s63, {k*64}\ns_and_b32 s61, s61, 0x3ff\ns_add_u32 s61, s61, s62")
            a(f"buffer_load_dwordx4 v[{bA+4*k}:{bA+4*k+3}], v5, s[{rX}:{rX+3}], s61 offen ; @T:x{k}")
    stamp(a, 'xissued')
    a(f"s_add_u32 s62, s{sG}, s{sRB}\ns_and_b32 s62, s62, 1\ns_sub_u32 s{sNU}, 4, s62")
    a(f"s_lshr_b32 s62, s{sG}, 1\ns_mul_i32 s{sU0}, s62, 7\ns_sub_u32 s63, 7, s{sNU}\ns_and_b32 s61, s{sG}, 1\ns_mul_i32 s63, s63, s61\ns_add_u32 s{sU0}, s{sU0}, s63")
    a(f"s_add_u32 s62, s{sU0}, s{sW}\ns_lshl_b32 s{sCOG}, s62, 7\ns_cmp_lt_u32 s{sW}, s{sNU}\ns_cselect_b32 s{sCOG}, s{sCOG}, 0x40000000")
    a(f"s_lshl_b32 s62, s{sG}, 10\ns_lshl_b32 s63, s{sW}, 8\ns_add_u32 s{sCOQ}, s62, s63")
    a(f"s_lshl_b32 s62, s{sU0}, 16\ns_add_u32 s{sCOD}, s62, s63\ns_cmp_eq_u32 s{sNU}, 4\ns_cselect_b32 s{sCOD3}, s{sCOD}, 0x40000000")
    a(f"s_lshl_b32 s62, s{sG}, 19\ns_add_u32 s{sCOO}, s62, s63")
    a(f"s_mul_i32 s{sRING}, s{sW}, 24576\ns_lshl_b32 s{sKVM0}, s{sW}, 12\ns_add_u32 s{sKVM0}, s{sKVM0}, {LB}")
    srd(a, rWG, 76, 512*3584)
    a("v_lshrrev_b32 v6, 3, v0\nv_bfe_u32 v7, v0, 4, 1\nv_lshlrev_b32 v7, 1, v7\nv_bfe_u32 v8, v0, 5, 1\nv_lshl_add_u32 v7, v8, 2, v7\nv_and_b32 v8, 7, v0\nv_xor_b32 v7, v7, v8")
    a("v_lshlrev_b32 v7, 4, v7\nv_xor_b32 v8, 64, v7")
    for dv, rs in ((vDG, 3584), (vDQ, 8192), (vDO, 1024)):
        a(f"v_mul_u32_u24 v9, {rs}, v6")
        for j in range(4):
            a(f"v_add_u32 v{dv+j}, v9, v{7 + (j & 1)}")
            if j: a(f"v_add_u32 v{dv+j}, {j*(8*rs - 1024)}, v{dv+j}")
    X = lambda ks0: (lambda ks, qb: ((ks0 + ks)*4 + qb)*4)
    mk = lambda name, r, dv, rs, co, acc, n, inter, rot, row0: [Panel(name, r, dv, rs, co(j), acc, j == 0, X(2*j), inter, rot, row0(j)) for j in range(n)]
    pG = mk('G', rWG, vDG, 3584, lambda j: f"s{sCOG}", bA, 8, False, True, lambda j: 0)
    pU = mk('U', rWU, vDG, 3584, lambda j: f"s{sCOG}", bB, 8, False, True, lambda j: 0)
    pQa = mk('Qa', rWQ, vDQ, 8192, lambda j: f"s{sCOQ}", bC, 8, False, True, lambda j: 0)
    pQb = mk('Qb', rWQ, vDQ, 8192, lambda j: f"s{sCOQ}", bA, 8, False, True, lambda j: 128)
    pD0 = mk('D0', rWD, vDO, 1024, lambda j: f"s{sCOD3 if j == 3 else sCOD}", bC, 4, True, False, lambda j: j*65536)
    pD1 = mk('D1', rWD, vDO, 1024, lambda j: f"s{sCOD3 if j == 3 else sCOD}", bA, 4, True, False, lambda j: j*65536 + 128)
    pO0 = mk('O0', rWO, vDO, 1024, lambda j: None, bB, 8, True, False, lambda j: (j//4)*65536)
    pO1 = mk('O1', rWO, vDO, 1024, lambda j: None, bA, 8, True, False, lambda j: (j//4)*65536 + 128)
    oreg = lambda j, ks, qb: 32*j + (ks*4 + qb)*4
    for j in range(8):
        for P in (pO0[j], pO1[j]): P.j = j; P.bfrag = (lambda j: (lambda ks, qb: oreg(j, ks, qb)))(j)
    S1 = pG + pU + pQa + pQb + pD0 + pD1
    a(f"s_sub_u32 s{sJ}, s{sROT}, 1")
    for i in range(OPT.get('early', 1)):
        s0, s1, d = panel_dma(S1[i], i)
        for x in s0 + ["s_nop 0"] + d[:4] + s1 + ["s_nop 0"] + d[4:]: a(x)
    if OPT['prefetch']:
        srd(a, rWD, 80, 1792*1024)
        a(f"s_lshr_b32 s62, s{sG}, 1\ns_mul_i32 s62, s62, 7\ns_and_b32 s61, s{sG}, 1\ns_mul_i32 s61, s61, 3\ns_add_u32 s62, s62, s61\ns_lshl_b32 s62, s62, 16")
        a(f"v_cmp_gt_u32 vcc, 0x40000, v{vPF}\nv_mov_b32 v9, 0x40000000\ns_nop 0\nv_cndmask_b32 v9, v9, v{vPF}, vcc")
        a(f"v_mov_b32 v54, v9\ns_mov_b32 s44, s62") if not OPT['timing'] else a(f"v_mov_b32 v54, v9\ns_mov_b32 s46, s62")
    lndma = []
    late_dma = []
    if OPT.get('late2'):
        pass
    for i in range(OPT.get('early', 1), 3):
        s0, s1, d = panel_dma(S1[i], i)
        if i >= 3 - OPT.get('late2', 0):
            late_dma += s0 + ['s_nop 0'] + d[:4] + s1 + ['s_nop 0'] + d[4:]; continue
        lndma += [s0 + ["s_nop 0", d[0]]] + [[x] for x in d[1:4]] + [s1 + ["s_nop 0", d[4]]] + [[x] for x in d[5:]]
    if OPT['prefetch']: lndma.append([f"buffer_load_dword v{vGB}, v54, s[{rWD}:{rWD+3}], s{44 if not OPT['timing'] else 46} offen ; @T:pf"])
    stamp(a, 'dmaissued')
    srd(a, rWU, 78, 512*3584); srd(a, rWQ, 70, 512*8192); srd(a, rWO, 72, 4096*1024)
    if not OPT['prefetch']: srd(a, rWD, 80, 1792*1024)
    a(f"s_lshl_b32 s62, s{sG}, 19")
    srd(a, rK, 66, 0x80000, add='s62'); srd(a, rV, 68, 0x80800, add='s62', sub=2048)
    srd(a, rWS, WSP, 0x2000000)
    srd(a, rOUT, 82, 2048*1024); srd(a, rDBG, 84, 256)
    a(f"s_lshl_b32 s81, s{sG}, 19\ns_lshl_b32 s82, s{sW}, 13\ns_lshl_b32 s83, s{sW}, 14")
    a(f"s_lshl_b32 s{sSLAB}, s{sG}, 5\ns_add_u32 s{sSLAB}, s{sSLAB}, s{sRB}\ns_lshl_b32 s{sSLAB}, s{sSLAB}, 2\ns_add_u32 s{sSLAB}, s{sSLAB}, s{sW}\ns_lshl_b32 s{sSLAB}, s{sSLAB}, 14")
    for t in range(2):
        for k in range(4): a(f"s_add_u32 s{sT+t*4+k}, s{sSLAB}, {t*0x1000000 + k*4096}")
    a("v_bfe_u32 v5, v0, 2, 2\nv_lshrrev_b32 v6, 4, v0\nv_and_b32 v7, 3, v0\nv_lshlrev_b32 v7, 3, v7")
    a(f"v_add_u32 v7, s{sRING}, v7")
    a("v_lshrrev_b32 v8, 1, v5\nv_and_b32 v9, 1, v6\nv_lshl_add_u32 v9, v9, 1, v8")
    a("v_lshl_add_u32 v26, v6, 3, v5\nv_lshl_add_u32 v26, v26, 7, v7")
    a("v_lshrrev_b32 v27, 1, v6\nv_xor_b32 v27, v27, v6\nv_and_b32 v27, 1, v27\nv_lshl_add_u32 v27, v27, 1, v8")
    a("v_lshl_add_u32 v28, v6, 2, v5\nv_lshl_add_u32 v28, v28, 7, v7")
    a(f"s_lshl_b32 s62, s{sW}, 3\nv_add_u32 v29, s62, v6\nv_and_b32 v5, 15, v0")
    for i in range(2):
        a(f"v_add_u32 v8, {4*i}, v29\nv_and_b32 v8, 15, v8\nv_xor_b32 v8, v8, v5\nv_lshlrev_b32 v8, 4, v8\nv_lshl_add_u32 v{vDK+i}, v29, 8, v8")
        a(f"v_add_u32 v8, {4*i}, v6\nv_lshlrev_b32 v8, 1, v8\nv_xor_b32 v8, v8, v5\nv_lshlrev_b32 v8, 4, v8\nv_lshl_add_u32 v{vDV+i}, v29, 8, v8")
    a("v_mov_b32 v29, v9")
    for nb in range(4):
        a(f"v_xor_b32 v{vWA+nb}, {nb}, v29\nv_lshl_add_u32 v{vWA+nb}, v{vWA+nb}, 5, v26")
        a(f"v_xor_b32 v{vWI+nb}, {nb}, v27\nv_lshl_add_u32 v{vWI+nb}, v{vWI+nb}, 5, v28")
    a(f"v_add_u32 v{vFA}, {LB}, v{vL16}")
    a(f"v_add_u32 v44, s83, v{vFA}")
    stamp(a, 'setup')
    F = bB
    if OPT['lnm']:
        b = Prog()
        b("s_mov_b32 s45, 0xffff0000" if not OPT['timing'] else "s_mov_b32 s47, 0xffff0000")
        MK = 45 if not OPT['timing'] else 47
        for i in range(4): b(f"v_mov_b32 v{32+i}, 0x3f803f80")
        b(f"v_bfe_u32 v45, v{vL16}, 4, 2\nv_bfe_u32 v46, v{vL16}, 6, 2\nv_lshrrev_b32 v47, 8, v{vL16}")
        b("s_waitcnt vmcnt(@x0)")
        for sx in range(4): b(f"ds_read_b128 v[{bA+4*sx}:{bA+4*sx+3}], v{50+sx} ; @T:q0")
        for c4 in range(4):
            if c4 < 3:
                b(f"s_waitcnt vmcnt(@x{c4+1})")
                for sx in range(4): b(f"ds_read_b128 v[{bA+16*(c4+1)+4*sx}:{bA+16*(c4+1)+4*sx+3}], v{50+sx} offset:{(c4+1)*4096} ; @T:q{c4+1}")
            b(f"s_waitcnt lgkmcnt(@q{c4})")
            for k in range(4*c4, 4*c4 + 4):
                x = f"v[{bA+4*k}:{bA+4*k+3}]"
                un = [[f"v_lshlrev_b32 v{F+2*i}, 16, v{bA+i}", f"v_and_b32 v{F+2*i+1}, s{MK}, v{bA+i}"] for i in range(4*k, 4*k+4)]
                last = (c4 == 3)
                b(f"{MF} v[36:39], v[32:35], {x}, {'0' if k == 0 else 'v[36:39]'}")
                if not last:
                    for y in un[0] + un[1]: b(y)
                b(f"{MF} v[40:43], {x}, {x}, {'0' if k == 0 else 'v[40:43]'}")
                if not last:
                    for y in un[2] + un[3]: b(y)
        late = [y for i in range(48, 64) for y in (f"v_lshlrev_b32 v{F+2*i}, 16, v{bA+i}", f"v_and_b32 v{F+2*i+1}, s{MK}, v{bA+i}")]
        for x in stampl(1): b(x)
        st = []
        st += ["v_cmp_eq_u32 vcc, 1, v45", None, None, "v_cndmask_b32 v40, v40, v41, vcc", "v_cmp_eq_u32 vcc, 2, v45", None, None, "v_cndmask_b32 v40, v40, v42, vcc",
               "v_cmp_eq_u32 vcc, 3, v45", None, None, "v_cndmask_b32 v40, v40, v43, vcc", "v_cmp_eq_u32 vcc, v46, v47", None, None, "v_cndmask_b32 v40, 0, v40, vcc"]
        st += [f"v_mul_f32 v36, {hx(1/512)}, v36", "v_mov_b32 v41, v40", "v_cvt_pk_bf16_f32 v37, v36, v36", None, "v_permlane16_swap_b32 v40, v41", "v_lshlrev_b32 v37, 16, v37", "v_add_f32 v40, v40, v41",
               "v_mov_b32 v41, v40", None, None, "v_permlane32_swap_b32 v40, v41", None, "v_add_f32 v40, v40, v41",
               f"v_mul_f32 v40, {hx(1/512)}, v40", "v_fma_f32 v40, -v36, v36, v40", "v_max_f32 v40, 0, v40",
               "v_cvt_pk_bf16_f32 v40, v40, v40", "v_lshlrev_b32 v40, 16, v40", f"v_add_f32 v40, {hx(1e-5)}, v40", "v_cvt_pk_bf16_f32 v40, v40, v40", "v_lshlrev_b32 v40, 16, v40",
               "v_sqrt_f32 v40, v40", None, "v_cvt_pk_bf16_f32 v40, v40, v40", "v_lshlrev_b32 v40, 16, v40", "v_rcp_f32 v42, v40", None, "v_mul_f32 v43, v37, v42"]
        for y in late[:10]: b(y)
        late = late[10:]
        for y in st:
            if y is None: b(late.pop(0) if late else "s_nop 0")
            else: b(y)
        for y in late: b(y)
        for k in range(16):
            for i in range(4*k, 4*k+4): b(f"v_pk_fma_f32 v[{F+2*i}:{F+2*i+1}], v[{F+2*i}:{F+2*i+1}], v[42:43], v[42:43] op_sel:[0,0,1] op_sel_hi:[1,0,1] neg_lo:[0,0,1] neg_hi:[0,0,1]")
            if k: b(f"ds_write_b128 v44, v[{bA+4*k-4}:{bA+4*k-1}] offset:{(k-1)*1024}")
            for i in range(4*k, 4*k+4): b(f"v_cvt_pk_bf16_f32 v{bA+i}, v{F+2*i}, v{F+2*i+1}")
        b(f"ds_write_b128 v44, v[{bA+60}:{bA+63}] offset:{15*1024}")
    else:
        b = Prog()
        for k in range(16):
            if OPT['xdma']:
                if k == 0:
                    b("s_waitcnt vmcnt(@x0)")
                    for sx in range(4): b(f"ds_read_b128 v[{bA+4*sx}:{bA+4*sx+3}], v{50+sx} ; @T:q0")
                if k % 4 == 0:
                    c4 = k // 4
                    if c4 < 3:
                        b(f"s_waitcnt vmcnt(@x{c4+1})")
                        for sx in range(4): b(f"ds_read_b128 v[{bA+16*(c4+1)+4*sx}:{bA+16*(c4+1)+4*sx+3}], v{50+sx} offset:{(c4+1)*4096} ; @T:q{c4+1}")
                    b(f"s_waitcnt lgkmcnt(@q{c4})")
            else: b(f"s_waitcnt vmcnt(@x{k})")
            for i in range(4*k, 4*k+4):
                b(f"v_lshlrev_b32 v{F+2*i}, 16, v{bA+i}\nv_and_b32 v{F+2*i+1}, 0xffff0000, v{bA+i}")
            for i in range(4*k, 4*k+4):
                if k == 0: b(f"v_mov_b32 v{32+2*i}, v{F+2*i}\nv_mov_b32 v{33+2*i}, v{F+2*i+1}")
                else: b(f"v_pk_add_f32 v[{32+2*(i%4)}:{33+2*(i%4)}], v[{32+2*(i%4)}:{33+2*(i%4)}], v[{F+2*i}:{F+2*i+1}]")
        for x in stampl(1): b(x)
        b("v_pk_add_f32 v[32:33], v[32:33], v[34:35]\nv_pk_add_f32 v[36:37], v[36:37], v[38:39]\nv_pk_add_f32 v[32:33], v[32:33], v[36:37]\nv_add_f32 v32, v32, v33")
        xreduce(b, 32, 'v_add_f32', 33)
        b(f"v_mul_f32 v32, {hx(1/512)}, v32\nv_cvt_pk_bf16_f32 v33, v32, v32\nv_lshlrev_b32 v34, 16, v33\nv_sub_f32 v40, v32, v34")
        for i in range(64):
            b(f"v_pk_add_f32 v[{F+2*i}:{F+2*i+1}], v[{F+2*i}:{F+2*i+1}], v[34:35] op_sel_hi:[1,0] neg_lo:[0,1] neg_hi:[0,1]")
            if i >= 2:
                j = i - 2; r = 46 + 2*(j % 4)
                b(f"v_pk_mul_f32 v[{r}:{r+1}], v[{F+2*j}:{F+2*j+1}], v[{F+2*j}:{F+2*j+1}]" if j < 4 else f"v_pk_fma_f32 v[{r}:{r+1}], v[{F+2*j}:{F+2*j+1}], v[{F+2*j}:{F+2*j+1}], v[{r}:{r+1}]")
        for j in (62, 63):
            r = 46 + 2*(j % 4); b(f"v_pk_fma_f32 v[{r}:{r+1}], v[{F+2*j}:{F+2*j+1}], v[{F+2*j}:{F+2*j+1}], v[{r}:{r+1}]")
        b("v_pk_add_f32 v[46:47], v[46:47], v[48:49]\nv_pk_add_f32 v[50:51], v[50:51], v[52:53]\nv_pk_add_f32 v[46:47], v[46:47], v[50:51]\nv_add_f32 v42, v46, v47")
        xreduce(b, 42, 'v_add_f32', 43)
        b(f"v_mul_f32 v42, {hx(1/512)}, v42\nv_fma_f32 v42, -v40, v40, v42\nv_max_f32 v42, 0, v42")
        rb16 = lambda r: f"v_cvt_pk_bf16_f32 v{r}, v{r}, v{r}\nv_lshlrev_b32 v{r}, 16, v{r}"
        b(rb16(42)); b(f"v_add_f32 v42, {hx(1e-5)}, v42"); b(rb16(42)); b("v_sqrt_f32 v42, v42\ns_nop 0"); b(rb16(42)); b("v_rcp_f32 v42, v42\ns_nop 0")
        for k in range(16):
            for i in range(4*k, 4*k+4): b(f"v_pk_mul_f32 v[{F+2*i}:{F+2*i+1}], v[{F+2*i}:{F+2*i+1}], v[42:43] op_sel_hi:[1,0]")
            if k: b(f"ds_write_b128 v44, v[{bA+4*k-4}:{bA+4*k-1}] offset:{(k-1)*1024}")
            for i in range(4*k, 4*k+4): b(f"v_cvt_pk_bf16_f32 v{bA+i}, v{F+2*i}, v{F+2*i+1}")
        b(f"ds_write_b128 v44, v[{bA+60}:{bA+63}] offset:{15*1024}")
    interleave(a, b.L, lndma, OPT.get('lnevery', 10), OPT.get('lnstart', 0))
    stamp(a, 'lndone')
    a("s_waitcnt vmcnt(@w0) lgkmcnt(0)\ns_barrier")
    stamp(a, 'lnbar')
    xr = lambda ks, qb, tag, lay: f"ds_read_b128 a[{(ks*4+qb)*4}:{(ks*4+qb)*4+3}], v{vFA} offset:{lay(ks, qb)*1024} ; @T:{tag}"
    layX = lambda ks, qb: qb*16 + ks
    layF = lambda ks, qb: ks*4 + qb
    def stream_head(P, idx, tag, lay, extra=()):
        for x in wreads(P, idx, 0): a(x)
        for ks in range(2):
            for qb in range(4): a(xr(ks, qb, tag, lay))
        for nb in (1, 2):
            for x in wreads(P, idx, nb): a(x)
        for x in extra: a(x)
        a("s_waitcnt lgkmcnt(@auto)")
    RG = [2, 3, 4, 5, 6, 12, 14, 20]
    def frag_reads(xm, pos, ks0, tag, lay):
        for k in range(8): xm.setdefault((pos, RG[k]), []).append(xr(ks0 + k % 2, k // 2, tag, lay))
    stream_head(S1[0], 0, 'xr', layX, late_dma)
    stamp(a, 2)
    fill = {}; xm = {}; xs = {}
    for j in range(7): frag_reads(xm, j, 2*j + 2, 'xr', layX)
    o1, o2 = attn_addr_ops()
    xs[(9, 0)] = ["s_barrier"]
    fill[8] = [f"v_add_u32 v{vPF}, s82, v{vFA}", f"v_mov_b32 v{vGB}, {hx(-2.0 * math.log2(math.e) * math.sqrt(2.0 / math.pi) * 0.044715)}"] + gelu_stage1(bA)
    fill[16] = geglu_stage2(bA, bB)
    fill[24] = qpack(bC, 0) + o1
    xs[(26, 0)] = ["s_waitcnt lgkmcnt(@hw)", "s_barrier"]
    for j in range(4): frag_reads(xm, 28 + j, 2*j, 'hr', layF)
    fill[32] = qpack(bA, 1)
    fill[36] = park(bC, 128) + o2
    xs[(32, 3)] = ["s_waitcnt lgkmcnt(@hr)", "s_barrier"]
    kvs = [kvdma(2, 0, 0, True, False), kvdma(3, 1, 0, True, False), kvdma(0, 2, 0), kvdma(1, 3, 1)]
    xs[(32, 10)] = [f"s_lshl_b32 s{sKO+3}, s{sRB}, {14 if OPT['map'] == 8 else 15}"]; xs[(32, 12)] = [f"s_sub_u32 s{sKO+3}, s{sKO+3}, 8192"]
    for i, (sc, dd) in enumerate(kvs):
        pos = [33, 34, 37, 38][i]
        if i < 2:
            xs.setdefault((pos, 20), []).append(sc[1]); xs.setdefault((pos, 22), []).append(sc[2]); xs.setdefault((pos, 28), []).append(sc[0])
            for x, g in zip(dd, [29, 30]): xm.setdefault((pos, g), []).extend([x, None])
        else:
            xs.setdefault((pos, 9), []).append(sc[1]); xs.setdefault((pos, 10), []).append(sc[2]); xs.setdefault((pos, 11), []).append(sc[0])
            for x, g in zip(dd, [13, 17, 21, 27]): xm.setdefault((pos, g), []).extend([x, None])
    xs[(39, 3)] = ["s_waitcnt vmcnt(@kv3)", "s_barrier"]
    for x, g in zip(kreads(2), [8, 9, 10, 11, 12, 13, 14, 16]): xm.setdefault((39, g), []).append(x)
    left = emit_stream(a, S1, 0, fill, xm, xs, must_empty=(24, 32, 36))
    assert not left
    stamp(a, 3)
    X_ = SP(dict(S=vS, P=[32, 48, 64, 80], NEGM=vNEGM, ONES=vONES, LM=vLM, L=vL, KA=vKA, VA=vVAl, KF=aKF, VF=aVF, Q=vQ, Qf='v', O=aO), OPT)
    def with_fill(ms, q, memat, start=0, room0=2):
        for g, m in enumerate(ms):
            a(m)
            room = room0
            for x in memat.get(g, []):
                a(x); room -= (2 if x.startswith('buffer') else 0 if x.startswith('s_') else 1)
            while g >= start and q and room >= 1:
                x = q.pop(0); a(x); room -= cost(x)
    st = park(bA, 160)
    k10, k11 = X_.kreads(3, 0), X_.kreads(3, 1)
    with_fill(X_.qk(0, '0'), st, {16: k10[:2], 17: k10[2:]}, start=3)
    for x in k11 + st: a(x)
    for i in range(4): a(f"v_mov_b32 v{vONES+i}, 0x3f803f80\nv_mov_b32 v{vL+i}, 0")
    T = [88 + 2*qb for qb in range(4)]
    for k in range(4):
        for qb in range(4):
            b0 = vS[0] + qb*8
            a([f"v_max3_f32 v{T[qb]}, v{b0}, v{b0+1}, v{b0+2}", f"v_max3_f32 v{T[qb]}, v{T[qb]}, v{b0+3}, v{b0+4}", f"v_max3_f32 v{T[qb]}, v{T[qb]}, v{b0+5}, v{b0+6}", f"v_max_f32 v{T[qb]}, v{T[qb]}, v{b0+7}"][k])
    for sw in ('v_permlane16_swap_b32', 'v_permlane32_swap_b32'):
        for qb in range(4): a(f"v_mov_b32 v{T[qb]+1}, v{T[qb]}")
        for qb in range(4): a(f"{sw} v{T[qb]}, v{T[qb]+1}")
        for qb in range(4): a(f"v_max_f32 v{T[qb]}, v{T[qb]}, v{T[qb]+1}")
    for qb in range(4):
        for i in range(4): a(f"v_sub_f32 v{vNEGM+qb*4+i}, 0, v{T[qb]}")
    a("s_waitcnt vmcnt(@kv1) lgkmcnt(0)\ns_barrier")
    subs = [f"v_sub_f32 v{X_.sblk(0, kb, qb)+i}, v{X_.sblk(0, kb, qb)+i}, v{T[qb]}" for kb in range(2) for qb in range(4) for i in range(4)]
    E0, S0 = X_.smq(0, 0)
    q0 = subs[:8]; si = 0
    for k, e in enumerate(E0):
        q0.append(e)
        if 8 + k < 32 and k % 4 == 3: q0 += subs[8 + k - 3: 8 + k + 1]
        while si < len(S0) and S0[si][0] <= k: q0.append(S0[si][1]); si += 1
    q0 += ["s_nop 0"] + [x[1] for x in S0[si:]]
    q0 += [f"s_lshl_b32 s0, s{sRB}, 3", f"v_mov_b32 v{vT}, s0", f"s_lshl_b32 s0, 0x100, s{sG}", f"v_mov_b32 v{vT+1}, s0"] + pf_addr('s0', vT+3)
    q0 += [f"s_cmp_eq_u32 s{sW}, 0", "s_cselect_b32 s0, 1, 0", "s_mov_b32 s1, 0"]
    sc, dd = kvdma(2, 4, 2)
    k20, k21 = X_.kreads(0, 0), X_.kreads(0, 1)
    with_fill(X_.qk(1), q0, {0: [sc[0]], 1: [sc[1]], 2: [sc[2]], 4: [dd[0]], 9: [dd[1]], 16: k20[:2], 17: k20[2:], 21: [dd[2]], 26: [dd[3]]}, room0=OPT.get('proom', 3))
    for x in k21 + q0: a(x)
    c = ([], [], 32)
    for j_ in (1, 2, 3): _, c = X_.sp(j_, c, kvdma)
    E1, S1_ = X_.smq(1, 1); rem = set(c[0]) | set(x[1] for x in c[1])
    for x in E1 + [y[1] for y in S1_]:
        if x not in rem: a(x)
    cp = lambda c: (list(c[0]), list(c[1]), c[2])
    a("s_waitcnt lgkmcnt(0)")
    sts = [parked_store(f) + " ; @T:st" for f in range(16)]
    carry = cp(c)
    for j_ in range(4):
        kw = {}
        if j_ < 3:
            n = [6, 5, 5][j_]; kw['xauto'] = [(36, 100, sts[:n])]; sts = sts[n:]
        else:
            kw['alsowait'] = 'st'
            if OPT['prefetch']: kw['xauto'] = [(40, 44, [f"buffer_load_dword v{vT+3}, v{vPF}, s[{rWO}:{rWO+3}], s81 offen ; @X"])]
            if OPT['single']: kw['postbar'] = f"s_mov_b64 exec, s[0:1]\nbuffer_atomic_or v{vT+1}, v{vT}, s[{rDBG}:{rDBG+3}], 0 offen ; @X\ns_mov_b64 exec, -1"
        body, carry = X_.sp(j_, carry, kvdma, first=(j_ == 0), **kw)
        for x in body: a(x)
    for _ in range(2):
        _, c = X_.sp(4, c, kvdma, postbar=("x" if OPT['single'] else None)); _, c = X_.sp(5, c, kvdma)
    assert set(c[0]) <= set(carry[0]) and set(c[1]) <= set(carry[1]), (carry, c)
    for x in [x for x in carry[0] if x not in c[0]] + ["s_nop 0"] + [x[1] for x in carry[1] if x not in c[1]]: a(x)
    carry = cp(c)
    stamp(a, 'loop0')
    a(f"s_mov_b32 s{sCNT}, 12")
    a(".p2align 6")
    a("L_attn_loop:")
    c0 = cp(carry); loop = []
    for j_ in (4, 5):
        pb = f"buffer_load_dword v{vT+2}, v{vT}, s[{rDBG}:{rDBG+3}], 0 offen sc1 ; @T:poll" if (j_ == 4 and OPT['single']) else None
        body, carry = X_.sp(j_, carry, kvdma, postbar=pb)
        loop += body
    assert cp(carry) == c0
    a.loop = (len(a.L), len(a.L) + len(loop))
    for x in loop: a(x)
    a(f"s_sub_u32 s{sCNT}, s{sCNT}, 1\ns_cmp_lg_u32 s{sCNT}, 0\ns_cbranch_scc1 L_attn_loop")
    stamp(a, 'loop1')
    S2 = pO0 + pO1; base2 = len(S1)
    AV2 = 128
    woff = lambda h: f"s_add_u32 s0, s{sW}, {h}\ns_and_b32 s0, s0, 3\ns_lshl_b32 s0, s0, 17\ns_add_u32 s{44+h}, s0, s{sCOO}"
    def wd(k):
        s0, s1, d = panel_dma(S2[k], base2 + k)
        return [woff(k)] + s0 + d[:4] + s1 + d[4:]
    for j_ in (28, 29, 30):
        kw = {}
        if j_ == 28 and OPT['single']:
            so = share_offsets(f"s{sG}") + [f"s_bfe_u32 s{sBITS}, s{sBITS}, 0x80008", f"s_cmp_lg_u32 s{sBITS}, 0xff", f"s_cselect_b32 s{sLATE}, 1, 0", f"s_cselect_b32 s{sBITS}, 0x40000000, s{sSHOFF}"]
            a(f"v_readfirstlane_b32 s{sBITS}, v{vT+2}")
            fl = []
            for g in range(8):
                pl = ploads(FPE, 1, g, f"s{sBITS}"); fl += [pl[0], pl[2].replace(f"v[{FPE[1]+4*g}:{FPE[1]+4*g+3}]", f"a[{160+4*g}:{163+4*g}]")]
            kw['xauto'] = [(30, 56, so), (56, 104, fl)]
        if j_ == 29:
            kw['dma'] = (True, True, False, True); kw['xauto'] = [(34, 100, wd(0) + wd(1))]
        if j_ == 30:
            kw['dma'] = (False, True, False, False); kw['knext'] = False
            kw['xauto'] = [(34, 100, wd(2) + [woff(3)])]
            kw['vlast'] = sum((X_.vreads(2, db, aKF + 4*db) for db in range(8)), []) + sum((X_.vreads(3, db, AV2 + 4*db) for db in range(8)), [])
        body, carry = X_.sp(j_, carry, kvdma, **kw)
        for x in body: a(x)
    E, Sq, edone = list(carry[0]), list(carry[1]), carry[2]
    post = []
    lq = [qb for qb in range(4) if qb >= OPT['msum']]
    for sw in ('v_permlane16_swap_b32', 'v_permlane32_swap_b32'):
        post += [f"v_mov_b32 v{96+qb}, v{vL+qb}" for qb in lq] + ["s_nop 1"] + [f"{sw} v{vL+qb}, v{96+qb}" for qb in lq] + [f"v_add_f32 v{vL+qb}, v{vL+qb}, v{96+qb}" for qb in lq]
    post += [f"v_add_u32 v{vPF}, s83, v{vFA}"]
    if OPT['single']:
        post += [f"v_mov_b32 v{vSIG}, v{vT}", f"v_bfe_u32 v{vXO}, v{vL16}, 4, 4", f"v_lshlrev_b32 v{vXO}, 10, v{vXO}", f"v_lshrrev_b32 v{vT+3}, 8, v{vL16}", f"v_lshl_add_u32 v{vXO}, v{vT+3}, 3, v{vXO}"]
    ex0 = []
    if OPT['single']:
        for g in range(8):
            pl = ploads(FPE, 1, g, f"s{sBITS}"); ex0 += [pl[0], pl[1], None, None]
    for g, m in enumerate(X_.pv1(2, aKF) + X_.pv1(3, AV2)):
        check_p(m, Sq)
        a(m)
        if g == 0: a("s_barrier")
        if not E and not Sq and not post and ex0:
            x = ex0.pop(0)
            if x: a(x)
            continue
        room = 2; e_prev = edone
        nav = sum(1 for x in Sq if x[0] <= e_prev)
        if E and (nav < room or g % 2 == 0): a(E.pop(0)); edone += 1; room -= 2
        while room > 0:
            if Sq and Sq[0][0] <= e_prev: a(Sq.pop(0)[1]); room -= 1
            elif not E and not Sq and post: x = post.pop(0); a(x); room -= cost(x)
            else: break
    assert not E and not Sq
    for x in post + [x for x in ex0 if x]: a(x)
    stamp(a, 4)
    for h in range(4): a(f"s_add_u32 s{80+h%2}, s{sW}, {h}\ns_and_b32 s{80+h%2}, s{80+h%2}, 3")  if False else None
    a("s_nop 3")
    for qb in range(OPT['msum']): a(f"v_mov_b32 v{vL+qb}, v{vLM+4*qb}")
    a(f"v_add_f32 v{vT+1}, v{vL}, v{vL+1}\nv_add_f32 v{vT+2}, v{vL+2}, v{vL+3}\nv_add_f32 v{vT+1}, v{vT+1}, v{vT+2}")
    a(f"v_cmp_nge_f32 vcc, {hx(2.0**OPT['fthresh'])}, v{vT+1}\ns_nop 1\ns_cbranch_vccnz L_fallback\nL_fb_ret:")
    for qb in range(4): a(f"v_rcp_f32 v{vL+qb}, v{vL+qb}")
    for h in range(4): a(f"s_add_u32 s0, s{sW}, {h}\ns_and_b32 s0, s0, 3\ns_lshl_b32 s0, s0, 14\nv_add_u32 v{vOA+h}, s0, v{vFA}")
    def norm(sp, qb, pk):
        o_ = []; t = [64, 76, 96, 108][(sp*4 + qb) % 4]; l = vL + qb
        for e in range(2):
            o = aO + ((2*sp + e)*4 + qb)*4
            o_ += [f"v_accvgpr_read_b32 v{t+4*e+i}, a{o+i}" for i in range(4)]
        if pk:
            sel = "op_sel_hi:[1,0]" if l % 2 == 0 else "op_sel:[0,1]"
            o_ += [f"v_pk_mul_f32 v[{t+2*i}:{t+2*i+1}], v[{t+2*i}:{t+2*i+1}], v[{l - l%2}:{l - l%2 + 1}] {sel}" for i in range(4)]
        else: o_ += [f"v_mul_f32 v{t+i}, v{t+i}, v{l}" for i in range(8)]
        o_ += [f"v_cvt_pk_bf16_f32 v{t+8+i}, v{t+2*i}, v{t+2*i+1}" for i in range(4)]
        o_ += [f"ds_write_b128 v{vPF}, v[{t+8}:{t+11}] offset:{(sp*4 + qb)*1024} ; @T:ow{sp//2}"]
        return o_
    ex = []
    if OPT['single']:
        xl = xloads(); ex = [xl[:2], xl[2:3], xl[3:5], xl[5:]]
    NPRE = OPT.get('npre', 16)
    for k in range(NPRE):
        for x in norm(k // 4, k % 4, True): a(x)
        if ex:
            for x in ex.pop(0): a(x)
    stamp(a, 'owritten')
    ord_ = lambda j, ks, qb: f"ds_read_b128 a[{oreg(j, ks, qb)}:{oreg(j, ks, qb)+3}], v{vOA + j % 4} offset:{((2*(j//4) + ks)*4 + qb)*1024}"
    a(f"s_waitcnt vmcnt(@w{base2})")
    for x in wreads(S2[0], base2, 0): a(x)
    for ks in range(2):
        for qb in range(4): a(ord_(0, ks, qb))
    for nb in (1, 2):
        for x in wreads(S2[0], base2, nb): a(x)
    a("s_waitcnt lgkmcnt(@auto)")
    stamp(a, 5)
    fill = {13: slab_store(bB, 0, 0)}; xm = {}; xs = {}
    fill[0] = sum((norm(k // 4, k % 4, False) for k in range(NPRE, 16)), [])
    xs[(0, 10)] = ["s_waitcnt lgkmcnt(@ow0)", "s_barrier"]
    if NPRE < 16: xs[(3, 28)] = ["s_waitcnt lgkmcnt(@ow1)", "s_barrier"]
    else: xs[(0, 10)] = ["s_waitcnt lgkmcnt(@ow1)", "s_barrier"]
    for j in range(7):
        gaps = [12, 14, 15, 20, 22, 23, 28, 29] if j == 0 else RG
        for k in range(8): xm.setdefault((j, gaps[k]), []).append(ord_(j + 1, k % 2, k // 2))
    if OPT['single']:
        xs[(3, 8)] = ["s_waitcnt vmcnt(@pl)"]
        fill[0] = [f'v_accvgpr_read_b32 v{FPE[1]+i}, a{160+i}' for i in range(32)]
        fill[3] = fred_fill(FPE, (1,)); fill[8] = fred_fill(FPE, (0,))
    left = emit_stream(a, S2, base2, fill, xm, xs, must_empty=(3, 13), quiet=range(32), cap=dict([(k, OPT.get('ocap', 30)) for k in range(3)] + [(k, OPT.get('fcap', [32, 32, 32, 44, 40, 40, 40, 40, 40])[k-4]) for k in range(4, 13)]))
    for x in left: a(x)
    a("s_nop 7")
    for x in slab_store(bA, 0, 1): a(x)
    stamp(a, 6)
    if OPT['timing']: a("s_memrealtime s[80:81]\ns_waitcnt lgkmcnt(0)")
    if OPT['single']:
        end_phase(a)
    if OPT['timing'] and not OPT.get('dbgtime'):
        a("s_waitcnt vmcnt(0)")
        a("s_memtime s[44:45]\ns_memrealtime s[46:47]\ns_waitcnt lgkmcnt(0)")
        a(f"s_lshl_b32 s62, s2, 2\ns_add_u32 s62, s62, s{sW}\ns_lshl_b32 s62, s62, 6\ns_add_u32 s62, s62, 0x3000000")
        a(f"s_mov_b32 s{rWS+2}, 0x4000000")
        for i in range(8): a(f"v_mov_b32 v3, s{sTS+2*i if i < 7 else 44}\nv_mov_b32 v4, {4*i}\nbuffer_store_dword v3, v4, s[{rWS}:{rWS+3}], s62 offen")
        a(f"v_mov_b32 v3, s46\nv_mov_b32 v4, 32\nbuffer_store_dword v3, v4, s[{rWS}:{rWS+3}], s62 offen")
        a(f"v_mov_b32 v3, s80\nv_mov_b32 v4, 40\nbuffer_store_dword v3, v4, s[{rWS}:{rWS+3}], s62 offen")
        for k, r in enumerate((82, 98, 96)): a(f"v_mov_b32 v3, s{r}\nv_mov_b32 v4, {44+4*k}\nbuffer_store_dword v3, v4, s[{rWS}:{rWS+3}], s62 offen")
        a(f"v_mov_b32 v3, s100\nv_mov_b32 v4, 36\nbuffer_store_dword v3, v4, s[{rWS}:{rWS+3}], s62 offen")
    if OPT.get('dbgtime'):
        a("s_waitcnt vmcnt(0)\ns_memrealtime s[46:47]\ns_memtime s[44:45]\ns_waitcnt lgkmcnt(0)\ns_mov_b64 exec, 1")
        a(f"v_mov_b32 v3, s46\nv_mov_b32 v4, 4\nbuffer_atomic_umax v3, v4, s[{rDBG}:{rDBG+3}], 0 offen")
        a(f"s_not_b32 s100, s100\nv_mov_b32 v3, s100\nv_mov_b32 v4, 12\nbuffer_atomic_umax v3, v4, s[{rDBG}:{rDBG+3}], 0 offen")
        st = [sTS + 2*i for i in range(7)] + [44]
        for i in range(6):
            a(f"s_sub_u32 s0, s{st[i+1]}, s{st[i]}\nv_mov_b32 v3, s0\nv_mov_b32 v4, {20 + 8*i}\nbuffer_atomic_umax v3, v4, s[{rDBG}:{rDBG+3}], 0 offen")
    a("L_main_end:\ns_endpgm")
    a.fb = fallback()
    return a

GV = [192 + i for i in range(8)] + [224 + i for i in range(8)]
def fred_fill(FP, which=(0, 1)):
    ops = []
    for fr in which:
        base = FP[fr]
        acc = [16, 17, 22, 23, 24, 25, 30, 31]
        for n in range(8):
            r = base + 4*n
            for i in range(4):
                if n == 0: ops += [f"v_lshlrev_b32 v{acc[2*i]}, 16, v{r+i}", f"v_and_b32 v{acc[2*i+1]}, 0xffff0000, v{r+i}"]
                else:
                    ta, tb = vT + 2*(i % 2), vT + 2*(i % 2) + 1
                    ops += [f"v_lshlrev_b32 v{ta}, 16, v{r+i}", f"v_and_b32 v{tb}, 0xffff0000, v{r+i}", f"v_add_f32 v{acc[2*i]}, v{acc[2*i]}, v{ta}", f"v_add_f32 v{acc[2*i+1]}, v{acc[2*i+1]}, v{tb}"]
        for b in range(0, 8, 4):
            ops += [f"v_mul_f32 v{vT+i}, {hx(-math.log2(math.e))}, v{acc[b+i]}" for i in range(4)]
            ops += [f"v_exp_f32 v{vT+i}, v{vT+i}" for i in range(4)]
            ops += [f"v_add_f32 v{vT+i}, 1.0, v{vT+i}" for i in range(4)]
            ops += [f"v_rcp_f32 v{vT+i}, v{vT+i}" for i in range(4)]
            ops += [f"v_mul_f32 v{GV[8*fr+b+i]}, v{acc[b+i]}, v{vT+i}" for i in range(4)]
    return ops

def end_phase(a):
    a("v_mov_b32 v32, 0\nv_mov_b32 v33, 0")
    a(f"s_cmp_lg_u32 s{sW}, 0\ns_cbranch_scc1 L_e_nz\nds_write_b32 v32, v33\nL_e_nz:")
    a("s_waitcnt vmcnt(0) lgkmcnt(0)\ns_barrier")
    stamp(a, 'drained')
    if OPT.get('rt2'): a('s_memrealtime s[82:83]\ns_waitcnt lgkmcnt(0)')
    a(f"s_mov_b32 s{sDONE}, 0\ns_mov_b32 s{sTODO}, 0\ns_mov_b32 s{sCNT}, 0\ns_lshl_b32 s46, s{sRB}, 3")
    a(f"s_cmp_lg_u32 s{sW}, 0\ns_cbranch_scc1 L_e_other")
    a(f"s_lshl_b32 s47, 1, s{sG}\nv_mov_b32 v34, s47\ns_mov_b64 exec, 1\nbuffer_atomic_or v34, v{vSIG}, s[{rDBG}:{rDBG+3}], 0 offen sc0\ns_waitcnt vmcnt(0)\nv_readfirstlane_b32 s{sBITS}, v34\ns_mov_b64 exec, -1")
    a(f"s_or_b32 s{sBITS}, s{sBITS}, s47\ns_and_b32 s47, s{sBITS}, 0xff\ns_cmp_eq_u32 s47, 0xff\ns_cbranch_scc1 L_e_pub")
    a(f"L_e_w0:\ns_and_b32 s{sBITS}, s{sBITS}, 0xff")
    a(f"L_e_pub:\ns_and_b32 s{sBITS}, s{sBITS}, 0xff00ff\nv_mov_b32 v33, s{sBITS}\nds_write_b32 v32, v33\ns_branch L_e_have")
    a(f"L_e_other:\nds_read_b32 v33, v32\ns_waitcnt lgkmcnt(0)\nv_readfirstlane_b32 s{sBITS}, v33\ns_nop 0\ns_bitcmp1_b32 s{sBITS}, 31\ns_cbranch_scc1 L_e_exit")
    a(f"L_e_have:\ns_andn2_b32 s47, s{sBITS}, s{sDONE}")
    for g in range(8):
        a(f"s_bitcmp1_b32 s47, {g}\ns_cbranch_scc0 L_e_s{g}")
        for x in ploads(SPR, 0, g, f"s{sSHOFF}"): a(x)
        a(f"L_e_s{g}:")
    a(f"s_or_b32 s{sDONE}, s{sDONE}, s{sBITS}\ns_and_b32 s47, s{sDONE}, 0xff\ns_cmp_eq_u32 s47, 0xff\ns_cbranch_scc1 L_e_all")
    a(f"s_cmp_lg_u32 s{sW}, 0\ns_cbranch_scc0 L_e_poll\ns_sleep 1\ns_branch L_e_other")
    a(f"L_e_poll:\ns_add_u32 s{sCNT}, s{sCNT}, 1\ns_cmp_gt_u32 s{sCNT}, {OPT['spin']}\ns_cbranch_scc1 L_e_abandon")
    a(f"s_sleep {OPT.get('psleep', 2)}\nbuffer_load_dword v34, off, s[{rDBG}:{rDBG+3}], s46 sc1\ns_waitcnt vmcnt(0)\nv_readfirstlane_b32 s{sBITS}, v34\ns_branch L_e_w0")
    a(f"L_e_abandon:\ns_lshl_b32 s47, 0x10000, s{sG}\nv_mov_b32 v34, s47\ns_mov_b64 exec, 1\nbuffer_atomic_or v34, v{vSIG}, s[{rDBG}:{rDBG+3}], 0 offen sc0\ns_waitcnt vmcnt(0)\nv_readfirstlane_b32 s{sBITS}, v34\ns_mov_b64 exec, -1")
    a(f"s_nop 0\ns_and_b32 s47, s{sBITS}, 0xff\ns_cmp_eq_u32 s47, 0xff\ns_cbranch_scc1 L_e_w0")
    a(f"v_mov_b32 v33, 0x80000000\nds_write_b32 v32, v33\ns_waitcnt lgkmcnt(0)\ns_branch L_e_exit")
    a(f"L_e_all:\ns_lshr_b32 s{sTODO}, s{sBITS}, 16")
    stamp(a, 'allseen')
    if OPT.get('rt2'): a('s_memrealtime s[98:99]\ns_waitcnt lgkmcnt(0)')
    a(f"L_e_fin:\ns_cmp_eq_u32 s{sLATE}, 0\ns_cbranch_scc1 L_e_nolate")
    for g in range(8):
        for x in ploads(FPL, 1, g, f"s{sSHOFF}"): a(x)
    for x in xloads(): a(x)
    a("s_waitcnt vmcnt(0)")
    for x in fred_fill(FPL): a(x)
    a("L_e_nolate:\ns_waitcnt vmcnt(0)")
    if OPT.get('rt2'): a('s_memrealtime s[96:97]\ns_waitcnt lgkmcnt(0)')
    for fr in range(2):
        d = 64 + 8*fr
        for n in range(8):
            r = SPR[fr] + 4*n
            for i in range(4):
                if n == 0: a(f"v_lshlrev_b32 v{d+2*i}, 16, v{r+i}\nv_and_b32 v{d+2*i+1}, 0xffff0000, v{r+i}")
                else: a(f"v_lshlrev_b32 v{80+2*i}, 16, v{r+i}\nv_and_b32 v{81+2*i}, 0xffff0000, v{r+i}")
            if n:
                for i in range(4): a(f"v_pk_add_f32 v[{d+2*i}:{d+2*i+1}], v[{d+2*i}:{d+2*i+1}], v[{80+2*i}:{81+2*i}]")
        a(f"s_add_u32 s0, s{sXOFF}, {fr*16384}")
        for e in range(2):
            xr_ = xregs[2*fr+e]
            for i in range(2): a(f"v_lshlrev_b32 v{80+2*i}, 16, v{xr_+i}\nv_and_b32 v{81+2*i}, 0xffff0000, v{xr_+i}")
            for i in range(4): a(f"v_fmac_f32 v{80+i}, v{d+4*e+i}, v{GV[8*fr+4*e+i]}")
            a(f"v_cvt_pk_bf16_f32 v{88+4*fr+2*e}, v80, v81\nv_cvt_pk_bf16_f32 v{89+4*fr+2*e}, v82, v83")
            a(f"buffer_store_dwordx2 v[{88+4*fr+2*e}:{89+4*fr+2*e}], v{vXO}, s[{rOUT}:{rOUT+3}], s0 offen offset:{32*e}{OPT.get('outflags', '')}")
    a(f"s_cmp_eq_u32 s{sTODO}, 0\ns_cbranch_scc1 L_e_exit")
    a(f"s_ff1_i32_b32 s47, s{sTODO}\ns_bitset0_b32 s{sTODO}, s47\ns_mov_b32 s{sLATE}, 1")
    for x in share_offsets("s47"): a(x)
    for g in range(8):
        for x in ploads(SPR, 0, g, f"s{sSHOFF}"): a(x)
    a("s_branch L_e_fin\nL_e_exit:")

def fallback():
    a = Prog()
    a("L_fallback:")
    M = [64 + qb for qb in range(4)]; AL = [68 + qb for qb in range(4)]; TM = [72 + 2*qb for qb in range(4)]
    FK, FV = 80, 88
    a(f"s_waitcnt vmcnt(0) lgkmcnt(0)\ns_mov_b32 s{sLATE}, 1")
    o1, o2 = attn_addr_ops()
    KA2 = 96; VA2 = [100 + i for i in range(8)]
    for x in o1:
        for s in range(4): x = x.replace(f"v_lshl_add_u32 v{vKA+s},", f"v_lshl_add_u32 v{KA2+s},")
        a(x)
    for x in o2:
        for db in range(8): x = x.replace(f"v_lshl_add_u32 v{vVAl[db]}, v{vT+3}, 5", f"v_lshl_add_u32 v{VA2[db]}, v{vT+3}, 5")
        a(x)
    for r in [KA2 + s for s in range(4)] + VA2: a(f"v_add_u32 v{r}, s83, v{r}")
    a(f"v_lshrrev_b32 v{vT}, 8, v{vL16}\nv_bfe_u32 v{vT+1}, v{vL16}, 4, 4")
    for part in range(4):
        for i in range(2):
            a(f"v_add_u32 v{vT+2}, {8*part + 4*i}, v{vT}\nv_and_b32 v{vT+2}, 15, v{vT+2}\nv_xor_b32 v{vT+2}, v{vT+2}, v{vT+1}\nv_lshlrev_b32 v{vT+2}, 4, v{vT+2}\nv_add_u32 v{vT+3}, {8*part}, v{vT}\nv_lshl_add_u32 v{FK+2*part+i}, v{vT+3}, 8, v{vT+2}")
            a(f"v_add_u32 v{vT+2}, {4*i}, v{vT}\nv_lshlrev_b32 v{vT+2}, 1, v{vT+2}\nv_xor_b32 v{vT+2}, v{vT+2}, v{vT+1}\nv_lshlrev_b32 v{vT+2}, 4, v{vT+2}\nv_lshl_add_u32 v{FV+2*part+i}, v{vT+3}, 8, v{vT+2}")
    for qb in range(4): a(f"v_mov_b32 v{M[qb]}, 0xff7fffff\nv_mov_b32 v{vL+qb}, 0")
    for i in range(128): a(f"v_accvgpr_write_b32 a{aO+i}, 0")
    a(f"s_mov_b32 s80, 0\ns_add_u32 s81, s83, {LB}")
    a("L_fb_loop:")
    for part in range(4):
        a(f"s_add_u32 m0, s81, {part*4096}\ns_nop 0")
        a(f"buffer_load_dwordx4 v{FK+2*part}, s[{rK}:{rK+3}], s80 offen lds\nbuffer_load_dwordx4 v{FK+2*part+1}, s[{rK}:{rK+3}], s80 offen offset:1024 lds")
        a(f"buffer_load_dwordx4 v{FV+2*part}, s[{rV}:{rV+3}], s80 offen offset:2048 lds\nbuffer_load_dwordx4 v{FV+2*part+1}, s[{rV}:{rV+3}], s80 offen offset:3072 lds")
    a("s_waitcnt vmcnt(0)")
    for x in kreads(0):
        for s in range(4): x = x.replace(f", v{vKA+s} ", f", v{KA2+s} ")
        a(x)
    a("s_waitcnt lgkmcnt(0)")
    for db in range(8):
        for jj in range(2): a(f"ds_read_b64_tr_b16 a[{aVF+db*4+2*jj}:{aVF+db*4+2*jj+1}], v{VA2[db]} offset:{jj*8192}")
    for x in qk(0, '0'): a(x)
    a("s_nop 7\ns_waitcnt lgkmcnt(0)")
    for qb in range(4):
        b0 = vS[0] + qb*8; T = TM[qb]
        a(f"v_max3_f32 v{T}, v{b0}, v{b0+1}, v{b0+2}\nv_max3_f32 v{T}, v{T}, v{b0+3}, v{b0+4}\nv_max3_f32 v{T}, v{T}, v{b0+5}, v{b0+6}\nv_max3_f32 v{T}, v{T}, v{b0+7}, v{M[qb]}")
        xreduce(a, T, 'v_max_f32', T + 1)
        a(f"v_sub_f32 v{AL[qb]}, v{M[qb]}, v{T}\nv_mov_b32 v{M[qb]}, v{T}\nv_exp_f32 v{AL[qb]}, v{AL[qb]}")
        for i in range(8): a(f"v_sub_f32 v{b0+i}, v{b0+i}, v{T}")
        for i in range(8): a(f"v_exp_f32 v{b0+i}, v{b0+i}")
        a(f"v_mul_f32 v{vL+qb}, v{vL+qb}, v{AL[qb]}")
        for i in range(8): a(f"v_add_f32 v{vL+qb}, v{vL+qb}, v{b0+i}")
        for i in range(4): a(f"v_cvt_pk_bf16_f32 v{vP[0]+qb*4+i}, v{b0+2*i}, v{b0+2*i+1}")
        for db in range(8):
            o = aO + (db*4 + qb)*4
            for i in range(4): a(f"v_accvgpr_read_b32 v{vT+i}, a{o+i}")
            for i in range(4): a(f"v_mul_f32 v{vT+i}, v{vT+i}, v{AL[qb]}")
            for i in range(4): a(f"v_accvgpr_write_b32 a{o+i}, v{vT+i}")
    a("s_nop 1")
    for x in pv(0, False, 0): a(x)
    a("s_nop 7\ns_add_u32 s80, s80, 8192\ns_cmp_lt_u32 s80, 0x80000\ns_cbranch_scc1 L_fb_loop")
    for qb in range(4): xreduce(a, vL + qb, 'v_add_f32', vT)
    a("s_branch L_fb_ret")
    return a

def final_kernel():
    a = Prog()
    a("final_kernel:")
    a("s_cmp_ge_u32 s2, 512\ns_cbranch_scc1 L_fin_end")
    if OPT['timing']: a("s_memrealtime s[30:31]")
    a("s_load_dwordx2 s[4:5], s[0:1], 0\ns_load_dwordx2 s[6:7], s[0:1], 72\ns_load_dwordx2 s[8:9], s[0:1], 88")
    a("v_lshrrev_b32 v2, 6, v0\nv_and_b32 v0, 63, v0\nv_readfirstlane_b32 s3, v2\nv_lshlrev_b32 v1, 4, v0")
    a("s_lshl_b32 s10, s2, 2\ns_nop 2\ns_add_u32 s10, s10, s3")
    a("s_waitcnt lgkmcnt(0)")
    srd(a, 12, 4, 2048*1024); srd(a, 16, 6, 2048*1024); srd(a, 20, 8, 0x2000000)
    a("s_lshl_b32 s11, s10, 10")
    for t in range(2):
        for g in range(8):
            a(f"s_add_u32 s24, s11, {t*0x1000000 + g*0x200000}")
            r = 8 + (t*8 + g)*4
            a(f"buffer_load_dwordx4 v[{r}:{r+3}], v1, s[20:23], s24 offen ; @T:l{t}{g}")
    a("s_lshr_b32 s25, s10, 6\ns_lshl_b32 s25, s25, 16\ns_and_b32 s26, s10, 3\ns_lshl_b32 s26, s26, 14\ns_add_u32 s25, s25, s26")
    a("s_bfe_u32 s26, s10, 0x40002\ns_lshl_b32 s26, s26, 6\ns_add_u32 s25, s25, s26")
    a("v_and_b32 v2, 15, v0\nv_lshlrev_b32 v2, 10, v2\nv_lshrrev_b32 v3, 4, v0\nv_lshl_add_u32 v2, v3, 3, v2")
    a("buffer_load_dwordx2 v[4:5], v2, s[12:15], s25 offen ; @T:x\nbuffer_load_dwordx2 v[6:7], v2, s[12:15], s25 offen offset:32 ; @T:x")
    acc = [72, 80]
    for t in range(2):
        for g in range(8):
            r = 8 + (t*8 + g)*4
            a(f"s_waitcnt vmcnt(@l{t}{g})")
            for i in range(4):
                if g == 0:
                    a(f"v_lshlrev_b32 v{acc[t]+2*i}, 16, v{r+i}\nv_and_b32 v{acc[t]+2*i+1}, 0xffff0000, v{r+i}")
                else:
                    a(f"v_lshlrev_b32 v88, 16, v{r+i}\nv_and_b32 v89, 0xffff0000, v{r+i}\nv_pk_add_f32 v[{acc[t]+2*i}:{acc[t]+2*i+1}], v[{acc[t]+2*i}:{acc[t]+2*i+1}], v[88:89]")
    for i in range(8): a(f"v_mul_f32 v{8+i}, {hx(-math.log2(math.e))}, v{80+i}")
    for i in range(8): a(f"v_exp_f32 v{8+i}, v{8+i}")
    for i in range(8): a(f"v_add_f32 v{8+i}, 1.0, v{8+i}")
    for i in range(8): a(f"v_rcp_f32 v{8+i}, v{8+i}")
    for i in range(8): a(f"v_mul_f32 v{8+i}, v{8+i}, v{80+i}")
    a("s_waitcnt vmcnt(@x)")
    for i in range(4): a(f"v_lshlrev_b32 v{16+2*i}, 16, v{4+i}\nv_and_b32 v{17+2*i}, 0xffff0000, v{4+i}")
    for i in range(8): a(f"v_fmac_f32 v{16+i}, v{8+i}, v{72+i}")
    for i in range(4): a(f"v_cvt_pk_bf16_f32 v{4+i}, v{16+2*i}, v{17+2*i}")
    a("buffer_store_dwordx2 v[4:5], v2, s[16:19], s25 offen\nbuffer_store_dwordx2 v[6:7], v2, s[16:19], s25 offen offset:32")
    if OPT['timing']:
        a("s_waitcnt vmcnt(0)\ns_memrealtime s[32:33]\ns_waitcnt lgkmcnt(0)\ns_mov_b32 s22, 0x4000000\ns_lshl_b32 s11, s10, 3\ns_add_u32 s11, s11, 0x3100000")
        a("v_mov_b32 v4, s30\nv_mov_b32 v5, s32\nv_mov_b32 v2, 0\nbuffer_store_dwordx2 v[4:5], v2, s[20:23], s11 offen")
    a("L_fin_end:\ns_endpgm")
    return a

def kd(name, vgpr, acc):
    return f""".section .rodata,"a"
.p2align 6
.amdhsa_kernel {name}
  .amdhsa_next_free_vgpr {vgpr}
  .amdhsa_next_free_sgpr 102
  .amdhsa_accum_offset {acc}
  .amdhsa_group_segment_fixed_size 0
  .amdhsa_kernarg_size 96
  .amdhsa_user_sgpr_count 2
  .amdhsa_user_sgpr_kernarg_segment_ptr 1
  .amdhsa_system_sgpr_workgroup_id_x 1
.end_amdhsa_kernel
"""

def build(opts=None):
    if opts: OPT.update(opts)
    m = main_kernel(); f = final_kernel()
    lo, hi = m.loop
    L1 = resolve_waits(m.L)
    dbl = m.L[:hi] + m.L[lo:hi] + m.L[hi:]
    L2 = resolve_waits(dbl)
    def loopseg(L, k):
        idx = [i for i, x in enumerate(L) if x.startswith('L_attn_loop')][0] + 1
        n = len(L2) - len(L1)
        return L[idx + k*n: idx + (k+1)*n]
    assert loopseg(L2, 0) == loopseg(L2, 1), "loop waits differ between trips"
    assert L2[-200:] == L1[-200:]
    probs = check_stream(L2, 'main')
    FB = resolve_waits(m.fb.L); probs += check_stream(FB + FB, 'fallback')
    F1 = resolve_waits(f.L); probs += check_stream(F1, 'final')
    strip = lambda L: [re.sub(r'\s*;.*', '', x) for x in L]
    txt = "; fused LN + GQA attention + GEGLU FFN (generated by my own script)\n"
    if OPT['single']:
        name = KNAME + '_kernel'
        txt += "; @launch grid=(256,1,1) block=(256,1,1) lds=163840\n"
    else:
        name = 'main_kernel'
        txt += "; @launch kernel=main_kernel grid=(256,1,1) block=(256,1,1) lds=163840\n; @launch kernel=final_kernel grid=(512,1,1) block=(256,1,1) lds=0\n"
    txt += '.amdgcn_target "amdgcn-amd-amdhsa--gfx950"\n.text\n'
    L1[0] = name + ':'
    txt += f".globl {name}\n.p2align 8\n.type {name},@function\n" + "\n".join(strip(L1)) + "\nL_code_end:\n" + "\n".join(strip(FB)) + "\n"
    if not OPT['single']:
        txt += ".globl final_kernel\n.p2align 8\n.type final_kernel,@function\n" + "\n".join(strip(F1)) + "\n"
    txt += kd(name, 512, 256) + ('' if OPT['single'] else kd('final_kernel', 96, 96))
    return txt, probs

if __name__ == '__main__':
    opts = eval(sys.argv[2]) if len(sys.argv) > 2 else None
    txt, probs = build(opts)
    open(sys.argv[1], 'w').write(txt)
    print(len(txt), 'bytes;', len(probs), 'hazard problems')
    for p in probs[:30]: print(p)
```

```python
import sys, re, math, struct
from asmlib import Ins, check_stream, cost
from sp import SP

KNAME = 'recurrent_scan__gqa_block_cached__geglu_ffn__prompt'
MF = 'v_mfma_f32_16x16x32_bf16'
def f2u(x): return struct.unpack('<I', struct.pack('<f', x))[0]
def hx(x): return '0x%08x' % f2u(x)

OPT = dict(late2=1, npre=16, ocap=16, lnm=1, early=0, lnevery=16, map=4, xdma=1, psleep=8, single=1, spin=200000, msum=2, stflags=' sc1', prefetch=1, codepf=1, timing=0, stamps=[0,1,2,3,4,5,6,7], fthresh=24, filler_cap=48)

sW, sG, sRB, sNU, sU0 = 3, 4, 5, 6, 7
sRBX = sRB
rK, rV, rWG, rWU, rWQ, rWD, rWO, rX, rWS = 8, 12, 16, 20, 24, 28, 32, 36, 40
rOUT, rDBG = 64, 68
sLATE, sSHOFF, sXOFF, sDONE, sTODO, sBITS = 61, 62, 63, 84, 85, 1
sKO = 44
sKVM0, sCNT, sRING, sJ, sOFF0, sOFF1, sROT = 48, 49, 50, 51, 52, 53, 54
sCOG, sCOQ, sCOD, sCOD3, sCOO, sSLAB = 55, 56, 57, 58, 59, 60
sT = 72
sTS = 86
vFA, vL16 = 0, 1
vWA, vWI = 2, 6
vDG, vDQ, vDO = 10, 14, 18
vDK, vDV = 22, 24
vT = 26
vGB, vPF = 30, 31
vW = 32
bA, bB, bC = 64, 128, 192
vKA = 10
vVAl = [2, 3, 4, 5, 14, 15, 16, 17]
vQ = bB; vS = [bC, bC + 32]; vP = [32, 48]
vNEGM, vONES, vLM, vL = 96, 112, 116, 124
aO, aKF, aVF = 0, 192, 224
RING = 0
LB = 98304

class Prog:
    def __init__(self): self.L = []
    def __call__(self, s):
        for x in s.split('\n'):
            x = x.strip()
            if x: self.L.append(x)

def srd(a, r, lo, size, add=None, sub=None):
    a(f"s_mov_b32 s{r}, s{lo}\ns_mov_b32 s{r+1}, s{lo+1}")
    if add: a(f"s_add_u32 s{r}, s{r}, {add}\ns_addc_u32 s{r+1}, s{r+1}, 0")
    if sub: a(f"s_sub_u32 s{r}, s{r}, {sub}\ns_subb_u32 s{r+1}, s{r+1}, 0")
    a(f"s_mov_b32 s{r+2}, {size}\ns_mov_b32 s{r+3}, 0x20000")

def stampl(name):
    if OPT['timing'] and name in OPT['stamps']:
        i = OPT['stamps'].index(name)
        return [f"s_memtime s[{sTS+2*i}:{sTS+2*i+1}]", "s_waitcnt lgkmcnt(0)"]
    return []
def stamp(a, name):
    for x in stampl(name): a(x)

def resolve_waits(lines):
    parsed = []
    for l in lines:
        t = l.split(';')[0].strip()
        parsed.append(None if (not t or t.endswith(':') or t.startswith('.')) else Ins(t))
    out = list(lines)
    vmq = []; dsq = []
    for i, l in enumerate(lines):
        I = parsed[i]
        if I is None: continue
        tag = None
        m = re.search(r'@T:(\w+)', l)
        if m: tag = m.group(1)
        if I.op == 's_waitcnt':
            parts = []
            m = re.search(r'vmcnt\(([^)]*)\)', l)
            if m:
                x = m.group(1)
                if x.startswith('@'):
                    idx = [k for k, e in enumerate(vmq) if e[0] in x[1:].split('|')]
                    n = len(vmq) - 1 - idx[-1] if idx else None
                else: n = int(x)
                if n is not None:
                    n = min(n, 63); parts.append(f"vmcnt({n})")
                    while len(vmq) > n: vmq.pop(0)
            m = re.search(r'lgkmcnt\(([^)]*)\)', l)
            if m:
                ns = []
                for x in m.group(1).split('+'):
                    if x == '@auto':
                        need = -1
                        for j in range(i + 1, len(lines)):
                            J = parsed[j]
                            if J is None: continue
                            if J.op == 's_waitcnt' and ('@auto' in lines[j] or 'lgkmcnt(0)' in lines[j]): break
                            tch = set(J.r) | set(J.w)
                            for k, e in enumerate(dsq):
                                if tch & e[1]: need = max(need, k)
                        if need >= 0: ns.append(len(dsq) - 1 - need)
                    elif x.startswith('@'):
                        idx = [k for k, e in enumerate(dsq) if e[0] == x[1:]]
                        if idx: ns.append(len(dsq) - 1 - idx[-1])
                    else: ns.append(int(x))
                if ns:
                    n = min(min(ns), 15); parts.append(f"lgkmcnt({n})")
                    while len(dsq) > n: dsq.pop(0)
            out[i] = ("s_waitcnt " + " ".join(parts)) if parts else None
        elif I.kind in ('dsr', 'dsw'): dsq.append((tag, set(I.w)))
        elif I.kind == 'smem':
            dsq.append((tag, set(I.w))); dsq.append((tag, set(I.w)))
        elif I.kind in ('vld', 'vst', 'dma') and '@X' not in l: vmq.append((tag, set(I.w)))
    return [x for x in out if x is not None]

class Panel:
    def __init__(self, name, srd, dv, rs, co, acc, first, bfrag, inter, rot, row0=0):
        self.name = name; self.srd = srd; self.dv = dv; self.rs = rs; self.co = co; self.acc = acc
        self.first = first; self.bfrag = bfrag; self.inter = inter; self.rot = rot; self.row0 = row0

def panel_dma(P, idx):
    sl = idx % 3
    s0 = []
    if P.rot:
        s0 += [f"s_add_u32 s{sJ}, s{sJ}, 1", f"s_and_b32 s{sJ}, s{sJ}, 7", f"s_mul_i32 s{sOFF0}, s{sJ}, {64*P.rs}", f"s_add_u32 s{sOFF0}, s{sOFF0}, {P.co}"]
        if P.row0: s0.append(f"s_add_u32 s{sOFF0}, s{sOFF0}, {P.row0}")
    elif P.name[0] == 'O':
        s0 += [f"s_add_u32 s{sOFF0}, s{44 + P.j % 4}, {P.row0}"]
    else:
        s0 += [f"s_add_u32 s{sOFF0}, {P.co}, {P.row0}"]
    s0 += [f"s_add_u32 m0, s{sRING}, {sl*8192}"]
    s1 = [f"s_add_u32 s{sOFF1}, s{sOFF0}, {32*P.rs}", f"s_add_u32 m0, s{sRING}, {sl*8192 + 4096}"]
    d = []
    for i in range(8):
        so = sOFF0 if i < 4 else sOFF1
        off = f" offset:{1024*(i%4)}" if i % 4 else ""
        d.append(f"buffer_load_dwordx4 v{P.dv + i%4}, s[{P.srd}:{P.srd+3}], s{so} offen{off} lds ; @T:w{idx}")
    return s0, s1, d

def wreads(P, idx, nb):
    sl = idx % 3; out = []
    for ks in range(2):
        for jj in range(2):
            r = vW + nb*8 + ks*4 + jj*2
            if P.inter: ad = vWI + nb; off = sl*8192 + ks*4096 + jj*2048
            else: ad = vWA + (nb ^ (2*jj)); off = sl*8192 + ks*4096 + jj*512
            out.append(f"ds_read_b64_tr_b16 v[{r}:{r+1}], v{ad} offset:{off} ; @T:wr{idx}_{nb}")
    return out

def panel_mfmas(P):
    out = []
    for nb in range(4):
        for qb in range(4):
            for ks in range(2):
                d = P.acc + (nb*4 + qb)*4; w = vW + nb*8 + ks*4; b = P.bfrag(ks, qb)
                c = '0' if (P.first and ks == 0) else f"v[{d}:{d+3}]"
                out.append(f"{MF} v[{d}:{d+3}], v[{w}:{w+3}], a[{b}:{b+3}], {c}")
    return out

def emit_stream(a, panels, base, fillers, extra_mem, extra_shadow, nxt=None, must_empty=(), quiet=None, cap=None):
    allp = panels + (nxt or [])
    q = []; pend = []
    for pos, P in enumerate(panels):
        idx = base + pos
        if pos in must_empty: assert not q, (pos, len(q))
        q += fillers.get(pos, [])
        stamp(a, f'p{idx}')
        ms = panel_mfmas(P)
        shadow = [[] for _ in range(32)]; mem = [[] for _ in range(32)]; dma = {}
        r3 = wreads(P, idx, 3)
        mem[0] += r3[:2]; mem[1] += r3[2:]
        hasn = pos + 1 < len(allp)
        if hasn:
            N = allp[pos+1]
            shadow[7].append(f"s_waitcnt vmcnt(@w{idx+1}) lgkmcnt(@auto+@wr{idx}_3)")
            for nb in range(3):
                r = wreads(N, idx+1, nb); g = 8*nb + 8
                mem[g] += r[:2]; mem[g+2] += r[2:]
        else:
            shadow[7].append(f"s_waitcnt lgkmcnt(@auto)")
        shadow[15].append("s_waitcnt lgkmcnt(@auto)"); shadow[23].append("s_waitcnt lgkmcnt(@auto)"); shadow[31].append("s_waitcnt lgkmcnt(@auto)")
        if pos + 3 < len(allp):
            s0, s1, d = panel_dma(allp[pos+3], idx+3)
            for k, x in enumerate(s0): shadow[8 - len(s0) + k - (1 if 8 - len(s0) + k <= 7 else 0)].append(x)
            gaps = [9, 11, 13, 17, 19, 21, 25, 27]
            shadow[16].append(s1[0]); shadow[18].append(s1[1])
            for x, g in zip(d, gaps): dma[g] = x
        for (p2, g), x in extra_mem.items():
            if p2 == pos:
                assert g not in dma, (pos, g)
                mem[g] += x
        for (p2, g), x in extra_shadow.items():
            if p2 == pos: shadow[g] += x
        budget = (cap or {}).get(pos, OPT['filler_cap'])
        free = [g for g in range(32) if g not in dma]
        base_room = sum(max(0, 2 - len(mem[g])) for g in free)
        want = min(budget, sum(cost(x) for x in q))
        extra = max(0, want - base_room); acc = 0.0
        for g in range(32):
            a(ms[g])
            for x in shadow[g]: a(x)
            if g in dma:
                a(dma[g]); continue
            for x in mem[g]:
                if x: a(x)
            room = 2 - len(mem[g])
            acc += extra / len(free)
            while q:
                x = q[0]
                if x.startswith('ds_') or x.startswith('buffer'):
                    pend.append(q.pop(0)); continue
                c = cost(x)
                if pend and (set(Ins(x.split(';')[0]).w) & set(sum((Ins(y.split(';')[0]).r for y in pend), []))): break
                if c <= room: room -= c
                elif (c - room) <= acc + (0.75 if room > 0 and extra > 0 else 0): acc -= (c - max(room, 0)); room = 0
                else: break
                a(q.pop(0))
            if pend and g + 1 < 32 and (g + 1) not in dma and len(mem[g+1]) <= (1 if quiet else 0) and ((g + 1) in (quiet or OPT.get('quiet', (4, 6, 22, 28, 30))) or not dma):
                mem[g+1] += [pend.pop(0), None]
        if (pos + 1) in must_empty and not q:
            for x in pend: a(x)
            pend = []
        q = pend + q; pend = []
    return q

def gelu_stage1(G):
    A = -2.0 * math.log2(math.e) * math.sqrt(2.0 / math.pi)
    ops = []
    for blk in range(16):
        x = [G + blk*4 + i for i in range(4)]; t = [vT + i for i in range(4)]
        ops += [f"v_mul_f32 v{t[i]}, v{x[i]}, v{x[i]}" for i in range(4)]
        ops += [f"v_fmaak_f32 v{t[i]}, v{vGB}, v{t[i]}, {hx(A)}" for i in range(4)]
        ops += [f"v_mul_f32 v{t[i]}, v{t[i]}, v{x[i]}" for i in range(4)]
        ops += [f"v_exp_f32 v{t[i]}, v{t[i]}" for i in range(4)]
        ops += [f"v_add_f32 v{t[i]}, 1.0, v{t[i]}" for i in range(4)]
        ops += [f"v_rcp_f32 v{t[i]}, v{t[i]}" for i in range(4)]
        ops += [f"v_mul_f32 v{x[i]}, v{x[i]}, v{t[i]}" for i in range(4)]
    return ops

def geglu_stage2(G, U):
    ops = []
    for sp in range(2):
        for qb in range(4):
            b0 = ((2*sp)*4 + qb)*4; b1 = ((2*sp+1)*4 + qb)*4
            for b in (b0, b1):
                ops += [f"v_mul_f32 v{G+b+i}, v{G+b+i}, v{U+b+i}" for i in range(4)]
            d = U + b0
            ops += [f"v_cvt_pk_bf16_f32 v{d}, v{G+b0}, v{G+b0+1}", f"v_cvt_pk_bf16_f32 v{d+1}, v{G+b0+2}, v{G+b0+3}",
                    f"v_cvt_pk_bf16_f32 v{d+2}, v{G+b1}, v{G+b1+1}", f"v_cvt_pk_bf16_f32 v{d+3}, v{G+b1+2}, v{G+b1+3}"]
            ops += [f"ds_write_b128 v{vPF}, v[{d}:{d+3}] offset:{(sp*4 + qb)*1024} ; @T:hw"]
    return ops

def qpack(acc, half):
    c = math.log2(math.e) / math.sqrt(128.0)
    ops = []; late = []
    for sp in range(2):
        for qb in range(4):
            b0 = acc + ((2*sp)*4 + qb)*4; b1 = acc + ((2*sp+1)*4 + qb)*4
            for b in (b0, b1):
                ops += [f"v_mul_f32 v{b+i}, {hx(c)}, v{b+i}" for i in range(4)]
            ops += late; late = []
            d = vQ + (qb*4 + 2*half + sp)*4
            ops += [f"v_cvt_pk_bf16_f32 v{d}, v{b0}, v{b0+1}", f"v_cvt_pk_bf16_f32 v{d+1}, v{b0+2}, v{b0+3}",
                    f"v_cvt_pk_bf16_f32 v{d+2}, v{b1}, v{b1+1}", f"v_cvt_pk_bf16_f32 v{d+3}, v{b1+2}, v{b1+3}"]
            late = [f"v_permlane32_swap_b32 v{d}, v{d+2}", f"v_permlane32_swap_b32 v{d+1}, v{d+3}", "s_nop 0",
                    f"v_permlane16_swap_b32 v{d}, v{d+2}", f"v_permlane16_swap_b32 v{d+1}, v{d+3}"]
    return ops + ["s_nop 1"] + late

def slab_store(acc, t, hf):
    ops = []
    for sp in range(2):
        for qb in range(4):
            b0 = acc + ((2*sp)*4 + qb)*4; b1 = acc + ((2*sp+1)*4 + qb)*4
            ops += [f"v_cvt_pk_bf16_f32 v{b0}, v{b0}, v{b0+1}", f"v_cvt_pk_bf16_f32 v{b0+1}, v{b0+2}, v{b0+3}",
                    f"v_cvt_pk_bf16_f32 v{b0+2}, v{b1}, v{b1+1}", f"v_cvt_pk_bf16_f32 v{b0+3}, v{b1+2}, v{b1+3}"]
            f = hf*8 + sp*4 + qb
            so = sT + (t*4 + f // 4)
            ops += [f"buffer_store_dwordx4 v[{b0}:{b0+3}], v{vL16}, s[{rWS}:{rWS+3}], s{so} offen offset:{(f%4)*1024}{OPT['stflags']} ; @T:st"]
    return ops

def park(acc, dst):
    ops = []
    for sp in range(2):
        for qb in range(4):
            b0 = acc + ((2*sp)*4 + qb)*4; b1 = acc + ((2*sp+1)*4 + qb)*4
            ops += [f"v_cvt_pk_bf16_f32 v{b0}, v{b0}, v{b0+1}", f"v_cvt_pk_bf16_f32 v{b0+1}, v{b0+2}, v{b0+3}",
                    f"v_cvt_pk_bf16_f32 v{b0+2}, v{b1}, v{b1+1}", f"v_cvt_pk_bf16_f32 v{b0+3}, v{b1+2}, v{b1+3}"]
            ops += [f"v_accvgpr_write_b32 a{dst + (sp*4+qb)*4 + i}, v{b0+i}" for i in range(4)]
    return ops
def parked_store(f):
    return f"buffer_store_dwordx4 a[{128+4*f}:{131+4*f}], v{vL16}, s[{rWS}:{rWS+3}], s{sT + 4 + f//4} offen offset:{(f%4)*1024}{OPT['stflags']}"

def qk(b, cinit='negm'):
    out = []
    for qb in range(4):
        for kb in range(2):
            for s in range(4):
                r = vS[b] + (qb*2 + kb)*4; d = f"v[{r}:{r+3}]"
                c = d if s else (f"v[{vNEGM+4*qb}:{vNEGM+4*qb+3}]" if cinit == 'negm' else '0')
                k = aKF + (kb*4 + s)*4; q = vQ + (qb*4 + s)*4
                out.append(f"{MF} {d}, a[{k}:{k+3}], v[{q}:{q+3}], {c}")
    return out
def pv(b, first=False, nsum=None, aVF=aVF):
    nsum = OPT['msum'] if nsum is None else nsum
    out = []
    for qb in range(4):
        p = vP[b] + qb*4
        for db in range(8):
            o = aO + (db*4 + qb)*4; v = aVF + db*4
            c = '0' if first else f"a[{o}:{o+3}]"
            out.append(f"{MF} a[{o}:{o+3}], a[{v}:{v+3}], v[{p}:{p+3}], {c}")
        if qb < nsum:
            l = vLM + 4*qb
            out.append(f"{MF} v[{l}:{l+3}], v[{vONES}:{vONES+3}], v[{p}:{p+3}], {'0' if first else f'v[{l}:{l+3}]'}")
    return out
def kreads(sl):
    return [f"ds_read_b128 a[{aKF+(kb*4+s)*4}:{aKF+(kb*4+s)*4+3}], v{vKA+s} offset:{sl*16384 + kb*8192}" for kb in range(2) for s in range(4)]
def vreads(sl, aVF=aVF):
    return [f"ds_read_b64_tr_b16 a[{aVF+db*4+2*jj}:{aVF+db*4+2*jj+1}], v{vVAl[db]} offset:{sl*16384 + jj*8192}" for db in range(8) for jj in range(2)]
def kvdma(sl, kidx, vidx, dok=True, dov=True):
    sc = [f"s_add_u32 m0, s{sKVM0}, {sl*16384}"]; d = []
    if dok:
        ks = sKO + kidx % 4; kp = sKO + (kidx - 1) % 4
        sc += [f"s_add_u32 s{ks}, s{kp}, 8192", f"s_and_b32 s{ks}, s{ks}, 0x7ffff"]
        d += [f"buffer_load_dwordx4 v{vDK}, s[{rK}:{rK+3}], s{ks} offen lds ; @T:kv{sl}",
              f"buffer_load_dwordx4 v{vDK+1}, s[{rK}:{rK+3}], s{ks} offen offset:1024 lds ; @T:kv{sl}"]
    if dov:
        vs = sKO + vidx % 4
        d += [f"buffer_load_dwordx4 v{vDV}, s[{rV}:{rV+3}], s{vs} offen offset:2048 lds ; @T:kv{sl}",
              f"buffer_load_dwordx4 v{vDV+1}, s[{rV}:{rV+3}], s{vs} offen offset:3072 lds ; @T:kv{sl}"]
    return sc, d
def smq(b):
    nsum = OPT['msum']; E = []; Sg = []
    for qb in range(4):
        for i in range(4):
            s0 = vS[b] + qb*8 + 2*i
            E += [f"v_exp_f32 v{s0}, v{s0}", f"v_exp_f32 v{s0+1}, v{s0+1}"]; k = len(E)
            if qb >= nsum:
                Sg += [(k-1, f"v_add_f32 v{vL+qb}, v{vL+qb}, v{s0}"), (k, f"v_add_f32 v{vL+qb}, v{vL+qb}, v{s0+1}")]
            Sg += [(k, f"v_cvt_pk_bf16_f32 v{vP[b]+qb*4+i}, v{s0}, v{s0+1}")]
    return E, Sg

def check_p(m, *queues):
    rd = set(Ins(m).ab)
    for q in queues:
        for x in (q or []): assert not (set(Ins(x[1]).w) & rd), (m, x)

def period(p, carry, dok=True, dov=True, first=False, kread=True, xdma=None, alsowait=None, nofill=(), kvg=([2, 3, 4], [27, 39, 47, 59]), vnext=None):
    sl = p % 4
    ms = qk((p+1) % 2) + pv(p % 2, first)
    N = len(ms); H = 32
    shadow = [None]*N
    shadow[N-1] = f"s_waitcnt vmcnt(@kv{(p+1)%4}{'|' + alsowait if alsowait else ''}) lgkmcnt(0)"
    shadow[H-1] = "s_waitcnt lgkmcnt(0)"
    shadow[0] = "s_barrier"
    mem = []
    vr = vreads(sl)
    for i, x in enumerate(vr): mem.append((1 + (i*24) // len(vr), x))
    if kread:
        kr = kreads(sl)
        for i, x in enumerate(kr): mem.append((33 + (i*24) // len(kr), x))
    if vnext:
        for i, x in enumerate(vnext): mem.append((33 + (i*26) // len(vnext), x))
    dmag = {}
    if dok or dov:
        sc, dd = kvdma((p + 3) % 4, p + 5, p + 3, dok, dov)
        for x, g in zip(sc, kvg[0]): shadow[g] = x
        for x, g in zip(dd, kvg[1]): dmag[g] = x
    if xdma:
        for (g, x) in xdma:
            if x.startswith('buffer'):
                assert g not in dmag and not shadow[g]; dmag[g] = x
            else:
                assert not shadow[g] and g not in dmag, (g, x); shadow[g] = x
    mem.sort(key=lambda t: t[0])
    st = 34
    cE, cS, cdone = carry
    nE, nS = smq((p+1) % 2)
    lines = []
    E = list(cE); Sq = list(cS); edone = cdone
    mi = 0
    extra = max(0, 64 + len(mem) + len(nS) + 2*len(dmag) + 2*len(nofill) - 2*N)
    acc = 0.0; old_S = None
    for g in range(N):
        check_p(ms[g], old_S, Sq if g <= st else None)
        lines.append(ms[g])
        if shadow[g]: lines.append(shadow[g])
        if g == st:
            assert not E, (p, len(E))
            old_S = Sq; E = nE; Sq = nS; edone = 0
        acc += extra / N
        if g in dmag:
            lines.append(dmag[g]); continue
        if g in nofill: continue
        room = 2
        if acc >= 1.0 - 1e-9: room += 1; acc -= 1.0
        gm = []; gv = []
        e_prev = edone
        left = (st - g) if g < st else (N - g + st)
        navail = (1 if (mi < len(mem) and mem[mi][0] <= g) else 0) + (len(old_S) if old_S else 0) + sum(1 for x in Sq if x[0] <= e_prev)
        if E and (len(E) * 2 >= left or navail < 2):
            gv.append(E.pop(0)); room -= 2; edone += 1
        while room > 0:
            if mi < len(mem) and mem[mi][0] <= g: gm.append(mem[mi][1]); mi += 1; room -= 1
            elif old_S: gv.append(old_S.pop(0)[1]); room -= 1
            elif Sq and Sq[0][0] <= e_prev: gv.append(Sq.pop(0)[1]); room -= 1
            elif mi < len(mem) and mem[mi][0] <= g + 3: gm.append(mem[mi][1]); mi += 1; room -= 1
            else: break
        lines += gm + gv
    assert mi == len(mem) and not old_S, (mi, len(mem), old_S)
    return lines, (E, Sq, edone)

def xreduce(a, reg, op, tmp):
    a(f"v_mov_b32 v{tmp}, v{reg}\ns_nop 1\nv_permlane16_swap_b32 v{reg}, v{tmp}\ns_nop 1\n{op} v{reg}, v{reg}, v{tmp}")
    a(f"v_mov_b32 v{tmp}, v{reg}\ns_nop 1\nv_permlane32_swap_b32 v{reg}, v{tmp}\ns_nop 1\n{op} v{reg}, v{reg}, v{tmp}")

def attn_addr_ops():
    o = []
    t0, t1, t2, t3 = vT, vT+1, vT+2, vT+3
    o += [f"v_bfe_u32 v{t0}, v{vL16}, 4, 4", f"v_lshrrev_b32 v{t1}, 8, v{vL16}"]
    o += [f"v_lshrrev_b32 v{t2}, 3, v{t0}", f"v_lshlrev_b32 v{t2}, 12, v{t2}", f"v_and_b32 v{t3}, 7, v{t0}", f"v_lshlrev_b32 v{t3}, 8, v{t3}",
          f"v_add_u32 v{t2}, v{t2}, v{t3}", f"v_add_u32 v{t2}, {LB}, v{t2}"]
    for s in range(4):
        o += [f"v_add_u32 v{t3}, {4*s}, v{t1}", f"v_xor_b32 v{t3}, v{t3}, v{t0}", f"v_lshl_add_u32 v{vKA+s}, v{t3}, 4, v{t2}"]
    o2 = []
    o2 += [f"v_bfe_u32 v{t0}, v{vL16}, 6, 3", f"v_lshrrev_b32 v{t2}, 9, v{vL16}", f"v_lshlrev_b32 v{t2}, 12, v{t2}",
           f"v_lshl_add_u32 v{t2}, v{t0}, 8, v{t2}", f"v_add_u32 v{t2}, {LB + 2048}, v{t2}", f"v_bfe_u32 v{t3}, v{vL16}, 4, 2", f"v_lshl_add_u32 v{t2}, v{t3}, 3, v{t2}"]
    for db in range(8):
        o2 += [f"v_xor_b32 v{t3}, {db}, v{t0}", f"v_lshl_add_u32 v{vVAl[db]}, v{t3}, 5, v{t2}"]
    return o, o2

def pf_addr(st, vt):
    if OPT['map'] == 8:
        return [f"s_lshl_b32 {st}, s{sRB}, 2", f"s_add_u32 {st}, {st}, s{sW}", f"s_lshl_b32 {st}, {st}, 12", f"v_and_b32 v{vPF}, 0x1f0, v{vL16}", f"v_lshlrev_b32 v{vPF}, 3, v{vPF}",
                f"v_lshrrev_b32 v{vt}, 9, v{vL16}", f"v_lshl_add_u32 v{vPF}, v{vt}, 6, v{vPF}", f"v_add_u32 v{vPF}, {st}, v{vPF}"]
    return [f"s_and_b32 {st}, s{sRB}, 15", f"s_lshl_b32 {st}, {st}, 2", f"s_add_u32 {st}, {st}, s{sW}", f"s_lshl_b32 {st}, {st}, 13", f"v_lshlrev_b32 v{vPF}, 3, v{vL16}", f"v_add_u32 v{vPF}, {st}, v{vPF}"]

def interleave(a, base, extra, every, start=0):
    k = 0
    for n, x in enumerate(base):
        a(x)
        if n >= start and (n + 1 - start) % every == 0 and k < len(extra) and not x.startswith('s_memtime'):
            for y in extra[k]: a(y)
            k += 1
    for g in extra[k:]:
        for y in g: a(y)

def unpack_sum(dst, srcs, t0):
    ops = []
    for n, r in enumerate(srcs):
        for i in range(4):
            if n == 0:
                ops += [f"v_lshlrev_b32 v{dst+2*i}, 16, v{r+i}", f"v_and_b32 v{dst+2*i+1}, 0xffff0000, v{r+i}"]
            else:
                ta, tb = t0 + 2*(i % 2), t0 + 2*(i % 2) + 1
                ops += [f"v_lshlrev_b32 v{ta}, 16, v{r+i}", f"v_and_b32 v{tb}, 0xffff0000, v{r+i}",
                        f"v_add_f32 v{dst+2*i}, v{dst+2*i}, v{ta}", f"v_add_f32 v{dst+2*i+1}, v{dst+2*i+1}, v{tb}"]
    return ops

def silu_ops(r, n, tmp):
    ops = []
    for b in range(0, n, 4):
        ops += [f"v_mul_f32 v{tmp+i}, {hx(-math.log2(math.e))}, v{r+b+i}" for i in range(4)]
        ops += [f"v_exp_f32 v{tmp+i}, v{tmp+i}" for i in range(4)]
        ops += [f"v_add_f32 v{tmp+i}, 1.0, v{tmp+i}" for i in range(4)]
        ops += [f"v_rcp_f32 v{tmp+i}, v{tmp+i}" for i in range(4)]
        ops += [f"v_mul_f32 v{r+b+i}, v{r+b+i}, v{tmp+i}" for i in range(4)]
    return ops

def share_offsets(sh):
    return [f"s_lshl_b32 s{sSHOFF}, s{sRB}, 3", f"s_add_u32 s{sSHOFF}, s{sSHOFF}, {sh}", f"s_lshl_b32 s{sSHOFF}, s{sSHOFF}, 2", f"s_add_u32 s{sSHOFF}, s{sSHOFF}, s{sW}", f"s_lshl_b32 s{sSHOFF}, s{sSHOFF}, 11",
            f"s_lshl_b32 s{sXOFF}, {sh}, 1", f"s_lshr_b32 s0, s{sW}, 1", f"s_add_u32 s{sXOFF}, s{sXOFF}, s0", f"s_lshl_b32 s{sXOFF}, s{sXOFF}, 6",
            f"s_and_b32 s0, s{sW}, 1", f"s_lshl_b32 s0, s0, 15", f"s_add_u32 s{sXOFF}, s{sXOFF}, s0", f"s_lshl_b32 s0, s{sRB}, 16", f"s_add_u32 s{sXOFF}, s{sXOFF}, s0"]

def ploads(dst, t, g, base):
    return [f"s_add_u32 s0, {base}, {t*0x1000000 + g*0x200000}",
            f"buffer_load_dwordx4 v[{dst[0]+g*4}:{dst[0]+g*4+3}], v{vL16}, s[{rWS}:{rWS+3}], s0 offen sc1 ; @T:pl",
            f"buffer_load_dwordx4 v[{dst[1]+g*4}:{dst[1]+g*4+3}], v{vL16}, s[{rWS}:{rWS+3}], s0 offen offset:1024 sc1 ; @T:pl"]
FPE, FPL, SPR = (192, 224), (192, 224), (128, 160)

vOA = 120
vXO, vSIG, vXD, vGV = 10, 11, 2, 128
xregs = [2, 4, 12, 14]
def xloads():
    o = []
    for i in range(2):
        o.append(f"s_add_u32 s0, s{sXOFF}, {i*16384}")
        for e in range(2):
            r = xregs[2*i+e]
            o.append(f"buffer_load_dwordx2 v[{r}:{r+1}], v{vXO}, s[{rX}:{rX+3}], s0 offen offset:{32*e} ; @T:xl")
    return o
def f_reduce_ops():
    ops = []
    ops += unpack_sum(vGA, [128 + 4*g for g in range(8)], vT)
    ops += unpack_sum(vGA + 8, [160 + 4*g for g in range(8)], vT)
    ops += silu_ops(vGA, 16, vT)
    return ops
vGA = 96

def main_kernel():
    global vGA
    a = Prog()
    a(f"main_kernel:")
    a("s_cmp_ge_u32 s2, 256\ns_cbranch_scc1 L_main_end")
    stamp(a, 0)
    if OPT['timing']: a("s_memrealtime s[100:101]\ns_waitcnt lgkmcnt(0)")
    a("s_load_dwordx16 s[64:79], s[0:1], 0\ns_load_dwordx8 s[80:87], s[0:1], 64") if not OPT['timing'] else a("s_load_dwordx16 s[64:79], s[0:1], 0\ns_load_dwordx4 s[80:83], s[0:1], 64\ns_load_dwordx2 s[84:85], s[0:1], 80\ns_load_dwordx2 s[44:45], s[0:1], 88")
    WSP = 86 if not OPT['timing'] else 44
    a(f"v_lshrrev_b32 v2, 6, v0\nv_and_b32 v0, 63, v0\nv_readfirstlane_b32 s{sW}, v2")
    a(f"v_lshlrev_b32 v{vL16}, 4, v0")
    if OPT['map'] == 8:
        a(f"s_and_b32 s{sG}, s2, 7\ns_lshr_b32 s{sRB}, s2, 3")
    else:
        a(f"s_and_b32 s{sG}, s2, 3\ns_lshl_b32 s{sG}, s{sG}, 1\ns_bfe_u32 s{sRB}, s2, 0x10003\ns_add_u32 s{sG}, s{sG}, s{sRB}")
        a(f"s_bfe_u32 s{sRB}, s2, 0x10002\ns_lshl_b32 s{sRB}, s{sRB}, 4\ns_lshr_b32 s{sROT}, s2, 4\ns_add_u32 s{sRB}, s{sRB}, s{sROT}")
    if OPT['xdma']:
        a(f"s_and_b32 s{sROT}, s{sRB}, 3\ns_lshl_b32 s{sROT}, s{sROT}, 1")
        a(f"v_lshrrev_b32 v6, 4, v0\nv_and_b32 v5, 15, v0")
        for rg in range(4):
            a(f"v_add_u32 v7, {4*rg}, v6\nv_xor_b32 v7, v7, v5\nv_lshlrev_b32 v7, 4, v7\nv_add_u32 v8, {3*rg}, v6\nv_lshl_add_u32 v{32+rg}, v8, 10, v7")
        a(f"s_lshl_b32 s62, s{sRB}, 16\ns_lshl_b32 s63, s{sW}, 14\ns_add_u32 s62, s62, s63\ns_add_u32 s60, s63, {LB}\ns_lshl_b32 s63, s{sROT}, 7")
    else:
        a(f"s_and_b32 s{sROT}, s{sRB}, 7")
        a(f"v_and_b32 v5, 15, v0\nv_lshlrev_b32 v5, 10, v5\nv_lshrrev_b32 v6, 4, v0\nv_lshl_add_u32 v5, v6, 4, v5")
        a(f"s_lshl_b32 s62, s{sRB}, 16\ns_lshl_b32 s63, s{sW}, 14\ns_add_u32 s62, s62, s63\ns_lshl_b32 s63, s{sROT}, 7")
    for x in pf_addr('s61', 3): a(x)
    if OPT['codepf']:
        a("s_getpc_b64 s[46:47]\nL_pc0:")
        a(f"v_min_u32 v7, L_code_end-L_pc0-4, v{vPF}")
        a(f"global_load_dword v{vGB}, v7, s[46:47] ; @T:pf")
    a("s_waitcnt lgkmcnt(0)")
    stamp(a, 'karg')
    srd(a, rX, 64, 2048*1024)
    if OPT['xdma']:
        for c4 in range(4):
            a(f"s_add_u32 s61, s63, {c4*256}\ns_and_b32 s61, s61, 0x3ff\ns_add_u32 m0, s60, {c4*4096}\ns_add_u32 s61, s61, s62")
            for rg in range(4): a(f"buffer_load_dwordx4 v{32+rg}, s[{rX}:{rX+3}], s61 offen offset:{rg*1024} lds ; @T:x{c4}")
        for sx in range(4):
            a(f"v_add_u32 v7, {4*sx}, v6\nv_xor_b32 v7, v7, v5\nv_lshlrev_b32 v7, 4, v7\nv_lshl_add_u32 v7, v5, 8, v7\nv_add_u32 v{50+sx}, s60, v7")
    else:
        for k in range(16):
            a(f"s_add_u32 s61, s63, {k*64}\ns_and_b32 s61, s61, 0x3ff\ns_add_u32 s61, s61, s62")
            a(f"buffer_load_dwordx4 v[{bA+4*k}:{bA+4*k+3}], v5, s[{rX}:{rX+3}], s61 offen ; @T:x{k}")
    stamp(a, 'xissued')
    a(f"s_add_u32 s62, s{sG}, s{sRB}\ns_and_b32 s62, s62, 1\ns_sub_u32 s{sNU}, 4, s62")
    a(f"s_lshr_b32 s62, s{sG}, 1\ns_mul_i32 s{sU0}, s62, 7\ns_sub_u32 s63, 7, s{sNU}\ns_and_b32 s61, s{sG}, 1\ns_mul_i32 s63, s63, s61\ns_add_u32 s{sU0}, s{sU0}, s63")
    a(f"s_add_u32 s62, s{sU0}, s{sW}\ns_lshl_b32 s{sCOG}, s62, 7\ns_cmp_lt_u32 s{sW}, s{sNU}\ns_cselect_b32 s{sCOG}, s{sCOG}, 0x40000000")
    a(f"s_lshl_b32 s62, s{sG}, 10\ns_lshl_b32 s63, s{sW}, 8\ns_add_u32 s{sCOQ}, s62, s63")
    a(f"s_lshl_b32 s62, s{sU0}, 16\ns_add_u32 s{sCOD}, s62, s63\ns_cmp_eq_u32 s{sNU}, 4\ns_cselect_b32 s{sCOD3}, s{sCOD}, 0x40000000")
    a(f"s_lshl_b32 s62, s{sG}, 19\ns_add_u32 s{sCOO}, s62, s63")
    a(f"s_mul_i32 s{sRING}, s{sW}, 24576\ns_lshl_b32 s{sKVM0}, s{sW}, 12\ns_add_u32 s{sKVM0}, s{sKVM0}, {LB}")
    srd(a, rWG, 76, 512*3584)
    a("v_lshrrev_b32 v6, 3, v0\nv_bfe_u32 v7, v0, 4, 1\nv_lshlrev_b32 v7, 1, v7\nv_bfe_u32 v8, v0, 5, 1\nv_lshl_add_u32 v7, v8, 2, v7\nv_and_b32 v8, 7, v0\nv_xor_b32 v7, v7, v8")
    a("v_lshlrev_b32 v7, 4, v7\nv_xor_b32 v8, 64, v7")
    for dv, rs in ((vDG, 3584), (vDQ, 8192), (vDO, 1024)):
        a(f"v_mul_u32_u24 v9, {rs}, v6")
        for j in range(4):
            a(f"v_add_u32 v{dv+j}, v9, v{7 + (j & 1)}")
            if j: a(f"v_add_u32 v{dv+j}, {j*(8*rs - 1024)}, v{dv+j}")
    X = lambda ks0: (lambda ks, qb: ((ks0 + ks)*4 + qb)*4)
    mk = lambda name, r, dv, rs, co, acc, n, inter, rot, row0: [Panel(name, r, dv, rs, co(j), acc, j == 0, X(2*j), inter, rot, row0(j)) for j in range(n)]
    pG = mk('G', rWG, vDG, 3584, lambda j: f"s{sCOG}", bA, 8, False, True, lambda j: 0)
    pU = mk('U', rWU, vDG, 3584, lambda j: f"s{sCOG}", bB, 8, False, True, lambda j: 0)
    pQa = mk('Qa', rWQ, vDQ, 8192, lambda j: f"s{sCOQ}", bC, 8, False, True, lambda j: 0)
    pQb = mk('Qb', rWQ, vDQ, 8192, lambda j: f"s{sCOQ}", bA, 8, False, True, lambda j: 128)
    pD0 = mk('D0', rWD, vDO, 1024, lambda j: f"s{sCOD3 if j == 3 else sCOD}", bC, 4, True, False, lambda j: j*65536)
    pD1 = mk('D1', rWD, vDO, 1024, lambda j: f"s{sCOD3 if j == 3 else sCOD}", bA, 4, True, False, lambda j: j*65536 + 128)
    pO0 = mk('O0', rWO, vDO, 1024, lambda j: None, bB, 8, True, False, lambda j: (j//4)*65536)
    pO1 = mk('O1', rWO, vDO, 1024, lambda j: None, bA, 8, True, False, lambda j: (j//4)*65536 + 128)
    oreg = lambda j, ks, qb: 32*j + (ks*4 + qb)*4
    for j in range(8):
        for P in (pO0[j], pO1[j]): P.j = j; P.bfrag = (lambda j: (lambda ks, qb: oreg(j, ks, qb)))(j)
    S1 = pG + pU + pQa + pQb + pD0 + pD1
    a(f"s_sub_u32 s{sJ}, s{sROT}, 1")
    for i in range(OPT.get('early', 1)):
        s0, s1, d = panel_dma(S1[i], i)
        for x in s0 + ["s_nop 0"] + d[:4] + s1 + ["s_nop 0"] + d[4:]: a(x)
    if OPT['prefetch']:
        srd(a, rWD, 80, 1792*1024)
        a(f"s_lshr_b32 s62, s{sG}, 1\ns_mul_i32 s62, s62, 7\ns_and_b32 s61, s{sG}, 1\ns_mul_i32 s61, s61, 3\ns_add_u32 s62, s62, s61\ns_lshl_b32 s62, s62, 16")
        a(f"v_cmp_gt_u32 vcc, 0x40000, v{vPF}\nv_mov_b32 v9, 0x40000000\ns_nop 0\nv_cndmask_b32 v9, v9, v{vPF}, vcc")
        a(f"v_mov_b32 v54, v9\ns_mov_b32 s44, s62") if not OPT['timing'] else a(f"v_mov_b32 v54, v9\ns_mov_b32 s46, s62")
    lndma = []
    late_dma = []
    if OPT.get('late2'):
        pass
    for i in range(OPT.get('early', 1), 3):
        s0, s1, d = panel_dma(S1[i], i)
        if i >= 3 - OPT.get('late2', 0):
            late_dma += s0 + ['s_nop 0'] + d[:4] + s1 + ['s_nop 0'] + d[4:]; continue
        lndma += [s0 + ["s_nop 0", d[0]]] + [[x] for x in d[1:4]] + [s1 + ["s_nop 0", d[4]]] + [[x] for x in d[5:]]
    if OPT['prefetch']: lndma.append([f"buffer_load_dword v{vGB}, v54, s[{rWD}:{rWD+3}], s{44 if not OPT['timing'] else 46} offen ; @T:pf"])
    stamp(a, 'dmaissued')
    srd(a, rWU, 78, 512*3584); srd(a, rWQ, 70, 512*8192); srd(a, rWO, 72, 4096*1024)
    if not OPT['prefetch']: srd(a, rWD, 80, 1792*1024)
    a(f"s_lshl_b32 s62, s{sG}, 19")
    srd(a, rK, 66, 0x80000, add='s62'); srd(a, rV, 68, 0x80800, add='s62', sub=2048)
    srd(a, rWS, WSP, 0x2000000)
    srd(a, rOUT, 82, 2048*1024); srd(a, rDBG, 84, 256)
    a(f"s_lshl_b32 s81, s{sG}, 19\ns_lshl_b32 s82, s{sW}, 13\ns_lshl_b32 s83, s{sW}, 14")
    a(f"s_lshl_b32 s{sSLAB}, s{sG}, 5\ns_add_u32 s{sSLAB}, s{sSLAB}, s{sRB}\ns_lshl_b32 s{sSLAB}, s{sSLAB}, 2\ns_add_u32 s{sSLAB}, s{sSLAB}, s{sW}\ns_lshl_b32 s{sSLAB}, s{sSLAB}, 14")
    for t in range(2):
        for k in range(4): a(f"s_add_u32 s{sT+t*4+k}, s{sSLAB}, {t*0x1000000 + k*4096}")
    a("v_bfe_u32 v5, v0, 2, 2\nv_lshrrev_b32 v6, 4, v0\nv_and_b32 v7, 3, v0\nv_lshlrev_b32 v7, 3, v7")
    a(f"v_add_u32 v7, s{sRING}, v7")
    a("v_lshrrev_b32 v8, 1, v5\nv_and_b32 v9, 1, v6\nv_lshl_add_u32 v9, v9, 1, v8")
    a("v_lshl_add_u32 v26, v6, 3, v5\nv_lshl_add_u32 v26, v26, 7, v7")
    a("v_lshrrev_b32 v27, 1, v6\nv_xor_b32 v27, v27, v6\nv_and_b32 v27, 1, v27\nv_lshl_add_u32 v27, v27, 1, v8")
    a("v_lshl_add_u32 v28, v6, 2, v5\nv_lshl_add_u32 v28, v28, 7, v7")
    a(f"s_lshl_b32 s62, s{sW}, 3\nv_add_u32 v29, s62, v6\nv_and_b32 v5, 15, v0")
    for i in range(2):
        a(f"v_add_u32 v8, {4*i}, v29\nv_and_b32 v8, 15, v8\nv_xor_b32 v8, v8, v5\nv_lshlrev_b32 v8, 4, v8\nv_lshl_add_u32 v{vDK+i}, v29, 8, v8")
        a(f"v_add_u32 v8, {4*i}, v6\nv_lshlrev_b32 v8, 1, v8\nv_xor_b32 v8, v8, v5\nv_lshlrev_b32 v8, 4, v8\nv_lshl_add_u32 v{vDV+i}, v29, 8, v8")
    a("v_mov_b32 v29, v9")
    for nb in range(4):
        a(f"v_xor_b32 v{vWA+nb}, {nb}, v29\nv_lshl_add_u32 v{vWA+nb}, v{vWA+nb}, 5, v26")
        a(f"v_xor_b32 v{vWI+nb}, {nb}, v27\nv_lshl_add_u32 v{vWI+nb}, v{vWI+nb}, 5, v28")
    a(f"v_add_u32 v{vFA}, {LB}, v{vL16}")
    a(f"v_add_u32 v44, s83, v{vFA}")
    stamp(a, 'setup')
    F = bB
    if OPT['lnm']:
        b = Prog()
        b("s_mov_b32 s45, 0xffff0000" if not OPT['timing'] else "s_mov_b32 s47, 0xffff0000")
        MK = 45 if not OPT['timing'] else 47
        for i in range(4): b(f"v_mov_b32 v{32+i}, 0x3f803f80")
        b(f"v_bfe_u32 v45, v{vL16}, 4, 2\nv_bfe_u32 v46, v{vL16}, 6, 2\nv_lshrrev_b32 v47, 8, v{vL16}")
        b("s_waitcnt vmcnt(@x0)")
        for sx in range(4): b(f"ds_read_b128 v[{bA+4*sx}:{bA+4*sx+3}], v{50+sx} ; @T:q0")
        for c4 in range(4):
            if c4 < 3:
                b(f"s_waitcnt vmcnt(@x{c4+1})")
                for sx in range(4): b(f"ds_read_b128 v[{bA+16*(c4+1)+4*sx}:{bA+16*(c4+1)+4*sx+3}], v{50+sx} offset:{(c4+1)*4096} ; @T:q{c4+1}")
            b(f"s_waitcnt lgkmcnt(@q{c4})")
            for k in range(4*c4, 4*c4 + 4):
                x = f"v[{bA+4*k}:{bA+4*k+3}]"
                un = [[f"v_lshlrev_b32 v{F+2*i}, 16, v{bA+i}", f"v_and_b32 v{F+2*i+1}, s{MK}, v{bA+i}"] for i in range(4*k, 4*k+4)]
                last = (c4 == 3)
                b(f"{MF} v[36:39], v[32:35], {x}, {'0' if k == 0 else 'v[36:39]'}")
                if not last:
                    for y in un[0] + un[1]: b(y)
                b(f"{MF} v[40:43], {x}, {x}, {'0' if k == 0 else 'v[40:43]'}")
                if not last:
                    for y in un[2] + un[3]: b(y)
        late = [y for i in range(48, 64) for y in (f"v_lshlrev_b32 v{F+2*i}, 16, v{bA+i}", f"v_and_b32 v{F+2*i+1}, s{MK}, v{bA+i}")]
        for x in stampl(1): b(x)
        st = []
        st += ["v_cmp_eq_u32 vcc, 1, v45", None, None, "v_cndmask_b32 v40, v40, v41, vcc", "v_cmp_eq_u32 vcc, 2, v45", None, None, "v_cndmask_b32 v40, v40, v42, vcc",
               "v_cmp_eq_u32 vcc, 3, v45", None, None, "v_cndmask_b32 v40, v40, v43, vcc", "v_cmp_eq_u32 vcc, v46, v47", None, None, "v_cndmask_b32 v40, 0, v40, vcc"]
        st += [f"v_mul_f32 v36, {hx(1/512)}, v36", "v_mov_b32 v41, v40", "v_cvt_pk_bf16_f32 v37, v36, v36", None, "v_permlane16_swap_b32 v40, v41", "v_lshlrev_b32 v37, 16, v37", "v_add_f32 v40, v40, v41",
               "v_mov_b32 v41, v40", None, None, "v_permlane32_swap_b32 v40, v41", None, "v_add_f32 v40, v40, v41",
               f"v_mul_f32 v40, {hx(1/512)}, v40", "v_fma_f32 v40, -v36, v36, v40", "v_max_f32 v40, 0, v40",
               "v_cvt_pk_bf16_f32 v40, v40, v40", "v_lshlrev_b32 v40, 16, v40", f"v_add_f32 v40, {hx(1e-5)}, v40", "v_cvt_pk_bf16_f32 v40, v40, v40", "v_lshlrev_b32 v40, 16, v40",
               "v_sqrt_f32 v40, v40", None, "v_cvt_pk_bf16_f32 v40, v40, v40", "v_lshlrev_b32 v40, 16, v40", "v_rcp_f32 v42, v40", None, "v_mul_f32 v43, v37, v42"]
        for y in late[:10]: b(y)
        late = late[10:]
        for y in st:
            if y is None: b(late.pop(0) if late else "s_nop 0")
            else: b(y)
        for y in late: b(y)
        for k in range(16):
            for i in range(4*k, 4*k+4): b(f"v_pk_fma_f32 v[{F+2*i}:{F+2*i+1}], v[{F+2*i}:{F+2*i+1}], v[42:43], v[42:43] op_sel:[0,0,1] op_sel_hi:[1,0,1] neg_lo:[0,0,1] neg_hi:[0,0,1]")
            if k: b(f"ds_write_b128 v44, v[{bA+4*k-4}:{bA+4*k-1}] offset:{(k-1)*1024}")
            for i in range(4*k, 4*k+4): b(f"v_cvt_pk_bf16_f32 v{bA+i}, v{F+2*i}, v{F+2*i+1}")
        b(f"ds_write_b128 v44, v[{bA+60}:{bA+63}] offset:{15*1024}")
    else:
        b = Prog()
        for k in range(16):
            if OPT['xdma']:
                if k == 0:
                    b("s_waitcnt vmcnt(@x0)")
                    for sx in range(4): b(f"ds_read_b128 v[{bA+4*sx}:{bA+4*sx+3}], v{50+sx} ; @T:q0")
                if k % 4 == 0:
                    c4 = k // 4
                    if c4 < 3:
                        b(f"s_waitcnt vmcnt(@x{c4+1})")
                        for sx in range(4): b(f"ds_read_b128 v[{bA+16*(c4+1)+4*sx}:{bA+16*(c4+1)+4*sx+3}], v{50+sx} offset:{(c4+1)*4096} ; @T:q{c4+1}")
                    b(f"s_waitcnt lgkmcnt(@q{c4})")
            else: b(f"s_waitcnt vmcnt(@x{k})")
            for i in range(4*k, 4*k+4):
                b(f"v_lshlrev_b32 v{F+2*i}, 16, v{bA+i}\nv_and_b32 v{F+2*i+1}, 0xffff0000, v{bA+i}")
            for i in range(4*k, 4*k+4):
                if k == 0: b(f"v_mov_b32 v{32+2*i}, v{F+2*i}\nv_mov_b32 v{33+2*i}, v{F+2*i+1}")
                else: b(f"v_pk_add_f32 v[{32+2*(i%4)}:{33+2*(i%4)}], v[{32+2*(i%4)}:{33+2*(i%4)}], v[{F+2*i}:{F+2*i+1}]")
        for x in stampl(1): b(x)
        b("v_pk_add_f32 v[32:33], v[32:33], v[34:35]\nv_pk_add_f32 v[36:37], v[36:37], v[38:39]\nv_pk_add_f32 v[32:33], v[32:33], v[36:37]\nv_add_f32 v32, v32, v33")
        xreduce(b, 32, 'v_add_f32', 33)
        b(f"v_mul_f32 v32, {hx(1/512)}, v32\nv_cvt_pk_bf16_f32 v33, v32, v32\nv_lshlrev_b32 v34, 16, v33\nv_sub_f32 v40, v32, v34")
        for i in range(64):
            b(f"v_pk_add_f32 v[{F+2*i}:{F+2*i+1}], v[{F+2*i}:{F+2*i+1}], v[34:35] op_sel_hi:[1,0] neg_lo:[0,1] neg_hi:[0,1]")
            if i >= 2:
                j = i - 2; r = 46 + 2*(j % 4)
                b(f"v_pk_mul_f32 v[{r}:{r+1}], v[{F+2*j}:{F+2*j+1}], v[{F+2*j}:{F+2*j+1}]" if j < 4 else f"v_pk_fma_f32 v[{r}:{r+1}], v[{F+2*j}:{F+2*j+1}], v[{F+2*j}:{F+2*j+1}], v[{r}:{r+1}]")
        for j in (62, 63):
            r = 46 + 2*(j % 4); b(f"v_pk_fma_f32 v[{r}:{r+1}], v[{F+2*j}:{F+2*j+1}], v[{F+2*j}:{F+2*j+1}], v[{r}:{r+1}]")
        b("v_pk_add_f32 v[46:47], v[46:47], v[48:49]\nv_pk_add_f32 v[50:51], v[50:51], v[52:53]\nv_pk_add_f32 v[46:47], v[46:47], v[50:51]\nv_add_f32 v42, v46, v47")
        xreduce(b, 42, 'v_add_f32', 43)
        b(f"v_mul_f32 v42, {hx(1/512)}, v42\nv_fma_f32 v42, -v40, v40, v42\nv_max_f32 v42, 0, v42")
        rb16 = lambda r: f"v_cvt_pk_bf16_f32 v{r}, v{r}, v{r}\nv_lshlrev_b32 v{r}, 16, v{r}"
        b(rb16(42)); b(f"v_add_f32 v42, {hx(1e-5)}, v42"); b(rb16(42)); b("v_sqrt_f32 v42, v42\ns_nop 0"); b(rb16(42)); b("v_rcp_f32 v42, v42\ns_nop 0")
        for k in range(16):
            for i in range(4*k, 4*k+4): b(f"v_pk_mul_f32 v[{F+2*i}:{F+2*i+1}], v[{F+2*i}:{F+2*i+1}], v[42:43] op_sel_hi:[1,0]")
            if k: b(f"ds_write_b128 v44, v[{bA+4*k-4}:{bA+4*k-1}] offset:{(k-1)*1024}")
            for i in range(4*k, 4*k+4): b(f"v_cvt_pk_bf16_f32 v{bA+i}, v{F+2*i}, v{F+2*i+1}")
        b(f"ds_write_b128 v44, v[{bA+60}:{bA+63}] offset:{15*1024}")
    interleave(a, b.L, lndma, OPT.get('lnevery', 10), OPT.get('lnstart', 0))
    stamp(a, 'lndone')
    a("s_waitcnt vmcnt(@w0) lgkmcnt(0)\ns_barrier")
    stamp(a, 'lnbar')
    xr = lambda ks, qb, tag, lay: f"ds_read_b128 a[{(ks*4+qb)*4}:{(ks*4+qb)*4+3}], v{vFA} offset:{lay(ks, qb)*1024} ; @T:{tag}"
    layX = lambda ks, qb: qb*16 + ks
    layF = lambda ks, qb: ks*4 + qb
    def stream_head(P, idx, tag, lay, extra=()):
        for x in wreads(P, idx, 0): a(x)
        for ks in range(2):
            for qb in range(4): a(xr(ks, qb, tag, lay))
        for nb in (1, 2):
            for x in wreads(P, idx, nb): a(x)
        for x in extra: a(x)
        a("s_waitcnt lgkmcnt(@auto)")
    RG = [2, 3, 4, 5, 6, 12, 14, 20]
    def frag_reads(xm, pos, ks0, tag, lay):
        for k in range(8): xm.setdefault((pos, RG[k]), []).append(xr(ks0 + k % 2, k // 2, tag, lay))
    stream_head(S1[0], 0, 'xr', layX, late_dma)
    stamp(a, 2)
    fill = {}; xm = {}; xs = {}
    for j in range(7): frag_reads(xm, j, 2*j + 2, 'xr', layX)
    o1, o2 = attn_addr_ops()
    xs[(9, 0)] = ["s_barrier"]
    fill[8] = [f"v_add_u32 v{vPF}, s82, v{vFA}", f"v_mov_b32 v{vGB}, {hx(-2.0 * math.log2(math.e) * math.sqrt(2.0 / math.pi) * 0.044715)}"] + gelu_stage1(bA)
    fill[16] = geglu_stage2(bA, bB)
    fill[24] = qpack(bC, 0) + o1
    xs[(26, 0)] = ["s_waitcnt lgkmcnt(@hw)", "s_barrier"]
    for j in range(4): frag_reads(xm, 28 + j, 2*j, 'hr', layF)
    fill[32] = qpack(bA, 1)
    fill[36] = park(bC, 128) + o2
    xs[(32, 3)] = ["s_waitcnt lgkmcnt(@hr)", "s_barrier"]
    kvs = [kvdma(2, 0, 0, True, False), kvdma(3, 1, 0, True, False), kvdma(0, 2, 0), kvdma(1, 3, 1)]
    xs[(32, 10)] = [f"s_lshl_b32 s{sKO+3}, s{sRB}, {14 if OPT['map'] == 8 else 15}"]; xs[(32, 12)] = [f"s_sub_u32 s{sKO+3}, s{sKO+3}, 8192"]
    for i, (sc, dd) in enumerate(kvs):
        pos = [33, 34, 37, 38][i]
        if i < 2:
            xs.setdefault((pos, 20), []).append(sc[1]); xs.setdefault((pos, 22), []).append(sc[2]); xs.setdefault((pos, 28), []).append(sc[0])
            for x, g in zip(dd, [29, 30]): xm.setdefault((pos, g), []).extend([x, None])
        else:
            xs.setdefault((pos, 9), []).append(sc[1]); xs.setdefault((pos, 10), []).append(sc[2]); xs.setdefault((pos, 11), []).append(sc[0])
            for x, g in zip(dd, [13, 17, 21, 27]): xm.setdefault((pos, g), []).extend([x, None])
    xs[(39, 3)] = ["s_waitcnt vmcnt(@kv3)", "s_barrier"]
    for x, g in zip(kreads(2), [8, 9, 10, 11, 12, 13, 14, 16]): xm.setdefault((39, g), []).append(x)
    left = emit_stream(a, S1, 0, fill, xm, xs, must_empty=(24, 32, 36))
    assert not left
    stamp(a, 3)
    X_ = SP(dict(S=vS, P=[32, 48, 64, 80], NEGM=vNEGM, ONES=vONES, LM=vLM, L=vL, KA=vKA, VA=vVAl, KF=aKF, VF=aVF, Q=vQ, Qf='v', O=aO), OPT)
    def with_fill(ms, q, memat, start=0, room0=2):
        for g, m in enumerate(ms):
            a(m)
            room = room0
            for x in memat.get(g, []):
                a(x); room -= (2 if x.startswith('buffer') else 0 if x.startswith('s_') else 1)
            while g >= start and q and room >= 1:
                x = q.pop(0); a(x); room -= cost(x)
    st = park(bA, 160)
    k10, k11 = X_.kreads(3, 0), X_.kreads(3, 1)
    with_fill(X_.qk(0, '0'), st, {16: k10[:2], 17: k10[2:]}, start=3)
    for x in k11 + st: a(x)
    for i in range(4): a(f"v_mov_b32 v{vONES+i}, 0x3f803f80\nv_mov_b32 v{vL+i}, 0")
    T = [88 + 2*qb for qb in range(4)]
    for k in range(4):
        for qb in range(4):
            b0 = vS[0] + qb*8
            a([f"v_max3_f32 v{T[qb]}, v{b0}, v{b0+1}, v{b0+2}", f"v_max3_f32 v{T[qb]}, v{T[qb]}, v{b0+3}, v{b0+4}", f"v_max3_f32 v{T[qb]}, v{T[qb]}, v{b0+5}, v{b0+6}", f"v_max_f32 v{T[qb]}, v{T[qb]}, v{b0+7}"][k])
    for sw in ('v_permlane16_swap_b32', 'v_permlane32_swap_b32'):
        for qb in range(4): a(f"v_mov_b32 v{T[qb]+1}, v{T[qb]}")
        for qb in range(4): a(f"{sw} v{T[qb]}, v{T[qb]+1}")
        for qb in range(4): a(f"v_max_f32 v{T[qb]}, v{T[qb]}, v{T[qb]+1}")
    for qb in range(4):
        for i in range(4): a(f"v_sub_f32 v{vNEGM+qb*4+i}, 0, v{T[qb]}")
    a("s_waitcnt vmcnt(@kv1) lgkmcnt(0)\ns_barrier")
    subs = [f"v_sub_f32 v{X_.sblk(0, kb, qb)+i}, v{X_.sblk(0, kb, qb)+i}, v{T[qb]}" for kb in range(2) for qb in range(4) for i in range(4)]
    E0, S0 = X_.smq(0, 0)
    q0 = subs[:8]; si = 0
    for k, e in enumerate(E0):
        q0.append(e)
        if 8 + k < 32 and k % 4 == 3: q0 += subs[8 + k - 3: 8 + k + 1]
        while si < len(S0) and S0[si][0] <= k: q0.append(S0[si][1]); si += 1
    q0 += ["s_nop 0"] + [x[1] for x in S0[si:]]
    q0 += [f"s_lshl_b32 s0, s{sRB}, 3", f"v_mov_b32 v{vT}, s0", f"s_lshl_b32 s0, 0x100, s{sG}", f"v_mov_b32 v{vT+1}, s0"] + pf_addr('s0', vT+3)
    q0 += [f"s_cmp_eq_u32 s{sW}, 0", "s_cselect_b32 s0, 1, 0", "s_mov_b32 s1, 0"]
    sc, dd = kvdma(2, 4, 2)
    k20, k21 = X_.kreads(0, 0), X_.kreads(0, 1)
    with_fill(X_.qk(1), q0, {0: [sc[0]], 1: [sc[1]], 2: [sc[2]], 4: [dd[0]], 9: [dd[1]], 16: k20[:2], 17: k20[2:], 21: [dd[2]], 26: [dd[3]]}, room0=OPT.get('proom', 3))
    for x in k21 + q0: a(x)
    c = ([], [], 32)
    for j_ in (1, 2, 3): _, c = X_.sp(j_, c, kvdma)
    E1, S1_ = X_.smq(1, 1); rem = set(c[0]) | set(x[1] for x in c[1])
    for x in E1 + [y[1] for y in S1_]:
        if x not in rem: a(x)
    cp = lambda c: (list(c[0]), list(c[1]), c[2])
    a("s_waitcnt lgkmcnt(0)")
    sts = [parked_store(f) + " ; @T:st" for f in range(16)]
    carry = cp(c)
    for j_ in range(4):
        kw = {}
        if j_ < 3:
            n = [6, 5, 5][j_]; kw['xauto'] = [(36, 100, sts[:n])]; sts = sts[n:]
        else:
            kw['alsowait'] = 'st'
            if OPT['prefetch']: kw['xauto'] = [(40, 44, [f"buffer_load_dword v{vT+3}, v{vPF}, s[{rWO}:{rWO+3}], s81 offen ; @X"])]
            if OPT['single']: kw['postbar'] = f"s_mov_b64 exec, s[0:1]\nbuffer_atomic_or v{vT+1}, v{vT}, s[{rDBG}:{rDBG+3}], 0 offen ; @X\ns_mov_b64 exec, -1"
        body, carry = X_.sp(j_, carry, kvdma, first=(j_ == 0), **kw)
        for x in body: a(x)
    for _ in range(2):
        _, c = X_.sp(4, c, kvdma, postbar=("x" if OPT['single'] else None)); _, c = X_.sp(5, c, kvdma)
    assert set(c[0]) <= set(carry[0]) and set(c[1]) <= set(carry[1]), (carry, c)
    for x in [x for x in carry[0] if x not in c[0]] + ["s_nop 0"] + [x[1] for x in carry[1] if x not in c[1]]: a(x)
    carry = cp(c)
    stamp(a, 'loop0')
    a(f"s_mov_b32 s{sCNT}, 12")
    a(".p2align 6")
    a("L_attn_loop:")
    c0 = cp(carry); loop = []
    for j_ in (4, 5):
        pb = f"buffer_load_dword v{vT+2}, v{vT}, s[{rDBG}:{rDBG+3}], 0 offen sc1 ; @T:poll" if (j_ == 4 and OPT['single']) else None
        body, carry = X_.sp(j_, carry, kvdma, postbar=pb)
        loop += body
    assert cp(carry) == c0
    a.loop = (len(a.L), len(a.L) + len(loop))
    for x in loop: a(x)
    a(f"s_sub_u32 s{sCNT}, s{sCNT}, 1\ns_cmp_lg_u32 s{sCNT}, 0\ns_cbranch_scc1 L_attn_loop")
    stamp(a, 'loop1')
    S2 = pO0 + pO1; base2 = len(S1)
    AV2 = 128
    woff = lambda h: f"s_add_u32 s0, s{sW}, {h}\ns_and_b32 s0, s0, 3\ns_lshl_b32 s0, s0, 17\ns_add_u32 s{44+h}, s0, s{sCOO}"
    def wd(k):
        s0, s1, d = panel_dma(S2[k], base2 + k)
        return [woff(k)] + s0 + d[:4] + s1 + d[4:]
    for j_ in (28, 29, 30):
        kw = {}
        if j_ == 28 and OPT['single']:
            so = share_offsets(f"s{sG}") + [f"s_bfe_u32 s{sBITS}, s{sBITS}, 0x80008", f"s_cmp_lg_u32 s{sBITS}, 0xff", f"s_cselect_b32 s{sLATE}, 1, 0", f"s_cselect_b32 s{sBITS}, 0x40000000, s{sSHOFF}"]
            a(f"v_readfirstlane_b32 s{sBITS}, v{vT+2}")
            fl = []
            for g in range(8):
                pl = ploads(FPE, 1, g, f"s{sBITS}"); fl += [pl[0], pl[2].replace(f"v[{FPE[1]+4*g}:{FPE[1]+4*g+3}]", f"a[{160+4*g}:{163+4*g}]")]
            kw['xauto'] = [(30, 56, so), (56, 104, fl)]
        if j_ == 29:
            kw['dma'] = (True, True, False, True); kw['xauto'] = [(34, 100, wd(0) + wd(1))]
        if j_ == 30:
            kw['dma'] = (False, True, False, False); kw['knext'] = False
            kw['xauto'] = [(34, 100, wd(2) + [woff(3)])]
            kw['vlast'] = sum((X_.vreads(2, db, aKF + 4*db) for db in range(8)), []) + sum((X_.vreads(3, db, AV2 + 4*db) for db in range(8)), [])
        body, carry = X_.sp(j_, carry, kvdma, **kw)
        for x in body: a(x)
    E, Sq, edone = list(carry[0]), list(carry[1]), carry[2]
    post = []
    lq = [qb for qb in range(4) if qb >= OPT['msum']]
    for sw in ('v_permlane16_swap_b32', 'v_permlane32_swap_b32'):
        post += [f"v_mov_b32 v{96+qb}, v{vL+qb}" for qb in lq] + ["s_nop 1"] + [f"{sw} v{vL+qb}, v{96+qb}" for qb in lq] + [f"v_add_f32 v{vL+qb}, v{vL+qb}, v{96+qb}" for qb in lq]
    post += [f"v_add_u32 v{vPF}, s83, v{vFA}"]
    if OPT['single']:
        post += [f"v_mov_b32 v{vSIG}, v{vT}", f"v_bfe_u32 v{vXO}, v{vL16}, 4, 4", f"v_lshlrev_b32 v{vXO}, 10, v{vXO}", f"v_lshrrev_b32 v{vT+3}, 8, v{vL16}", f"v_lshl_add_u32 v{vXO}, v{vT+3}, 3, v{vXO}"]
    ex0 = []
    if OPT['single']:
        for g in range(8):
            pl = ploads(FPE, 1, g, f"s{sBITS}"); ex0 += [pl[0], pl[1], None, None]
    for g, m in enumerate(X_.pv1(2, aKF) + X_.pv1(3, AV2)):
        check_p(m, Sq)
        a(m)
        if g == 0: a("s_barrier")
        if not E and not Sq and not post and ex0:
            x = ex0.pop(0)
            if x: a(x)
            continue
        room = 2; e_prev = edone
        nav = sum(1 for x in Sq if x[0] <= e_prev)
        if E and (nav < room or g % 2 == 0): a(E.pop(0)); edone += 1; room -= 2
        while room > 0:
            if Sq and Sq[0][0] <= e_prev: a(Sq.pop(0)[1]); room -= 1
            elif not E and not Sq and post: x = post.pop(0); a(x); room -= cost(x)
            else: break
    assert not E and not Sq
    for x in post + [x for x in ex0 if x]: a(x)
    stamp(a, 4)
    for h in range(4): a(f"s_add_u32 s{80+h%2}, s{sW}, {h}\ns_and_b32 s{80+h%2}, s{80+h%2}, 3")  if False else None
    a("s_nop 3")
    for qb in range(OPT['msum']): a(f"v_mov_b32 v{vL+qb}, v{vLM+4*qb}")
    a(f"v_add_f32 v{vT+1}, v{vL}, v{vL+1}\nv_add_f32 v{vT+2}, v{vL+2}, v{vL+3}\nv_add_f32 v{vT+1}, v{vT+1}, v{vT+2}")
    a(f"v_cmp_nge_f32 vcc, {hx(2.0**OPT['fthresh'])}, v{vT+1}\ns_nop 1\ns_cbranch_vccnz L_fallback\nL_fb_ret:")
    for qb in range(4): a(f"v_rcp_f32 v{vL+qb}, v{vL+qb}")
    for h in range(4): a(f"s_add_u32 s0, s{sW}, {h}\ns_and_b32 s0, s0, 3\ns_lshl_b32 s0, s0, 14\nv_add_u32 v{vOA+h}, s0, v{vFA}")
    def norm(sp, qb, pk):
        o_ = []; t = [64, 76, 96, 108][(sp*4 + qb) % 4]; l = vL + qb
        for e in range(2):
            o = aO + ((2*sp + e)*4 + qb)*4
            o_ += [f"v_accvgpr_read_b32 v{t+4*e+i}, a{o+i}" for i in range(4)]
        if pk:
            sel = "op_sel_hi:[1,0]" if l % 2 == 0 else "op_sel:[0,1]"
            o_ += [f"v_pk_mul_f32 v[{t+2*i}:{t+2*i+1}], v[{t+2*i}:{t+2*i+1}], v[{l - l%2}:{l - l%2 + 1}] {sel}" for i in range(4)]
        else: o_ += [f"v_mul_f32 v{t+i}, v{t+i}, v{l}" for i in range(8)]
        o_ += [f"v_cvt_pk_bf16_f32 v{t+8+i}, v{t+2*i}, v{t+2*i+1}" for i in range(4)]
        o_ += [f"ds_write_b128 v{vPF}, v[{t+8}:{t+11}] offset:{(sp*4 + qb)*1024} ; @T:ow{sp//2}"]
        return o_
    ex = []
    if OPT['single']:
        xl = xloads(); ex = [xl[:2], xl[2:3], xl[3:5], xl[5:]]
    NPRE = OPT.get('npre', 16)
    for k in range(NPRE):
        for x in norm(k // 4, k % 4, True): a(x)
        if ex:
            for x in ex.pop(0): a(x)
    stamp(a, 'owritten')
    ord_ = lambda j, ks, qb: f"ds_read_b128 a[{oreg(j, ks, qb)}:{oreg(j, ks, qb)+3}], v{vOA + j % 4} offset:{((2*(j//4) + ks)*4 + qb)*1024}"
    a(f"s_waitcnt vmcnt(@w{base2})")
    for x in wreads(S2[0], base2, 0): a(x)
    for ks in range(2):
        for qb in range(4): a(ord_(0, ks, qb))
    for nb in (1, 2):
        for x in wreads(S2[0], base2, nb): a(x)
    a("s_waitcnt lgkmcnt(@auto)")
    stamp(a, 5)
    fill = {13: slab_store(bB, 0, 0)}; xm = {}; xs = {}
    fill[0] = sum((norm(k // 4, k % 4, False) for k in range(NPRE, 16)), [])
    xs[(0, 10)] = ["s_waitcnt lgkmcnt(@ow0)", "s_barrier"]
    if NPRE < 16: xs[(3, 28)] = ["s_waitcnt lgkmcnt(@ow1)", "s_barrier"]
    else: xs[(0, 10)] = ["s_waitcnt lgkmcnt(@ow1)", "s_barrier"]
    for j in range(7):
        gaps = [12, 14, 15, 20, 22, 23, 28, 29] if j == 0 else RG
        for k in range(8): xm.setdefault((j, gaps[k]), []).append(ord_(j + 1, k % 2, k // 2))
    if OPT['single']:
        xs[(3, 8)] = ["s_waitcnt vmcnt(@pl)"]
        fill[0] = [f'v_accvgpr_read_b32 v{FPE[1]+i}, a{160+i}' for i in range(32)]
        fill[3] = fred_fill(FPE, (1,)); fill[8] = fred_fill(FPE, (0,))
    left = emit_stream(a, S2, base2, fill, xm, xs, must_empty=(3, 13), quiet=range(32), cap=dict([(k, OPT.get('ocap', 30)) for k in range(3)] + [(k, OPT.get('fcap', [32, 32, 32, 44, 40, 40, 40, 40, 40])[k-4]) for k in range(4, 13)]))
    for x in left: a(x)
    a("s_nop 7")
    for x in slab_store(bA, 0, 1): a(x)
    stamp(a, 6)
    if OPT['timing']: a("s_memrealtime s[80:81]\ns_waitcnt lgkmcnt(0)")
    if OPT['single']:
        end_phase(a)
    if OPT['timing'] and not OPT.get('dbgtime'):
        a("s_waitcnt vmcnt(0)")
        a("s_memtime s[44:45]\ns_memrealtime s[46:47]\ns_waitcnt lgkmcnt(0)")
        a(f"s_lshl_b32 s62, s2, 2\ns_add_u32 s62, s62, s{sW}\ns_lshl_b32 s62, s62, 6\ns_add_u32 s62, s62, 0x3000000")
        a(f"s_mov_b32 s{rWS+2}, 0x4000000")
        for i in range(8): a(f"v_mov_b32 v3, s{sTS+2*i if i < 7 else 44}\nv_mov_b32 v4, {4*i}\nbuffer_store_dword v3, v4, s[{rWS}:{rWS+3}], s62 offen")
        a(f"v_mov_b32 v3, s46\nv_mov_b32 v4, 32\nbuffer_store_dword v3, v4, s[{rWS}:{rWS+3}], s62 offen")
        a(f"v_mov_b32 v3, s80\nv_mov_b32 v4, 40\nbuffer_store_dword v3, v4, s[{rWS}:{rWS+3}], s62 offen")
        for k, r in enumerate((82, 98, 96)): a(f"v_mov_b32 v3, s{r}\nv_mov_b32 v4, {44+4*k}\nbuffer_store_dword v3, v4, s[{rWS}:{rWS+3}], s62 offen")
        a(f"v_mov_b32 v3, s100\nv_mov_b32 v4, 36\nbuffer_store_dword v3, v4, s[{rWS}:{rWS+3}], s62 offen")
    if OPT.get('dbgtime'):
        a(f"s_cmp_eq_u32 s2, {OPT['dbgtime']-1}\ns_cbranch_scc0 L_main_end\ns_cmp_eq_u32 s{sW}, 0\ns_cbranch_scc0 L_main_end")
        a("s_waitcnt vmcnt(0)\ns_memrealtime s[46:47]\ns_memtime s[44:45]\ns_waitcnt lgkmcnt(0)\ns_mov_b64 exec, 1")
        a(f"s_sub_u32 s0, s46, s100\nv_mov_b32 v3, s0\nv_mov_b32 v4, 4\nbuffer_store_dword v3, v4, s[{rDBG}:{rDBG+3}], 0 offen")
        st = [sTS + 2*i for i in range(7)] + [44]
        for i in range(7):
            a(f"s_sub_u32 s0, s{st[i+1]}, s{st[i]}\nv_mov_b32 v3, s0\nv_mov_b32 v4, {12 + 8*i}\nbuffer_store_dword v3, v4, s[{rDBG}:{rDBG+3}], 0 offen")
    a("L_main_end:\ns_endpgm")
    a.fb = fallback()
    return a

GV = [192 + i for i in range(8)] + [224 + i for i in range(8)]
def fred_fill(FP, which=(0, 1)):
    ops = []
    for fr in which:
        base = FP[fr]
        acc = [16, 17, 22, 23, 24, 25, 30, 31]
        for n in range(8):
            r = base + 4*n
            for i in range(4):
                if n == 0: ops += [f"v_lshlrev_b32 v{acc[2*i]}, 16, v{r+i}", f"v_and_b32 v{acc[2*i+1]}, 0xffff0000, v{r+i}"]
                else:
                    ta, tb = vT + 2*(i % 2), vT + 2*(i % 2) + 1
                    ops += [f"v_lshlrev_b32 v{ta}, 16, v{r+i}", f"v_and_b32 v{tb}, 0xffff0000, v{r+i}", f"v_add_f32 v{acc[2*i]}, v{acc[2*i]}, v{ta}", f"v_add_f32 v{acc[2*i+1]}, v{acc[2*i+1]}, v{tb}"]
        for b in range(0, 8, 4):
            ops += [f"v_mul_f32 v{vT+i}, {hx(-math.log2(math.e))}, v{acc[b+i]}" for i in range(4)]
            ops += [f"v_exp_f32 v{vT+i}, v{vT+i}" for i in range(4)]
            ops += [f"v_add_f32 v{vT+i}, 1.0, v{vT+i}" for i in range(4)]
            ops += [f"v_rcp_f32 v{vT+i}, v{vT+i}" for i in range(4)]
            ops += [f"v_mul_f32 v{GV[8*fr+b+i]}, v{acc[b+i]}, v{vT+i}" for i in range(4)]
    return ops

def end_phase(a):
    a("v_mov_b32 v32, 0\nv_mov_b32 v33, 0")
    a(f"s_cmp_lg_u32 s{sW}, 0\ns_cbranch_scc1 L_e_nz\nds_write_b32 v32, v33\nL_e_nz:")
    a("s_waitcnt vmcnt(0) lgkmcnt(0)\ns_barrier")
    stamp(a, 'drained')
    if OPT.get('rt2'): a('s_memrealtime s[82:83]\ns_waitcnt lgkmcnt(0)')
    a(f"s_mov_b32 s{sDONE}, 0\ns_mov_b32 s{sTODO}, 0\ns_mov_b32 s{sCNT}, 0\ns_lshl_b32 s46, s{sRB}, 3")
    a(f"s_cmp_lg_u32 s{sW}, 0\ns_cbranch_scc1 L_e_other")
    a(f"s_lshl_b32 s47, 1, s{sG}\nv_mov_b32 v34, s47\ns_mov_b64 exec, 1\nbuffer_atomic_or v34, v{vSIG}, s[{rDBG}:{rDBG+3}], 0 offen sc0\ns_waitcnt vmcnt(0)\nv_readfirstlane_b32 s{sBITS}, v34\ns_mov_b64 exec, -1")
    a(f"s_or_b32 s{sBITS}, s{sBITS}, s47\ns_and_b32 s47, s{sBITS}, 0xff\ns_cmp_eq_u32 s47, 0xff\ns_cbranch_scc1 L_e_pub")
    a(f"L_e_w0:\ns_and_b32 s{sBITS}, s{sBITS}, 0xff")
    a(f"L_e_pub:\ns_and_b32 s{sBITS}, s{sBITS}, 0xff00ff\nv_mov_b32 v33, s{sBITS}\nds_write_b32 v32, v33\ns_branch L_e_have")
    a(f"L_e_other:\nds_read_b32 v33, v32\ns_waitcnt lgkmcnt(0)\nv_readfirstlane_b32 s{sBITS}, v33\ns_nop 0\ns_bitcmp1_b32 s{sBITS}, 31\ns_cbranch_scc1 L_e_exit")
    a(f"L_e_have:\ns_andn2_b32 s47, s{sBITS}, s{sDONE}")
    for g in range(8):
        a(f"s_bitcmp1_b32 s47, {g}\ns_cbranch_scc0 L_e_s{g}")
        for x in ploads(SPR, 0, g, f"s{sSHOFF}"): a(x)
        a(f"L_e_s{g}:")
    a(f"s_or_b32 s{sDONE}, s{sDONE}, s{sBITS}\ns_and_b32 s47, s{sDONE}, 0xff\ns_cmp_eq_u32 s47, 0xff\ns_cbranch_scc1 L_e_all")
    a(f"s_cmp_lg_u32 s{sW}, 0\ns_cbranch_scc0 L_e_poll\ns_sleep 1\ns_branch L_e_other")
    a(f"L_e_poll:\ns_add_u32 s{sCNT}, s{sCNT}, 1\ns_cmp_gt_u32 s{sCNT}, {OPT['spin']}\ns_cbranch_scc1 L_e_abandon")
    a(f"s_sleep {OPT.get('psleep', 2)}\nbuffer_load_dword v34, off, s[{rDBG}:{rDBG+3}], s46 sc1\ns_waitcnt vmcnt(0)\nv_readfirstlane_b32 s{sBITS}, v34\ns_branch L_e_w0")
    a(f"L_e_abandon:\ns_lshl_b32 s47, 0x10000, s{sG}\nv_mov_b32 v34, s47\ns_mov_b64 exec, 1\nbuffer_atomic_or v34, v{vSIG}, s[{rDBG}:{rDBG+3}], 0 offen sc0\ns_waitcnt vmcnt(0)\nv_readfirstlane_b32 s{sBITS}, v34\ns_mov_b64 exec, -1")
    a(f"s_nop 0\ns_and_b32 s47, s{sBITS}, 0xff\ns_cmp_eq_u32 s47, 0xff\ns_cbranch_scc1 L_e_w0")
    a(f"v_mov_b32 v33, 0x80000000\nds_write_b32 v32, v33\ns_waitcnt lgkmcnt(0)\ns_branch L_e_exit")
    a(f"L_e_all:\ns_lshr_b32 s{sTODO}, s{sBITS}, 16")
    stamp(a, 'allseen')
    if OPT.get('rt2'): a('s_memrealtime s[98:99]\ns_waitcnt lgkmcnt(0)')
    a(f"L_e_fin:\ns_cmp_eq_u32 s{sLATE}, 0\ns_cbranch_scc1 L_e_nolate")
    for g in range(8):
        for x in ploads(FPL, 1, g, f"s{sSHOFF}"): a(x)
    for x in xloads(): a(x)
    a("s_waitcnt vmcnt(0)")
    for x in fred_fill(FPL): a(x)
    a("L_e_nolate:\ns_waitcnt vmcnt(0)")
    if OPT.get('rt2'): a('s_memrealtime s[96:97]\ns_waitcnt lgkmcnt(0)')
    for fr in range(2):
        d = 64 + 8*fr
        for n in range(8):
            r = SPR[fr] + 4*n
            for i in range(4):
                if n == 0: a(f"v_lshlrev_b32 v{d+2*i}, 16, v{r+i}\nv_and_b32 v{d+2*i+1}, 0xffff0000, v{r+i}")
                else: a(f"v_lshlrev_b32 v{80+2*i}, 16, v{r+i}\nv_and_b32 v{81+2*i}, 0xffff0000, v{r+i}")
            if n:
                for i in range(4): a(f"v_pk_add_f32 v[{d+2*i}:{d+2*i+1}], v[{d+2*i}:{d+2*i+1}], v[{80+2*i}:{81+2*i}]")
        a(f"s_add_u32 s0, s{sXOFF}, {fr*16384}")
        for e in range(2):
            xr_ = xregs[2*fr+e]
            for i in range(2): a(f"v_lshlrev_b32 v{80+2*i}, 16, v{xr_+i}\nv_and_b32 v{81+2*i}, 0xffff0000, v{xr_+i}")
            for i in range(4): a(f"v_fmac_f32 v{80+i}, v{d+4*e+i}, v{GV[8*fr+4*e+i]}")
            a(f"v_cvt_pk_bf16_f32 v{88+4*fr+2*e}, v80, v81\nv_cvt_pk_bf16_f32 v{89+4*fr+2*e}, v82, v83")
            a(f"buffer_store_dwordx2 v[{88+4*fr+2*e}:{89+4*fr+2*e}], v{vXO}, s[{rOUT}:{rOUT+3}], s0 offen offset:{32*e}{OPT.get('outflags', '')}")
    a(f"s_cmp_eq_u32 s{sTODO}, 0\ns_cbranch_scc1 L_e_exit")
    a(f"s_ff1_i32_b32 s47, s{sTODO}\ns_bitset0_b32 s{sTODO}, s47\ns_mov_b32 s{sLATE}, 1")
    for x in share_offsets("s47"): a(x)
    for g in range(8):
        for x in ploads(SPR, 0, g, f"s{sSHOFF}"): a(x)
    a("s_branch L_e_fin\nL_e_exit:")

def fallback():
    a = Prog()
    a("L_fallback:")
    M = [64 + qb for qb in range(4)]; AL = [68 + qb for qb in range(4)]; TM = [72 + 2*qb for qb in range(4)]
    FK, FV = 80, 88
    a(f"s_waitcnt vmcnt(0) lgkmcnt(0)\ns_mov_b32 s{sLATE}, 1")
    o1, o2 = attn_addr_ops()
    KA2 = 96; VA2 = [100 + i for i in range(8)]
    for x in o1:
        for s in range(4): x = x.replace(f"v_lshl_add_u32 v{vKA+s},", f"v_lshl_add_u32 v{KA2+s},")
        a(x)
    for x in o2:
        for db in range(8): x = x.replace(f"v_lshl_add_u32 v{vVAl[db]}, v{vT+3}, 5", f"v_lshl_add_u32 v{VA2[db]}, v{vT+3}, 5")
        a(x)
    for r in [KA2 + s for s in range(4)] + VA2: a(f"v_add_u32 v{r}, s83, v{r}")
    a(f"v_lshrrev_b32 v{vT}, 8, v{vL16}\nv_bfe_u32 v{vT+1}, v{vL16}, 4, 4")
    for part in range(4):
        for i in range(2):
            a(f"v_add_u32 v{vT+2}, {8*part + 4*i}, v{vT}\nv_and_b32 v{vT+2}, 15, v{vT+2}\nv_xor_b32 v{vT+2}, v{vT+2}, v{vT+1}\nv_lshlrev_b32 v{vT+2}, 4, v{vT+2}\nv_add_u32 v{vT+3}, {8*part}, v{vT}\nv_lshl_add_u32 v{FK+2*part+i}, v{vT+3}, 8, v{vT+2}")
            a(f"v_add_u32 v{vT+2}, {4*i}, v{vT}\nv_lshlrev_b32 v{vT+2}, 1, v{vT+2}\nv_xor_b32 v{vT+2}, v{vT+2}, v{vT+1}\nv_lshlrev_b32 v{vT+2}, 4, v{vT+2}\nv_lshl_add_u32 v{FV+2*part+i}, v{vT+3}, 8, v{vT+2}")
    for qb in range(4): a(f"v_mov_b32 v{M[qb]}, 0xff7fffff\nv_mov_b32 v{vL+qb}, 0")
    for i in range(128): a(f"v_accvgpr_write_b32 a{aO+i}, 0")
    a(f"s_mov_b32 s80, 0\ns_add_u32 s81, s83, {LB}")
    a("L_fb_loop:")
    for part in range(4):
        a(f"s_add_u32 m0, s81, {part*4096}\ns_nop 0")
        a(f"buffer_load_dwordx4 v{FK+2*part}, s[{rK}:{rK+3}], s80 offen lds\nbuffer_load_dwordx4 v{FK+2*part+1}, s[{rK}:{rK+3}], s80 offen offset:1024 lds")
        a(f"buffer_load_dwordx4 v{FV+2*part}, s[{rV}:{rV+3}], s80 offen offset:2048 lds\nbuffer_load_dwordx4 v{FV+2*part+1}, s[{rV}:{rV+3}], s80 offen offset:3072 lds")
    a("s_waitcnt vmcnt(0)")
    for x in kreads(0):
        for s in range(4): x = x.replace(f", v{vKA+s} ", f", v{KA2+s} ")
        a(x)
    a("s_waitcnt lgkmcnt(0)")
    for db in range(8):
        for jj in range(2): a(f"ds_read_b64_tr_b16 a[{aVF+db*4+2*jj}:{aVF+db*4+2*jj+1}], v{VA2[db]} offset:{jj*8192}")
    for x in qk(0, '0'): a(x)
    a("s_nop 7\ns_waitcnt lgkmcnt(0)")
    for qb in range(4):
        b0 = vS[0] + qb*8; T = TM[qb]
        a(f"v_max3_f32 v{T}, v{b0}, v{b0+1}, v{b0+2}\nv_max3_f32 v{T}, v{T}, v{b0+3}, v{b0+4}\nv_max3_f32 v{T}, v{T}, v{b0+5}, v{b0+6}\nv_max3_f32 v{T}, v{T}, v{b0+7}, v{M[qb]}")
        xreduce(a, T, 'v_max_f32', T + 1)
        a(f"v_sub_f32 v{AL[qb]}, v{M[qb]}, v{T}\nv_mov_b32 v{M[qb]}, v{T}\nv_exp_f32 v{AL[qb]}, v{AL[qb]}")
        for i in range(8): a(f"v_sub_f32 v{b0+i}, v{b0+i}, v{T}")
        for i in range(8): a(f"v_exp_f32 v{b0+i}, v{b0+i}")
        a(f"v_mul_f32 v{vL+qb}, v{vL+qb}, v{AL[qb]}")
        for i in range(8): a(f"v_add_f32 v{vL+qb}, v{vL+qb}, v{b0+i}")
        for i in range(4): a(f"v_cvt_pk_bf16_f32 v{vP[0]+qb*4+i}, v{b0+2*i}, v{b0+2*i+1}")
        for db in range(8):
            o = aO + (db*4 + qb)*4
            for i in range(4): a(f"v_accvgpr_read_b32 v{vT+i}, a{o+i}")
            for i in range(4): a(f"v_mul_f32 v{vT+i}, v{vT+i}, v{AL[qb]}")
            for i in range(4): a(f"v_accvgpr_write_b32 a{o+i}, v{vT+i}")
    a("s_nop 1")
    for x in pv(0, False, 0): a(x)
    a("s_nop 7\ns_add_u32 s80, s80, 8192\ns_cmp_lt_u32 s80, 0x80000\ns_cbranch_scc1 L_fb_loop")
    for qb in range(4): xreduce(a, vL + qb, 'v_add_f32', vT)
    a("s_branch L_fb_ret")
    return a

def final_kernel():
    a = Prog()
    a("final_kernel:")
    a("s_cmp_ge_u32 s2, 512\ns_cbranch_scc1 L_fin_end")
    if OPT['timing']: a("s_memrealtime s[30:31]")
    a("s_load_dwordx2 s[4:5], s[0:1], 0\ns_load_dwordx2 s[6:7], s[0:1], 72\ns_load_dwordx2 s[8:9], s[0:1], 88")
    a("v_lshrrev_b32 v2, 6, v0\nv_and_b32 v0, 63, v0\nv_readfirstlane_b32 s3, v2\nv_lshlrev_b32 v1, 4, v0")
    a("s_lshl_b32 s10, s2, 2\ns_nop 2\ns_add_u32 s10, s10, s3")
    a("s_waitcnt lgkmcnt(0)")
    srd(a, 12, 4, 2048*1024); srd(a, 16, 6, 2048*1024); srd(a, 20, 8, 0x2000000)
    a("s_lshl_b32 s11, s10, 10")
    for t in range(2):
        for g in range(8):
            a(f"s_add_u32 s24, s11, {t*0x1000000 + g*0x200000}")
            r = 8 + (t*8 + g)*4
            a(f"buffer_load_dwordx4 v[{r}:{r+3}], v1, s[20:23], s24 offen ; @T:l{t}{g}")
    a("s_lshr_b32 s25, s10, 6\ns_lshl_b32 s25, s25, 16\ns_and_b32 s26, s10, 3\ns_lshl_b32 s26, s26, 14\ns_add_u32 s25, s25, s26")
    a("s_bfe_u32 s26, s10, 0x40002\ns_lshl_b32 s26, s26, 6\ns_add_u32 s25, s25, s26")
    a("v_and_b32 v2, 15, v0\nv_lshlrev_b32 v2, 10, v2\nv_lshrrev_b32 v3, 4, v0\nv_lshl_add_u32 v2, v3, 3, v2")
    a("buffer_load_dwordx2 v[4:5], v2, s[12:15], s25 offen ; @T:x\nbuffer_load_dwordx2 v[6:7], v2, s[12:15], s25 offen offset:32 ; @T:x")
    acc = [72, 80]
    for t in range(2):
        for g in range(8):
            r = 8 + (t*8 + g)*4
            a(f"s_waitcnt vmcnt(@l{t}{g})")
            for i in range(4):
                if g == 0:
                    a(f"v_lshlrev_b32 v{acc[t]+2*i}, 16, v{r+i}\nv_and_b32 v{acc[t]+2*i+1}, 0xffff0000, v{r+i}")
                else:
                    a(f"v_lshlrev_b32 v88, 16, v{r+i}\nv_and_b32 v89, 0xffff0000, v{r+i}\nv_pk_add_f32 v[{acc[t]+2*i}:{acc[t]+2*i+1}], v[{acc[t]+2*i}:{acc[t]+2*i+1}], v[88:89]")
    for i in range(8): a(f"v_mul_f32 v{8+i}, {hx(-math.log2(math.e))}, v{80+i}")
    for i in range(8): a(f"v_exp_f32 v{8+i}, v{8+i}")
    for i in range(8): a(f"v_add_f32 v{8+i}, 1.0, v{8+i}")
    for i in range(8): a(f"v_rcp_f32 v{8+i}, v{8+i}")
    for i in range(8): a(f"v_mul_f32 v{8+i}, v{8+i}, v{80+i}")
    a("s_waitcnt vmcnt(@x)")
    for i in range(4): a(f"v_lshlrev_b32 v{16+2*i}, 16, v{4+i}\nv_and_b32 v{17+2*i}, 0xffff0000, v{4+i}")
    for i in range(8): a(f"v_fmac_f32 v{16+i}, v{8+i}, v{72+i}")
    for i in range(4): a(f"v_cvt_pk_bf16_f32 v{4+i}, v{16+2*i}, v{17+2*i}")
    a("buffer_store_dwordx2 v[4:5], v2, s[16:19], s25 offen\nbuffer_store_dwordx2 v[6:7], v2, s[16:19], s25 offen offset:32")
    if OPT['timing']:
        a("s_waitcnt vmcnt(0)\ns_memrealtime s[32:33]\ns_waitcnt lgkmcnt(0)\ns_mov_b32 s22, 0x4000000\ns_lshl_b32 s11, s10, 3\ns_add_u32 s11, s11, 0x3100000")
        a("v_mov_b32 v4, s30\nv_mov_b32 v5, s32\nv_mov_b32 v2, 0\nbuffer_store_dwordx2 v[4:5], v2, s[20:23], s11 offen")
    a("L_fin_end:\ns_endpgm")
    return a

def kd(name, vgpr, acc):
    return f""".section .rodata,"a"
.p2align 6
.amdhsa_kernel {name}
  .amdhsa_next_free_vgpr {vgpr}
  .amdhsa_next_free_sgpr 102
  .amdhsa_accum_offset {acc}
  .amdhsa_group_segment_fixed_size 0
  .amdhsa_kernarg_size 96
  .amdhsa_user_sgpr_count 2
  .amdhsa_user_sgpr_kernarg_segment_ptr 1
  .amdhsa_system_sgpr_workgroup_id_x 1
.end_amdhsa_kernel
"""

def build(opts=None):
    if opts: OPT.update(opts)
    m = main_kernel(); f = final_kernel()
    lo, hi = m.loop
    L1 = resolve_waits(m.L)
    dbl = m.L[:hi] + m.L[lo:hi] + m.L[hi:]
    L2 = resolve_waits(dbl)
    def loopseg(L, k):
        idx = [i for i, x in enumerate(L) if x.startswith('L_attn_loop')][0] + 1
        n = len(L2) - len(L1)
        return L[idx + k*n: idx + (k+1)*n]
    assert loopseg(L2, 0) == loopseg(L2, 1), "loop waits differ between trips"
    assert L2[-200:] == L1[-200:]
    probs = check_stream(L2, 'main')
    FB = resolve_waits(m.fb.L); probs += check_stream(FB + FB, 'fallback')
    F1 = resolve_waits(f.L); probs += check_stream(F1, 'final')
    strip = lambda L: [re.sub(r'\s*;.*', '', x) for x in L]
    txt = "; fused LN + GQA attention + GEGLU FFN (generated by my own script)\n"
    if OPT['single']:
        name = KNAME + '_kernel'
        txt += "; @launch grid=(256,1,1) block=(256,1,1) lds=163840\n"
    else:
        name = 'main_kernel'
        txt += "; @launch kernel=main_kernel grid=(256,1,1) block=(256,1,1) lds=163840\n; @launch kernel=final_kernel grid=(512,1,1) block=(256,1,1) lds=0\n"
    txt += '.amdgcn_target "amdgcn-amd-amdhsa--gfx950"\n.text\n'
    L1[0] = name + ':'
    txt += f".globl {name}\n.p2align 8\n.type {name},@function\n" + "\n".join(strip(L1)) + "\nL_code_end:\n" + "\n".join(strip(FB)) + "\n"
    if not OPT['single']:
        txt += ".globl final_kernel\n.p2align 8\n.type final_kernel,@function\n" + "\n".join(strip(F1)) + "\n"
    txt += kd(name, 512, 256) + ('' if OPT['single'] else kd('final_kernel', 96, 96))
    return txt, probs

if __name__ == '__main__':
    opts = eval(sys.argv[2]) if len(sys.argv) > 2 else None
    txt, probs = build(opts)
    open(sys.argv[1], 'w').write(txt)
    print(len(txt), 'bytes;', len(probs), 'hazard problems')
    for p in probs[:30]: print(p)
```

```python
import sys, re, math, struct
from asmlib import Ins, check_stream, cost
from sp import SP

KNAME = 'recurrent_scan__gqa_block_cached__geglu_ffn__prompt'
MF = 'v_mfma_f32_16x16x32_bf16'
def f2u(x): return struct.unpack('<I', struct.pack('<f', x))[0]
def hx(x): return '0x%08x' % f2u(x)

OPT = dict(late2=1, npre=16, ocap=16, lnm=1, early=0, lnevery=16, map=4, xdma=1, psleep=8, single=1, spin=30000, msum=2, stflags=' sc1', prefetch=1, codepf=1, timing=0, stamps=[0,1,2,3,4,5,6,7], fthresh=24, filler_cap=48)

sW, sG, sRB, sNU, sU0 = 3, 4, 5, 6, 7
sRBX = sRB
rK, rV, rWG, rWU, rWQ, rWD, rWO, rX, rWS = 8, 12, 16, 20, 24, 28, 32, 36, 40
rOUT, rDBG = 64, 68
sLATE, sSHOFF, sXOFF, sDONE, sTODO, sBITS = 61, 62, 63, 84, 85, 1
sKO = 44
sKVM0, sCNT, sRING, sJ, sOFF0, sOFF1, sROT = 48, 49, 50, 51, 52, 53, 54
sCOG, sCOQ, sCOD, sCOD3, sCOO, sSLAB = 55, 56, 57, 58, 59, 60
sT = 72
sTS = 86
vFA, vL16 = 0, 1
vWA, vWI = 2, 6
vDG, vDQ, vDO = 10, 14, 18
vDK, vDV = 22, 24
vT = 26
vGB, vPF = 30, 31
vW = 32
bA, bB, bC = 64, 128, 192
vKA = 10
vVAl = [2, 3, 4, 5, 14, 15, 16, 17]
vQ = bB; vS = [bC, bC + 32]; vP = [32, 48]
vNEGM, vONES, vLM, vL = 96, 112, 116, 124
aO, aKF, aVF = 0, 192, 224
RING = 0
LB = 98304

HEADER = """; Kernarg layout (96 bytes, ptrs only, base s[0:1]):
; One fused kernel, 256 workgroups x 4 waves (one per SIMD, 512 registers), workgroup = (64-row block rb, kv head g):
; Written with my own generator script (register allocation, MFMA-gap scheduling and s_waitcnt counting).
"""

class Prog:
    def __init__(self): self.L = []
    def __call__(self, s):
        for x in s.split('\n'):
            x = x.strip()
            if x: self.L.append(x)

def srd(a, r, lo, size, add=None, sub=None):
    a(f"s_mov_b32 s{r}, s{lo}\ns_mov_b32 s{r+1}, s{lo+1}")
    if add: a(f"s_add_u32 s{r}, s{r}, {add}\ns_addc_u32 s{r+1}, s{r+1}, 0")
    if sub: a(f"s_sub_u32 s{r}, s{r}, {sub}\ns_subb_u32 s{r+1}, s{r+1}, 0")
    a(f"s_mov_b32 s{r+2}, {size}\ns_mov_b32 s{r+3}, 0x20000")

def stampl(name):
    if OPT['timing'] and name in OPT['stamps']:
        i = OPT['stamps'].index(name)
        return [f"s_memtime s[{sTS+2*i}:{sTS+2*i+1}]", "s_waitcnt lgkmcnt(0)"]
    return []
def stamp(a, name):
    for x in stampl(name): a(x)

def resolve_waits(lines):
    parsed = []
    for l in lines:
        t = l.split(';')[0].strip()
        parsed.append(None if (not t or t.endswith(':') or t.startswith('.')) else Ins(t))
    out = list(lines)
    vmq = []; dsq = []
    for i, l in enumerate(lines):
        I = parsed[i]
        if I is None: continue
        tag = None
        m = re.search(r'@T:(\w+)', l)
        if m: tag = m.group(1)
        if I.op == 's_waitcnt':
            parts = []
            m = re.search(r'vmcnt\(([^)]*)\)', l)
            if m:
                x = m.group(1)
                if x.startswith('@'):
                    idx = [k for k, e in enumerate(vmq) if e[0] in x[1:].split('|')]
                    n = len(vmq) - 1 - idx[-1] if idx else None
                else: n = int(x)
                if n is not None:
                    n = min(n, 63); parts.append(f"vmcnt({n})")
                    while len(vmq) > n: vmq.pop(0)
            m = re.search(r'lgkmcnt\(([^)]*)\)', l)
            if m:
                ns = []
                for x in m.group(1).split('+'):
                    if x == '@auto':
                        need = -1
                        for j in range(i + 1, len(lines)):
                            J = parsed[j]
                            if J is None: continue
                            if J.op == 's_waitcnt' and ('@auto' in lines[j] or 'lgkmcnt(0)' in lines[j]): break
                            tch = set(J.r) | set(J.w)
                            for k, e in enumerate(dsq):
                                if tch & e[1]: need = max(need, k)
                        if need >= 0: ns.append(len(dsq) - 1 - need)
                    elif x.startswith('@'):
                        idx = [k for k, e in enumerate(dsq) if e[0] == x[1:]]
                        if idx: ns.append(len(dsq) - 1 - idx[-1])
                    else: ns.append(int(x))
                if ns:
                    n = min(min(ns), 15); parts.append(f"lgkmcnt({n})")
                    while len(dsq) > n: dsq.pop(0)
            out[i] = ("s_waitcnt " + " ".join(parts)) if parts else None
        elif I.kind in ('dsr', 'dsw'): dsq.append((tag, set(I.w)))
        elif I.kind == 'smem':
            dsq.append((tag, set(I.w))); dsq.append((tag, set(I.w)))
        elif I.kind in ('vld', 'vst', 'dma') and '@X' not in l: vmq.append((tag, set(I.w)))
    return [x for x in out if x is not None]

class Panel:
    def __init__(self, name, srd, dv, rs, co, acc, first, bfrag, inter, rot, row0=0):
        self.name = name; self.srd = srd; self.dv = dv; self.rs = rs; self.co = co; self.acc = acc
        self.first = first; self.bfrag = bfrag; self.inter = inter; self.rot = rot; self.row0 = row0

def panel_dma(P, idx):
    sl = idx % 3
    s0 = []
    if P.rot:
        s0 += [f"s_add_u32 s{sJ}, s{sJ}, 1", f"s_and_b32 s{sJ}, s{sJ}, 7", f"s_mul_i32 s{sOFF0}, s{sJ}, {64*P.rs}", f"s_add_u32 s{sOFF0}, s{sOFF0}, {P.co}"]
        if P.row0: s0.append(f"s_add_u32 s{sOFF0}, s{sOFF0}, {P.row0}")
    elif P.name[0] == 'O':
        s0 += [f"s_add_u32 s{sOFF0}, s{44 + P.j % 4}, {P.row0}"]
    else:
        s0 += [f"s_add_u32 s{sOFF0}, {P.co}, {P.row0}"]
    s0 += [f"s_add_u32 m0, s{sRING}, {sl*8192}"]
    s1 = [f"s_add_u32 s{sOFF1}, s{sOFF0}, {32*P.rs}", f"s_add_u32 m0, s{sRING}, {sl*8192 + 4096}"]
    d = []
    for i in range(8):
        so = sOFF0 if i < 4 else sOFF1
        off = f" offset:{1024*(i%4)}" if i % 4 else ""
        d.append(f"buffer_load_dwordx4 v{P.dv + i%4}, s[{P.srd}:{P.srd+3}], s{so} offen{off}{OPT.get('wfl', '')} lds ; @T:w{idx}")
    return s0, s1, d

def wreads(P, idx, nb):
    sl = idx % 3; out = []
    for ks in range(2):
        for jj in range(2):
            r = vW + nb*8 + ks*4 + jj*2
            if P.inter: ad = vWI + nb; off = sl*8192 + ks*4096 + jj*2048
            else: ad = vWA + (nb ^ (2*jj)); off = sl*8192 + ks*4096 + jj*512
            out.append(f"ds_read_b64_tr_b16 v[{r}:{r+1}], v{ad} offset:{off} ; @T:wr{idx}_{nb}")
    return out

def panel_mfmas(P):
    out = []
    for nb in range(4):
        for qb in range(4):
            for ks in range(2):
                d = P.acc + (nb*4 + qb)*4; w = vW + nb*8 + ks*4; b = P.bfrag(ks, qb)
                c = '0' if (P.first and ks == 0) else f"v[{d}:{d+3}]"
                out.append(f"{MF} v[{d}:{d+3}], v[{w}:{w+3}], a[{b}:{b+3}], {c}")
    return out

def emit_stream(a, panels, base, fillers, extra_mem, extra_shadow, nxt=None, must_empty=(), quiet=None, cap=None, late=None):
    allp = panels + (nxt or [])
    q = []; pend = []; lastst = -99
    for pos, P in enumerate(panels):
        idx = base + pos
        if pos in must_empty: assert not q, (pos, len(q))
        q += fillers.get(pos, [])
        if idx == 16 and OPT.get('skip', 0): a("L_join16:")
        stamp(a, f'p{idx}')
        ms = panel_mfmas(P)
        shadow = [[] for _ in range(32)]; mem = [[] for _ in range(32)]; dma = {}
        r3 = wreads(P, idx, 3)
        mem[0] += r3[:2]; mem[1] += r3[2:]
        hasn = pos + 1 < len(allp)
        if hasn:
            N = allp[pos+1]
            shadow[7].append(f"s_waitcnt vmcnt(@w{idx+1}) lgkmcnt(@auto+@wr{idx}_3)")
            for nb in range(3):
                r = wreads(N, idx+1, nb); g = 8*nb + 8
                mem[g] += r[:2]; mem[g+2] += r[2:]
        else:
            shadow[7].append(f"s_waitcnt lgkmcnt(@auto)")
        shadow[15].append("s_waitcnt lgkmcnt(@auto)"); shadow[23].append("s_waitcnt lgkmcnt(@auto)"); shadow[31].append("s_waitcnt lgkmcnt(@auto)")
        if pos + 3 < len(allp):
            s0, s1, d = panel_dma(allp[pos+3], idx+3)
            for k, x in enumerate(s0): shadow[8 - len(s0) + k - (1 if 8 - len(s0) + k <= 7 else 0)].append(x)
            gaps = [9, 11, 13, 17, 19, 21, 25, 27]
            shadow[16].append(s1[0]); shadow[18].append(s1[1])
            for x, g in zip(d, gaps): dma[g] = x
        for (p2, g), x in extra_mem.items():
            if p2 == pos:
                assert g not in dma, (pos, g)
                mem[g] += x
        for (p2, g), x in extra_shadow.items():
            if p2 == pos: shadow[g] += x
        budget = (cap or {}).get(pos, OPT['filler_cap'])
        free = [g for g in range(32) if g not in dma]
        base_room = sum(max(0, 2 - len(mem[g])) for g in free)
        want = min(budget, sum(cost(x) for x in q))
        extra = max(0, want - base_room); acc = 0.0
        for g in range(32):
            a(ms[g])
            for x in shadow[g]: a(x)
            if g in dma:
                a(dma[g]); continue
            for x in mem[g]:
                if x: a(x)
            room = 2 - len(mem[g])
            acc += extra / len(free)
            if late and (pos, g) in late:
                q += late[(pos, g)]
            while q:
                x = q[0]
                if x.startswith('ds_') or x.startswith('buffer'):
                    pend.append(q.pop(0)); continue
                c = cost(x)
                if pend and (set(Ins(x.split(';')[0]).w) & set(sum((Ins(y.split(';')[0]).r for y in pend), []))): break
                if c <= room: room -= c
                elif (c - room) <= acc + (0.75 if room > 0 and extra > 0 else 0): acc -= (c - max(room, 0)); room = 0
                else: break
                a(q.pop(0))
            if pend and g + 1 < 32 and (g + 1) not in dma and len(mem[g+1]) <= (1 if quiet else 0) and ((g + 1) in (quiet or OPT.get('quiet', (4, 6, 22, 28, 30))) or not dma):
                if pend[0].startswith('buffer') and pos*32 + g - lastst < OPT.get('stgap', 8): pass
                else:
                    if pend[0].startswith('buffer'): lastst = pos*32 + g
                    mem[g+1] += [pend.pop(0), None]
        if (pos + 1) in must_empty and not q:
            for x in pend: a(x)
            pend = []
        q = pend + q; pend = []
    return q

def gelu_stage1(G):
    A = -2.0 * math.log2(math.e) * math.sqrt(2.0 / math.pi)
    ops = []
    for blk in range(16):
        x = [G + blk*4 + i for i in range(4)]; t = [vT + i for i in range(4)]
        ops += [f"v_mul_f32 v{t[i]}, v{x[i]}, v{x[i]}" for i in range(4)]
        ops += [f"v_fmaak_f32 v{t[i]}, v{vGB}, v{t[i]}, {hx(A)}" for i in range(4)]
        ops += [f"v_mul_f32 v{t[i]}, v{t[i]}, v{x[i]}" for i in range(4)]
        ops += [f"v_exp_f32 v{t[i]}, v{t[i]}" for i in range(4)]
        ops += [f"v_add_f32 v{t[i]}, 1.0, v{t[i]}" for i in range(4)]
        ops += [f"v_rcp_f32 v{t[i]}, v{t[i]}" for i in range(4)]
        ops += [f"v_mul_f32 v{x[i]}, v{x[i]}, v{t[i]}" for i in range(4)]
    return ops

def geglu_stage2(G, U):
    ops = []
    for sp in range(2):
        for qb in range(4):
            b0 = ((2*sp)*4 + qb)*4; b1 = ((2*sp+1)*4 + qb)*4
            for b in (b0, b1):
                ops += [f"v_mul_f32 v{G+b+i}, v{G+b+i}, v{U+b+i}" for i in range(4)]
            d = U + b0
            ops += [f"v_cvt_pk_bf16_f32 v{d}, v{G+b0}, v{G+b0+1}", f"v_cvt_pk_bf16_f32 v{d+1}, v{G+b0+2}, v{G+b0+3}",
                    f"v_cvt_pk_bf16_f32 v{d+2}, v{G+b1}, v{G+b1+1}", f"v_cvt_pk_bf16_f32 v{d+3}, v{G+b1+2}, v{G+b1+3}"]
            ops += [f"ds_write_b128 v{vPF}, v[{d}:{d+3}] offset:{(sp*4 + qb)*1024} ; @T:hw"]
    return ops

def qpack(acc, half):
    c = math.log2(math.e) / math.sqrt(128.0)
    ops = []; late = []
    for sp in range(2):
        for qb in range(4):
            b0 = acc + ((2*sp)*4 + qb)*4; b1 = acc + ((2*sp+1)*4 + qb)*4
            for b in (b0, b1):
                ops += [f"v_mul_f32 v{b+i}, {hx(c)}, v{b+i}" for i in range(4)]
            ops += late; late = []
            d = vQ + (qb*4 + 2*half + sp)*4
            ops += [f"v_cvt_pk_bf16_f32 v{d}, v{b0}, v{b0+1}", f"v_cvt_pk_bf16_f32 v{d+1}, v{b0+2}, v{b0+3}",
                    f"v_cvt_pk_bf16_f32 v{d+2}, v{b1}, v{b1+1}", f"v_cvt_pk_bf16_f32 v{d+3}, v{b1+2}, v{b1+3}"]
            late = [f"v_permlane32_swap_b32 v{d}, v{d+2}", f"v_permlane32_swap_b32 v{d+1}, v{d+3}", "s_nop 0",
                    f"v_permlane16_swap_b32 v{d}, v{d+2}", f"v_permlane16_swap_b32 v{d+1}, v{d+3}"]
    return ops + ["s_nop 1"] + late

def slab_store(acc, t, hf):
    ops = []
    for sp in range(2):
        for qb in range(4):
            b0 = acc + ((2*sp)*4 + qb)*4; b1 = acc + ((2*sp+1)*4 + qb)*4
            ops += [f"v_cvt_pk_bf16_f32 v{b0}, v{b0}, v{b0+1}", f"v_cvt_pk_bf16_f32 v{b0+1}, v{b0+2}, v{b0+3}",
                    f"v_cvt_pk_bf16_f32 v{b0+2}, v{b1}, v{b1+1}", f"v_cvt_pk_bf16_f32 v{b0+3}, v{b1+2}, v{b1+3}"]
            f = hf*8 + sp*4 + qb
            so = sT + (t*4 + f // 4)
            ops += [f"buffer_store_dwordx4 v[{b0}:{b0+3}], v{vL16}, s[{rWS}:{rWS+3}], s{so} offen offset:{(f%4)*1024}{OPT['stflags']} ; @T:st"]
    return ops

def park(acc, dst):
    ops = []
    for sp in range(2):
        for qb in range(4):
            b0 = acc + ((2*sp)*4 + qb)*4; b1 = acc + ((2*sp+1)*4 + qb)*4
            ops += [f"v_cvt_pk_bf16_f32 v{b0}, v{b0}, v{b0+1}", f"v_cvt_pk_bf16_f32 v{b0+1}, v{b0+2}, v{b0+3}",
                    f"v_cvt_pk_bf16_f32 v{b0+2}, v{b1}, v{b1+1}", f"v_cvt_pk_bf16_f32 v{b0+3}, v{b1+2}, v{b1+3}"]
            ops += [f"v_accvgpr_write_b32 a{dst + (sp*4+qb)*4 + i}, v{b0+i}" for i in range(4)]
    return ops
def parked_store(f):
    return f"buffer_store_dwordx4 a[{128+4*f}:{131+4*f}], v{vL16}, s[{rWS}:{rWS+3}], s{sT + 4 + f//4} offen offset:{(f%4)*1024}{OPT['stflags']}"

def qk(b, cinit='negm'):
    out = []
    for qb in range(4):
        for kb in range(2):
            for s in range(4):
                r = vS[b] + (qb*2 + kb)*4; d = f"v[{r}:{r+3}]"
                c = d if s else (f"v[{vNEGM+4*qb}:{vNEGM+4*qb+3}]" if cinit == 'negm' else '0')
                k = aKF + (kb*4 + s)*4; q = vQ + (qb*4 + s)*4
                out.append(f"{MF} {d}, a[{k}:{k+3}], v[{q}:{q+3}], {c}")
    return out
def pv(b, first=False, nsum=None, aVF=aVF):
    nsum = OPT['msum'] if nsum is None else nsum
    out = []
    for qb in range(4):
        p = vP[b] + qb*4
        for db in range(8):
            o = aO + (db*4 + qb)*4; v = aVF + db*4
            c = '0' if first else f"a[{o}:{o+3}]"
            out.append(f"{MF} a[{o}:{o+3}], a[{v}:{v+3}], v[{p}:{p+3}], {c}")
        if qb < nsum:
            l = vLM + 4*qb
            out.append(f"{MF} v[{l}:{l+3}], v[{vONES}:{vONES+3}], v[{p}:{p+3}], {'0' if first else f'v[{l}:{l+3}]'}")
    return out
def kreads(sl):
    return [f"ds_read_b128 a[{aKF+(kb*4+s)*4}:{aKF+(kb*4+s)*4+3}], v{vKA+s} offset:{sl*16384 + kb*8192}" for kb in range(2) for s in range(4)]
def vreads(sl, aVF=aVF):
    return [f"ds_read_b64_tr_b16 a[{aVF+db*4+2*jj}:{aVF+db*4+2*jj+1}], v{vVAl[db]} offset:{sl*16384 + jj*8192}" for db in range(8) for jj in range(2)]
def kvdma(sl, kidx, vidx, dok=True, dov=True):
    sc = [f"s_add_u32 m0, s{sKVM0}, {sl*16384}"]; d = []
    if dok:
        ks = sKO + kidx % 4; kp = sKO + (kidx - 1) % 4
        sc += [f"s_add_u32 s{ks}, s{kp}, 8192", f"s_and_b32 s{ks}, s{ks}, 0x7ffff"]
        d += [f"buffer_load_dwordx4 v{vDK}, s[{rK}:{rK+3}], s{ks} offen{OPT.get('kvfl', '')} lds ; @T:kv{sl}",
              f"buffer_load_dwordx4 v{vDK+1}, s[{rK}:{rK+3}], s{ks} offen offset:1024{OPT.get('kvfl', '')} lds ; @T:kv{sl}"]
    if dov:
        vs = sKO + vidx % 4
        d += [f"buffer_load_dwordx4 v{vDV}, s[{rV}:{rV+3}], s{vs} offen offset:2048{OPT.get('kvfl', '')} lds ; @T:kv{sl}",
              f"buffer_load_dwordx4 v{vDV+1}, s[{rV}:{rV+3}], s{vs} offen offset:3072{OPT.get('kvfl', '')} lds ; @T:kv{sl}"]
    return sc, d
def smq(b):
    nsum = OPT['msum']; E = []; Sg = []
    for qb in range(4):
        for i in range(4):
            s0 = vS[b] + qb*8 + 2*i
            E += [f"v_exp_f32 v{s0}, v{s0}", f"v_exp_f32 v{s0+1}, v{s0+1}"]; k = len(E)
            if qb >= nsum:
                Sg += [(k-1, f"v_add_f32 v{vL+qb}, v{vL+qb}, v{s0}"), (k, f"v_add_f32 v{vL+qb}, v{vL+qb}, v{s0+1}")]
            Sg += [(k, f"v_cvt_pk_bf16_f32 v{vP[b]+qb*4+i}, v{s0}, v{s0+1}")]
    return E, Sg

def check_p(m, *queues):
    rd = set(Ins(m).ab)
    for q in queues:
        for x in (q or []): assert not (set(Ins(x[1]).w) & rd), (m, x)

def period(p, carry, dok=True, dov=True, first=False, kread=True, xdma=None, alsowait=None, nofill=(), kvg=([2, 3, 4], [27, 39, 47, 59]), vnext=None):
    sl = p % 4
    ms = qk((p+1) % 2) + pv(p % 2, first)
    N = len(ms); H = 32
    shadow = [None]*N
    shadow[N-1] = f"s_waitcnt vmcnt(@kv{(p+1)%4}{'|' + alsowait if alsowait else ''}) lgkmcnt(0)"
    shadow[H-1] = "s_waitcnt lgkmcnt(0)"
    shadow[0] = "s_barrier"
    mem = []
    vr = vreads(sl)
    for i, x in enumerate(vr): mem.append((1 + (i*24) // len(vr), x))
    if kread:
        kr = kreads(sl)
        for i, x in enumerate(kr): mem.append((33 + (i*24) // len(kr), x))
    if vnext:
        for i, x in enumerate(vnext): mem.append((33 + (i*26) // len(vnext), x))
    dmag = {}
    if dok or dov:
        sc, dd = kvdma((p + 3) % 4, p + 5, p + 3, dok, dov)
        for x, g in zip(sc, kvg[0]): shadow[g] = x
        for x, g in zip(dd, kvg[1]): dmag[g] = x
    if xdma:
        for (g, x) in xdma:
            if x.startswith('buffer'):
                assert g not in dmag and not shadow[g]; dmag[g] = x
            else:
                assert not shadow[g] and g not in dmag, (g, x); shadow[g] = x
    mem.sort(key=lambda t: t[0])
    st = 34
    cE, cS, cdone = carry
    nE, nS = smq((p+1) % 2)
    lines = []
    E = list(cE); Sq = list(cS); edone = cdone
    mi = 0
    extra = max(0, 64 + len(mem) + len(nS) + 2*len(dmag) + 2*len(nofill) - 2*N)
    acc = 0.0; old_S = None
    for g in range(N):
        check_p(ms[g], old_S, Sq if g <= st else None)
        lines.append(ms[g])
        if shadow[g]: lines.append(shadow[g])
        if g == st:
            assert not E, (p, len(E))
            old_S = Sq; E = nE; Sq = nS; edone = 0
        acc += extra / N
        if g in dmag:
            lines.append(dmag[g]); continue
        if g in nofill: continue
        room = 2
        if acc >= 1.0 - 1e-9: room += 1; acc -= 1.0
        gm = []; gv = []
        e_prev = edone
        left = (st - g) if g < st else (N - g + st)
        navail = (1 if (mi < len(mem) and mem[mi][0] <= g) else 0) + (len(old_S) if old_S else 0) + sum(1 for x in Sq if x[0] <= e_prev)
        if E and (len(E) * 2 >= left or navail < 2):
            gv.append(E.pop(0)); room -= 2; edone += 1
        while room > 0:
            if mi < len(mem) and mem[mi][0] <= g: gm.append(mem[mi][1]); mi += 1; room -= 1
            elif old_S: gv.append(old_S.pop(0)[1]); room -= 1
            elif Sq and Sq[0][0] <= e_prev: gv.append(Sq.pop(0)[1]); room -= 1
            elif mi < len(mem) and mem[mi][0] <= g + 3: gm.append(mem[mi][1]); mi += 1; room -= 1
            else: break
        lines += gm + gv
    assert mi == len(mem) and not old_S, (mi, len(mem), old_S)
    return lines, (E, Sq, edone)

def xreduce(a, reg, op, tmp):
    a(f"v_mov_b32 v{tmp}, v{reg}\ns_nop 1\nv_permlane16_swap_b32 v{reg}, v{tmp}\ns_nop 1\n{op} v{reg}, v{reg}, v{tmp}")
    a(f"v_mov_b32 v{tmp}, v{reg}\ns_nop 1\nv_permlane32_swap_b32 v{reg}, v{tmp}\ns_nop 1\n{op} v{reg}, v{reg}, v{tmp}")

def attn_addr_ops():
    o = []
    t0, t1, t2, t3 = vT, vT+1, vT+2, vT+3
    o += [f"v_bfe_u32 v{t0}, v{vL16}, 4, 4", f"v_lshrrev_b32 v{t1}, 8, v{vL16}"]
    o += [f"v_lshrrev_b32 v{t2}, 3, v{t0}", f"v_lshlrev_b32 v{t2}, 12, v{t2}", f"v_and_b32 v{t3}, 7, v{t0}", f"v_lshlrev_b32 v{t3}, 8, v{t3}",
          f"v_add_u32 v{t2}, v{t2}, v{t3}", f"v_add_u32 v{t2}, {LB}, v{t2}"]
    for s in range(4):
        o += [f"v_add_u32 v{t3}, {4*s}, v{t1}", f"v_xor_b32 v{t3}, v{t3}, v{t0}", f"v_lshl_add_u32 v{vKA+s}, v{t3}, 4, v{t2}"]
    o2 = []
    o2 += [f"v_bfe_u32 v{t0}, v{vL16}, 6, 3", f"v_lshrrev_b32 v{t2}, 9, v{vL16}", f"v_lshlrev_b32 v{t2}, 12, v{t2}",
           f"v_lshl_add_u32 v{t2}, v{t0}, 8, v{t2}", f"v_add_u32 v{t2}, {LB + 2048}, v{t2}", f"v_bfe_u32 v{t3}, v{vL16}, 4, 2", f"v_lshl_add_u32 v{t2}, v{t3}, 3, v{t2}"]
    for db in range(8):
        o2 += [f"v_xor_b32 v{t3}, {db}, v{t0}", f"v_lshl_add_u32 v{vVAl[db]}, v{t3}, 5, v{t2}"]
    return o, o2

def pf_addr(st, vt):
    if OPT['map'] == 8:
        return [f"s_lshl_b32 {st}, s{sRB}, 2", f"s_add_u32 {st}, {st}, s{sW}", f"s_lshl_b32 {st}, {st}, 12", f"v_and_b32 v{vPF}, 0x1f0, v{vL16}", f"v_lshlrev_b32 v{vPF}, 3, v{vPF}",
                f"v_lshrrev_b32 v{vt}, 9, v{vL16}", f"v_lshl_add_u32 v{vPF}, v{vt}, 6, v{vPF}", f"v_add_u32 v{vPF}, {st}, v{vPF}"]
    return [f"s_and_b32 {st}, s{sRB}, 15", f"s_lshl_b32 {st}, {st}, 2", f"s_add_u32 {st}, {st}, s{sW}", f"s_lshl_b32 {st}, {st}, 13", f"v_lshlrev_b32 v{vPF}, 3, v{vL16}", f"v_add_u32 v{vPF}, {st}, v{vPF}"]

def interleave(a, base, extra, every, start=0):
    k = 0
    for n, x in enumerate(base):
        a(x)
        if n >= start and (n + 1 - start) % every == 0 and k < len(extra) and not x.startswith('s_memtime'):
            for y in extra[k]: a(y)
            k += 1
    for g in extra[k:]:
        for y in g: a(y)

def unpack_sum(dst, srcs, t0):
    ops = []
    for n, r in enumerate(srcs):
        for i in range(4):
            if n == 0:
                ops += [f"v_lshlrev_b32 v{dst+2*i}, 16, v{r+i}", f"v_and_b32 v{dst+2*i+1}, 0xffff0000, v{r+i}"]
            else:
                ta, tb = t0 + 2*(i % 2), t0 + 2*(i % 2) + 1
                ops += [f"v_lshlrev_b32 v{ta}, 16, v{r+i}", f"v_and_b32 v{tb}, 0xffff0000, v{r+i}",
                        f"v_add_f32 v{dst+2*i}, v{dst+2*i}, v{ta}", f"v_add_f32 v{dst+2*i+1}, v{dst+2*i+1}, v{tb}"]
    return ops

def silu_ops(r, n, tmp):
    ops = []
    for b in range(0, n, 4):
        ops += [f"v_mul_f32 v{tmp+i}, {hx(-math.log2(math.e))}, v{r+b+i}" for i in range(4)]
        ops += [f"v_exp_f32 v{tmp+i}, v{tmp+i}" for i in range(4)]
        ops += [f"v_add_f32 v{tmp+i}, 1.0, v{tmp+i}" for i in range(4)]
        ops += [f"v_rcp_f32 v{tmp+i}, v{tmp+i}" for i in range(4)]
        ops += [f"v_mul_f32 v{r+b+i}, v{r+b+i}, v{tmp+i}" for i in range(4)]
    return ops

def share_offsets(sh, sW=sW):
    return [f"s_lshl_b32 s{sSHOFF}, s{sRB}, 3", f"s_add_u32 s{sSHOFF}, s{sSHOFF}, {sh}", f"s_lshl_b32 s{sSHOFF}, s{sSHOFF}, 2", f"s_add_u32 s{sSHOFF}, s{sSHOFF}, s{sW}", f"s_lshl_b32 s{sSHOFF}, s{sSHOFF}, 11",
            f"s_lshl_b32 s{sXOFF}, {sh}, 1", f"s_lshr_b32 s0, s{sW}, 1", f"s_add_u32 s{sXOFF}, s{sXOFF}, s0", f"s_lshl_b32 s{sXOFF}, s{sXOFF}, 6",
            f"s_and_b32 s0, s{sW}, 1", f"s_lshl_b32 s0, s0, 15", f"s_add_u32 s{sXOFF}, s{sXOFF}, s0", f"s_lshl_b32 s0, s{sRB}, 16", f"s_add_u32 s{sXOFF}, s{sXOFF}, s0"]

def ploads(dst, t, g, base):
    return [f"s_add_u32 s0, {base}, {t*0x1000000 + g*0x200000}",
            f"buffer_load_dwordx4 v[{dst[0]+g*4}:{dst[0]+g*4+3}], v{vL16}, s[{rWS}:{rWS+3}], s0 offen sc1 ; @T:pl",
            f"buffer_load_dwordx4 v[{dst[1]+g*4}:{dst[1]+g*4+3}], v{vL16}, s[{rWS}:{rWS+3}], s0 offen offset:1024 sc1 ; @T:pl"]
FPE, FPL, SPR = (192, 224), (192, 224), (128, 160)

vOA = 120
vXO, vSIG, vXD, vGV = 10, 11, 2, 128
xregs = [2, 4, 12, 14]
def xloads():
    o = []
    for i in range(2):
        o.append(f"s_add_u32 s0, s{sXOFF}, {i*16384}")
        for e in range(2):
            r = xregs[2*i+e]
            o.append(f"buffer_load_dwordx2 v[{r}:{r+1}], v{vXO}, s[{rX}:{rX+3}], s0 offen offset:{32*e} ; @T:xl")
    return o
def f_reduce_ops():
    ops = []
    ops += unpack_sum(vGA, [128 + 4*g for g in range(8)], vT)
    ops += unpack_sum(vGA + 8, [160 + 4*g for g in range(8)], vT)
    ops += silu_ops(vGA, 16, vT)
    return ops
vGA = 96

def main_kernel():
    global vGA
    a = Prog()
    a(f"main_kernel:")
    a("s_cmp_ge_u32 s2, 256\ns_cbranch_scc1 L_main_end")
    stamp(a, 0)
    if OPT['timing']: a("s_memrealtime s[100:101]\ns_waitcnt lgkmcnt(0)")
    a("s_load_dwordx16 s[64:79], s[0:1], 0\ns_load_dwordx8 s[80:87], s[0:1], 64") if not OPT['timing'] else a("s_load_dwordx16 s[64:79], s[0:1], 0\ns_load_dwordx4 s[80:83], s[0:1], 64\ns_load_dwordx2 s[84:85], s[0:1], 80\ns_load_dwordx2 s[44:45], s[0:1], 88")
    WSP = 86 if not OPT['timing'] else 44
    a(f"v_lshrrev_b32 v2, 6, v0\nv_and_b32 v0, 63, v0\nv_readfirstlane_b32 s{sW}, v2")
    a(f"v_lshlrev_b32 v{vL16}, 4, v0")
    if OPT['map'] == 8:
        a(f"s_and_b32 s{sG}, s2, 7\ns_lshr_b32 s{sRB}, s2, 3")
    else:
        a(f"s_and_b32 s{sG}, s2, 3\ns_lshl_b32 s{sG}, s{sG}, 1\ns_bfe_u32 s{sRB}, s2, 0x10003\ns_add_u32 s{sG}, s{sG}, s{sRB}")
        a(f"s_bfe_u32 s{sRB}, s2, 0x10002\ns_lshl_b32 s{sRB}, s{sRB}, 4\ns_lshr_b32 s{sROT}, s2, 4\ns_add_u32 s{sRB}, s{sRB}, s{sROT}")
    if OPT['xdma']:
        a(f"s_and_b32 s{sROT}, s{sRB}, 3\ns_lshl_b32 s{sROT}, s{sROT}, 1")
        a(f"v_lshrrev_b32 v6, 4, v0\nv_and_b32 v5, 15, v0")
        for rg in range(4):
            a(f"v_add_u32 v7, {4*rg}, v6\nv_xor_b32 v7, v7, v5\nv_lshlrev_b32 v7, 4, v7\nv_add_u32 v8, {3*rg}, v6\nv_lshl_add_u32 v{32+rg}, v8, 10, v7")
        a(f"s_lshl_b32 s62, s{sRB}, 16\ns_lshl_b32 s63, s{sW}, 14\ns_add_u32 s62, s62, s63\ns_add_u32 s60, s63, {LB}\ns_lshl_b32 s63, s{sROT}, 7")
    else:
        a(f"s_and_b32 s{sROT}, s{sRB}, 7")
        a(f"v_and_b32 v5, 15, v0\nv_lshlrev_b32 v5, 10, v5\nv_lshrrev_b32 v6, 4, v0\nv_lshl_add_u32 v5, v6, 4, v5")
        a(f"s_lshl_b32 s62, s{sRB}, 16\ns_lshl_b32 s63, s{sW}, 14\ns_add_u32 s62, s62, s63\ns_lshl_b32 s63, s{sROT}, 7")
    for x in pf_addr('s61', 3): a(x)
    if OPT['codepf']:
        a("s_getpc_b64 s[46:47]\nL_pc0:")
        a(f"v_min_u32 v7, L_code_end-L_pc0-4, v{vPF}")
        a(f"global_load_dword v{vGB}, v7, s[46:47] ; @T:pf")
    a("s_waitcnt lgkmcnt(0)")
    stamp(a, 'karg')
    srd(a, rX, 64, 2048*1024)
    if OPT['xdma']:
        for c4 in range(4):
            a(f"s_add_u32 s61, s63, {c4*256}\ns_and_b32 s61, s61, 0x3ff\ns_add_u32 m0, s60, {c4*4096}\ns_add_u32 s61, s61, s62")
            for rg in range(4): a(f"buffer_load_dwordx4 v{32+rg}, s[{rX}:{rX+3}], s61 offen offset:{rg*1024} lds ; @T:x{c4}")
        for sx in range(4):
            a(f"v_add_u32 v7, {4*sx}, v6\nv_xor_b32 v7, v7, v5\nv_lshlrev_b32 v7, 4, v7\nv_lshl_add_u32 v7, v5, 8, v7\nv_add_u32 v{50+sx}, s60, v7")
    else:
        for k in range(16):
            a(f"s_add_u32 s61, s63, {k*64}\ns_and_b32 s61, s61, 0x3ff\ns_add_u32 s61, s61, s62")
            a(f"buffer_load_dwordx4 v[{bA+4*k}:{bA+4*k+3}], v5, s[{rX}:{rX+3}], s61 offen ; @T:x{k}")
    stamp(a, 'xissued')
    a(f"s_add_u32 s62, s{sG}, s{sRB}\ns_and_b32 s62, s62, 1\ns_sub_u32 s{sNU}, 4, s62")
    a(f"s_lshr_b32 s62, s{sG}, 1\ns_mul_i32 s{sU0}, s62, 7\ns_sub_u32 s63, 7, s{sNU}\ns_and_b32 s61, s{sG}, 1\ns_mul_i32 s63, s63, s61\ns_add_u32 s{sU0}, s{sU0}, s63")
    a(f"s_add_u32 s62, s{sU0}, s{sW}\ns_lshl_b32 s{sCOG}, s62, 7\ns_cmp_lt_u32 s{sW}, s{sNU}\ns_cselect_b32 s{sCOG}, s{sCOG}, 0x40000000")
    a(f"s_lshl_b32 s62, s{sG}, 10\ns_lshl_b32 s63, s{sW}, 8\ns_add_u32 s{sCOQ}, s62, s63")
    a(f"s_lshl_b32 s62, s{sU0}, 16\ns_add_u32 s{sCOD}, s62, s63\ns_cmp_eq_u32 s{sNU}, 4\ns_cselect_b32 s{sCOD3}, s{sCOD}, 0x40000000")
    a(f"s_lshl_b32 s62, s{sG}, 19\ns_add_u32 s{sCOO}, s62, s63")
    a(f"s_mul_i32 s{sRING}, s{sW}, 24576\ns_lshl_b32 s{sKVM0}, s{sW}, 12\ns_add_u32 s{sKVM0}, s{sKVM0}, {LB}")
    srd(a, rWG, 76, 512*3584)
    a("v_lshrrev_b32 v6, 3, v0\nv_bfe_u32 v7, v0, 4, 1\nv_lshlrev_b32 v7, 1, v7\nv_bfe_u32 v8, v0, 5, 1\nv_lshl_add_u32 v7, v8, 2, v7\nv_and_b32 v8, 7, v0\nv_xor_b32 v7, v7, v8")
    a("v_lshlrev_b32 v7, 4, v7\nv_xor_b32 v8, 64, v7")
    for dv, rs in ((vDG, 3584), (vDQ, 8192), (vDO, 1024)):
        a(f"v_mul_u32_u24 v9, {rs}, v6")
        for j in range(4):
            a(f"v_add_u32 v{dv+j}, v9, v{7 + (j & 1)}")
            if j: a(f"v_add_u32 v{dv+j}, {j*(8*rs - 1024)}, v{dv+j}")
    X = lambda ks0: (lambda ks, qb: ((ks0 + ks)*4 + qb)*4)
    mk = lambda name, r, dv, rs, co, acc, n, inter, rot, row0: [Panel(name, r, dv, rs, co(j), acc, j == 0, X(2*j), inter, rot, row0(j)) for j in range(n)]
    pG = mk('G', rWG, vDG, 3584, lambda j: f"s{sCOG}", bA, 8, False, True, lambda j: 0)
    pU = mk('U', rWU, vDG, 3584, lambda j: f"s{sCOG}", bB, 8, False, True, lambda j: 0)
    pQa = mk('Qa', rWQ, vDQ, 8192, lambda j: f"s{sCOQ}", bC, 8, False, True, lambda j: 0)
    pQb = mk('Qb', rWQ, vDQ, 8192, lambda j: f"s{sCOQ}", bA, 8, False, True, lambda j: 128)
    pD0 = mk('D0', rWD, vDO, 1024, lambda j: f"s{sCOD3 if j == 3 else sCOD}", bC, 4, True, False, lambda j: j*65536)
    pD1 = mk('D1', rWD, vDO, 1024, lambda j: f"s{sCOD3 if j == 3 else sCOD}", bA, 4, True, False, lambda j: j*65536 + 128)
    pO0 = mk('O0', rWO, vDO, 1024, lambda j: None, bB, 8, True, False, lambda j: (j//4)*65536)
    pO1 = mk('O1', rWO, vDO, 1024, lambda j: None, bA, 8, True, False, lambda j: (j//4)*65536 + 128)
    oreg = lambda j, ks, qb: 32*j + (ks*4 + qb)*4
    for j in range(8):
        for P in (pO0[j], pO1[j]): P.j = j; P.bfrag = (lambda j: (lambda ks, qb: oreg(j, ks, qb)))(j)
    S1 = pG + pU + pQa + pQb + pD0 + pD1
    a(f"s_sub_u32 s{sJ}, s{sROT}, 1")
    for i in range(OPT.get('early', 1)):
        s0, s1, d = panel_dma(S1[i], i)
        for x in s0 + ["s_nop 0"] + d[:4] + s1 + ["s_nop 0"] + d[4:]: a(x)
    if OPT['prefetch']:
        srd(a, rWD, 80, 1792*1024)
        a(f"s_lshr_b32 s62, s{sG}, 1\ns_mul_i32 s62, s62, 7\ns_and_b32 s61, s{sG}, 1\ns_mul_i32 s61, s61, 3\ns_add_u32 s62, s62, s61\ns_lshl_b32 s62, s62, 16")
        a(f"v_cmp_gt_u32 vcc, 0x40000, v{vPF}\nv_mov_b32 v9, 0x40000000\ns_nop 0\nv_cndmask_b32 v9, v9, v{vPF}, vcc")
        a(f"v_mov_b32 v54, v9\ns_mov_b32 s44, s62") if not OPT['timing'] else a(f"v_mov_b32 v54, v9\ns_mov_b32 s46, s62")
    lndma = []
    late_dma = []
    if OPT.get('late2'):
        pass
    for i in range(OPT.get('early', 1), 3):
        s0, s1, d = panel_dma(S1[i], i)
        if i >= 3 - OPT.get('late2', 0):
            late_dma += s0 + ['s_nop 0'] + d[:4] + s1 + ['s_nop 0'] + d[4:]; continue
        lndma += [s0 + ["s_nop 0", d[0]]] + [[x] for x in d[1:4]] + [s1 + ["s_nop 0", d[4]]] + [[x] for x in d[5:]]
    if OPT['prefetch']: lndma += [[f"buffer_load_dword v{vGB}, v54, s[{rWD}:{rWD+3}], s{44 if not OPT['timing'] else 46} offen{' offset:64' if h else ''} ; @T:pf"] for h in range(OPT.get('pf2', 1))]
    stamp(a, 'dmaissued')
    srd(a, rWU, 78, 512*3584); srd(a, rWQ, 70, 512*8192); srd(a, rWO, 72, 4096*1024)
    if not OPT['prefetch']: srd(a, rWD, 80, 1792*1024)
    a(f"s_lshl_b32 s62, s{sG}, 19")
    srd(a, rK, 66, 0x80000, add='s62'); srd(a, rV, 68, 0x80800, add='s62', sub=2048)
    srd(a, rWS, WSP, 0x2001000)
    srd(a, rOUT, 82, 2048*1024); srd(a, rDBG, 84, 256)
    a(f"s_lshl_b32 s81, s{sG}, 19\ns_lshl_b32 s82, s{sW}, 13\ns_lshl_b32 s83, s{sW}, 14")
    a(f"s_lshl_b32 s{sSLAB}, s{sG}, 5\ns_add_u32 s{sSLAB}, s{sSLAB}, s{sRB}\ns_lshl_b32 s{sSLAB}, s{sSLAB}, 2\ns_add_u32 s{sSLAB}, s{sSLAB}, s{sW}\ns_lshl_b32 s{sSLAB}, s{sSLAB}, 14")
    for t in range(2):
        for k in range(4): a(f"s_add_u32 s{sT+t*4+k}, s{sSLAB}, {t*0x1000000 + k*4096}")
    a("v_bfe_u32 v5, v0, 2, 2\nv_lshrrev_b32 v6, 4, v0\nv_and_b32 v7, 3, v0\nv_lshlrev_b32 v7, 3, v7")
    a(f"v_add_u32 v7, s{sRING}, v7")
    a("v_lshrrev_b32 v8, 1, v5\nv_and_b32 v9, 1, v6\nv_lshl_add_u32 v9, v9, 1, v8")
    a("v_lshl_add_u32 v26, v6, 3, v5\nv_lshl_add_u32 v26, v26, 7, v7")
    a("v_lshrrev_b32 v27, 1, v6\nv_xor_b32 v27, v27, v6\nv_and_b32 v27, 1, v27\nv_lshl_add_u32 v27, v27, 1, v8")
    a("v_lshl_add_u32 v28, v6, 2, v5\nv_lshl_add_u32 v28, v28, 7, v7")
    a(f"s_lshl_b32 s62, s{sW}, 3\nv_add_u32 v29, s62, v6\nv_and_b32 v5, 15, v0")
    for i in range(2):
        a(f"v_add_u32 v8, {4*i}, v29\nv_and_b32 v8, 15, v8\nv_xor_b32 v8, v8, v5\nv_lshlrev_b32 v8, 4, v8\nv_lshl_add_u32 v{vDK+i}, v29, 8, v8")
        a(f"v_add_u32 v8, {4*i}, v6\nv_lshlrev_b32 v8, 1, v8\nv_xor_b32 v8, v8, v5\nv_lshlrev_b32 v8, 4, v8\nv_lshl_add_u32 v{vDV+i}, v29, 8, v8")
    a("v_mov_b32 v29, v9")
    for nb in range(4):
        a(f"v_xor_b32 v{vWA+nb}, {nb}, v29\nv_lshl_add_u32 v{vWA+nb}, v{vWA+nb}, 5, v26")
        a(f"v_xor_b32 v{vWI+nb}, {nb}, v27\nv_lshl_add_u32 v{vWI+nb}, v{vWI+nb}, 5, v28")
    a(f"v_add_u32 v{vFA}, {LB}, v{vL16}")
    a(f"v_add_u32 v44, s83, v{vFA}")
    stamp(a, 'setup')
    F = bB
    if OPT['lnm']:
        b = Prog()
        b("s_mov_b32 s45, 0xffff0000" if not OPT['timing'] else "s_mov_b32 s47, 0xffff0000")
        MK = 45 if not OPT['timing'] else 47
        for i in range(4): b(f"v_mov_b32 v{32+i}, 0x3f803f80")
        b(f"v_bfe_u32 v45, v{vL16}, 4, 2\nv_bfe_u32 v46, v{vL16}, 6, 2\nv_lshrrev_b32 v47, 8, v{vL16}")
        b("s_waitcnt vmcnt(@x0)")
        for sx in range(4): b(f"ds_read_b128 v[{bA+4*sx}:{bA+4*sx+3}], v{50+sx} ; @T:q0")
        for c4 in range(4):
            if c4 < 3:
                b(f"s_waitcnt vmcnt(@x{c4+1})")
                for sx in range(4): b(f"ds_read_b128 v[{bA+16*(c4+1)+4*sx}:{bA+16*(c4+1)+4*sx+3}], v{50+sx} offset:{(c4+1)*4096} ; @T:q{c4+1}")
            b(f"s_waitcnt lgkmcnt(@q{c4})")
            for k in range(4*c4, 4*c4 + 4):
                x = f"v[{bA+4*k}:{bA+4*k+3}]"
                un = [[f"v_lshlrev_b32 v{F+2*i}, 16, v{bA+i}", f"v_and_b32 v{F+2*i+1}, s{MK}, v{bA+i}"] for i in range(4*k, 4*k+4)]
                last = (c4 == 3)
                b(f"{MF} v[36:39], v[32:35], {x}, {'0' if k == 0 else 'v[36:39]'}")
                if not last:
                    for y in un[0] + un[1]: b(y)
                b(f"{MF} v[40:43], {x}, {x}, {'0' if k == 0 else 'v[40:43]'}")
                if not last:
                    for y in un[2] + un[3]: b(y)
        late = [y for i in range(48, 64) for y in (f"v_lshlrev_b32 v{F+2*i}, 16, v{bA+i}", f"v_and_b32 v{F+2*i+1}, s{MK}, v{bA+i}")]
        for x in stampl(1): b(x)
        st = []
        st += ["v_cmp_eq_u32 vcc, 1, v45", None, None, "v_cndmask_b32 v40, v40, v41, vcc", "v_cmp_eq_u32 vcc, 2, v45", None, None, "v_cndmask_b32 v40, v40, v42, vcc",
               "v_cmp_eq_u32 vcc, 3, v45", None, None, "v_cndmask_b32 v40, v40, v43, vcc", "v_cmp_eq_u32 vcc, v46, v47", None, None, "v_cndmask_b32 v40, 0, v40, vcc"]
        st += [f"v_mul_f32 v36, {hx(1/512)}, v36", "v_mov_b32 v41, v40", "v_cvt_pk_bf16_f32 v37, v36, v36", None, "v_permlane16_swap_b32 v40, v41", "v_lshlrev_b32 v37, 16, v37", "v_add_f32 v40, v40, v41",
               "v_mov_b32 v41, v40", None, None, "v_permlane32_swap_b32 v40, v41", None, "v_add_f32 v40, v40, v41",
               f"v_mul_f32 v40, {hx(1/512)}, v40", "v_fma_f32 v40, -v36, v36, v40", "v_max_f32 v40, 0, v40",
               "v_cvt_pk_bf16_f32 v40, v40, v40", "v_lshlrev_b32 v40, 16, v40", f"v_add_f32 v40, {hx(1e-5)}, v40", "v_cvt_pk_bf16_f32 v40, v40, v40", "v_lshlrev_b32 v40, 16, v40",
               "v_sqrt_f32 v40, v40", None, "v_cvt_pk_bf16_f32 v40, v40, v40", "v_lshlrev_b32 v40, 16, v40", "v_rcp_f32 v42, v40", None, "v_mul_f32 v43, v37, v42"]
        for y in late[:10]: b(y)
        late = late[10:]
        for y in st:
            if y is None: b(late.pop(0) if late else "s_nop 0")
            else: b(y)
        for y in late: b(y)
        for k in range(16):
            for i in range(4*k, 4*k+4): b(f"v_pk_fma_f32 v[{F+2*i}:{F+2*i+1}], v[{F+2*i}:{F+2*i+1}], v[42:43], v[42:43] op_sel:[0,0,1] op_sel_hi:[1,0,1] neg_lo:[0,0,1] neg_hi:[0,0,1]")
            if k: b(f"ds_write_b128 v44, v[{bA+4*k-4}:{bA+4*k-1}] offset:{(k-1)*1024}")
            for i in range(4*k, 4*k+4): b(f"v_cvt_pk_bf16_f32 v{bA+i}, v{F+2*i}, v{F+2*i+1}")
        b(f"ds_write_b128 v44, v[{bA+60}:{bA+63}] offset:{15*1024}")
    else:
        b = Prog()
        for k in range(16):
            if OPT['xdma']:
                if k == 0:
                    b("s_waitcnt vmcnt(@x0)")
                    for sx in range(4): b(f"ds_read_b128 v[{bA+4*sx}:{bA+4*sx+3}], v{50+sx} ; @T:q0")
                if k % 4 == 0:
                    c4 = k // 4
                    if c4 < 3:
                        b(f"s_waitcnt vmcnt(@x{c4+1})")
                        for sx in range(4): b(f"ds_read_b128 v[{bA+16*(c4+1)+4*sx}:{bA+16*(c4+1)+4*sx+3}], v{50+sx} offset:{(c4+1)*4096} ; @T:q{c4+1}")
                    b(f"s_waitcnt lgkmcnt(@q{c4})")
            else: b(f"s_waitcnt vmcnt(@x{k})")
            for i in range(4*k, 4*k+4):
                b(f"v_lshlrev_b32 v{F+2*i}, 16, v{bA+i}\nv_and_b32 v{F+2*i+1}, 0xffff0000, v{bA+i}")
            for i in range(4*k, 4*k+4):
                if k == 0: b(f"v_mov_b32 v{32+2*i}, v{F+2*i}\nv_mov_b32 v{33+2*i}, v{F+2*i+1}")
                else: b(f"v_pk_add_f32 v[{32+2*(i%4)}:{33+2*(i%4)}], v[{32+2*(i%4)}:{33+2*(i%4)}], v[{F+2*i}:{F+2*i+1}]")
        for x in stampl(1): b(x)
        b("v_pk_add_f32 v[32:33], v[32:33], v[34:35]\nv_pk_add_f32 v[36:37], v[36:37], v[38:39]\nv_pk_add_f32 v[32:33], v[32:33], v[36:37]\nv_add_f32 v32, v32, v33")
        xreduce(b, 32, 'v_add_f32', 33)
        b(f"v_mul_f32 v32, {hx(1/512)}, v32\nv_cvt_pk_bf16_f32 v33, v32, v32\nv_lshlrev_b32 v34, 16, v33\nv_sub_f32 v40, v32, v34")
        for i in range(64):
            b(f"v_pk_add_f32 v[{F+2*i}:{F+2*i+1}], v[{F+2*i}:{F+2*i+1}], v[34:35] op_sel_hi:[1,0] neg_lo:[0,1] neg_hi:[0,1]")
            if i >= 2:
                j = i - 2; r = 46 + 2*(j % 4)
                b(f"v_pk_mul_f32 v[{r}:{r+1}], v[{F+2*j}:{F+2*j+1}], v[{F+2*j}:{F+2*j+1}]" if j < 4 else f"v_pk_fma_f32 v[{r}:{r+1}], v[{F+2*j}:{F+2*j+1}], v[{F+2*j}:{F+2*j+1}], v[{r}:{r+1}]")
        for j in (62, 63):
            r = 46 + 2*(j % 4); b(f"v_pk_fma_f32 v[{r}:{r+1}], v[{F+2*j}:{F+2*j+1}], v[{F+2*j}:{F+2*j+1}], v[{r}:{r+1}]")
        b("v_pk_add_f32 v[46:47], v[46:47], v[48:49]\nv_pk_add_f32 v[50:51], v[50:51], v[52:53]\nv_pk_add_f32 v[46:47], v[46:47], v[50:51]\nv_add_f32 v42, v46, v47")
        xreduce(b, 42, 'v_add_f32', 43)
        b(f"v_mul_f32 v42, {hx(1/512)}, v42\nv_fma_f32 v42, -v40, v40, v42\nv_max_f32 v42, 0, v42")
        rb16 = lambda r: f"v_cvt_pk_bf16_f32 v{r}, v{r}, v{r}\nv_lshlrev_b32 v{r}, 16, v{r}"
        b(rb16(42)); b(f"v_add_f32 v42, {hx(1e-5)}, v42"); b(rb16(42)); b("v_sqrt_f32 v42, v42\ns_nop 0"); b(rb16(42)); b("v_rcp_f32 v42, v42\ns_nop 0")
        for k in range(16):
            for i in range(4*k, 4*k+4): b(f"v_pk_mul_f32 v[{F+2*i}:{F+2*i+1}], v[{F+2*i}:{F+2*i+1}], v[42:43] op_sel_hi:[1,0]")
            if k: b(f"ds_write_b128 v44, v[{bA+4*k-4}:{bA+4*k-1}] offset:{(k-1)*1024}")
            for i in range(4*k, 4*k+4): b(f"v_cvt_pk_bf16_f32 v{bA+i}, v{F+2*i}, v{F+2*i+1}")
        b(f"ds_write_b128 v44, v[{bA+60}:{bA+63}] offset:{15*1024}")
    interleave(a, b.L, lndma, OPT.get('lnevery', 10), OPT.get('lnstart', 0))
    stamp(a, 'lndone')
    a("s_waitcnt vmcnt(@w0) lgkmcnt(0)\ns_barrier")
    stamp(a, 'lnbar')
    xr = lambda ks, qb, tag, lay: f"ds_read_b128 a[{(ks*4+qb)*4}:{(ks*4+qb)*4+3}], v{vFA} offset:{lay(ks, qb)*1024} ; @T:{tag}"
    layX = lambda ks, qb: qb*16 + ks
    layF = lambda ks, qb: ks*4 + qb
    def stream_head(P, idx, tag, lay, extra=()):
        for x in wreads(P, idx, 0): a(x)
        for ks in range(2):
            for qb in range(4): a(xr(ks, qb, tag, lay))
        for nb in (1, 2):
            for x in wreads(P, idx, nb): a(x)
        for x in extra: a(x)
        a("s_waitcnt lgkmcnt(@auto)")
    RG = [2, 3, 4, 5, 6, 12, 14, 20]
    def frag_reads(xm, pos, ks0, tag, lay):
        for k in range(8): xm.setdefault((pos, RG[k]), []).append(xr(ks0 + k % 2, k // 2, tag, lay))
    idle = Prog()
    if OPT.get('skip', 0):
        a(f"s_cmp_ge_u32 s{sW}, s{sNU}\ns_cbranch_scc1 L_idle")
        idle("L_idle:")
        for ks in range(16):
            for qb in range(4): idle(xr(ks, qb, 'xr', layX))
        for i in range(128): idle(f"v_mov_b32 v{bA+i}, 0")
        for i in range(4): idle(f"v_mov_b32 v{vT+i}, 1.0")
        idle(f"v_add_u32 v{vPF}, s82, v{vFA}\ns_add_u32 s{sJ}, s{sJ}, {(16 - (3 - OPT.get('late2', 0))) % 8}")
        idle("s_waitcnt vmcnt(0) lgkmcnt(0)")
        idle(f"v_mov_b32 v{vGB}, {hx(-2.0 * math.log2(math.e) * math.sqrt(2.0 / math.pi) * 0.044715)}\ns_barrier")
        for i in (16, 17, 18):
            s0, s1, d = panel_dma(S1[i], i)
            for x in s0 + ["s_nop 0"] + d[:4] + s1 + ["s_nop 0"] + d[4:]: idle(x)
        idle("s_waitcnt vmcnt(@w16)")
        for nb in range(3):
            for x in wreads(S1[16], 16, nb): idle(x)
        idle("s_waitcnt lgkmcnt(0)\ns_branch L_join16")
    a.idle = idle
    stream_head(S1[0], 0, 'xr', layX, late_dma)
    stamp(a, 2)
    fill = {}; xm = {}; xs = {}
    for j in range(7): frag_reads(xm, j, 2*j + 2, 'xr', layX)
    o1, o2 = attn_addr_ops()
    xs[(9, 0)] = ["s_barrier"]
    fill[8] = [f"v_add_u32 v{vPF}, s82, v{vFA}", f"v_mov_b32 v{vGB}, {hx(-2.0 * math.log2(math.e) * math.sqrt(2.0 / math.pi) * 0.044715)}"] + gelu_stage1(bA)
    fill[16] = geglu_stage2(bA, bB)
    fill[24] = qpack(bC, 0) + o1
    xs[(26, 0)] = ["s_waitcnt lgkmcnt(@hw)", "s_barrier"]
    for j in range(4): frag_reads(xm, 28 + j, 2*j, 'hr', layF)
    fill[32] = qpack(bA, 1)
    fill[36] = park(bC, 128) + o2
    xs[(32, 3)] = ["s_waitcnt lgkmcnt(@hr)", "s_barrier"]
    kvs = [kvdma(2, 0, 0, True, False), kvdma(3, 1, 0, True, False), kvdma(0, 2, 0), kvdma(1, 3, 1)]
    xs[(32, 10)] = [f"s_lshl_b32 s{sKO+3}, s{sRB}, {14 if OPT['map'] == 8 else 15}"]; xs[(32, 12)] = [f"s_sub_u32 s{sKO+3}, s{sKO+3}, 8192"]
    for i, (sc, dd) in enumerate(kvs):
        pos = [33, 34, 37, 38][i]
        if i < 2:
            xs.setdefault((pos, 20), []).append(sc[1]); xs.setdefault((pos, 22), []).append(sc[2]); xs.setdefault((pos, 28), []).append(sc[0])
            for x, g in zip(dd, [29, 30]): xm.setdefault((pos, g), []).extend([x, None])
        else:
            xs.setdefault((pos, 9), []).append(sc[1]); xs.setdefault((pos, 10), []).append(sc[2]); xs.setdefault((pos, 11), []).append(sc[0])
            for x, g in zip(dd, [13, 17, 21, 27]): xm.setdefault((pos, g), []).extend([x, None])
    xs[(39, 3)] = ["s_waitcnt vmcnt(@kv3)", "s_barrier"]
    for x, g in zip(kreads(2), [8, 9, 10, 11, 12, 13, 14, 16]): xm.setdefault((39, g), []).append(x)
    left = emit_stream(a, S1, 0, fill, xm, xs, must_empty=(24, 32, 36))
    assert not left
    stamp(a, 3)
    X_ = SP(dict(S=vS, P=[32, 48, 64, 80], NEGM=vNEGM, ONES=vONES, LM=vLM, L=vL, KA=vKA, VA=vVAl, KF=aKF, VF=aVF, Q=vQ, Qf='v', O=aO), OPT)
    def with_fill(ms, q, memat, start=0, room0=2):
        for g, m in enumerate(ms):
            a(m)
            room = room0
            for x in memat.get(g, []):
                a(x); room -= (2 if x.startswith('buffer') else 0 if x.startswith('s_') else 1)
            while g >= start and q and room >= 1:
                x = q.pop(0); a(x); room -= cost(x)
    st = park(bA, 160)
    k10, k11 = X_.kreads(3, 0), X_.kreads(3, 1)
    with_fill(X_.qk(0, '0'), st, {16: k10[:2], 17: k10[2:]}, start=3)
    for x in k11 + st: a(x)
    for i in range(4): a(f"v_mov_b32 v{vONES+i}, 0x3f803f80\nv_mov_b32 v{vL+i}, 0")
    T = [88 + 2*qb for qb in range(4)]
    for k in range(4):
        for qb in range(4):
            b0 = vS[0] + qb*8
            a([f"v_max3_f32 v{T[qb]}, v{b0}, v{b0+1}, v{b0+2}", f"v_max3_f32 v{T[qb]}, v{T[qb]}, v{b0+3}, v{b0+4}", f"v_max3_f32 v{T[qb]}, v{T[qb]}, v{b0+5}, v{b0+6}", f"v_max_f32 v{T[qb]}, v{T[qb]}, v{b0+7}"][k])
    for sw in ('v_permlane16_swap_b32', 'v_permlane32_swap_b32'):
        for qb in range(4): a(f"v_mov_b32 v{T[qb]+1}, v{T[qb]}")
        for qb in range(4): a(f"{sw} v{T[qb]}, v{T[qb]+1}")
        for qb in range(4): a(f"v_max_f32 v{T[qb]}, v{T[qb]}, v{T[qb]+1}")
    for qb in range(4):
        for i in range(4): a(f"v_sub_f32 v{vNEGM+qb*4+i}, 0, v{T[qb]}")
    a("s_waitcnt vmcnt(@kv1) lgkmcnt(0)\ns_barrier")
    subs = [f"v_sub_f32 v{X_.sblk(0, kb, qb)+i}, v{X_.sblk(0, kb, qb)+i}, v{T[qb]}" for kb in range(2) for qb in range(4) for i in range(4)]
    E0, S0 = X_.smq(0, 0)
    q0 = subs[:8]; si = 0
    for k, e in enumerate(E0):
        q0.append(e)
        if 8 + k < 32 and k % 4 == 3: q0 += subs[8 + k - 3: 8 + k + 1]
        while si < len(S0) and S0[si][0] <= k: q0.append(S0[si][1]); si += 1
    q0 += ["s_nop 0"] + [x[1] for x in S0[si:]]
    q0 += [f"s_lshl_b32 s0, s{sRB}, 3", f"v_mov_b32 v{vT}, s0", f"s_lshl_b32 s0, 0x100, s{sG}", f"v_mov_b32 v{vT+1}, s0"] + pf_addr('s0', vT+3)
    if OPT.get('flags'): q0 += flag_off(sLATE) + [f"v_mov_b32 v{vT+2}, 0"]
    q0 += [f"s_cmp_eq_u32 s{sW}, 0", "s_cselect_b32 s0, 1, 0", "s_mov_b32 s1, 0"]
    sc, dd = kvdma(2, 4, 2)
    k20, k21 = X_.kreads(0, 0), X_.kreads(0, 1)
    with_fill(X_.qk(1), q0, {0: [sc[0]], 1: [sc[1]], 2: [sc[2]], 4: [dd[0]], 9: [dd[1]], 16: k20[:2], 17: k20[2:], 21: [dd[2]], 26: [dd[3]]}, room0=OPT.get('proom', 3))
    for x in k21 + q0: a(x)
    c = ([], [], 32)
    for j_ in (1, 2, 3): _, c = X_.sp(j_, c, kvdma)
    E1, S1_ = X_.smq(1, 1); rem = set(c[0]) | set(x[1] for x in c[1])
    for x in E1 + [y[1] for y in S1_]:
        if x not in rem: a(x)
    cp = lambda c: (list(c[0]), list(c[1]), c[2])
    a("s_waitcnt lgkmcnt(0)")
    sts = [parked_store(f) + " ; @T:st" for f in range(16)]
    carry = cp(c)
    for j_ in range(4):
        kw = {}
        if j_ < 3:
            n = [6, 5, 5][j_]; kw['xauto'] = [(36, 100, sts[:n])]; sts = sts[n:]
            if j_ == 0 and OPT.get('flags'): kw['postbar'] = f"s_mov_b64 exec, 1\nbuffer_store_dword v{vT+2}, off, s[{rWS}:{rWS+3}], s{sLATE} sc1 ; @T:st\ns_mov_b64 exec, -1"
        else:
            kw['alsowait'] = 'st'
            if OPT['prefetch'] and OPT.get('pfearly'): kw['xauto'] = [(40, 70, [f"buffer_load_dword v{vT+3}, v{vPF}, s[{rWO}:{rWO+3}], s81 offen{' offset:64' if h else ''} ; @X" for h in range(OPT.get('pf2', 1))])]
            if OPT['single']: kw['postbar'] = f"s_mov_b64 exec, s[0:1]\nbuffer_atomic_or v{vT+1}, v{vT}, s[{rDBG}:{rDBG+3}], 0 offen ; @X\ns_mov_b64 exec, -1"
        body, carry = X_.sp(j_, carry, kvdma, first=(j_ == 0), **kw)
        for x in body: a(x)
    for _ in range(2):
        _, c = X_.sp(4, c, kvdma, postbar=("x" if OPT['single'] else None)); _, c = X_.sp(5, c, kvdma, postbar=("x" if OPT['prefetch'] and OPT.get('pfloop', 0) else None))
    assert set(c[0]) <= set(carry[0]) and set(c[1]) <= set(carry[1]), (carry, c)
    for x in [x for x in carry[0] if x not in c[0]] + ["s_nop 0"] + [x[1] for x in carry[1] if x not in c[1]]: a(x)
    carry = cp(c)
    stamp(a, 'loop0')
    a(f"s_mov_b32 s{sCNT}, 12")
    a(".p2align 6")
    a("L_attn_loop:")
    c0 = cp(carry); loop = []
    for j_ in (4, 5):
        pb = f"buffer_load_dword v{vT+2}, v{vT}, s[{rDBG}:{rDBG+3}], 0 offen sc1 ; @T:poll" if (j_ == 4 and OPT['single']) else None
        if j_ == 5 and OPT['prefetch'] and OPT.get('pfloop', 0): pb = f"buffer_load_dword v{vT+3}, v{vPF}, s[{rWO}:{rWO+3}], s81 offen ; @T:pfo"
        body, carry = X_.sp(j_, carry, kvdma, postbar=pb)
        loop += body
    assert cp(carry) == c0
    a.loop = (len(a.L), len(a.L) + len(loop))
    for x in loop: a(x)
    a(f"s_sub_u32 s{sCNT}, s{sCNT}, 1\ns_cmp_lg_u32 s{sCNT}, 0\ns_cbranch_scc1 L_attn_loop")
    stamp(a, 'loop1')
    S2 = pO0 + pO1; base2 = len(S1)
    AV2 = 128
    woff = lambda h: f"s_add_u32 s0, s{sW}, {h}\ns_and_b32 s0, s0, 3\ns_lshl_b32 s0, s0, 17\ns_add_u32 s{44+h}, s0, s{sCOO}"
    def wd(k):
        s0, s1, d = panel_dma(S2[k], base2 + k)
        return [woff(k)] + s0 + d[:4] + s1 + d[4:]
    for j_ in (28, 29, 30):
        kw = {}
        if j_ == 28 and OPT['single']:
            so = share_offsets(f"s{sG}") + [f"s_bfe_u32 s{sBITS}, s{sBITS}, 0x80008", f"s_cmp_lg_u32 s{sBITS}, 0xff", f"s_cselect_b32 s{sLATE}, 1, 0", f"s_cselect_b32 s{sBITS}, 0x40000000, s{sSHOFF}"]
            a(f"v_readfirstlane_b32 s{sBITS}, v{vT+2}")
            fl = []
            for g in range(8):
                pl = ploads(FPE, 1, g, f"s{sBITS}"); fl += [pl[0], pl[2].replace(f"v[{FPE[1]+4*g}:{FPE[1]+4*g+3}]", f"a[{160+4*g}:{163+4*g}]")]
            kw['xauto'] = [(30, 56, so), (56, 104, fl)]
        if j_ == 28 and OPT['prefetch'] and not OPT.get('pfloop', 0) and not OPT.get('pfearly'): kw['xd'] = [(7, f"buffer_load_dword v{vT+3}, v{vPF}, s[{rWO}:{rWO+3}], s81 offen")]
        if j_ == 29:
            kw['dma'] = (True, True, False, True); kw['xauto'] = [(34, 100, wd(0) + wd(1))]
        if j_ == 30:
            kw['dma'] = (False, True, False, False); kw['knext'] = False
            kw['xauto'] = [(34, 100, wd(2) + [woff(3)])]
            kw['vlast'] = sum((X_.vreads(2, db, aKF + 4*db) for db in range(8)), []) + sum((X_.vreads(3, db, AV2 + 4*db) for db in range(8)), [])
        body, carry = X_.sp(j_, carry, kvdma, **kw)
        for x in body: a(x)
    E, Sq, edone = list(carry[0]), list(carry[1]), carry[2]
    post = []
    lq = [qb for qb in range(4) if qb >= OPT['msum']]
    for sw in ('v_permlane16_swap_b32', 'v_permlane32_swap_b32'):
        post += [f"v_mov_b32 v{96+qb}, v{vL+qb}" for qb in lq] + ["s_nop 1"] + [f"{sw} v{vL+qb}, v{96+qb}" for qb in lq] + [f"v_add_f32 v{vL+qb}, v{vL+qb}, v{96+qb}" for qb in lq]
    post += [f"v_add_u32 v{vPF}, s83, v{vFA}"]
    if OPT['single']:
        post += [f"v_mov_b32 v{vSIG}, v{vT}", f"v_bfe_u32 v{vXO}, v{vL16}, 4, 4", f"v_lshlrev_b32 v{vXO}, 10, v{vXO}", f"v_lshrrev_b32 v{vT+3}, 8, v{vL16}", f"v_lshl_add_u32 v{vXO}, v{vT+3}, 3, v{vXO}"]
    ex0 = []
    if OPT['single']:
        for g in range(8):
            pl = ploads(FPE, 1, g, f"s{sBITS}"); ex0 += [pl[0], pl[1], None]
        xl = xloads(); ex0 += [xl[0] + "\n" + xl[1], None, xl[2], xl[3], xl[4], None, xl[5]]
    for g, m in enumerate(X_.pv1(2, aKF) + X_.pv1(3, AV2)):
        check_p(m, Sq)
        a(m)
        if g == 0: a("s_barrier")
        if not E and not Sq and not post and ex0:
            x = ex0.pop(0)
            if x: a(x)
            continue
        room = 2; e_prev = edone
        nav = sum(1 for x in Sq if x[0] <= e_prev)
        if E and (nav < room or g % 2 == 0): a(E.pop(0)); edone += 1; room -= 2
        while room > 0:
            if Sq and Sq[0][0] <= e_prev: a(Sq.pop(0)[1]); room -= 1
            elif not E and not Sq and post: x = post.pop(0); a(x); room -= cost(x)
            else: break
    assert not E and not Sq
    for x in post + [x for x in ex0 if x]: a(x)
    stamp(a, 4)
    for h in range(4): a(f"s_add_u32 s{80+h%2}, s{sW}, {h}\ns_and_b32 s{80+h%2}, s{80+h%2}, 3")  if False else None
    a("s_nop 3")
    for qb in range(OPT['msum']): a(f"v_mov_b32 v{vL+qb}, v{vLM+4*qb}")
    a(f"v_add_f32 v{vT+1}, v{vL}, v{vL+1}\nv_add_f32 v{vT+2}, v{vL+2}, v{vL+3}\nv_add_f32 v{vT+1}, v{vT+1}, v{vT+2}")
    a(f"v_cmp_nge_f32 vcc, {hx(2.0**OPT['fthresh'])}, v{vT+1}\ns_nop 1\ns_cbranch_vccnz L_fallback\nL_fb_ret:")
    for qb in range(4): a(f"v_rcp_f32 v{vL+qb}, v{vL+qb}")
    for h in range(4): a(f"s_add_u32 s0, s{sW}, {h}\ns_and_b32 s0, s0, 3\ns_lshl_b32 s0, s0, 14\nv_add_u32 v{vOA+h}, s0, v{vFA}")
    def norm(sp, qb, pk):
        o_ = []; t = [64, 76, 96, 108][(sp*4 + qb) % 4]; l = vL + qb
        for e in range(2):
            o = aO + ((2*sp + e)*4 + qb)*4
            o_ += [f"v_accvgpr_read_b32 v{t+4*e+i}, a{o+i}" for i in range(4)]
        if pk:
            sel = "op_sel_hi:[1,0]" if l % 2 == 0 else "op_sel:[0,1]"
            o_ += [f"v_pk_mul_f32 v[{t+2*i}:{t+2*i+1}], v[{t+2*i}:{t+2*i+1}], v[{l - l%2}:{l - l%2 + 1}] {sel}" for i in range(4)]
        else: o_ += [f"v_mul_f32 v{t+i}, v{t+i}, v{l}" for i in range(8)]
        o_ += [f"v_cvt_pk_bf16_f32 v{t+8+i}, v{t+2*i}, v{t+2*i+1}" for i in range(4)]
        o_ += [f"ds_write_b128 v{vPF}, v[{t+8}:{t+11}] offset:{(sp*4 + qb)*1024} ; @T:ow{sp//2}"]
        return o_
    ex = []
    NPRE = OPT.get('npre', 16)
    for k in range(NPRE):
        for x in norm(k // 4, k % 4, True): a(x)
        if ex:
            for x in ex.pop(0): a(x)
    stamp(a, 'owritten')
    ord_ = lambda j, ks, qb: f"ds_read_b128 a[{oreg(j, ks, qb)}:{oreg(j, ks, qb)+3}], v{vOA + j % 4} offset:{((2*(j//4) + ks)*4 + qb)*1024}"
    a(f"s_waitcnt vmcnt(@w{base2})")
    for x in wreads(S2[0], base2, 0): a(x)
    for ks in range(2):
        for qb in range(4): a(ord_(0, ks, qb))
    for nb in (1, 2):
        for x in wreads(S2[0], base2, nb): a(x)
    a("s_waitcnt lgkmcnt(@auto)")
    stamp(a, 5)
    fill = {OPT.get('stpos', 13): slab_store(bB, 0, 0)}; xm = {}; xs = {}
    fill[0] = sum((norm(k // 4, k % 4, False) for k in range(NPRE, 16)), [])
    xs[(0, 10)] = ["s_waitcnt lgkmcnt(@ow0)", "s_barrier"]
    if NPRE < 16: xs[(3, 28)] = ["s_waitcnt lgkmcnt(@ow1)", "s_barrier"]
    else: xs[(0, 10)] = ["s_waitcnt lgkmcnt(@ow1)", "s_barrier"]
    for j in range(7):
        gaps = [12, 14, 15, 20, 22, 23, 28, 29] if j == 0 else RG
        for k in range(8): xm.setdefault((j, gaps[k]), []).append(ord_(j + 1, k % 2, k // 2))
    if OPT['single']:
        if not OPT.get('fredend', 1): xs[(3, 8)] = ["s_waitcnt vmcnt(@pl)"]
        fill[0] = [f'v_accvgpr_read_b32 v{FPE[1]+i}, a{160+i}' for i in range(32)]
        if not OPT.get('fredend', 1): fill[3] = fred_fill(FPE, (1,)); fill[8] = fred_fill(FPE, (0,))
    fin = slab_store(bA, 0, 1)
    left = emit_stream(a, S2, base2, fill, xm, xs, late={(15, 18): fin[:20]}, must_empty=(3,), quiet=range(32), cap=dict([(k, OPT.get('ocap', 30)) for k in range(3)] + [(k, OPT.get('fcap', [32, 32, 32, 44, 40, 40, 40, 40, 40])[k-4]) for k in range(4, 13)]))
    for x in left: a(x)
    a("s_nop 5")
    for x in fin[20:]: a(x)
    stamp(a, 6)
    if OPT['timing']: a("s_memrealtime s[80:81]\ns_waitcnt lgkmcnt(0)\ns_mov_b32 s101, s80")
    if OPT['single']:
        (end_phase_flags if OPT.get('flags') else end_phase)(a)
    if OPT['timing'] and not OPT.get('dbgtime'):
        a("s_waitcnt vmcnt(0)")
        a("s_memtime s[44:45]\ns_memrealtime s[46:47]\ns_waitcnt lgkmcnt(0)")
        a(f"s_lshl_b32 s62, s2, 2\ns_add_u32 s62, s62, s{sW}\ns_lshl_b32 s62, s62, 6\ns_add_u32 s62, s62, 0x3000000")
        a(f"s_mov_b32 s{rWS+2}, 0x4000000")
        for i in range(8): a(f"v_mov_b32 v3, s{sTS+2*i if i < 7 else 44}\nv_mov_b32 v4, {4*i}\nbuffer_store_dword v3, v4, s[{rWS}:{rWS+3}], s62 offen")
        a(f"v_mov_b32 v3, s46\nv_mov_b32 v4, 32\nbuffer_store_dword v3, v4, s[{rWS}:{rWS+3}], s62 offen")
        a(f"v_mov_b32 v3, s101\nv_mov_b32 v4, 40\nbuffer_store_dword v3, v4, s[{rWS}:{rWS+3}], s62 offen")
        for k, r in enumerate((94 if OPT.get('flags') else 82, 98, 96)): a(f"v_mov_b32 v3, s{r}\nv_mov_b32 v4, {44+4*k}\nbuffer_store_dword v3, v4, s[{rWS}:{rWS+3}], s62 offen")
        a(f"v_mov_b32 v3, s100\nv_mov_b32 v4, 36\nbuffer_store_dword v3, v4, s[{rWS}:{rWS+3}], s62 offen")
    if OPT.get('dbgtime'):
        a(f"s_cmp_eq_u32 s2, {OPT['dbgtime']-1}\ns_cbranch_scc0 L_main_end\ns_cmp_eq_u32 s{sW}, 0\ns_cbranch_scc0 L_main_end")
        a("s_waitcnt vmcnt(0)\ns_memrealtime s[46:47]\ns_memtime s[44:45]\ns_waitcnt lgkmcnt(0)\ns_mov_b64 exec, 1")
        a(f"s_sub_u32 s0, s46, s100\nv_mov_b32 v3, s0\nv_mov_b32 v4, 4\nbuffer_store_dword v3, v4, s[{rDBG}:{rDBG+3}], 0 offen")
        st = [sTS + 2*i for i in range(7)] + [44]
        for i in range(7):
            a(f"s_sub_u32 s0, s{st[i+1]}, s{st[i]}\nv_mov_b32 v3, s0\nv_mov_b32 v4, {12 + 8*i}\nbuffer_store_dword v3, v4, s[{rDBG}:{rDBG+3}], 0 offen")
    a("L_main_end:\ns_endpgm")
    a.fb = fallback()
    return a

GV = [192 + i for i in range(8)] + [224 + i for i in range(8)]
def fred_fill(FP, which=(0, 1)):
    ops = []
    for fr in which:
        base = FP[fr]
        acc = [16, 17, 22, 23, 24, 25, 30, 31]
        for n in range(8):
            r = base + 4*n
            for i in range(4):
                if n == 0: ops += [f"v_lshlrev_b32 v{acc[2*i]}, 16, v{r+i}", f"v_and_b32 v{acc[2*i+1]}, 0xffff0000, v{r+i}"]
                else:
                    ta, tb = vT + 2*(i % 2), vT + 2*(i % 2) + 1
                    ops += [f"v_lshlrev_b32 v{ta}, 16, v{r+i}", f"v_and_b32 v{tb}, 0xffff0000, v{r+i}", f"v_add_f32 v{acc[2*i]}, v{acc[2*i]}, v{ta}", f"v_add_f32 v{acc[2*i+1]}, v{acc[2*i+1]}, v{tb}"]
        for b in range(0, 8, 4):
            ops += [f"v_mul_f32 v{vT+i}, {hx(-math.log2(math.e))}, v{acc[b+i]}" for i in range(4)]
            ops += [f"v_exp_f32 v{vT+i}, v{vT+i}" for i in range(4)]
            ops += [f"v_add_f32 v{vT+i}, 1.0, v{vT+i}" for i in range(4)]
            ops += [f"v_rcp_f32 v{vT+i}, v{vT+i}" for i in range(4)]
            ops += [f"v_mul_f32 v{GV[8*fr+b+i]}, v{acc[b+i]}, v{vT+i}" for i in range(4)]
    return ops

def fred_pk(FP):
    ops = []
    for fr in range(2):
        base = FP[fr]; acc = 40 + 8*fr
        for n in range(8):
            r = base + 4*n
            d = acc if n == 0 else 56
            for i in range(4): ops += [f"v_lshlrev_b32 v{d+2*i}, 16, v{r+i}", f"v_and_b32 v{d+2*i+1}, s44, v{r+i}"]
            if n: ops += [f"v_pk_add_f32 v[{acc+2*i}:{acc+2*i+1}], v[{acc+2*i}:{acc+2*i+1}], v[{56+2*i}:{57+2*i}]" for i in range(4)]
    for fr in range(2):
        acc = 40 + 8*fr
        ops += [f"v_mul_f32 v{56+i}, s45, v{acc+i}" for i in range(8)]
        ops += [f"v_exp_f32 v{56+i}, v{56+i}" for i in range(8)]
        ops += [f"v_add_f32 v{56+i}, 1.0, v{56+i}" for i in range(8)]
        ops += [f"v_rcp_f32 v{56+i}, v{56+i}" for i in range(8)]
        ops += [f"v_mul_f32 v{GV[8*fr+i]}, v{acc+i}, v{56+i}" for i in range(8)]
    return [f"s_mov_b32 s44, 0xffff0000", f"s_mov_b32 s45, {hx(-math.log2(math.e))}"] + ops

def end_phase(a):
    if OPT.get('fredend', 1):
        for x in fred_pk(FPE): a(x)
    a("v_mov_b32 v32, 0\nv_mov_b32 v33, 0\nv_mov_b32 v36, 0\nv_mov_b32 v37, 0\nv_mov_b32 v38, 0\nv_mov_b32 v39, 0")
    a(f"s_cmp_lg_u32 s{sW}, 0\ns_cbranch_scc1 L_e_nz\nds_write_b32 v32, v33\nL_e_nz:")
    a("s_waitcnt vmcnt(0) lgkmcnt(0)\ns_barrier")
    stamp(a, 'drained')
    if OPT.get('rt2'): a('s_memrealtime s[82:83]\ns_waitcnt lgkmcnt(0)')
    a(f"s_mov_b32 s{sDONE}, 0\ns_mov_b32 s{sTODO}, 0\ns_mov_b32 s{sCNT}, 0\ns_lshl_b32 s46, s{sRB}, 3")
    a(f"s_cmp_lg_u32 s{sW}, 0\ns_cbranch_scc1 L_e_other")
    a(f"s_lshl_b32 s47, 1, s{sG}\nv_mov_b32 v34, s47\ns_mov_b64 exec, 1\nbuffer_atomic_or v34, v{vSIG}, s[{rDBG}:{rDBG+3}], 0 offen sc0\ns_waitcnt vmcnt(0)\nv_readfirstlane_b32 s{sBITS}, v34\ns_mov_b64 exec, -1")
    a(f"s_or_b32 s{sBITS}, s{sBITS}, s47\ns_and_b32 s47, s{sBITS}, 0xff\ns_cmp_eq_u32 s47, 0xff\ns_cbranch_scc1 L_e_pub")
    a(f"L_e_w0:\ns_nop 0\ns_or_b32 s{sBITS}, s{sBITS}, s{sDONE}\ns_and_b32 s{sBITS}, s{sBITS}, 0xff")
    a(f"L_e_pub:\ns_and_b32 s{sBITS}, s{sBITS}, 0xff00ff\nv_mov_b32 v33, s{sBITS}\nds_write_b32 v32, v33\ns_branch L_e_have")
    a(f"L_e_other:\nds_read_b32 v33, v32\ns_waitcnt lgkmcnt(0)\nv_readfirstlane_b32 s{sBITS}, v33\ns_nop 0\ns_bitcmp1_b32 s{sBITS}, 31\ns_cbranch_scc1 L_e_exit")
    a(f"L_e_have:\ns_andn2_b32 s47, s{sBITS}, s{sDONE}")
    for g in range(8):
        a(f"s_bitcmp1_b32 s47, {g}\ns_cbranch_scc0 L_e_s{g}")
        for x in ploads(SPR, 0, g, f"s{sSHOFF}"): a(x)
        a(f"L_e_s{g}:")
    a(f"s_or_b32 s{sDONE}, s{sDONE}, s{sBITS}\ns_and_b32 s47, s{sDONE}, 0xff\ns_cmp_eq_u32 s47, 0xff\ns_cbranch_scc1 L_e_all")
    a(f"s_cmp_lg_u32 s{sW}, 0\ns_cbranch_scc0 L_e_poll\ns_sleep 1\ns_branch L_e_other")
    a(f"L_e_poll:\ns_add_u32 s{sCNT}, s{sCNT}, 1\ns_cmp_gt_u32 s{sCNT}, {OPT['spin']}\ns_cbranch_scc1 L_e_abandon")
    PD = OPT.get('pdepth', 1)
    if PD == 1:
        a(f"s_sleep {OPT.get('psleep', 2)}\nbuffer_load_dword v34, off, s[{rDBG}:{rDBG+3}], s46 sc1\ns_waitcnt vmcnt(0)\nv_readfirstlane_b32 s{sBITS}, v34\ns_branch L_e_w0")
    else:
        a(f"s_sleep {OPT.get('psleep', 2)}\ns_and_b32 s47, s{sCNT}, {PD-1}")
        for k in range(PD):
            a(f"s_cmp_eq_u32 s47, {k}\ns_cbranch_scc0 L_e_p{k}\nbuffer_load_dword v{36+k}, off, s[{rDBG}:{rDBG+3}], s46 sc1\ns_waitcnt vmcnt({PD-1})\nv_readfirstlane_b32 s{sBITS}, v{36+(k+1)%PD}\ns_branch L_e_w0\nL_e_p{k}:")
    a(f"L_e_abandon:\ns_lshl_b32 s47, 0x10000, s{sG}\nv_mov_b32 v34, s47\ns_mov_b64 exec, 1\nbuffer_atomic_or v34, v{vSIG}, s[{rDBG}:{rDBG+3}], 0 offen sc0\ns_waitcnt vmcnt(0)\nv_readfirstlane_b32 s{sBITS}, v34\ns_mov_b64 exec, -1")
    a(f"s_nop 0\ns_and_b32 s47, s{sBITS}, 0xff\ns_cmp_eq_u32 s47, 0xff\ns_cbranch_scc1 L_e_w0")
    a(f"v_mov_b32 v33, 0x80000000\nds_write_b32 v32, v33\ns_waitcnt lgkmcnt(0)\ns_branch L_e_exit")
    a(f"L_e_all:\ns_lshr_b32 s{sTODO}, s{sBITS}, 16")
    stamp(a, 'allseen')
    if OPT.get('rt2'): a('s_memrealtime s[98:99]\ns_waitcnt lgkmcnt(0)')
    a(f"L_e_fin:\ns_cmp_eq_u32 s{sLATE}, 0\ns_cbranch_scc1 L_e_nolate")
    for g in range(8):
        for x in ploads(FPL, 1, g, f"s{sSHOFF}"): a(x)
    for x in xloads(): a(x)
    a("s_waitcnt vmcnt(0)")
    for x in fred_pk(FPL): a(x)
    a("L_e_nolate:\ns_mov_b32 s44, 0xffff0000\ns_waitcnt vmcnt(0)")
    if OPT.get('rt2'): a('s_memrealtime s[96:97]\ns_waitcnt lgkmcnt(0)')
    for fr in range(2):
        d = 64 + 8*fr
        for n in range(8):
            r = SPR[fr] + 4*n
            for i in range(4):
                if n == 0: a(f"v_lshlrev_b32 v{d+2*i}, 16, v{r+i}\nv_and_b32 v{d+2*i+1}, s44, v{r+i}")
                else: a(f"v_lshlrev_b32 v{80+2*i}, 16, v{r+i}\nv_and_b32 v{81+2*i}, s44, v{r+i}")
            if n:
                for i in range(4): a(f"v_pk_add_f32 v[{d+2*i}:{d+2*i+1}], v[{d+2*i}:{d+2*i+1}], v[{80+2*i}:{81+2*i}]")
        a(f"s_add_u32 s0, s{sXOFF}, {fr*16384}")
        for e in range(2):
            xr_ = xregs[2*fr+e]
            for i in range(2): a(f"v_lshlrev_b32 v{80+2*i}, 16, v{xr_+i}\nv_and_b32 v{81+2*i}, 0xffff0000, v{xr_+i}")
            for i in range(4): a(f"v_fmac_f32 v{80+i}, v{d+4*e+i}, v{GV[8*fr+4*e+i]}")
            a(f"v_cvt_pk_bf16_f32 v{88+4*fr+2*e}, v80, v81\nv_cvt_pk_bf16_f32 v{89+4*fr+2*e}, v82, v83")
            a(f"buffer_store_dwordx2 v[{88+4*fr+2*e}:{89+4*fr+2*e}], v{vXO}, s[{rOUT}:{rOUT+3}], s0 offen offset:{32*e}{OPT.get('outflags', '')}")
    a(f"s_cmp_eq_u32 s{sTODO}, 0\ns_cbranch_scc1 L_e_exit")
    a(f"s_ff1_i32_b32 s47, s{sTODO}\ns_bitset0_b32 s{sTODO}, s47\ns_mov_b32 s{sLATE}, 1")
    for x in share_offsets("s47"): a(x)
    for g in range(8):
        for x in ploads(SPR, 0, g, f"s{sSHOFF}"): a(x)
    a("s_branch L_e_fin\nL_e_exit:")

def flag_off(d):
    return [f"s_lshl_b32 s{d}, s{sRB}, 3", f"s_add_u32 s{d}, s{d}, s{sG}", f"s_lshl_b32 s{d}, s{d}, 2", f"s_add_u32 s{d}, s{d}, s{sW}", f"s_lshl_b32 s{d}, s{d}, 2", f"s_add_u32 s{d}, s{d}, 0x2000000"]

def end_phase_flags(a):
    for x in fred_pk(FPE): a(x)
    sWX = 83
    a("v_mov_b32 v32, 0\nv_mov_b32 v33, 0\nv_mov_b32 v36, 1\nv_mov_b32 v48, 0\nv_mov_b32 v49, 0\nv_mov_b32 v50, 0\nv_mov_b32 v51, 0")
    for x in flag_off(47): a(x)
    a(f"s_lshl_b32 s46, s{sRB}, 7\ns_lshr_b32 s0, s{sG}, 1\ns_lshl_b32 s0, s0, 2\ns_add_u32 s46, s46, s0\ns_add_u32 s82, s46, 0x2000000\ns_lshl_b32 s46, s{sRB}, 3")
    a(f"s_cmp_lg_u32 s{sW}, 0\ns_cbranch_scc1 L_e_nz\nds_write_b32 v32, v33\nL_e_nz:")
    a(f"s_waitcnt vmcnt(0)\ns_mov_b64 exec, 1\nbuffer_store_dword v36, off, s[{rWS}:{rWS+3}], s47 sc1\ns_mov_b64 exec, -1\ns_waitcnt lgkmcnt(0)\ns_barrier")
    stamp(a, 'drained')
    if OPT.get('rt2'): a('s_memrealtime s[80:81]\ns_waitcnt lgkmcnt(0)\ns_mov_b32 s94, s80')
    a(f"s_mov_b32 s{sDONE}, 0\ns_mov_b32 s{sTODO}, 0\ns_mov_b32 s{sCNT}, 0\nv_mov_b32 v35, 0")
    a(f"s_cmp_eq_u32 s{sW}, 0\ns_cbranch_scc1 L_e_poll1\ns_cmp_eq_u32 s{sW}, 1\ns_cbranch_scc0 L_e_other")
    a(f"s_lshl_b32 s47, 1, s{sG}\nv_mov_b32 v35, s47\ns_mov_b64 exec, 1\nbuffer_atomic_or v35, v{vSIG}, s[{rDBG}:{rDBG+3}], 0 offen sc0\ns_mov_b64 exec, -1")
    a(f"L_e_other:\nds_read_b32 v33, v32\ns_waitcnt lgkmcnt(0)\nv_readfirstlane_b32 s{sBITS}, v33\ns_nop 0\ns_bitcmp1_b32 s{sBITS}, 31\ns_cbranch_scc1 L_e_gaveup")
    a(f"L_e_have:\ns_andn2_b32 s47, s{sBITS}, s{sDONE}")
    for g in range(8):
        a(f"s_bitcmp1_b32 s47, {g}\ns_cbranch_scc0 L_e_s{g}")
        for x in ploads(SPR, 0, g, f"s{sSHOFF}"): a(x)
        a(f"L_e_s{g}:")
    a(f"s_or_b32 s{sDONE}, s{sDONE}, s{sBITS}\ns_cmp_eq_u32 s{sDONE}, 0xff\ns_cbranch_scc1 L_e_all")
    a(f"s_cmp_lg_u32 s{sW}, 0\ns_cbranch_scc0 L_e_poll\ns_sleep 1\ns_branch L_e_other")
    a(f"L_e_poll:\ns_add_u32 s{sCNT}, s{sCNT}, 1\ns_cmp_gt_u32 s{sCNT}, {OPT['spin']}\ns_cbranch_scc1 L_e_abandon\ns_sleep {OPT.get('psleep', 2)}")
    a(f"L_e_poll1:\ns_cmp_eq_u32 s{sLATE}, 0\ns_cbranch_scc0 L_e_polld")
    PD = OPT.get('pdepth', 1)
    a(f"s_mov_b64 exec, 0xff\ns_and_b32 s47, s{sCNT}, {PD-1}")
    for k in range(PD):
        a(f"s_cmp_eq_u32 s47, {k}\ns_cbranch_scc0 L_e_p{k}\nbuffer_load_dword v{48+k}, v{vL16}, s[{rWS}:{rWS+3}], s82 offen sc1\ns_waitcnt vmcnt({PD-1})\nv_cmp_eq_u32 vcc, 1, v{48+(k+1)%PD}\ns_branch L_e_pq\nL_e_p{k}:")
    a(f"L_e_pq:\ns_nop 1\ns_mov_b64 exec, -1\ns_or_b32 s{sBITS}, vcc_lo, s{sDONE}\ns_lshl_b32 s47, 1, s{sG}\ns_or_b32 s{sBITS}, s{sBITS}, s47\ns_and_b32 s{sBITS}, s{sBITS}, 0xff\ns_branch L_e_pub")
    a(f"L_e_polld:\nbuffer_load_dword v34, off, s[{rDBG}:{rDBG+3}], s46 sc1\ns_waitcnt vmcnt(0)\nv_readfirstlane_b32 s{sBITS}, v34")
    a(f"L_e_w0:\ns_nop 0\ns_and_b32 s{sBITS}, s{sBITS}, 0xff")
    a(f"L_e_pub:\nv_mov_b32 v33, s{sBITS}\nds_write_b32 v32, v33\ns_branch L_e_have")
    a(f"L_e_abandon:\ns_lshl_b32 s47, 0x10000, s{sG}\nv_mov_b32 v34, s47\ns_mov_b64 exec, 1\nbuffer_atomic_or v34, v{vSIG}, s[{rDBG}:{rDBG+3}], 0 offen sc0\ns_waitcnt vmcnt(0)\nv_readfirstlane_b32 s{sBITS}, v34\ns_mov_b64 exec, -1")
    a(f"s_nop 0\ns_and_b32 s47, s{sBITS}, 0xff\ns_cmp_eq_u32 s47, 0xff\ns_cbranch_scc1 L_e_w0")
    a(f"v_mov_b32 v33, 0x80000000\nds_write_b32 v32, v33\ns_waitcnt lgkmcnt(0)\ns_branch L_e_exit")
    a(f"L_e_all:\ns_mov_b32 s{sWX}, 99")
    stamp(a, 'allseen')
    if OPT.get('rt2'): a('s_memrealtime s[98:99]\ns_waitcnt lgkmcnt(0)')
    a(f"L_e_fin:\ns_cmp_eq_u32 s{sLATE}, 0\ns_cbranch_scc1 L_e_nolate")
    for g in range(8):
        for x in ploads(FPL, 1, g, f"s{sSHOFF}"): a(x)
    for x in xloads(): a(x)
    a("s_waitcnt vmcnt(0)")
    for x in fred_pk(FPL): a(x)
    a(f's_mov_b32 s82, s44' if False else 's_nop 0')
    a("L_e_nolate:\ns_waitcnt vmcnt(0)")
    if OPT.get('rt2'): a('s_memrealtime s[96:97]\ns_waitcnt lgkmcnt(0)')
    for fr in range(2):
        d = 64 + 8*fr
        for n in range(8):
            r = SPR[fr] + 4*n
            for i in range(4):
                if n == 0: a(f"v_lshlrev_b32 v{d+2*i}, 16, v{r+i}\nv_and_b32 v{d+2*i+1}, 0xffff0000, v{r+i}")
                else: a(f"v_lshlrev_b32 v{80+2*i}, 16, v{r+i}\nv_and_b32 v{81+2*i}, 0xffff0000, v{r+i}")
            if n:
                for i in range(4): a(f"v_pk_add_f32 v[{d+2*i}:{d+2*i+1}], v[{d+2*i}:{d+2*i+1}], v[{80+2*i}:{81+2*i}]")
        a(f"s_add_u32 s0, s{sXOFF}, {fr*16384}")
        for e in range(2):
            xr_ = xregs[2*fr+e]
            for i in range(2): a(f"v_lshlrev_b32 v{80+2*i}, 16, v{xr_+i}\nv_and_b32 v{81+2*i}, 0xffff0000, v{xr_+i}")
            for i in range(4): a(f"v_fmac_f32 v{80+i}, v{d+4*e+i}, v{GV[8*fr+4*e+i]}")
            a(f"v_cvt_pk_bf16_f32 v{88+4*fr+2*e}, v80, v81\nv_cvt_pk_bf16_f32 v{89+4*fr+2*e}, v82, v83")
            a(f"buffer_store_dwordx2 v[{88+4*fr+2*e}:{89+4*fr+2*e}], v{vXO}, s[{rOUT}:{rOUT+3}], s0 offen offset:{32*e}{OPT.get('outflags', '')}")
    a(f"s_branch L_e_duty\nL_e_gaveup:\ns_waitcnt vmcnt(0)\ns_mov_b32 s{sWX}, 99\nL_e_duty:")
    a(f"s_cmp_eq_u32 s{sW}, 1\ns_cbranch_scc0 L_e_exit")
    a(f"s_cmp_eq_u32 s{sWX}, 99\ns_cbranch_scc0 L_e_next")
    a(f"v_readfirstlane_b32 s47, v35\ns_lshl_b32 s0, 1, s{sG}\ns_nop 0\ns_or_b32 s0, s0, s47\ns_and_b32 s0, s0, 0xff\ns_cmp_eq_u32 s0, 0xff\ns_cbranch_scc0 L_e_exit")
    a(f"s_bfe_u32 s{sTODO}, s47, 0x80010\ns_mov_b32 s{sWX}, 3")
    a(f"L_e_next:\ns_add_u32 s{sWX}, s{sWX}, 1\ns_cmp_lt_u32 s{sWX}, 4\ns_cbranch_scc1 L_e_same")
    a(f"s_cmp_eq_u32 s{sTODO}, 0\ns_cbranch_scc1 L_e_exit")
    a(f"s_ff1_i32_b32 s82, s{sTODO}\ns_bitset0_b32 s{sTODO}, s82\ns_mov_b32 s{sWX}, 0")
    a(f"L_e_same:\ns_mov_b32 s{sLATE}, 1")
    for x in share_offsets("s82", sWX): a(x)
    for g in range(8):
        for x in ploads(SPR, 0, g, f"s{sSHOFF}"): a(x)
    a("s_branch L_e_fin\nL_e_exit:")

def fallback():
    a = Prog()
    a("L_fallback:")
    M = [64 + qb for qb in range(4)]; AL = [68 + qb for qb in range(4)]; TM = [72 + 2*qb for qb in range(4)]
    FK, FV = 80, 88
    a(f"s_waitcnt vmcnt(0) lgkmcnt(0)\ns_mov_b32 s{sLATE}, 1")
    o1, o2 = attn_addr_ops()
    KA2 = 96; VA2 = [100 + i for i in range(8)]
    for x in o1:
        for s in range(4): x = x.replace(f"v_lshl_add_u32 v{vKA+s},", f"v_lshl_add_u32 v{KA2+s},")
        a(x)
    for x in o2:
        for db in range(8): x = x.replace(f"v_lshl_add_u32 v{vVAl[db]}, v{vT+3}, 5", f"v_lshl_add_u32 v{VA2[db]}, v{vT+3}, 5")
        a(x)
    for r in [KA2 + s for s in range(4)] + VA2: a(f"v_add_u32 v{r}, s83, v{r}")
    a(f"v_lshrrev_b32 v{vT}, 8, v{vL16}\nv_bfe_u32 v{vT+1}, v{vL16}, 4, 4")
    for part in range(4):
        for i in range(2):
            a(f"v_add_u32 v{vT+2}, {8*part + 4*i}, v{vT}\nv_and_b32 v{vT+2}, 15, v{vT+2}\nv_xor_b32 v{vT+2}, v{vT+2}, v{vT+1}\nv_lshlrev_b32 v{vT+2}, 4, v{vT+2}\nv_add_u32 v{vT+3}, {8*part}, v{vT}\nv_lshl_add_u32 v{FK+2*part+i}, v{vT+3}, 8, v{vT+2}")
            a(f"v_add_u32 v{vT+2}, {4*i}, v{vT}\nv_lshlrev_b32 v{vT+2}, 1, v{vT+2}\nv_xor_b32 v{vT+2}, v{vT+2}, v{vT+1}\nv_lshlrev_b32 v{vT+2}, 4, v{vT+2}\nv_lshl_add_u32 v{FV+2*part+i}, v{vT+3}, 8, v{vT+2}")
    for qb in range(4): a(f"v_mov_b32 v{M[qb]}, 0xff7fffff\nv_mov_b32 v{vL+qb}, 0")
    for i in range(128): a(f"v_accvgpr_write_b32 a{aO+i}, 0")
    a(f"s_mov_b32 s80, 0\ns_add_u32 s81, s83, {LB}")
    a("L_fb_loop:")
    for part in range(4):
        a(f"s_add_u32 m0, s81, {part*4096}\ns_nop 0")
        a(f"buffer_load_dwordx4 v{FK+2*part}, s[{rK}:{rK+3}], s80 offen lds\nbuffer_load_dwordx4 v{FK+2*part+1}, s[{rK}:{rK+3}], s80 offen offset:1024 lds")
        a(f"buffer_load_dwordx4 v{FV+2*part}, s[{rV}:{rV+3}], s80 offen offset:2048 lds\nbuffer_load_dwordx4 v{FV+2*part+1}, s[{rV}:{rV+3}], s80 offen offset:3072 lds")
    a("s_waitcnt vmcnt(0)")
    for x in kreads(0):
        for s in range(4): x = x.replace(f", v{vKA+s} ", f", v{KA2+s} ")
        a(x)
    a("s_waitcnt lgkmcnt(0)")
    for db in range(8):
        for jj in range(2): a(f"ds_read_b64_tr_b16 a[{aVF+db*4+2*jj}:{aVF+db*4+2*jj+1}], v{VA2[db]} offset:{jj*8192}")
    for x in qk(0, '0'): a(x)
    a("s_nop 7\ns_waitcnt lgkmcnt(0)")
    for qb in range(4):
        b0 = vS[0] + qb*8; T = TM[qb]
        a(f"v_max3_f32 v{T}, v{b0}, v{b0+1}, v{b0+2}\nv_max3_f32 v{T}, v{T}, v{b0+3}, v{b0+4}\nv_max3_f32 v{T}, v{T}, v{b0+5}, v{b0+6}\nv_max3_f32 v{T}, v{T}, v{b0+7}, v{M[qb]}")
        xreduce(a, T, 'v_max_f32', T + 1)
        a(f"v_sub_f32 v{AL[qb]}, v{M[qb]}, v{T}\nv_mov_b32 v{M[qb]}, v{T}\nv_exp_f32 v{AL[qb]}, v{AL[qb]}")
        for i in range(8): a(f"v_sub_f32 v{b0+i}, v{b0+i}, v{T}")
        for i in range(8): a(f"v_exp_f32 v{b0+i}, v{b0+i}")
        a(f"v_mul_f32 v{vL+qb}, v{vL+qb}, v{AL[qb]}")
        for i in range(8): a(f"v_add_f32 v{vL+qb}, v{vL+qb}, v{b0+i}")
        for i in range(4): a(f"v_cvt_pk_bf16_f32 v{vP[0]+qb*4+i}, v{b0+2*i}, v{b0+2*i+1}")
        for db in range(8):
            o = aO + (db*4 + qb)*4
            for i in range(4): a(f"v_accvgpr_read_b32 v{vT+i}, a{o+i}")
            for i in range(4): a(f"v_mul_f32 v{vT+i}, v{vT+i}, v{AL[qb]}")
            for i in range(4): a(f"v_accvgpr_write_b32 a{o+i}, v{vT+i}")
    a("s_nop 1")
    for x in pv(0, False, 0): a(x)
    a("s_nop 7\ns_add_u32 s80, s80, 8192\ns_cmp_lt_u32 s80, 0x80000\ns_cbranch_scc1 L_fb_loop")
    for qb in range(4): xreduce(a, vL + qb, 'v_add_f32', vT)
    a("s_branch L_fb_ret")
    return a

def final_kernel():
    a = Prog()
    a("final_kernel:")
    a("s_cmp_ge_u32 s2, 512\ns_cbranch_scc1 L_fin_end")
    if OPT['timing']: a("s_memrealtime s[30:31]")
    a("s_load_dwordx2 s[4:5], s[0:1], 0\ns_load_dwordx2 s[6:7], s[0:1], 72\ns_load_dwordx2 s[8:9], s[0:1], 88")
    a("v_lshrrev_b32 v2, 6, v0\nv_and_b32 v0, 63, v0\nv_readfirstlane_b32 s3, v2\nv_lshlrev_b32 v1, 4, v0")
    a("s_lshl_b32 s10, s2, 2\ns_nop 2\ns_add_u32 s10, s10, s3")
    a("s_waitcnt lgkmcnt(0)")
    srd(a, 12, 4, 2048*1024); srd(a, 16, 6, 2048*1024); srd(a, 20, 8, 0x2000000)
    a("s_lshl_b32 s11, s10, 10")
    for t in range(2):
        for g in range(8):
            a(f"s_add_u32 s24, s11, {t*0x1000000 + g*0x200000}")
            r = 8 + (t*8 + g)*4
            a(f"buffer_load_dwordx4 v[{r}:{r+3}], v1, s[20:23], s24 offen ; @T:l{t}{g}")
    a("s_lshr_b32 s25, s10, 6\ns_lshl_b32 s25, s25, 16\ns_and_b32 s26, s10, 3\ns_lshl_b32 s26, s26, 14\ns_add_u32 s25, s25, s26")
    a("s_bfe_u32 s26, s10, 0x40002\ns_lshl_b32 s26, s26, 6\ns_add_u32 s25, s25, s26")
    a("v_and_b32 v2, 15, v0\nv_lshlrev_b32 v2, 10, v2\nv_lshrrev_b32 v3, 4, v0\nv_lshl_add_u32 v2, v3, 3, v2")
    a("buffer_load_dwordx2 v[4:5], v2, s[12:15], s25 offen ; @T:x\nbuffer_load_dwordx2 v[6:7], v2, s[12:15], s25 offen offset:32 ; @T:x")
    acc = [72, 80]
    for t in range(2):
        for g in range(8):
            r = 8 + (t*8 + g)*4
            a(f"s_waitcnt vmcnt(@l{t}{g})")
            for i in range(4):
                if g == 0:
                    a(f"v_lshlrev_b32 v{acc[t]+2*i}, 16, v{r+i}\nv_and_b32 v{acc[t]+2*i+1}, 0xffff0000, v{r+i}")
                else:
                    a(f"v_lshlrev_b32 v88, 16, v{r+i}\nv_and_b32 v89, 0xffff0000, v{r+i}\nv_pk_add_f32 v[{acc[t]+2*i}:{acc[t]+2*i+1}], v[{acc[t]+2*i}:{acc[t]+2*i+1}], v[88:89]")
    for i in range(8): a(f"v_mul_f32 v{8+i}, {hx(-math.log2(math.e))}, v{80+i}")
    for i in range(8): a(f"v_exp_f32 v{8+i}, v{8+i}")
    for i in range(8): a(f"v_add_f32 v{8+i}, 1.0, v{8+i}")
    for i in range(8): a(f"v_rcp_f32 v{8+i}, v{8+i}")
    for i in range(8): a(f"v_mul_f32 v{8+i}, v{8+i}, v{80+i}")
    a("s_waitcnt vmcnt(@x)")
    for i in range(4): a(f"v_lshlrev_b32 v{16+2*i}, 16, v{4+i}\nv_and_b32 v{17+2*i}, 0xffff0000, v{4+i}")
    for i in range(8): a(f"v_fmac_f32 v{16+i}, v{8+i}, v{72+i}")
    for i in range(4): a(f"v_cvt_pk_bf16_f32 v{4+i}, v{16+2*i}, v{17+2*i}")
    a("buffer_store_dwordx2 v[4:5], v2, s[16:19], s25 offen\nbuffer_store_dwordx2 v[6:7], v2, s[16:19], s25 offen offset:32")
    if OPT['timing']:
        a("s_waitcnt vmcnt(0)\ns_memrealtime s[32:33]\ns_waitcnt lgkmcnt(0)\ns_mov_b32 s22, 0x4000000\ns_lshl_b32 s11, s10, 3\ns_add_u32 s11, s11, 0x3100000")
        a("v_mov_b32 v4, s30\nv_mov_b32 v5, s32\nv_mov_b32 v2, 0\nbuffer_store_dwordx2 v[4:5], v2, s[20:23], s11 offen")
    a("L_fin_end:\ns_endpgm")
    return a

def kd(name, vgpr, acc):
    return f""".section .rodata,"a"
.p2align 6
.amdhsa_kernel {name}
  .amdhsa_next_free_vgpr {vgpr}
  .amdhsa_next_free_sgpr 102
  .amdhsa_accum_offset {acc}
  .amdhsa_group_segment_fixed_size 0
  .amdhsa_kernarg_size 96
  .amdhsa_user_sgpr_count 2
  .amdhsa_user_sgpr_kernarg_segment_ptr 1
  .amdhsa_system_sgpr_workgroup_id_x 1
.end_amdhsa_kernel
"""

def build(opts=None):
    if opts: OPT.update(opts)
    m = main_kernel(); f = final_kernel()
    lo, hi = m.loop
    L1 = resolve_waits(m.L)
    dbl = m.L[:hi] + m.L[lo:hi] + m.L[hi:]
    L2 = resolve_waits(dbl)
    def loopseg(L, k):
        idx = [i for i, x in enumerate(L) if x.startswith('L_attn_loop')][0] + 1
        n = len(L2) - len(L1)
        return L[idx + k*n: idx + (k+1)*n]
    assert loopseg(L2, 0) == loopseg(L2, 1), "loop waits differ between trips"
    assert L2[-200:] == L1[-200:]
    probs = check_stream(L2, 'main')
    FB = resolve_waits(m.fb.L); probs += check_stream(FB + FB, 'fallback')
    ID = resolve_waits(m.idle.L); probs += check_stream(ID, 'idle')
    F1 = resolve_waits(f.L); probs += check_stream(F1, 'final')
    strip = lambda L: [re.sub(r'\s*;.*', '', x) for x in L]
    txt = HEADER
    if OPT['single']:
        name = KNAME + '_kernel'
        txt += "; @launch grid=(256,1,1) block=(256,1,1) lds=163840\n"
    else:
        name = 'main_kernel'
        txt += "; @launch kernel=main_kernel grid=(256,1,1) block=(256,1,1) lds=163840\n; @launch kernel=final_kernel grid=(512,1,1) block=(256,1,1) lds=0\n"
    txt += '.amdgcn_target "amdgcn-amd-amdhsa--gfx950"\n.text\n'
    L1[0] = name + ':'
    txt += f".globl {name}\n.p2align 8\n.type {name},@function\n" + "\n".join(strip(L1)) + "\n" + "\n".join(strip(ID)) + "\nL_code_end:\n" + "\n".join(strip(FB)) + "\n"
    if not OPT['single']:
        txt += ".globl final_kernel\n.p2align 8\n.type final_kernel,@function\n" + "\n".join(strip(F1)) + "\n"
    txt += kd(name, 512, 256) + ('' if OPT['single'] else kd('final_kernel', 96, 96))
    return txt, probs

if __name__ == '__main__':
    opts = eval(sys.argv[2]) if len(sys.argv) > 2 else None
    txt, probs = build(opts)
    open(sys.argv[1], 'w').write(txt)
    print(len(txt), 'bytes;', len(probs), 'hazard problems')
    for p in probs[:30]: print(p)
```

```python
import sys, re, math, struct
from asmlib import Ins, check_stream, cost
from sp import SP

KNAME = 'recurrent_scan__gqa_block_cached__geglu_ffn__prompt'
MF = 'v_mfma_f32_16x16x32_bf16'
def f2u(x): return struct.unpack('<I', struct.pack('<f', x))[0]
def hx(x): return '0x%08x' % f2u(x)

OPT = dict(late2=1, npre=16, ocap=16, lnm=1, early=0, lnevery=16, map=4, xdma=1, psleep=8, single=1, spin=30000, msum=2, stflags=' sc1', prefetch=1, codepf=1, timing=0, stamps=[0,1,2,3,4,5,6,7], fthresh=24, filler_cap=48)

sW, sG, sRB, sNU, sU0 = 3, 4, 5, 6, 7
sRBX = sRB
rK, rV, rWG, rWU, rWQ, rWD, rWO, rX, rWS = 8, 12, 16, 20, 24, 28, 32, 36, 40
rOUT, rDBG = 64, 68
sLATE, sSHOFF, sXOFF, sDONE, sTODO, sBITS = 61, 62, 63, 84, 85, 1
sKO = 44
sKVM0, sCNT, sRING, sJ, sOFF0, sOFF1, sROT = 48, 49, 50, 51, 52, 53, 54
sCOG, sCOQ, sCOD, sCOD3, sCOO, sSLAB = 55, 56, 57, 58, 59, 60
sT = 72
sTS = 86
vFA, vL16 = 0, 1
vWA, vWI = 2, 6
vDG, vDQ, vDO = 10, 14, 18
vDK, vDV = 22, 24
vT = 26
vGB, vPF = 30, 31
vW = 32
bA, bB, bC = 64, 128, 192
vKA = 10
vVAl = [2, 3, 4, 5, 14, 15, 16, 17]
vQ = bB; vS = [bC, bC + 32]; vP = [32, 48]
vNEGM, vONES, vLM, vL = 96, 112, 116, 124
aO, aKF, aVF = 0, 192, 224
RING = 0
LB = 98304

HEADER = """; Kernarg layout (96 bytes, ptrs only, base s[0:1]):
; One fused kernel, 256 workgroups x 4 waves (one per SIMD, 512 registers), workgroup = (64-row block rb, kv head g):
; Written with my own generator script (register allocation, MFMA-gap scheduling and s_waitcnt counting).
"""

class Prog:
    def __init__(self): self.L = []
    def __call__(self, s):
        for x in s.split('\n'):
            x = x.strip()
            if x: self.L.append(x)

def srd(a, r, lo, size, add=None, sub=None):
    a(f"s_mov_b32 s{r}, s{lo}\ns_mov_b32 s{r+1}, s{lo+1}")
    if add: a(f"s_add_u32 s{r}, s{r}, {add}\ns_addc_u32 s{r+1}, s{r+1}, 0")
    if sub: a(f"s_sub_u32 s{r}, s{r}, {sub}\ns_subb_u32 s{r+1}, s{r+1}, 0")
    a(f"s_mov_b32 s{r+2}, {size}\ns_mov_b32 s{r+3}, 0x20000")

def stampl(name):
    if OPT['timing'] and name in OPT['stamps']:
        i = OPT['stamps'].index(name)
        return [f"s_memtime s[{sTS+2*i}:{sTS+2*i+1}]", "s_waitcnt lgkmcnt(0)"]
    return []
def stamp(a, name):
    for x in stampl(name): a(x)

def resolve_waits(lines):
    parsed = []
    for l in lines:
        t = l.split(';')[0].strip()
        parsed.append(None if (not t or t.endswith(':') or t.startswith('.')) else Ins(t))
    out = list(lines)
    vmq = []; dsq = []
    for i, l in enumerate(lines):
        I = parsed[i]
        if I is None: continue
        tag = None
        m = re.search(r'@T:(\w+)', l)
        if m: tag = m.group(1)
        if I.op == 's_waitcnt':
            parts = []
            m = re.search(r'vmcnt\(([^)]*)\)', l)
            if m:
                x = m.group(1)
                if x.startswith('@'):
                    idx = [k for k, e in enumerate(vmq) if e[0] in x[1:].split('|')]
                    n = len(vmq) - 1 - idx[-1] if idx else None
                else: n = int(x)
                if n is not None:
                    n = min(n, 63); parts.append(f"vmcnt({n})")
                    while len(vmq) > n: vmq.pop(0)
            m = re.search(r'lgkmcnt\(([^)]*)\)', l)
            if m:
                ns = []
                for x in m.group(1).split('+'):
                    if x == '@auto':
                        need = -1
                        for j in range(i + 1, len(lines)):
                            J = parsed[j]
                            if J is None: continue
                            if J.op == 's_waitcnt' and ('@auto' in lines[j] or 'lgkmcnt(0)' in lines[j]): break
                            tch = set(J.r) | set(J.w)
                            for k, e in enumerate(dsq):
                                if tch & e[1]: need = max(need, k)
                        if need >= 0: ns.append(len(dsq) - 1 - need)
                    elif x.startswith('@'):
                        idx = [k for k, e in enumerate(dsq) if e[0] == x[1:]]
                        if idx: ns.append(len(dsq) - 1 - idx[-1])
                    else: ns.append(int(x))
                if ns:
                    n = min(min(ns), 15); parts.append(f"lgkmcnt({n})")
                    while len(dsq) > n: dsq.pop(0)
            out[i] = ("s_waitcnt " + " ".join(parts)) if parts else None
        elif I.kind in ('dsr', 'dsw'): dsq.append((tag, set(I.w)))
        elif I.kind == 'smem':
            dsq.append((tag, set(I.w))); dsq.append((tag, set(I.w)))
        elif I.kind in ('vld', 'vst', 'dma') and '@X' not in l: vmq.append((tag, set(I.w)))
    return [x for x in out if x is not None]

class Panel:
    def __init__(self, name, srd, dv, rs, co, acc, first, bfrag, inter, rot, row0=0):
        self.name = name; self.srd = srd; self.dv = dv; self.rs = rs; self.co = co; self.acc = acc
        self.first = first; self.bfrag = bfrag; self.inter = inter; self.rot = rot; self.row0 = row0

def panel_dma(P, idx):
    sl = idx % 3
    s0 = []
    if P.rot:
        s0 += [f"s_add_u32 s{sJ}, s{sJ}, 1", f"s_and_b32 s{sJ}, s{sJ}, 7", f"s_mul_i32 s{sOFF0}, s{sJ}, {64*P.rs}", f"s_add_u32 s{sOFF0}, s{sOFF0}, {P.co}"]
        if P.row0: s0.append(f"s_add_u32 s{sOFF0}, s{sOFF0}, {P.row0}")
    elif P.name[0] == 'O':
        s0 += [f"s_add_u32 s{sOFF0}, s{44 + P.j % 4}, {P.row0}"]
    else:
        s0 += [f"s_add_u32 s{sOFF0}, {P.co}, {P.row0}"]
    s0 += [f"s_add_u32 m0, s{sRING}, {sl*8192}"]
    s1 = [f"s_add_u32 s{sOFF1}, s{sOFF0}, {32*P.rs}", f"s_add_u32 m0, s{sRING}, {sl*8192 + 4096}"]
    d = []
    for i in range(8):
        so = sOFF0 if i < 4 else sOFF1
        off = f" offset:{1024*(i%4)}" if i % 4 else ""
        d.append(f"buffer_load_dwordx4 v{P.dv + i%4}, s[{P.srd}:{P.srd+3}], s{so} offen{off}{OPT.get('wfl', '')} lds ; @T:w{idx}")
    return s0, s1, d

def wreads(P, idx, nb):
    sl = idx % 3; out = []
    for ks in range(2):
        for jj in range(2):
            r = vW + nb*8 + ks*4 + jj*2
            if P.inter: ad = vWI + nb; off = sl*8192 + ks*4096 + jj*2048
            else: ad = vWA + (nb ^ (2*jj)); off = sl*8192 + ks*4096 + jj*512
            out.append(f"ds_read_b64_tr_b16 v[{r}:{r+1}], v{ad} offset:{off} ; @T:wr{idx}_{nb}")
    return out

def panel_mfmas(P):
    out = []
    for nb in range(4):
        for qb in range(4):
            for ks in range(2):
                d = P.acc + (nb*4 + qb)*4; w = vW + nb*8 + ks*4; b = P.bfrag(ks, qb)
                c = '0' if (P.first and ks == 0) else f"v[{d}:{d+3}]"
                out.append(f"{MF} v[{d}:{d+3}], v[{w}:{w+3}], a[{b}:{b+3}], {c}")
    return out

def emit_stream(a, panels, base, fillers, extra_mem, extra_shadow, nxt=None, must_empty=(), quiet=None, cap=None, late=None):
    allp = panels + (nxt or [])
    q = []; pend = []; lastst = -99
    for pos, P in enumerate(panels):
        idx = base + pos
        if pos in must_empty: assert not q, (pos, len(q))
        q += fillers.get(pos, [])
        if idx == 16 and OPT.get('skip', 0): a("L_join16:")
        stamp(a, f'p{idx}')
        ms = panel_mfmas(P)
        shadow = [[] for _ in range(32)]; mem = [[] for _ in range(32)]; dma = {}
        r3 = wreads(P, idx, 3)
        mem[0] += r3[:2]; mem[1] += r3[2:]
        hasn = pos + 1 < len(allp)
        if hasn:
            N = allp[pos+1]
            shadow[7].append(f"s_waitcnt vmcnt(@w{idx+1}) lgkmcnt(@auto+@wr{idx}_3)")
            for nb in range(3):
                r = wreads(N, idx+1, nb); g = 8*nb + 8
                mem[g] += r[:2]; mem[g+2] += r[2:]
        else:
            shadow[7].append(f"s_waitcnt lgkmcnt(@auto)")
        shadow[15].append("s_waitcnt lgkmcnt(@auto)"); shadow[23].append("s_waitcnt lgkmcnt(@auto)"); shadow[31].append("s_waitcnt lgkmcnt(@auto)")
        if pos + 3 < len(allp):
            s0, s1, d = panel_dma(allp[pos+3], idx+3)
            for k, x in enumerate(s0): shadow[8 - len(s0) + k - (1 if 8 - len(s0) + k <= 7 else 0)].append(x)
            gaps = [9, 11, 13, 17, 19, 21, 25, 27]
            shadow[16].append(s1[0]); shadow[18].append(s1[1])
            for x, g in zip(d, gaps): dma[g] = x
        for (p2, g), x in extra_mem.items():
            if p2 == pos:
                assert g not in dma, (pos, g)
                mem[g] += x
        for (p2, g), x in extra_shadow.items():
            if p2 == pos: shadow[g] += x
        budget = (cap or {}).get(pos, OPT['filler_cap'])
        free = [g for g in range(32) if g not in dma]
        base_room = sum(max(0, 2 - len(mem[g])) for g in free)
        want = min(budget, sum(cost(x) for x in q))
        extra = max(0, want - base_room); acc = 0.0
        for g in range(32):
            a(ms[g])
            for x in shadow[g]: a(x)
            if g in dma:
                a(dma[g]); continue
            for x in mem[g]:
                if x: a(x)
            room = 2 - len(mem[g])
            acc += extra / len(free)
            if late and (pos, g) in late:
                q += late[(pos, g)]
            while q:
                x = q[0]
                if x.startswith('ds_') or x.startswith('buffer'):
                    pend.append(q.pop(0)); continue
                c = cost(x)
                if pend and (set(Ins(x.split(';')[0]).w) & set(sum((Ins(y.split(';')[0]).r for y in pend), []))): break
                if c <= room: room -= c
                elif (c - room) <= acc + (0.75 if room > 0 and extra > 0 else 0): acc -= (c - max(room, 0)); room = 0
                else: break
                a(q.pop(0))
            if pend and g + 1 < 32 and (g + 1) not in dma and len(mem[g+1]) <= (1 if quiet else 0) and ((g + 1) in (quiet or OPT.get('quiet', (4, 6, 22, 28, 30))) or not dma):
                if pend[0].startswith('buffer') and pos*32 + g - lastst < OPT.get('stgap', 4): pass
                else:
                    if pend[0].startswith('buffer'): lastst = pos*32 + g
                    mem[g+1] += [pend.pop(0), None]
        if (pos + 1) in must_empty and not q:
            for x in pend: a(x)
            pend = []
        q = pend + q; pend = []
    return q

def gelu_stage1(G):
    A = -2.0 * math.log2(math.e) * math.sqrt(2.0 / math.pi)
    ops = []
    for blk in range(16):
        x = [G + blk*4 + i for i in range(4)]; t = [vT + i for i in range(4)]
        ops += [f"v_mul_f32 v{t[i]}, v{x[i]}, v{x[i]}" for i in range(4)]
        ops += [f"v_fmaak_f32 v{t[i]}, v{vGB}, v{t[i]}, {hx(A)}" for i in range(4)]
        ops += [f"v_mul_f32 v{t[i]}, v{t[i]}, v{x[i]}" for i in range(4)]
        ops += [f"v_exp_f32 v{t[i]}, v{t[i]}" for i in range(4)]
        ops += [f"v_add_f32 v{t[i]}, 1.0, v{t[i]}" for i in range(4)]
        ops += [f"v_rcp_f32 v{t[i]}, v{t[i]}" for i in range(4)]
        ops += [f"v_mul_f32 v{x[i]}, v{x[i]}, v{t[i]}" for i in range(4)]
    return ops

def geglu_stage2(G, U):
    mul = [f"v_mul_f32 v{U+i}, v{G+i}, v{U+i}" for i in range(64)]
    ops = []
    for sp in range(2):
        for qb in range(4):
            b0 = U + ((2*sp)*4 + qb)*4; b1 = U + ((2*sp+1)*4 + qb)*4
            ops += [f"v_cvt_pk_bf16_f32 v{b0}, v{b0}, v{b0+1}", f"v_cvt_pk_bf16_f32 v{b0+1}, v{b0+2}, v{b0+3}",
                    f"v_cvt_pk_bf16_f32 v{b0+2}, v{b1}, v{b1+1}", f"v_cvt_pk_bf16_f32 v{b0+3}, v{b1+2}, v{b1+3}"]
            if OPT.get('hglob', 0): ops += [f"buffer_store_dwordx4 v[{b0}:{b0+3}], v{vL16}, s[{rWS}:{rWS+3}], s{61 + sp} offen offset:{qb*1024} ; @T:hs"]
            else: ops += [f"ds_write_b128 v{vPF}, v[{b0}:{b0+3}] offset:{(sp*4 + qb)*1024} ; @T:hw"]
    return mul, ops

def qpack(acc, half):
    c = math.log2(math.e) / math.sqrt(128.0)
    ops = []; late = []
    for sp in range(2):
        for qb in range(4):
            b0 = acc + ((2*sp)*4 + qb)*4; b1 = acc + ((2*sp+1)*4 + qb)*4
            for b in (b0, b1):
                ops += [f"v_mul_f32 v{b+i}, {hx(c)}, v{b+i}" for i in range(4)]
            ops += late; late = []
            d = vQ + (qb*4 + 2*half + sp)*4
            ops += [f"v_cvt_pk_bf16_f32 v{d}, v{b0}, v{b0+1}", f"v_cvt_pk_bf16_f32 v{d+1}, v{b0+2}, v{b0+3}",
                    f"v_cvt_pk_bf16_f32 v{d+2}, v{b1}, v{b1+1}", f"v_cvt_pk_bf16_f32 v{d+3}, v{b1+2}, v{b1+3}"]
            late = [f"v_permlane32_swap_b32 v{d}, v{d+2}", f"v_permlane32_swap_b32 v{d+1}, v{d+3}", "s_nop 0",
                    f"v_permlane16_swap_b32 v{d}, v{d+2}", f"v_permlane16_swap_b32 v{d+1}, v{d+3}"]
    return ops + ["s_nop 1"] + late

def slab_store(acc, t, hf):
    ops = []
    for sp in range(2):
        for qb in range(4):
            b0 = acc + ((2*sp)*4 + qb)*4; b1 = acc + ((2*sp+1)*4 + qb)*4
            ops += [f"v_cvt_pk_bf16_f32 v{b0}, v{b0}, v{b0+1}", f"v_cvt_pk_bf16_f32 v{b0+1}, v{b0+2}, v{b0+3}",
                    f"v_cvt_pk_bf16_f32 v{b0+2}, v{b1}, v{b1+1}", f"v_cvt_pk_bf16_f32 v{b0+3}, v{b1+2}, v{b1+3}"]
            f = hf*8 + sp*4 + qb
            so = sT + (t*4 + f // 4)
            ops += [f"buffer_store_dwordx4 v[{b0}:{b0+3}], v{vL16}, s[{rWS}:{rWS+3}], s{so} offen offset:{(f%4)*1024}{OPT['stflags']} ; @T:st"]
    return ops

def park(acc, dst):
    ops = []
    for sp in range(2):
        for qb in range(4):
            b0 = acc + ((2*sp)*4 + qb)*4; b1 = acc + ((2*sp+1)*4 + qb)*4
            ops += [f"v_cvt_pk_bf16_f32 v{b0}, v{b0}, v{b0+1}", f"v_cvt_pk_bf16_f32 v{b0+1}, v{b0+2}, v{b0+3}",
                    f"v_cvt_pk_bf16_f32 v{b0+2}, v{b1}, v{b1+1}", f"v_cvt_pk_bf16_f32 v{b0+3}, v{b1+2}, v{b1+3}"]
            ops += [f"v_accvgpr_write_b32 a{dst + (sp*4+qb)*4 + i}, v{b0+i}" for i in range(4)]
    return ops
def parked_store(f):
    return f"buffer_store_dwordx4 a[{128+4*f}:{131+4*f}], v{vL16}, s[{rWS}:{rWS+3}], s{sT + 4 + f//4} offen offset:{(f%4)*1024}{OPT['stflags']}"

def qk(b, cinit='negm'):
    out = []
    for qb in range(4):
        for kb in range(2):
            for s in range(4):
                r = vS[b] + (qb*2 + kb)*4; d = f"v[{r}:{r+3}]"
                c = d if s else (f"v[{vNEGM+4*qb}:{vNEGM+4*qb+3}]" if cinit == 'negm' else '0')
                k = aKF + (kb*4 + s)*4; q = vQ + (qb*4 + s)*4
                out.append(f"{MF} {d}, a[{k}:{k+3}], v[{q}:{q+3}], {c}")
    return out
def pv(b, first=False, nsum=None, aVF=aVF):
    nsum = OPT['msum'] if nsum is None else nsum
    out = []
    for qb in range(4):
        p = vP[b] + qb*4
        for db in range(8):
            o = aO + (db*4 + qb)*4; v = aVF + db*4
            c = '0' if first else f"a[{o}:{o+3}]"
            out.append(f"{MF} a[{o}:{o+3}], a[{v}:{v+3}], v[{p}:{p+3}], {c}")
        if qb < nsum:
            l = vLM + 4*qb
            out.append(f"{MF} v[{l}:{l+3}], v[{vONES}:{vONES+3}], v[{p}:{p+3}], {'0' if first else f'v[{l}:{l+3}]'}")
    return out
def kreads(sl):
    return [f"ds_read_b128 a[{aKF+(kb*4+s)*4}:{aKF+(kb*4+s)*4+3}], v{vKA+s} offset:{sl*16384 + kb*8192}" for kb in range(2) for s in range(4)]
def vreads(sl, aVF=aVF):
    return [f"ds_read_b64_tr_b16 a[{aVF+db*4+2*jj}:{aVF+db*4+2*jj+1}], v{vVAl[db]} offset:{sl*16384 + jj*8192}" for db in range(8) for jj in range(2)]
def kvdma(sl, kidx, vidx, dok=True, dov=True):
    sc = [f"s_add_u32 m0, s{sKVM0}, {sl*16384}"]; d = []
    if dok:
        ks = sKO + kidx % 4; kp = sKO + (kidx - 1) % 4
        sc += [f"s_add_u32 s{ks}, s{kp}, 8192", f"s_and_b32 s{ks}, s{ks}, 0x7ffff"]
        d += [f"buffer_load_dwordx4 v{vDK}, s[{rK}:{rK+3}], s{ks} offen{OPT.get('kvfl', '')} lds ; @T:kv{sl}",
              f"buffer_load_dwordx4 v{vDK+1}, s[{rK}:{rK+3}], s{ks} offen offset:1024{OPT.get('kvfl', '')} lds ; @T:kv{sl}"]
    if dov:
        vs = sKO + vidx % 4
        d += [f"buffer_load_dwordx4 v{vDV}, s[{rV}:{rV+3}], s{vs} offen offset:2048{OPT.get('kvfl', '')} lds ; @T:kv{sl}",
              f"buffer_load_dwordx4 v{vDV+1}, s[{rV}:{rV+3}], s{vs} offen offset:3072{OPT.get('kvfl', '')} lds ; @T:kv{sl}"]
    return sc, d
def smq(b):
    nsum = OPT['msum']; E = []; Sg = []
    for qb in range(4):
        for i in range(4):
            s0 = vS[b] + qb*8 + 2*i
            E += [f"v_exp_f32 v{s0}, v{s0}", f"v_exp_f32 v{s0+1}, v{s0+1}"]; k = len(E)
            if qb >= nsum:
                Sg += [(k-1, f"v_add_f32 v{vL+qb}, v{vL+qb}, v{s0}"), (k, f"v_add_f32 v{vL+qb}, v{vL+qb}, v{s0+1}")]
            Sg += [(k, f"v_cvt_pk_bf16_f32 v{vP[b]+qb*4+i}, v{s0}, v{s0+1}")]
    return E, Sg

def check_p(m, *queues):
    rd = set(Ins(m).ab)
    for q in queues:
        for x in (q or []): assert not (set(Ins(x[1]).w) & rd), (m, x)

def period(p, carry, dok=True, dov=True, first=False, kread=True, xdma=None, alsowait=None, nofill=(), kvg=([2, 3, 4], [27, 39, 47, 59]), vnext=None):
    sl = p % 4
    ms = qk((p+1) % 2) + pv(p % 2, first)
    N = len(ms); H = 32
    shadow = [None]*N
    shadow[N-1] = f"s_waitcnt vmcnt(@kv{(p+1)%4}{'|' + alsowait if alsowait else ''}) lgkmcnt(0)"
    shadow[H-1] = "s_waitcnt lgkmcnt(0)"
    shadow[0] = "s_barrier"
    mem = []
    vr = vreads(sl)
    for i, x in enumerate(vr): mem.append((1 + (i*24) // len(vr), x))
    if kread:
        kr = kreads(sl)
        for i, x in enumerate(kr): mem.append((33 + (i*24) // len(kr), x))
    if vnext:
        for i, x in enumerate(vnext): mem.append((33 + (i*26) // len(vnext), x))
    dmag = {}
    if dok or dov:
        sc, dd = kvdma((p + 3) % 4, p + 5, p + 3, dok, dov)
        for x, g in zip(sc, kvg[0]): shadow[g] = x
        for x, g in zip(dd, kvg[1]): dmag[g] = x
    if xdma:
        for (g, x) in xdma:
            if x.startswith('buffer'):
                assert g not in dmag and not shadow[g]; dmag[g] = x
            else:
                assert not shadow[g] and g not in dmag, (g, x); shadow[g] = x
    mem.sort(key=lambda t: t[0])
    st = 34
    cE, cS, cdone = carry
    nE, nS = smq((p+1) % 2)
    lines = []
    E = list(cE); Sq = list(cS); edone = cdone
    mi = 0
    extra = max(0, 64 + len(mem) + len(nS) + 2*len(dmag) + 2*len(nofill) - 2*N)
    acc = 0.0; old_S = None
    for g in range(N):
        check_p(ms[g], old_S, Sq if g <= st else None)
        lines.append(ms[g])
        if shadow[g]: lines.append(shadow[g])
        if g == st:
            assert not E, (p, len(E))
            old_S = Sq; E = nE; Sq = nS; edone = 0
        acc += extra / N
        if g in dmag:
            lines.append(dmag[g]); continue
        if g in nofill: continue
        room = 2
        if acc >= 1.0 - 1e-9: room += 1; acc -= 1.0
        gm = []; gv = []
        e_prev = edone
        left = (st - g) if g < st else (N - g + st)
        navail = (1 if (mi < len(mem) and mem[mi][0] <= g) else 0) + (len(old_S) if old_S else 0) + sum(1 for x in Sq if x[0] <= e_prev)
        if E and (len(E) * 2 >= left or navail < 2):
            gv.append(E.pop(0)); room -= 2; edone += 1
        while room > 0:
            if mi < len(mem) and mem[mi][0] <= g: gm.append(mem[mi][1]); mi += 1; room -= 1
            elif old_S: gv.append(old_S.pop(0)[1]); room -= 1
            elif Sq and Sq[0][0] <= e_prev: gv.append(Sq.pop(0)[1]); room -= 1
            elif mi < len(mem) and mem[mi][0] <= g + 3: gm.append(mem[mi][1]); mi += 1; room -= 1
            else: break
        lines += gm + gv
    assert mi == len(mem) and not old_S, (mi, len(mem), old_S)
    return lines, (E, Sq, edone)

def xreduce(a, reg, op, tmp):
    a(f"v_mov_b32 v{tmp}, v{reg}\ns_nop 1\nv_permlane16_swap_b32 v{reg}, v{tmp}\ns_nop 1\n{op} v{reg}, v{reg}, v{tmp}")
    a(f"v_mov_b32 v{tmp}, v{reg}\ns_nop 1\nv_permlane32_swap_b32 v{reg}, v{tmp}\ns_nop 1\n{op} v{reg}, v{reg}, v{tmp}")

def attn_addr_ops():
    o = []
    t0, t1, t2, t3 = vT, vT+1, vT+2, vT+3
    o += [f"v_bfe_u32 v{t0}, v{vL16}, 4, 4", f"v_lshrrev_b32 v{t1}, 8, v{vL16}"]
    o += [f"v_lshrrev_b32 v{t2}, 3, v{t0}", f"v_lshlrev_b32 v{t2}, 12, v{t2}", f"v_and_b32 v{t3}, 7, v{t0}", f"v_lshlrev_b32 v{t3}, 8, v{t3}",
          f"v_add_u32 v{t2}, v{t2}, v{t3}", f"v_add_u32 v{t2}, {LB}, v{t2}"]
    for s in range(4):
        o += [f"v_add_u32 v{t3}, {4*s}, v{t1}", f"v_xor_b32 v{t3}, v{t3}, v{t0}", f"v_lshl_add_u32 v{vKA+s}, v{t3}, 4, v{t2}"]
    o2 = []
    o2 += [f"v_bfe_u32 v{t0}, v{vL16}, 6, 3", f"v_lshrrev_b32 v{t2}, 9, v{vL16}", f"v_lshlrev_b32 v{t2}, 12, v{t2}",
           f"v_lshl_add_u32 v{t2}, v{t0}, 8, v{t2}", f"v_add_u32 v{t2}, {LB + 2048}, v{t2}", f"v_bfe_u32 v{t3}, v{vL16}, 4, 2", f"v_lshl_add_u32 v{t2}, v{t3}, 3, v{t2}"]
    for db in range(8):
        o2 += [f"v_xor_b32 v{t3}, {db}, v{t0}", f"v_lshl_add_u32 v{vVAl[db]}, v{t3}, 5, v{t2}"]
    return o, o2

def pf_addr(st, vt):
    if OPT['map'] == 8:
        return [f"s_lshl_b32 {st}, s{sRB}, 2", f"s_add_u32 {st}, {st}, s{sW}", f"s_lshl_b32 {st}, {st}, 12", f"v_and_b32 v{vPF}, 0x1f0, v{vL16}", f"v_lshlrev_b32 v{vPF}, 3, v{vPF}",
                f"v_lshrrev_b32 v{vt}, 9, v{vL16}", f"v_lshl_add_u32 v{vPF}, v{vt}, 6, v{vPF}", f"v_add_u32 v{vPF}, {st}, v{vPF}"]
    return [f"s_and_b32 {st}, s{sRB}, 15", f"s_lshl_b32 {st}, {st}, 2", f"s_add_u32 {st}, {st}, s{sW}", f"s_lshl_b32 {st}, {st}, 13", f"v_lshlrev_b32 v{vPF}, 3, v{vL16}", f"v_add_u32 v{vPF}, {st}, v{vPF}"]

def interleave(a, base, extra, every, start=0):
    k = 0
    for n, x in enumerate(base):
        a(x)
        if n >= start and (n + 1 - start) % every == 0 and k < len(extra) and not x.startswith('s_memtime'):
            for y in extra[k]: a(y)
            k += 1
    for g in extra[k:]:
        for y in g: a(y)

def unpack_sum(dst, srcs, t0):
    ops = []
    for n, r in enumerate(srcs):
        for i in range(4):
            if n == 0:
                ops += [f"v_lshlrev_b32 v{dst+2*i}, 16, v{r+i}", f"v_and_b32 v{dst+2*i+1}, 0xffff0000, v{r+i}"]
            else:
                ta, tb = t0 + 2*(i % 2), t0 + 2*(i % 2) + 1
                ops += [f"v_lshlrev_b32 v{ta}, 16, v{r+i}", f"v_and_b32 v{tb}, 0xffff0000, v{r+i}",
                        f"v_add_f32 v{dst+2*i}, v{dst+2*i}, v{ta}", f"v_add_f32 v{dst+2*i+1}, v{dst+2*i+1}, v{tb}"]
    return ops

def silu_ops(r, n, tmp):
    ops = []
    for b in range(0, n, 4):
        ops += [f"v_mul_f32 v{tmp+i}, {hx(-math.log2(math.e))}, v{r+b+i}" for i in range(4)]
        ops += [f"v_exp_f32 v{tmp+i}, v{tmp+i}" for i in range(4)]
        ops += [f"v_add_f32 v{tmp+i}, 1.0, v{tmp+i}" for i in range(4)]
        ops += [f"v_rcp_f32 v{tmp+i}, v{tmp+i}" for i in range(4)]
        ops += [f"v_mul_f32 v{r+b+i}, v{r+b+i}, v{tmp+i}" for i in range(4)]
    return ops

def share_offsets(sh, sW=sW):
    return [f"s_lshl_b32 s{sSHOFF}, s{sRB}, 3", f"s_add_u32 s{sSHOFF}, s{sSHOFF}, {sh}", f"s_lshl_b32 s{sSHOFF}, s{sSHOFF}, 2", f"s_add_u32 s{sSHOFF}, s{sSHOFF}, s{sW}", f"s_lshl_b32 s{sSHOFF}, s{sSHOFF}, 11",
            f"s_lshl_b32 s{sXOFF}, {sh}, 1", f"s_lshr_b32 s0, s{sW}, 1", f"s_add_u32 s{sXOFF}, s{sXOFF}, s0", f"s_lshl_b32 s{sXOFF}, s{sXOFF}, 6",
            f"s_and_b32 s0, s{sW}, 1", f"s_lshl_b32 s0, s0, 15", f"s_add_u32 s{sXOFF}, s{sXOFF}, s0", f"s_lshl_b32 s0, s{sRB}, 16", f"s_add_u32 s{sXOFF}, s{sXOFF}, s0"]

def ploads(dst, t, g, base):
    return [f"s_add_u32 s0, {base}, {t*0x1000000 + g*0x200000}",
            f"buffer_load_dwordx4 v[{dst[0]+g*4}:{dst[0]+g*4+3}], v{vL16}, s[{rWS}:{rWS+3}], s0 offen sc1 ; @T:pl",
            f"buffer_load_dwordx4 v[{dst[1]+g*4}:{dst[1]+g*4+3}], v{vL16}, s[{rWS}:{rWS+3}], s0 offen offset:1024 sc1 ; @T:pl"]
FPE, FPL, SPR = (192, 224), (192, 224), (128, 160)

vOA = 120
vXO, vSIG, vXD, vGV = 10, 11, 2, 128
xregs = [2, 4, 12, 14]
def xloads():
    o = []
    for i in range(2):
        o.append(f"s_add_u32 s0, s{sXOFF}, {i*16384}")
        for e in range(2):
            r = xregs[2*i+e]
            o.append(f"buffer_load_dwordx2 v[{r}:{r+1}], v{vXO}, s[{rX}:{rX+3}], s0 offen offset:{32*e} ; @T:xl")
    return o
def f_reduce_ops():
    ops = []
    ops += unpack_sum(vGA, [128 + 4*g for g in range(8)], vT)
    ops += unpack_sum(vGA + 8, [160 + 4*g for g in range(8)], vT)
    ops += silu_ops(vGA, 16, vT)
    return ops
vGA = 96

def main_kernel():
    global vGA
    a = Prog()
    a(f"main_kernel:")
    a("s_cmp_ge_u32 s2, 256\ns_cbranch_scc1 L_main_end")
    stamp(a, 0)
    if OPT['timing']: a("s_memrealtime s[100:101]\ns_waitcnt lgkmcnt(0)")
    a("s_load_dwordx16 s[64:79], s[0:1], 0\ns_load_dwordx8 s[80:87], s[0:1], 64") if not OPT['timing'] else a("s_load_dwordx16 s[64:79], s[0:1], 0\ns_load_dwordx4 s[80:83], s[0:1], 64\ns_load_dwordx2 s[84:85], s[0:1], 80\ns_load_dwordx2 s[44:45], s[0:1], 88")
    WSP = 86 if not OPT['timing'] else 44
    a(f"v_lshrrev_b32 v2, 6, v0\nv_and_b32 v0, 63, v0\nv_readfirstlane_b32 s{sW}, v2")
    a(f"v_lshlrev_b32 v{vL16}, 4, v0")
    if OPT['map'] == 8:
        a(f"s_and_b32 s{sG}, s2, 7\ns_lshr_b32 s{sRB}, s2, 3")
    else:
        a(f"s_and_b32 s{sG}, s2, 3\ns_lshl_b32 s{sG}, s{sG}, 1\ns_bfe_u32 s{sRB}, s2, 0x10003\ns_add_u32 s{sG}, s{sG}, s{sRB}")
        a(f"s_bfe_u32 s{sRB}, s2, 0x10002\ns_lshl_b32 s{sRB}, s{sRB}, 4\ns_lshr_b32 s{sROT}, s2, 4\ns_add_u32 s{sRB}, s{sRB}, s{sROT}")
    if OPT['xdma']:
        a(f"s_and_b32 s{sROT}, s{sRB}, 3\ns_lshl_b32 s{sROT}, s{sROT}, 1")
        a(f"v_lshrrev_b32 v6, 4, v0\nv_and_b32 v5, 15, v0")
        for rg in range(4):
            a(f"v_add_u32 v7, {4*rg}, v6\nv_xor_b32 v7, v7, v5\nv_lshlrev_b32 v7, 4, v7\nv_add_u32 v8, {3*rg}, v6\nv_lshl_add_u32 v{32+rg}, v8, 10, v7")
        a(f"s_lshl_b32 s62, s{sRB}, 16\ns_lshl_b32 s63, s{sW}, 14\ns_add_u32 s62, s62, s63\ns_add_u32 s60, s63, {LB}\ns_lshl_b32 s63, s{sROT}, 7")
    else:
        a(f"s_and_b32 s{sROT}, s{sRB}, 7")
        a(f"v_and_b32 v5, 15, v0\nv_lshlrev_b32 v5, 10, v5\nv_lshrrev_b32 v6, 4, v0\nv_lshl_add_u32 v5, v6, 4, v5")
        a(f"s_lshl_b32 s62, s{sRB}, 16\ns_lshl_b32 s63, s{sW}, 14\ns_add_u32 s62, s62, s63\ns_lshl_b32 s63, s{sROT}, 7")
    for x in pf_addr('s61', 3): a(x)
    if OPT['codepf']:
        a("s_getpc_b64 s[46:47]\nL_pc0:")
        a(f"v_min_u32 v7, L_code_end-L_pc0-4, v{vPF}")
        a(f"global_load_dword v{vGB}, v7, s[46:47] ; @T:pf")
    a("s_waitcnt lgkmcnt(0)")
    stamp(a, 'karg')
    srd(a, rX, 64, 2048*1024)
    if OPT['xdma']:
        for c4 in range(4):
            a(f"s_add_u32 s61, s63, {c4*256}\ns_and_b32 s61, s61, 0x3ff\ns_add_u32 m0, s60, {c4*4096}\ns_add_u32 s61, s61, s62")
            for rg in range(4): a(f"buffer_load_dwordx4 v{32+rg}, s[{rX}:{rX+3}], s61 offen offset:{rg*1024} lds ; @T:x{c4}")
        for sx in range(4):
            a(f"v_add_u32 v7, {4*sx}, v6\nv_xor_b32 v7, v7, v5\nv_lshlrev_b32 v7, 4, v7\nv_lshl_add_u32 v7, v5, 8, v7\nv_add_u32 v{50+sx}, s60, v7")
    else:
        for k in range(16):
            a(f"s_add_u32 s61, s63, {k*64}\ns_and_b32 s61, s61, 0x3ff\ns_add_u32 s61, s61, s62")
            a(f"buffer_load_dwordx4 v[{bA+4*k}:{bA+4*k+3}], v5, s[{rX}:{rX+3}], s61 offen ; @T:x{k}")
    stamp(a, 'xissued')
    a(f"s_add_u32 s62, s{sG}, s{sRB}\ns_and_b32 s62, s62, 1\ns_sub_u32 s{sNU}, 4, s62")
    a(f"s_lshr_b32 s62, s{sG}, 1\ns_mul_i32 s{sU0}, s62, 7\ns_sub_u32 s63, 7, s{sNU}\ns_and_b32 s61, s{sG}, 1\ns_mul_i32 s63, s63, s61\ns_add_u32 s{sU0}, s{sU0}, s63")
    a(f"s_add_u32 s62, s{sU0}, s{sW}\ns_lshl_b32 s{sCOG}, s62, 7\ns_cmp_lt_u32 s{sW}, s{sNU}\ns_cselect_b32 s{sCOG}, s{sCOG}, 0x40000000")
    a(f"s_lshl_b32 s62, s{sG}, 10\ns_lshl_b32 s63, s{sW}, 8\ns_add_u32 s{sCOQ}, s62, s63")
    a(f"s_lshl_b32 s62, s{sU0}, 16\ns_add_u32 s{sCOD}, s62, s63\ns_cmp_eq_u32 s{sNU}, 4\ns_cselect_b32 s{sCOD3}, s{sCOD}, 0x40000000")
    a(f"s_lshl_b32 s62, s{sG}, 19\ns_add_u32 s{sCOO}, s62, s63")
    a(f"s_mul_i32 s{sRING}, s{sW}, 24576\ns_lshl_b32 s{sKVM0}, s{sW}, 12\ns_add_u32 s{sKVM0}, s{sKVM0}, {LB}")
    srd(a, rWG, 76, 512*3584)
    a("v_lshrrev_b32 v6, 3, v0\nv_bfe_u32 v7, v0, 4, 1\nv_lshlrev_b32 v7, 1, v7\nv_bfe_u32 v8, v0, 5, 1\nv_lshl_add_u32 v7, v8, 2, v7\nv_and_b32 v8, 7, v0\nv_xor_b32 v7, v7, v8")
    a("v_lshlrev_b32 v7, 4, v7\nv_xor_b32 v8, 64, v7")
    for dv, rs in ((vDG, 3584), (vDQ, 8192), (vDO, 1024)):
        a(f"v_mul_u32_u24 v9, {rs}, v6")
        for j in range(4):
            a(f"v_add_u32 v{dv+j}, v9, v{7 + (j & 1)}")
            if j: a(f"v_add_u32 v{dv+j}, {j*(8*rs - 1024)}, v{dv+j}")
    X = lambda ks0: (lambda ks, qb: ((ks0 + ks)*4 + qb)*4)
    mk = lambda name, r, dv, rs, co, acc, n, inter, rot, row0: [Panel(name, r, dv, rs, co(j), acc, j == 0, X(2*j), inter, rot, row0(j)) for j in range(n)]
    pG = mk('G', rWG, vDG, 3584, lambda j: f"s{sCOG}", bA, 8, False, True, lambda j: 0)
    pU = mk('U', rWU, vDG, 3584, lambda j: f"s{sCOG}", bB, 8, False, True, lambda j: 0)
    pQa = mk('Qa', rWQ, vDQ, 8192, lambda j: f"s{sCOQ}", bC, 8, False, True, lambda j: 0)
    pQb = mk('Qb', rWQ, vDQ, 8192, lambda j: f"s{sCOQ}", bA, 8, False, True, lambda j: 128)
    pD0 = mk('D0', rWD, vDO, 1024, lambda j: f"s{sCOD3 if j == 3 else sCOD}", bC, 4, True, False, lambda j: j*65536)
    pD1 = mk('D1', rWD, vDO, 1024, lambda j: f"s{sCOD3 if j == 3 else sCOD}", bA, 4, True, False, lambda j: j*65536 + 128)
    pO0 = mk('O0', rWO, vDO, 1024, lambda j: None, bB, 8, True, False, lambda j: (j//4)*65536)
    pO1 = mk('O1', rWO, vDO, 1024, lambda j: None, bA, 8, True, False, lambda j: (j//4)*65536 + 128)
    oreg = lambda j, ks, qb: 32*j + (ks*4 + qb)*4
    for j in range(8):
        for P in (pO0[j], pO1[j]): P.j = j; P.bfrag = (lambda j: (lambda ks, qb: oreg(j, ks, qb)))(j)
    S1 = pG + pU + pQa + pQb + pD0 + pD1
    a(f"s_sub_u32 s{sJ}, s{sROT}, 1")
    for i in range(OPT.get('early', 1)):
        s0, s1, d = panel_dma(S1[i], i)
        for x in s0 + ["s_nop 0"] + d[:4] + s1 + ["s_nop 0"] + d[4:]: a(x)
    if OPT['prefetch']:
        srd(a, rWD, 80, 1792*1024)
        a(f"s_lshr_b32 s62, s{sG}, 1\ns_mul_i32 s62, s62, 7\ns_and_b32 s61, s{sG}, 1\ns_mul_i32 s61, s61, 3\ns_add_u32 s62, s62, s61\ns_lshl_b32 s62, s62, 16")
        a(f"v_cmp_gt_u32 vcc, 0x40000, v{vPF}\nv_mov_b32 v9, 0x40000000\ns_nop 0\nv_cndmask_b32 v9, v9, v{vPF}, vcc")
        a(f"v_mov_b32 v54, v9\ns_mov_b32 s44, s62") if not OPT['timing'] else a(f"v_mov_b32 v54, v9\ns_mov_b32 s46, s62")
    lndma = []
    late_dma = []
    if OPT.get('late2'):
        pass
    for i in range(OPT.get('early', 1), 3):
        s0, s1, d = panel_dma(S1[i], i)
        if i >= 3 - OPT.get('late2', 0):
            late_dma += s0 + ['s_nop 0'] + d[:4] + s1 + ['s_nop 0'] + d[4:]; continue
        lndma += [s0 + ["s_nop 0", d[0]]] + [[x] for x in d[1:4]] + [s1 + ["s_nop 0", d[4]]] + [[x] for x in d[5:]]
    if OPT['prefetch']: lndma += [[f"buffer_load_dword v{vGB}, v54, s[{rWD}:{rWD+3}], s{44 if not OPT['timing'] else 46} offen{' offset:64' if h else ''} ; @T:pf"] for h in range(OPT.get('pf2', 1))]
    stamp(a, 'dmaissued')
    srd(a, rWU, 78, 512*3584); srd(a, rWQ, 70, 512*8192); srd(a, rWO, 72, 4096*1024)
    if not OPT['prefetch']: srd(a, rWD, 80, 1792*1024)
    a(f"s_lshl_b32 s62, s{sG}, 19")
    srd(a, rK, 66, 0x80000, add='s62'); srd(a, rV, 68, 0x80800, add='s62', sub=2048)
    srd(a, rWS, WSP, 0x2900000)
    srd(a, rOUT, 82, 2048*1024); srd(a, rDBG, 84, 256)
    a(f"s_lshl_b32 s81, s{sG}, 19\ns_lshl_b32 s82, s{sW}, 13\ns_lshl_b32 s83, s{sW}, 14")
    a(f"s_lshl_b32 s{sSLAB}, s{sG}, 5\ns_add_u32 s{sSLAB}, s{sSLAB}, s{sRB}\ns_lshl_b32 s{sSLAB}, s{sSLAB}, 2\ns_add_u32 s{sSLAB}, s{sSLAB}, s{sW}\ns_lshl_b32 s{sSLAB}, s{sSLAB}, 14")
    for t in range(2):
        for k in range(4): a(f"s_add_u32 s{sT+t*4+k}, s{sSLAB}, {t*0x1000000 + k*4096}")
    a("v_bfe_u32 v5, v0, 2, 2\nv_lshrrev_b32 v6, 4, v0\nv_and_b32 v7, 3, v0\nv_lshlrev_b32 v7, 3, v7")
    a(f"v_add_u32 v7, s{sRING}, v7")
    a("v_lshrrev_b32 v8, 1, v5\nv_and_b32 v9, 1, v6\nv_lshl_add_u32 v9, v9, 1, v8")
    a("v_lshl_add_u32 v26, v6, 3, v5\nv_lshl_add_u32 v26, v26, 7, v7")
    a("v_lshrrev_b32 v27, 1, v6\nv_xor_b32 v27, v27, v6\nv_and_b32 v27, 1, v27\nv_lshl_add_u32 v27, v27, 1, v8")
    a("v_lshl_add_u32 v28, v6, 2, v5\nv_lshl_add_u32 v28, v28, 7, v7")
    a(f"s_lshl_b32 s62, s{sW}, 3\nv_add_u32 v29, s62, v6\nv_and_b32 v5, 15, v0")
    for i in range(2):
        a(f"v_add_u32 v8, {4*i}, v29\nv_and_b32 v8, 15, v8\nv_xor_b32 v8, v8, v5\nv_lshlrev_b32 v8, 4, v8\nv_lshl_add_u32 v{vDK+i}, v29, 8, v8")
        a(f"v_add_u32 v8, {4*i}, v6\nv_lshlrev_b32 v8, 1, v8\nv_xor_b32 v8, v8, v5\nv_lshlrev_b32 v8, 4, v8\nv_lshl_add_u32 v{vDV+i}, v29, 8, v8")
    a("v_mov_b32 v29, v9")
    for nb in range(4):
        a(f"v_xor_b32 v{vWA+nb}, {nb}, v29\nv_lshl_add_u32 v{vWA+nb}, v{vWA+nb}, 5, v26")
        a(f"v_xor_b32 v{vWI+nb}, {nb}, v27\nv_lshl_add_u32 v{vWI+nb}, v{vWI+nb}, 5, v28")
    a(f"v_add_u32 v{vFA}, {LB}, v{vL16}")
    a(f"v_add_u32 v44, s83, v{vFA}")
    stamp(a, 'setup')
    F = bB
    if OPT['lnm']:
        b = Prog()
        b("s_mov_b32 s45, 0xffff0000" if not OPT['timing'] else "s_mov_b32 s47, 0xffff0000")
        MK = 45 if not OPT['timing'] else 47
        for i in range(4): b(f"v_mov_b32 v{32+i}, 0x3f803f80")
        b(f"v_bfe_u32 v45, v{vL16}, 4, 2\nv_bfe_u32 v46, v{vL16}, 6, 2\nv_lshrrev_b32 v47, 8, v{vL16}")
        b("s_waitcnt vmcnt(@x0)")
        for sx in range(4): b(f"ds_read_b128 v[{bA+4*sx}:{bA+4*sx+3}], v{50+sx} ; @T:q0")
        for c4 in range(4):
            if c4 < 3:
                b(f"s_waitcnt vmcnt(@x{c4+1})")
                for sx in range(4): b(f"ds_read_b128 v[{bA+16*(c4+1)+4*sx}:{bA+16*(c4+1)+4*sx+3}], v{50+sx} offset:{(c4+1)*4096} ; @T:q{c4+1}")
            b(f"s_waitcnt lgkmcnt(@q{c4})")
            for k in range(4*c4, 4*c4 + 4):
                x = f"v[{bA+4*k}:{bA+4*k+3}]"
                un = [[f"v_lshlrev_b32 v{F+2*i}, 16, v{bA+i}", f"v_and_b32 v{F+2*i+1}, s{MK}, v{bA+i}"] for i in range(4*k, 4*k+4)]
                last = (c4 == 3)
                b(f"{MF} v[36:39], v[32:35], {x}, {'0' if k == 0 else 'v[36:39]'}")
                if not last:
                    for y in un[0] + un[1]: b(y)
                b(f"{MF} v[40:43], {x}, {x}, {'0' if k == 0 else 'v[40:43]'}")
                if not last:
                    for y in un[2] + un[3]: b(y)
        late = [y for i in range(48, 64) for y in (f"v_lshlrev_b32 v{F+2*i}, 16, v{bA+i}", f"v_and_b32 v{F+2*i+1}, s{MK}, v{bA+i}")]
        for x in stampl(1): b(x)
        st = []
        st += ["v_cmp_eq_u32 vcc, 1, v45", None, None, "v_cndmask_b32 v40, v40, v41, vcc", "v_cmp_eq_u32 vcc, 2, v45", None, None, "v_cndmask_b32 v40, v40, v42, vcc",
               "v_cmp_eq_u32 vcc, 3, v45", None, None, "v_cndmask_b32 v40, v40, v43, vcc", "v_cmp_eq_u32 vcc, v46, v47", None, None, "v_cndmask_b32 v40, 0, v40, vcc"]
        st += [f"v_mul_f32 v36, {hx(1/512)}, v36", "v_mov_b32 v41, v40", "v_cvt_pk_bf16_f32 v37, v36, v36", None, "v_permlane16_swap_b32 v40, v41", "v_lshlrev_b32 v37, 16, v37", "v_add_f32 v40, v40, v41",
               "v_mov_b32 v41, v40", None, None, "v_permlane32_swap_b32 v40, v41", None, "v_add_f32 v40, v40, v41",
               f"v_mul_f32 v40, {hx(1/512)}, v40", "v_fma_f32 v40, -v36, v36, v40", "v_max_f32 v40, 0, v40",
               "v_cvt_pk_bf16_f32 v40, v40, v40", "v_lshlrev_b32 v40, 16, v40", f"v_add_f32 v40, {hx(1e-5)}, v40", "v_cvt_pk_bf16_f32 v40, v40, v40", "v_lshlrev_b32 v40, 16, v40",
               "v_sqrt_f32 v40, v40", None, "v_cvt_pk_bf16_f32 v40, v40, v40", "v_lshlrev_b32 v40, 16, v40", "v_rcp_f32 v42, v40", None, "v_mul_f32 v43, v37, v42"]
        for y in late[:10]: b(y)
        late = late[10:]
        for y in st:
            if y is None: b(late.pop(0) if late else "s_nop 0")
            else: b(y)
        for y in late: b(y)
        for k in range(16):
            for i in range(4*k, 4*k+4): b(f"v_pk_fma_f32 v[{F+2*i}:{F+2*i+1}], v[{F+2*i}:{F+2*i+1}], v[42:43], v[42:43] op_sel:[0,0,1] op_sel_hi:[1,0,1] neg_lo:[0,0,1] neg_hi:[0,0,1]")
            if k: b(f"ds_write_b128 v44, v[{bA+4*k-4}:{bA+4*k-1}] offset:{(k-1)*1024}")
            for i in range(4*k, 4*k+4): b(f"v_cvt_pk_bf16_f32 v{bA+i}, v{F+2*i}, v{F+2*i+1}")
        b(f"ds_write_b128 v44, v[{bA+60}:{bA+63}] offset:{15*1024}")
    else:
        b = Prog()
        for k in range(16):
            if OPT['xdma']:
                if k == 0:
                    b("s_waitcnt vmcnt(@x0)")
                    for sx in range(4): b(f"ds_read_b128 v[{bA+4*sx}:{bA+4*sx+3}], v{50+sx} ; @T:q0")
                if k % 4 == 0:
                    c4 = k // 4
                    if c4 < 3:
                        b(f"s_waitcnt vmcnt(@x{c4+1})")
                        for sx in range(4): b(f"ds_read_b128 v[{bA+16*(c4+1)+4*sx}:{bA+16*(c4+1)+4*sx+3}], v{50+sx} offset:{(c4+1)*4096} ; @T:q{c4+1}")
                    b(f"s_waitcnt lgkmcnt(@q{c4})")
            else: b(f"s_waitcnt vmcnt(@x{k})")
            for i in range(4*k, 4*k+4):
                b(f"v_lshlrev_b32 v{F+2*i}, 16, v{bA+i}\nv_and_b32 v{F+2*i+1}, 0xffff0000, v{bA+i}")
            for i in range(4*k, 4*k+4):
                if k == 0: b(f"v_mov_b32 v{32+2*i}, v{F+2*i}\nv_mov_b32 v{33+2*i}, v{F+2*i+1}")
                else: b(f"v_pk_add_f32 v[{32+2*(i%4)}:{33+2*(i%4)}], v[{32+2*(i%4)}:{33+2*(i%4)}], v[{F+2*i}:{F+2*i+1}]")
        for x in stampl(1): b(x)
        b("v_pk_add_f32 v[32:33], v[32:33], v[34:35]\nv_pk_add_f32 v[36:37], v[36:37], v[38:39]\nv_pk_add_f32 v[32:33], v[32:33], v[36:37]\nv_add_f32 v32, v32, v33")
        xreduce(b, 32, 'v_add_f32', 33)
        b(f"v_mul_f32 v32, {hx(1/512)}, v32\nv_cvt_pk_bf16_f32 v33, v32, v32\nv_lshlrev_b32 v34, 16, v33\nv_sub_f32 v40, v32, v34")
        for i in range(64):
            b(f"v_pk_add_f32 v[{F+2*i}:{F+2*i+1}], v[{F+2*i}:{F+2*i+1}], v[34:35] op_sel_hi:[1,0] neg_lo:[0,1] neg_hi:[0,1]")
            if i >= 2:
                j = i - 2; r = 46 + 2*(j % 4)
                b(f"v_pk_mul_f32 v[{r}:{r+1}], v[{F+2*j}:{F+2*j+1}], v[{F+2*j}:{F+2*j+1}]" if j < 4 else f"v_pk_fma_f32 v[{r}:{r+1}], v[{F+2*j}:{F+2*j+1}], v[{F+2*j}:{F+2*j+1}], v[{r}:{r+1}]")
        for j in (62, 63):
            r = 46 + 2*(j % 4); b(f"v_pk_fma_f32 v[{r}:{r+1}], v[{F+2*j}:{F+2*j+1}], v[{F+2*j}:{F+2*j+1}], v[{r}:{r+1}]")
        b("v_pk_add_f32 v[46:47], v[46:47], v[48:49]\nv_pk_add_f32 v[50:51], v[50:51], v[52:53]\nv_pk_add_f32 v[46:47], v[46:47], v[50:51]\nv_add_f32 v42, v46, v47")
        xreduce(b, 42, 'v_add_f32', 43)
        b(f"v_mul_f32 v42, {hx(1/512)}, v42\nv_fma_f32 v42, -v40, v40, v42\nv_max_f32 v42, 0, v42")
        rb16 = lambda r: f"v_cvt_pk_bf16_f32 v{r}, v{r}, v{r}\nv_lshlrev_b32 v{r}, 16, v{r}"
        b(rb16(42)); b(f"v_add_f32 v42, {hx(1e-5)}, v42"); b(rb16(42)); b("v_sqrt_f32 v42, v42\ns_nop 0"); b(rb16(42)); b("v_rcp_f32 v42, v42\ns_nop 0")
        for k in range(16):
            for i in range(4*k, 4*k+4): b(f"v_pk_mul_f32 v[{F+2*i}:{F+2*i+1}], v[{F+2*i}:{F+2*i+1}], v[42:43] op_sel_hi:[1,0]")
            if k: b(f"ds_write_b128 v44, v[{bA+4*k-4}:{bA+4*k-1}] offset:{(k-1)*1024}")
            for i in range(4*k, 4*k+4): b(f"v_cvt_pk_bf16_f32 v{bA+i}, v{F+2*i}, v{F+2*i+1}")
        b(f"ds_write_b128 v44, v[{bA+60}:{bA+63}] offset:{15*1024}")
    interleave(a, b.L, lndma, OPT.get('lnevery', 10), OPT.get('lnstart', 0))
    stamp(a, 'lndone')
    a("s_waitcnt vmcnt(@w0) lgkmcnt(0)\ns_barrier")
    stamp(a, 'lnbar')
    xr = lambda ks, qb, tag, lay: f"ds_read_b128 a[{(ks*4+qb)*4}:{(ks*4+qb)*4+3}], v{vFA} offset:{lay(ks, qb)*1024} ; @T:{tag}"
    layX = lambda ks, qb: qb*16 + ks
    layF = lambda ks, qb: ks*4 + qb
    def stream_head(P, idx, tag, lay, extra=()):
        for x in wreads(P, idx, 0): a(x)
        for ks in range(2):
            for qb in range(4): a(xr(ks, qb, tag, lay))
        for nb in (1, 2):
            for x in wreads(P, idx, nb): a(x)
        for x in extra: a(x)
        a("s_waitcnt lgkmcnt(@auto)")
    RG = [2, 3, 4, 5, 6, 12, 14, 20]
    def frag_reads(xm, pos, ks0, tag, lay):
        for k in range(8): xm.setdefault((pos, RG[k]), []).append(xr(ks0 + k % 2, k // 2, tag, lay))
    idle = Prog()
    if OPT.get('skip', 0):
        a(f"s_cmp_ge_u32 s{sW}, s{sNU}\ns_cbranch_scc1 L_idle")
        idle("L_idle:")
        for ks in range(16):
            for qb in range(4): idle(xr(ks, qb, 'xr', layX))
        for i in range(128): idle(f"v_mov_b32 v{bA+i}, 0")
        for i in range(4): idle(f"v_mov_b32 v{vT+i}, 1.0")
        idle(f"v_add_u32 v{vPF}, s82, v{vFA}\ns_add_u32 s{sJ}, s{sJ}, {(16 - (3 - OPT.get('late2', 0))) % 8}")
        idle("s_waitcnt vmcnt(0) lgkmcnt(0)")
        idle(f"v_mov_b32 v{vGB}, {hx(-2.0 * math.log2(math.e) * math.sqrt(2.0 / math.pi) * 0.044715)}\ns_barrier")
        for i in (16, 17, 18):
            s0, s1, d = panel_dma(S1[i], i)
            for x in s0 + ["s_nop 0"] + d[:4] + s1 + ["s_nop 0"] + d[4:]: idle(x)
        idle("s_waitcnt vmcnt(@w16)")
        for nb in range(3):
            for x in wreads(S1[16], 16, nb): idle(x)
        idle("s_waitcnt lgkmcnt(0)\ns_branch L_join16")
    a.idle = idle
    stream_head(S1[0], 0, 'xr', layX, late_dma)
    stamp(a, 2)
    fill = {}; xm = {}; xs = {}
    for j in range(7): frag_reads(xm, j, 2*j + 2, 'xr', layX)
    o1, o2 = attn_addr_ops()
    xs[(9, 0)] = ["s_barrier"]
    fill[8] = [f"v_add_u32 v{vPF}, s82, v{vFA}", f"v_mov_b32 v{vGB}, {hx(-2.0 * math.log2(math.e) * math.sqrt(2.0 / math.pi) * 0.044715)}"] + gelu_stage1(bA)
    g2a, g2b = geglu_stage2(bA, bB)
    if OPT.get('hglob', 0):
        fill[16] = g2a + g2b; fill[24] = qpack(bC, 0) + o1
        xs[(14, 28)] = [f"s_lshl_b32 s61, s2, 2", f"s_add_u32 s61, s61, s{sW}", f"s_lshl_b32 s61, s61, 13"]
        xs[(14, 29)] = [f"s_add_u32 s61, s61, 0x2100000", f"s_add_u32 s62, s61, 4096", f"s_add_u32 s63, s82, {LB}"]
        for sp in range(2):
            xs[(25 + sp, 28)] = (["s_waitcnt vmcnt(@hs)"] if sp == 0 else []) + [f"s_add_u32 m0, s63, {sp*4096}"]
            for k, g in enumerate([29, 30, 31, 31]):
                xm.setdefault((25 + sp, g), []).extend([f"buffer_load_dwordx4 v{vL16}, s[{rWS}:{rWS+3}], s{61 + sp} offen offset:{k*1024} lds ; @T:hd"] + ([None] if k != 2 else []))
        xs[(28, 0)] = ["s_waitcnt vmcnt(@hd)", "s_barrier"]
    elif OPT.get('g2late', 0):
        fill[16] = g2a; fill[24] = g2b + o1; fill[26] = qpack(bC, 0)
        xs[(27, 12)] = ["s_waitcnt lgkmcnt(@hw)", "s_barrier"]
    else:
        if OPT.get('hbatch', 1):
            fill[16] = g2a + [x for x in g2b if not x.startswith('ds_')]; fill[24] = o1 + qpack(bC, 0)
            hb = OPT.get('hbpos', (24, 3))
            xm[hb] = [x for x in g2b if x.startswith('ds_')]
        else:
            fill[16] = g2a + g2b; fill[24] = qpack(bC, 0) + o1
        xs[(26, 0)] = ["s_waitcnt lgkmcnt(@hw)", "s_barrier"]
    for j in range(4): frag_reads(xm, 28 + j, 2*j, 'hr', layF)
    fill[32] = qpack(bA, 1)
    fill[36] = park(bC, 128) + o2
    xs[(32, 3)] = ["s_waitcnt lgkmcnt(@hr)", "s_barrier"]
    kvs = [kvdma(2, 0, 0, True, False), kvdma(3, 1, 0, True, False), kvdma(0, 2, 0), kvdma(1, 3, 1)]
    xs[(32, 10)] = [f"s_lshl_b32 s{sKO+3}, s{sRB}, {14 if OPT['map'] == 8 else 15}"]; xs[(32, 12)] = [f"s_sub_u32 s{sKO+3}, s{sKO+3}, 8192"]
    for i, (sc, dd) in enumerate(kvs):
        pos = [33, 34, 37, 38][i]
        if i < 2:
            xs.setdefault((pos, 20), []).append(sc[1]); xs.setdefault((pos, 22), []).append(sc[2]); xs.setdefault((pos, 28), []).append(sc[0])
            for x, g in zip(dd, [29, 30]): xm.setdefault((pos, g), []).extend([x, None])
        else:
            xs.setdefault((pos, 9), []).append(sc[1]); xs.setdefault((pos, 10), []).append(sc[2]); xs.setdefault((pos, 11), []).append(sc[0])
            for x, g in zip(dd, [13, 17, 21, 27]): xm.setdefault((pos, g), []).extend([x, None])
    xs[(39, 3)] = ["s_waitcnt vmcnt(@kv3)", "s_barrier"]
    for x, g in zip(kreads(2), [8, 9, 10, 11, 12, 13, 14, 16]): xm.setdefault((39, g), []).append(x)
    left = emit_stream(a, S1, 0, fill, xm, xs, must_empty=(24, 26, 32, 36) if (OPT.get('g2late', 0) and not OPT.get('hglob', 0)) else (24, 32, 36), cap=dict((k, OPT.get('gcap', 41 if (OPT.get('g2late', 0) and not OPT.get('hglob', 0)) else 44)) for k in range(8, 24)))
    assert not left
    stamp(a, 3)
    X_ = SP(dict(S=vS, P=[32, 48, 64, 80], NEGM=vNEGM, ONES=vONES, LM=vLM, L=vL, KA=vKA, VA=vVAl, KF=aKF, VF=aVF, Q=vQ, Qf='v', O=aO), OPT)
    def with_fill(ms, q, memat, start=0, room0=2):
        for g, m in enumerate(ms):
            a(m)
            room = room0
            for x in memat.get(g, []):
                a(x); room -= (2 if x.startswith('buffer') else 0 if x.startswith('s_') else 1)
            while g >= start and q and room >= 1:
                x = q.pop(0); a(x); room -= cost(x)
    st = park(bA, 160)
    k10, k11 = X_.kreads(3, 0), X_.kreads(3, 1)
    with_fill(X_.qk(0, '0'), st, {16: k10[:2], 17: k10[2:]}, start=3)
    for x in k11 + st: a(x)
    for i in range(4): a(f"v_mov_b32 v{vONES+i}, 0x3f803f80\nv_mov_b32 v{vL+i}, 0")
    T = [88 + 2*qb for qb in range(4)]
    for k in range(4):
        for qb in range(4):
            b0 = vS[0] + qb*8
            a([f"v_max3_f32 v{T[qb]}, v{b0}, v{b0+1}, v{b0+2}", f"v_max3_f32 v{T[qb]}, v{T[qb]}, v{b0+3}, v{b0+4}", f"v_max3_f32 v{T[qb]}, v{T[qb]}, v{b0+5}, v{b0+6}", f"v_max_f32 v{T[qb]}, v{T[qb]}, v{b0+7}"][k])
    for sw in ('v_permlane16_swap_b32', 'v_permlane32_swap_b32'):
        for qb in range(4): a(f"v_mov_b32 v{T[qb]+1}, v{T[qb]}")
        for qb in range(4): a(f"{sw} v{T[qb]}, v{T[qb]+1}")
        for qb in range(4): a(f"v_max_f32 v{T[qb]}, v{T[qb]}, v{T[qb]+1}")
    for qb in range(4):
        for i in range(4): a(f"v_sub_f32 v{vNEGM+qb*4+i}, 0, v{T[qb]}")
    a("s_waitcnt vmcnt(@kv1) lgkmcnt(0)\ns_barrier")
    subs = [f"v_sub_f32 v{X_.sblk(0, kb, qb)+i}, v{X_.sblk(0, kb, qb)+i}, v{T[qb]}" for kb in range(2) for qb in range(4) for i in range(4)]
    E0, S0 = X_.smq(0, 0)
    q0 = subs[:8]; si = 0
    for k, e in enumerate(E0):
        q0.append(e)
        if 8 + k < 32 and k % 4 == 3: q0 += subs[8 + k - 3: 8 + k + 1]
        while si < len(S0) and S0[si][0] <= k: q0.append(S0[si][1]); si += 1
    q0 += ["s_nop 0"] + [x[1] for x in S0[si:]]
    q0 += [f"s_lshl_b32 s0, s{sRB}, 3", f"v_mov_b32 v{vT}, s0", f"s_lshl_b32 s0, 0x100, s{sG}", f"v_mov_b32 v{vT+1}, s0"] + pf_addr('s0', vT+3)
    if OPT.get('flags'): q0 += flag_off(sLATE) + [f"v_mov_b32 v{vT+2}, 0"]
    q0 += [f"s_cmp_eq_u32 s{sW}, 0", "s_cselect_b32 s0, 1, 0", "s_mov_b32 s1, 0"]
    sc, dd = kvdma(2, 4, 2)
    k20, k21 = X_.kreads(0, 0), X_.kreads(0, 1)
    with_fill(X_.qk(1), q0, {0: [sc[0]], 1: [sc[1]], 2: [sc[2]], 4: [dd[0]], 9: [dd[1]], 16: k20[:2], 17: k20[2:], 21: [dd[2]], 26: [dd[3]]}, room0=OPT.get('proom', 3))
    for x in k21 + q0: a(x)
    c = ([], [], 32)
    for j_ in (1, 2, 3): _, c = X_.sp(j_, c, kvdma)
    E1, S1_ = X_.smq(1, 1); rem = set(c[0]) | set(x[1] for x in c[1])
    for x in E1 + [y[1] for y in S1_]:
        if x not in rem: a(x)
    cp = lambda c: (list(c[0]), list(c[1]), c[2])
    a("s_waitcnt lgkmcnt(0)")
    sts = [parked_store(f) + " ; @T:st" for f in range(16)]
    carry = cp(c)
    for j_ in range(4):
        kw = {}
        if j_ < 3:
            n = [6, 5, 5][j_]; kw['xauto'] = [(36, 100, sts[:n])]; sts = sts[n:]
            if j_ == 0 and OPT.get('flags'): kw['postbar'] = f"s_mov_b64 exec, 1\nbuffer_store_dword v{vT+2}, off, s[{rWS}:{rWS+3}], s{sLATE} sc1 ; @T:st\ns_mov_b64 exec, -1"
        else:
            kw['alsowait'] = 'st'
            if OPT['prefetch'] and OPT.get('pfearly'): kw['xauto'] = [(40, 70, [f"buffer_load_dword v{vT+3}, v{vPF}, s[{rWO}:{rWO+3}], s81 offen{' offset:64' if h else ''} ; @X" for h in range(OPT.get('pf2', 1))])]
            if OPT['single']: kw['postbar'] = f"s_mov_b64 exec, s[0:1]\nbuffer_atomic_or v{vT+1}, v{vT}, s[{rDBG}:{rDBG+3}], 0 offen ; @X\ns_mov_b64 exec, -1"
        body, carry = X_.sp(j_, carry, kvdma, first=(j_ == 0), **kw)
        for x in body: a(x)
    for _ in range(2):
        _, c = X_.sp(4, c, kvdma, postbar=("x" if OPT['single'] else None)); _, c = X_.sp(5, c, kvdma, postbar=("x" if OPT['prefetch'] and OPT.get('pfloop', 0) else None))
    assert set(c[0]) <= set(carry[0]) and set(c[1]) <= set(carry[1]), (carry, c)
    for x in [x for x in carry[0] if x not in c[0]] + ["s_nop 0"] + [x[1] for x in carry[1] if x not in c[1]]: a(x)
    carry = cp(c)
    stamp(a, 'loop0')
    a(f"s_mov_b32 s{sCNT}, 12")
    a(".p2align 6")
    a("L_attn_loop:")
    c0 = cp(carry); loop = []
    for j_ in (4, 5):
        pb = f"buffer_load_dword v{vT+2}, v{vT}, s[{rDBG}:{rDBG+3}], 0 offen sc1 ; @T:poll" if (j_ == 4 and OPT['single']) else None
        if j_ == 5 and OPT['prefetch'] and OPT.get('pfloop', 0): pb = f"buffer_load_dword v{vT+3}, v{vPF}, s[{rWO}:{rWO+3}], s81 offen ; @T:pfo"
        body, carry = X_.sp(j_, carry, kvdma, postbar=pb)
        loop += body
    assert cp(carry) == c0
    a.loop = (len(a.L), len(a.L) + len(loop))
    for x in loop: a(x)
    a(f"s_sub_u32 s{sCNT}, s{sCNT}, 1\ns_cmp_lg_u32 s{sCNT}, 0\ns_cbranch_scc1 L_attn_loop")
    stamp(a, 'loop1')
    S2 = pO0 + pO1; base2 = len(S1)
    AV2 = 128
    woff = lambda h: f"s_add_u32 s0, s{sW}, {h}\ns_and_b32 s0, s0, 3\ns_lshl_b32 s0, s0, 17\ns_add_u32 s{44+h}, s0, s{sCOO}"
    def wd(k):
        s0, s1, d = panel_dma(S2[k], base2 + k)
        return [woff(k)] + s0 + d[:4] + s1 + d[4:]
    for j_ in (28, 29, 30):
        kw = {}
        if j_ == 28 and OPT['single']:
            so = share_offsets(f"s{sG}") + [f"s_bfe_u32 s{sBITS}, s{sBITS}, 0x80008", f"s_cmp_lg_u32 s{sBITS}, 0xff", f"s_cselect_b32 s{sLATE}, 1, 0", f"s_cselect_b32 s{sBITS}, 0x40000000, s{sSHOFF}"]
            a(f"v_readfirstlane_b32 s{sBITS}, v{vT+2}")
            fl = []
            for g in range(8):
                pl = ploads(FPE, 1, g, f"s{sBITS}"); fl += [pl[0], pl[2].replace(f"v[{FPE[1]+4*g}:{FPE[1]+4*g+3}]", f"a[{160+4*g}:{163+4*g}]")]
            kw['xauto'] = [(30, 56, so), (56, 104, fl)]
        if j_ == 28 and OPT['prefetch'] and not OPT.get('pfloop', 0) and not OPT.get('pfearly'): kw['xd'] = [(7, f"buffer_load_dword v{vT+3}, v{vPF}, s[{rWO}:{rWO+3}], s81 offen")]
        if j_ == 29:
            kw['dma'] = (True, True, False, True); kw['xauto'] = [(34, 100, wd(0) + wd(1))]
        if j_ == 30:
            kw['dma'] = (False, True, False, False); kw['knext'] = False
            kw['xauto'] = [(34, 100, wd(2) + [woff(3)])]
            kw['vlast'] = sum((X_.vreads(2, db, aKF + 4*db) for db in range(8)), []) + sum((X_.vreads(3, db, AV2 + 4*db) for db in range(8)), [])
        body, carry = X_.sp(j_, carry, kvdma, **kw)
        for x in body: a(x)
    E, Sq, edone = list(carry[0]), list(carry[1]), carry[2]
    post = []
    lq = [qb for qb in range(4) if qb >= OPT['msum']]
    for sw in ('v_permlane16_swap_b32', 'v_permlane32_swap_b32'):
        post += [f"v_mov_b32 v{96+qb}, v{vL+qb}" for qb in lq] + ["s_nop 1"] + [f"{sw} v{vL+qb}, v{96+qb}" for qb in lq] + [f"v_add_f32 v{vL+qb}, v{vL+qb}, v{96+qb}" for qb in lq]
    post += [f"v_add_u32 v{vPF}, s83, v{vFA}"]
    if OPT['single']:
        post += [f"v_mov_b32 v{vSIG}, v{vT}", f"v_bfe_u32 v{vXO}, v{vL16}, 4, 4", f"v_lshlrev_b32 v{vXO}, 10, v{vXO}", f"v_lshrrev_b32 v{vT+3}, 8, v{vL16}", f"v_lshl_add_u32 v{vXO}, v{vT+3}, 3, v{vXO}"]
    ex0 = []
    if OPT['single']:
        for g in range(8):
            pl = ploads(FPE, 1, g, f"s{sBITS}"); ex0 += [pl[0], pl[1], None]
        xl = xloads(); ex0 += [xl[0] + "\n" + xl[1], None, xl[2], xl[3], xl[4], None, xl[5]]
    for g, m in enumerate(X_.pv1(2, aKF) + X_.pv1(3, AV2)):
        check_p(m, Sq)
        a(m)
        if g == 0: a("s_barrier")
        if not E and not Sq and not post and ex0:
            x = ex0.pop(0)
            if x: a(x)
            continue
        room = 2; e_prev = edone
        nav = sum(1 for x in Sq if x[0] <= e_prev)
        if E and (nav < room or g % 2 == 0): a(E.pop(0)); edone += 1; room -= 2
        while room > 0:
            if Sq and Sq[0][0] <= e_prev: a(Sq.pop(0)[1]); room -= 1
            elif not E and not Sq and post: x = post.pop(0); a(x); room -= cost(x)
            else: break
    assert not E and not Sq
    for x in post + [x for x in ex0 if x]: a(x)
    stamp(a, 4)
    for h in range(4): a(f"s_add_u32 s{80+h%2}, s{sW}, {h}\ns_and_b32 s{80+h%2}, s{80+h%2}, 3")  if False else None
    a("s_nop 3")
    for qb in range(OPT['msum']): a(f"v_mov_b32 v{vL+qb}, v{vLM+4*qb}")
    a(f"v_add_f32 v{vT+1}, v{vL}, v{vL+1}\nv_add_f32 v{vT+2}, v{vL+2}, v{vL+3}\nv_add_f32 v{vT+1}, v{vT+1}, v{vT+2}")
    a(f"v_cmp_nge_f32 vcc, {hx(2.0**OPT['fthresh'])}, v{vT+1}\ns_nop 1\ns_cbranch_vccnz L_fallback\nL_fb_ret:")
    for qb in range(4): a(f"v_rcp_f32 v{vL+qb}, v{vL+qb}")
    for h in range(4): a(f"s_add_u32 s0, s{sW}, {h}\ns_and_b32 s0, s0, 3\ns_lshl_b32 s0, s0, 14\nv_add_u32 v{vOA+h}, s0, v{vFA}")
    def norm(sp, qb, pk):
        o_ = []; t = [64, 76, 96, 108][(sp*4 + qb) % 4]; l = vL + qb
        for e in range(2):
            o = aO + ((2*sp + e)*4 + qb)*4
            o_ += [f"v_accvgpr_read_b32 v{t+4*e+i}, a{o+i}" for i in range(4)]
        if pk:
            sel = "op_sel_hi:[1,0]" if l % 2 == 0 else "op_sel:[0,1]"
            o_ += [f"v_pk_mul_f32 v[{t+2*i}:{t+2*i+1}], v[{t+2*i}:{t+2*i+1}], v[{l - l%2}:{l - l%2 + 1}] {sel}" for i in range(4)]
        else: o_ += [f"v_mul_f32 v{t+i}, v{t+i}, v{l}" for i in range(8)]
        o_ += [f"v_cvt_pk_bf16_f32 v{t+8+i}, v{t+2*i}, v{t+2*i+1}" for i in range(4)]
        o_ += [f"ds_write_b128 v{vPF}, v[{t+8}:{t+11}] offset:{(sp*4 + qb)*1024} ; @T:ow{sp//2}"]
        return o_
    ex = []
    NPRE = OPT.get('npre', 16)
    for k in range(NPRE):
        for x in norm(k // 4, k % 4, True): a(x)
        if ex:
            for x in ex.pop(0): a(x)
    stamp(a, 'owritten')
    ord_ = lambda j, ks, qb: f"ds_read_b128 a[{oreg(j, ks, qb)}:{oreg(j, ks, qb)+3}], v{vOA + j % 4} offset:{((2*(j//4) + ks)*4 + qb)*1024}"
    a(f"s_waitcnt vmcnt(@w{base2})")
    for x in wreads(S2[0], base2, 0): a(x)
    for ks in range(2):
        for qb in range(4): a(ord_(0, ks, qb))
    for nb in (1, 2):
        for x in wreads(S2[0], base2, nb): a(x)
    a("s_waitcnt lgkmcnt(@auto)")
    stamp(a, 5)
    fill = {OPT.get('stpos', 13): slab_store(bB, 0, 0)}; xm = {}; xs = {}
    fill[0] = sum((norm(k // 4, k % 4, False) for k in range(NPRE, 16)), [])
    xs[(0, 10)] = ["s_waitcnt lgkmcnt(@ow0)", "s_barrier"]
    if NPRE < 16: xs[(3, 28)] = ["s_waitcnt lgkmcnt(@ow1)", "s_barrier"]
    else: xs[(0, 10)] = ["s_waitcnt lgkmcnt(@ow1)", "s_barrier"]
    for j in range(7):
        gaps = [12, 14, 15, 20, 22, 23, 28, 29] if j == 0 else RG
        for k in range(8): xm.setdefault((j, gaps[k]), []).append(ord_(j + 1, k % 2, k // 2))
    if OPT['single']:
        if not OPT.get('fredend', 1): xs[(3, 8)] = ["s_waitcnt vmcnt(@pl)"]
        fill[0] = [f'v_accvgpr_read_b32 v{FPE[1]+i}, a{160+i}' for i in range(32)]
        if not OPT.get('fredend', 1): fill[3] = fred_fill(FPE, (1,)); fill[8] = fred_fill(FPE, (0,))
    fin = slab_store(bA, 0, 1)
    left = emit_stream(a, S2, base2, fill, xm, xs, late={(15, 18): fin[:20]}, must_empty=(3,), quiet=range(32), cap=dict([(k, OPT.get('ocap', 30)) for k in range(3)] + [(k, OPT.get('fcap', [32, 32, 32, 44, 40, 40, 40, 40, 40])[k-4]) for k in range(4, 13)]))
    for x in left: a(x)
    a("s_nop 5")
    for x in fin[20:]: a(x)
    stamp(a, 6)
    if OPT['timing']: a("s_memrealtime s[80:81]\ns_waitcnt lgkmcnt(0)\ns_mov_b32 s101, s80")
    if OPT['single']:
        (end_phase_flags if OPT.get('flags') else end_phase)(a)
    if OPT['timing'] and not OPT.get('dbgtime'):
        a("s_waitcnt vmcnt(0)")
        a("s_memtime s[44:45]\ns_memrealtime s[46:47]\ns_waitcnt lgkmcnt(0)")
        a(f"s_lshl_b32 s62, s2, 2\ns_add_u32 s62, s62, s{sW}\ns_lshl_b32 s62, s62, 6\ns_add_u32 s62, s62, 0x3000000")
        a(f"s_mov_b32 s{rWS+2}, 0x4000000")
        for i in range(8): a(f"v_mov_b32 v3, s{sTS+2*i if i < 7 else 44}\nv_mov_b32 v4, {4*i}\nbuffer_store_dword v3, v4, s[{rWS}:{rWS+3}], s62 offen")
        a(f"v_mov_b32 v3, s46\nv_mov_b32 v4, 32\nbuffer_store_dword v3, v4, s[{rWS}:{rWS+3}], s62 offen")
        a(f"v_mov_b32 v3, s101\nv_mov_b32 v4, 40\nbuffer_store_dword v3, v4, s[{rWS}:{rWS+3}], s62 offen")
        for k, r in enumerate((94 if OPT.get('flags') else 82, 98, 96)): a(f"v_mov_b32 v3, s{r}\nv_mov_b32 v4, {44+4*k}\nbuffer_store_dword v3, v4, s[{rWS}:{rWS+3}], s62 offen")
        a(f"v_mov_b32 v3, s100\nv_mov_b32 v4, 36\nbuffer_store_dword v3, v4, s[{rWS}:{rWS+3}], s62 offen")
    if OPT.get('dbgtime'):
        a(f"s_cmp_eq_u32 s2, {OPT['dbgtime']-1}\ns_cbranch_scc0 L_main_end\ns_cmp_eq_u32 s{sW}, 0\ns_cbranch_scc0 L_main_end")
        a("s_waitcnt vmcnt(0)\ns_memrealtime s[46:47]\ns_memtime s[44:45]\ns_waitcnt lgkmcnt(0)\ns_mov_b64 exec, 1")
        a(f"s_sub_u32 s0, s46, s100\nv_mov_b32 v3, s0\nv_mov_b32 v4, 4\nbuffer_store_dword v3, v4, s[{rDBG}:{rDBG+3}], 0 offen")
        st = [sTS + 2*i for i in range(7)] + [44]
        for i in range(7):
            a(f"s_sub_u32 s0, s{st[i+1]}, s{st[i]}\nv_mov_b32 v3, s0\nv_mov_b32 v4, {12 + 8*i}\nbuffer_store_dword v3, v4, s[{rDBG}:{rDBG+3}], 0 offen")
    a("L_main_end:\ns_endpgm")
    a.fb = fallback()
    return a

GV = [192 + i for i in range(8)] + [224 + i for i in range(8)]
def fred_fill(FP, which=(0, 1)):
    ops = []
    for fr in which:
        base = FP[fr]
        acc = [16, 17, 22, 23, 24, 25, 30, 31]
        for n in range(8):
            r = base + 4*n
            for i in range(4):
                if n == 0: ops += [f"v_lshlrev_b32 v{acc[2*i]}, 16, v{r+i}", f"v_and_b32 v{acc[2*i+1]}, 0xffff0000, v{r+i}"]
                else:
                    ta, tb = vT + 2*(i % 2), vT + 2*(i % 2) + 1
                    ops += [f"v_lshlrev_b32 v{ta}, 16, v{r+i}", f"v_and_b32 v{tb}, 0xffff0000, v{r+i}", f"v_add_f32 v{acc[2*i]}, v{acc[2*i]}, v{ta}", f"v_add_f32 v{acc[2*i+1]}, v{acc[2*i+1]}, v{tb}"]
        for b in range(0, 8, 4):
            ops += [f"v_mul_f32 v{vT+i}, {hx(-math.log2(math.e))}, v{acc[b+i]}" for i in range(4)]
            ops += [f"v_exp_f32 v{vT+i}, v{vT+i}" for i in range(4)]
            ops += [f"v_add_f32 v{vT+i}, 1.0, v{vT+i}" for i in range(4)]
            ops += [f"v_rcp_f32 v{vT+i}, v{vT+i}" for i in range(4)]
            ops += [f"v_mul_f32 v{GV[8*fr+b+i]}, v{acc[b+i]}, v{vT+i}" for i in range(4)]
    return ops

def fred_pk(FP):
    ops = []
    for fr in range(2):
        base = FP[fr]; acc = 40 + 8*fr
        for n in range(8):
            r = base + 4*n
            d = acc if n == 0 else 56
            for i in range(4): ops += [f"v_lshlrev_b32 v{d+2*i}, 16, v{r+i}", f"v_and_b32 v{d+2*i+1}, s44, v{r+i}"]
            if n: ops += [f"v_pk_add_f32 v[{acc+2*i}:{acc+2*i+1}], v[{acc+2*i}:{acc+2*i+1}], v[{56+2*i}:{57+2*i}]" for i in range(4)]
    for fr in range(2):
        acc = 40 + 8*fr
        ops += [f"v_mul_f32 v{56+i}, s45, v{acc+i}" for i in range(8)]
        ops += [f"v_exp_f32 v{56+i}, v{56+i}" for i in range(8)]
        ops += [f"v_add_f32 v{56+i}, 1.0, v{56+i}" for i in range(8)]
        ops += [f"v_rcp_f32 v{56+i}, v{56+i}" for i in range(8)]
        ops += [f"v_mul_f32 v{GV[8*fr+i]}, v{acc+i}, v{56+i}" for i in range(8)]
    return [f"s_mov_b32 s44, 0xffff0000", f"s_mov_b32 s45, {hx(-math.log2(math.e))}"] + ops

def end_phase(a):
    if OPT.get('fredend', 1):
        for x in fred_pk(FPE): a(x)
    a("v_mov_b32 v32, 0\nv_mov_b32 v33, 0\nv_mov_b32 v36, 0\nv_mov_b32 v37, 0\nv_mov_b32 v38, 0\nv_mov_b32 v39, 0")
    a(f"s_cmp_lg_u32 s{sW}, 0\ns_cbranch_scc1 L_e_nz\nds_write_b32 v32, v33\nL_e_nz:")
    a("s_waitcnt vmcnt(0) lgkmcnt(0)\ns_barrier")
    stamp(a, 'drained')
    if OPT.get('rt2'): a('s_memrealtime s[82:83]\ns_waitcnt lgkmcnt(0)')
    a(f"s_mov_b32 s{sDONE}, 0\ns_mov_b32 s{sTODO}, 0\ns_mov_b32 s{sCNT}, 0\ns_lshl_b32 s46, s{sRB}, 3")
    a(f"s_cmp_lg_u32 s{sW}, 0\ns_cbranch_scc1 L_e_other")
    a(f"s_lshl_b32 s47, 1, s{sG}\nv_mov_b32 v34, s47\ns_mov_b64 exec, 1\nbuffer_atomic_or v34, v{vSIG}, s[{rDBG}:{rDBG+3}], 0 offen sc0\ns_waitcnt vmcnt(0)\nv_readfirstlane_b32 s{sBITS}, v34\ns_mov_b64 exec, -1")
    a(f"s_or_b32 s{sBITS}, s{sBITS}, s47\ns_and_b32 s47, s{sBITS}, 0xff\ns_cmp_eq_u32 s47, 0xff\ns_cbranch_scc1 L_e_pub")
    a(f"L_e_w0:\ns_nop 0\ns_or_b32 s{sBITS}, s{sBITS}, s{sDONE}\ns_and_b32 s{sBITS}, s{sBITS}, 0xff")
    a(f"L_e_pub:\ns_and_b32 s{sBITS}, s{sBITS}, 0xff00ff\nv_mov_b32 v33, s{sBITS}\nds_write_b32 v32, v33\ns_branch L_e_have")
    a(f"L_e_other:\nds_read_b32 v33, v32\ns_waitcnt lgkmcnt(0)\nv_readfirstlane_b32 s{sBITS}, v33\ns_nop 0\ns_bitcmp1_b32 s{sBITS}, 31\ns_cbranch_scc1 L_e_exit")
    a(f"L_e_have:\ns_andn2_b32 s47, s{sBITS}, s{sDONE}")
    for g in range(8):
        a(f"s_bitcmp1_b32 s47, {g}\ns_cbranch_scc0 L_e_s{g}")
        for x in ploads(SPR, 0, g, f"s{sSHOFF}"): a(x)
        a(f"L_e_s{g}:")
    a(f"s_or_b32 s{sDONE}, s{sDONE}, s{sBITS}\ns_and_b32 s47, s{sDONE}, 0xff\ns_cmp_eq_u32 s47, 0xff\ns_cbranch_scc1 L_e_all")
    a(f"s_cmp_lg_u32 s{sW}, 0\ns_cbranch_scc0 L_e_poll\ns_sleep 1\ns_branch L_e_other")
    a(f"L_e_poll:\ns_add_u32 s{sCNT}, s{sCNT}, 1\ns_cmp_gt_u32 s{sCNT}, {OPT['spin']}\ns_cbranch_scc1 L_e_abandon")
    PD = OPT.get('pdepth', 1)
    if PD == 1:
        a(f"s_sleep {OPT.get('psleep', 2)}\nbuffer_load_dword v34, off, s[{rDBG}:{rDBG+3}], s46 sc1\ns_waitcnt vmcnt(0)\nv_readfirstlane_b32 s{sBITS}, v34\ns_branch L_e_w0")
    else:
        a(f"s_sleep {OPT.get('psleep', 2)}\ns_and_b32 s47, s{sCNT}, {PD-1}")
        for k in range(PD):
            a(f"s_cmp_eq_u32 s47, {k}\ns_cbranch_scc0 L_e_p{k}\nbuffer_load_dword v{36+k}, off, s[{rDBG}:{rDBG+3}], s46 sc1\ns_waitcnt vmcnt({PD-1})\nv_readfirstlane_b32 s{sBITS}, v{36+(k+1)%PD}\ns_branch L_e_w0\nL_e_p{k}:")
    a(f"L_e_abandon:\ns_lshl_b32 s47, 0x10000, s{sG}\nv_mov_b32 v34, s47\ns_mov_b64 exec, 1\nbuffer_atomic_or v34, v{vSIG}, s[{rDBG}:{rDBG+3}], 0 offen sc0\ns_waitcnt vmcnt(0)\nv_readfirstlane_b32 s{sBITS}, v34\ns_mov_b64 exec, -1")
    a(f"s_nop 0\ns_and_b32 s47, s{sBITS}, 0xff\ns_cmp_eq_u32 s47, 0xff\ns_cbranch_scc1 L_e_w0")
    a(f"v_mov_b32 v33, 0x80000000\nds_write_b32 v32, v33\ns_waitcnt lgkmcnt(0)\ns_branch L_e_exit")
    a(f"L_e_all:\ns_lshr_b32 s{sTODO}, s{sBITS}, 16")
    stamp(a, 'allseen')
    if OPT.get('rt2'): a('s_memrealtime s[98:99]\ns_waitcnt lgkmcnt(0)')
    a(f"L_e_fin:\ns_cmp_eq_u32 s{sLATE}, 0\ns_cbranch_scc1 L_e_nolate")
    for g in range(8):
        for x in ploads(FPL, 1, g, f"s{sSHOFF}"): a(x)
    for x in xloads(): a(x)
    a("s_waitcnt vmcnt(0)")
    for x in fred_pk(FPL): a(x)
    a("L_e_nolate:\ns_mov_b32 s44, 0xffff0000\ns_waitcnt vmcnt(0)")
    if OPT.get('rt2'): a('s_memrealtime s[96:97]\ns_waitcnt lgkmcnt(0)')
    for fr in range(2):
        d = 64 + 8*fr
        for n in range(8):
            r = SPR[fr] + 4*n
            for i in range(4):
                if n == 0: a(f"v_lshlrev_b32 v{d+2*i}, 16, v{r+i}\nv_and_b32 v{d+2*i+1}, s44, v{r+i}")
                else: a(f"v_lshlrev_b32 v{80+2*i}, 16, v{r+i}\nv_and_b32 v{81+2*i}, s44, v{r+i}")
            if n:
                for i in range(4): a(f"v_pk_add_f32 v[{d+2*i}:{d+2*i+1}], v[{d+2*i}:{d+2*i+1}], v[{80+2*i}:{81+2*i}]")
        a(f"s_add_u32 s0, s{sXOFF}, {fr*16384}")
        for e in range(2):
            xr_ = xregs[2*fr+e]
            for i in range(2): a(f"v_lshlrev_b32 v{80+2*i}, 16, v{xr_+i}\nv_and_b32 v{81+2*i}, 0xffff0000, v{xr_+i}")
            for i in range(4): a(f"v_fmac_f32 v{80+i}, v{d+4*e+i}, v{GV[8*fr+4*e+i]}")
            a(f"v_cvt_pk_bf16_f32 v{88+4*fr+2*e}, v80, v81\nv_cvt_pk_bf16_f32 v{89+4*fr+2*e}, v82, v83")
            a(f"buffer_store_dwordx2 v[{88+4*fr+2*e}:{89+4*fr+2*e}], v{vXO}, s[{rOUT}:{rOUT+3}], s0 offen offset:{32*e}{OPT.get('outflags', '')}")
    a(f"s_cmp_eq_u32 s{sTODO}, 0\ns_cbranch_scc1 L_e_exit")
    a(f"s_ff1_i32_b32 s47, s{sTODO}\ns_bitset0_b32 s{sTODO}, s47\ns_mov_b32 s{sLATE}, 1")
    for x in share_offsets("s47"): a(x)
    for g in range(8):
        for x in ploads(SPR, 0, g, f"s{sSHOFF}"): a(x)
    a("s_branch L_e_fin\nL_e_exit:")

def flag_off(d):
    return [f"s_lshl_b32 s{d}, s{sRB}, 3", f"s_add_u32 s{d}, s{d}, s{sG}", f"s_lshl_b32 s{d}, s{d}, 2", f"s_add_u32 s{d}, s{d}, s{sW}", f"s_lshl_b32 s{d}, s{d}, 2", f"s_add_u32 s{d}, s{d}, 0x2000000"]

def end_phase_flags(a):
    for x in fred_pk(FPE): a(x)
    sWX = 83
    a("v_mov_b32 v32, 0\nv_mov_b32 v33, 0\nv_mov_b32 v36, 1\nv_mov_b32 v48, 0\nv_mov_b32 v49, 0\nv_mov_b32 v50, 0\nv_mov_b32 v51, 0")
    for x in flag_off(47): a(x)
    a(f"s_lshl_b32 s46, s{sRB}, 7\ns_lshr_b32 s0, s{sG}, 1\ns_lshl_b32 s0, s0, 2\ns_add_u32 s46, s46, s0\ns_add_u32 s82, s46, 0x2000000\ns_lshl_b32 s46, s{sRB}, 3")
    a(f"s_cmp_lg_u32 s{sW}, 0\ns_cbranch_scc1 L_e_nz\nds_write_b32 v32, v33\nL_e_nz:")
    a(f"s_waitcnt vmcnt(0)\ns_mov_b64 exec, 1\nbuffer_store_dword v36, off, s[{rWS}:{rWS+3}], s47 sc1\ns_mov_b64 exec, -1\ns_waitcnt lgkmcnt(0)\ns_barrier")
    stamp(a, 'drained')
    if OPT.get('rt2'): a('s_memrealtime s[80:81]\ns_waitcnt lgkmcnt(0)\ns_mov_b32 s94, s80')
    a(f"s_mov_b32 s{sDONE}, 0\ns_mov_b32 s{sTODO}, 0\ns_mov_b32 s{sCNT}, 0\nv_mov_b32 v35, 0")
    a(f"s_cmp_eq_u32 s{sW}, 0\ns_cbranch_scc1 L_e_poll1\ns_cmp_eq_u32 s{sW}, 1\ns_cbranch_scc0 L_e_other")
    a(f"s_lshl_b32 s47, 1, s{sG}\nv_mov_b32 v35, s47\ns_mov_b64 exec, 1\nbuffer_atomic_or v35, v{vSIG}, s[{rDBG}:{rDBG+3}], 0 offen sc0\ns_mov_b64 exec, -1")
    a(f"L_e_other:\nds_read_b32 v33, v32\ns_waitcnt lgkmcnt(0)\nv_readfirstlane_b32 s{sBITS}, v33\ns_nop 0\ns_bitcmp1_b32 s{sBITS}, 31\ns_cbranch_scc1 L_e_gaveup")
    a(f"L_e_have:\ns_andn2_b32 s47, s{sBITS}, s{sDONE}")
    for g in range(8):
        a(f"s_bitcmp1_b32 s47, {g}\ns_cbranch_scc0 L_e_s{g}")
        for x in ploads(SPR, 0, g, f"s{sSHOFF}"): a(x)
        a(f"L_e_s{g}:")
    a(f"s_or_b32 s{sDONE}, s{sDONE}, s{sBITS}\ns_cmp_eq_u32 s{sDONE}, 0xff\ns_cbranch_scc1 L_e_all")
    a(f"s_cmp_lg_u32 s{sW}, 0\ns_cbranch_scc0 L_e_poll\ns_sleep 1\ns_branch L_e_other")
    a(f"L_e_poll:\ns_add_u32 s{sCNT}, s{sCNT}, 1\ns_cmp_gt_u32 s{sCNT}, {OPT['spin']}\ns_cbranch_scc1 L_e_abandon\ns_sleep {OPT.get('psleep', 2)}")
    a(f"L_e_poll1:\ns_cmp_eq_u32 s{sLATE}, 0\ns_cbranch_scc0 L_e_polld")
    PD = OPT.get('pdepth', 1)
    a(f"s_mov_b64 exec, 0xff\ns_and_b32 s47, s{sCNT}, {PD-1}")
    for k in range(PD):
        a(f"s_cmp_eq_u32 s47, {k}\ns_cbranch_scc0 L_e_p{k}\nbuffer_load_dword v{48+k}, v{vL16}, s[{rWS}:{rWS+3}], s82 offen sc1\ns_waitcnt vmcnt({PD-1})\nv_cmp_eq_u32 vcc, 1, v{48+(k+1)%PD}\ns_branch L_e_pq\nL_e_p{k}:")
    a(f"L_e_pq:\ns_nop 1\ns_mov_b64 exec, -1\ns_or_b32 s{sBITS}, vcc_lo, s{sDONE}\ns_lshl_b32 s47, 1, s{sG}\ns_or_b32 s{sBITS}, s{sBITS}, s47\ns_and_b32 s{sBITS}, s{sBITS}, 0xff\ns_branch L_e_pub")
    a(f"L_e_polld:\nbuffer_load_dword v34, off, s[{rDBG}:{rDBG+3}], s46 sc1\ns_waitcnt vmcnt(0)\nv_readfirstlane_b32 s{sBITS}, v34")
    a(f"L_e_w0:\ns_nop 0\ns_and_b32 s{sBITS}, s{sBITS}, 0xff")
    a(f"L_e_pub:\nv_mov_b32 v33, s{sBITS}\nds_write_b32 v32, v33\ns_branch L_e_have")
    a(f"L_e_abandon:\ns_lshl_b32 s47, 0x10000, s{sG}\nv_mov_b32 v34, s47\ns_mov_b64 exec, 1\nbuffer_atomic_or v34, v{vSIG}, s[{rDBG}:{rDBG+3}], 0 offen sc0\ns_waitcnt vmcnt(0)\nv_readfirstlane_b32 s{sBITS}, v34\ns_mov_b64 exec, -1")
    a(f"s_nop 0\ns_and_b32 s47, s{sBITS}, 0xff\ns_cmp_eq_u32 s47, 0xff\ns_cbranch_scc1 L_e_w0")
    a(f"v_mov_b32 v33, 0x80000000\nds_write_b32 v32, v33\ns_waitcnt lgkmcnt(0)\ns_branch L_e_exit")
    a(f"L_e_all:\ns_mov_b32 s{sWX}, 99")
    stamp(a, 'allseen')
    if OPT.get('rt2'): a('s_memrealtime s[98:99]\ns_waitcnt lgkmcnt(0)')
    a(f"L_e_fin:\ns_cmp_eq_u32 s{sLATE}, 0\ns_cbranch_scc1 L_e_nolate")
    for g in range(8):
        for x in ploads(FPL, 1, g, f"s{sSHOFF}"): a(x)
    for x in xloads(): a(x)
    a("s_waitcnt vmcnt(0)")
    for x in fred_pk(FPL): a(x)
    a(f's_mov_b32 s82, s44' if False else 's_nop 0')
    a("L_e_nolate:\ns_waitcnt vmcnt(0)")
    if OPT.get('rt2'): a('s_memrealtime s[96:97]\ns_waitcnt lgkmcnt(0)')
    for fr in range(2):
        d = 64 + 8*fr
        for n in range(8):
            r = SPR[fr] + 4*n
            for i in range(4):
                if n == 0: a(f"v_lshlrev_b32 v{d+2*i}, 16, v{r+i}\nv_and_b32 v{d+2*i+1}, 0xffff0000, v{r+i}")
                else: a(f"v_lshlrev_b32 v{80+2*i}, 16, v{r+i}\nv_and_b32 v{81+2*i}, 0xffff0000, v{r+i}")
            if n:
                for i in range(4): a(f"v_pk_add_f32 v[{d+2*i}:{d+2*i+1}], v[{d+2*i}:{d+2*i+1}], v[{80+2*i}:{81+2*i}]")
        a(f"s_add_u32 s0, s{sXOFF}, {fr*16384}")
        for e in range(2):
            xr_ = xregs[2*fr+e]
            for i in range(2): a(f"v_lshlrev_b32 v{80+2*i}, 16, v{xr_+i}\nv_and_b32 v{81+2*i}, 0xffff0000, v{xr_+i}")
            for i in range(4): a(f"v_fmac_f32 v{80+i}, v{d+4*e+i}, v{GV[8*fr+4*e+i]}")
            a(f"v_cvt_pk_bf16_f32 v{88+4*fr+2*e}, v80, v81\nv_cvt_pk_bf16_f32 v{89+4*fr+2*e}, v82, v83")
            a(f"buffer_store_dwordx2 v[{88+4*fr+2*e}:{89+4*fr+2*e}], v{vXO}, s[{rOUT}:{rOUT+3}], s0 offen offset:{32*e}{OPT.get('outflags', '')}")
    a(f"s_branch L_e_duty\nL_e_gaveup:\ns_waitcnt vmcnt(0)\ns_mov_b32 s{sWX}, 99\nL_e_duty:")
    a(f"s_cmp_eq_u32 s{sW}, 1\ns_cbranch_scc0 L_e_exit")
    a(f"s_cmp_eq_u32 s{sWX}, 99\ns_cbranch_scc0 L_e_next")
    a(f"v_readfirstlane_b32 s47, v35\ns_lshl_b32 s0, 1, s{sG}\ns_nop 0\ns_or_b32 s0, s0, s47\ns_and_b32 s0, s0, 0xff\ns_cmp_eq_u32 s0, 0xff\ns_cbranch_scc0 L_e_exit")
    a(f"s_bfe_u32 s{sTODO}, s47, 0x80010\ns_mov_b32 s{sWX}, 3")
    a(f"L_e_next:\ns_add_u32 s{sWX}, s{sWX}, 1\ns_cmp_lt_u32 s{sWX}, 4\ns_cbranch_scc1 L_e_same")
    a(f"s_cmp_eq_u32 s{sTODO}, 0\ns_cbranch_scc1 L_e_exit")
    a(f"s_ff1_i32_b32 s82, s{sTODO}\ns_bitset0_b32 s{sTODO}, s82\ns_mov_b32 s{sWX}, 0")
    a(f"L_e_same:\ns_mov_b32 s{sLATE}, 1")
    for x in share_offsets("s82", sWX): a(x)
    for g in range(8):
        for x in ploads(SPR, 0, g, f"s{sSHOFF}"): a(x)
    a("s_branch L_e_fin\nL_e_exit:")

def fallback():
    a = Prog()
    a("L_fallback:")
    M = [64 + qb for qb in range(4)]; AL = [68 + qb for qb in range(4)]; TM = [72 + 2*qb for qb in range(4)]
    FK, FV = 80, 88
    a(f"s_waitcnt vmcnt(0) lgkmcnt(0)\ns_mov_b32 s{sLATE}, 1")
    o1, o2 = attn_addr_ops()
    KA2 = 96; VA2 = [100 + i for i in range(8)]
    for x in o1:
        for s in range(4): x = x.replace(f"v_lshl_add_u32 v{vKA+s},", f"v_lshl_add_u32 v{KA2+s},")
        a(x)
    for x in o2:
        for db in range(8): x = x.replace(f"v_lshl_add_u32 v{vVAl[db]}, v{vT+3}, 5", f"v_lshl_add_u32 v{VA2[db]}, v{vT+3}, 5")
        a(x)
    for r in [KA2 + s for s in range(4)] + VA2: a(f"v_add_u32 v{r}, s83, v{r}")
    a(f"v_lshrrev_b32 v{vT}, 8, v{vL16}\nv_bfe_u32 v{vT+1}, v{vL16}, 4, 4")
    for part in range(4):
        for i in range(2):
            a(f"v_add_u32 v{vT+2}, {8*part + 4*i}, v{vT}\nv_and_b32 v{vT+2}, 15, v{vT+2}\nv_xor_b32 v{vT+2}, v{vT+2}, v{vT+1}\nv_lshlrev_b32 v{vT+2}, 4, v{vT+2}\nv_add_u32 v{vT+3}, {8*part}, v{vT}\nv_lshl_add_u32 v{FK+2*part+i}, v{vT+3}, 8, v{vT+2}")
            a(f"v_add_u32 v{vT+2}, {4*i}, v{vT}\nv_lshlrev_b32 v{vT+2}, 1, v{vT+2}\nv_xor_b32 v{vT+2}, v{vT+2}, v{vT+1}\nv_lshlrev_b32 v{vT+2}, 4, v{vT+2}\nv_lshl_add_u32 v{FV+2*part+i}, v{vT+3}, 8, v{vT+2}")
    for qb in range(4): a(f"v_mov_b32 v{M[qb]}, 0xff7fffff\nv_mov_b32 v{vL+qb}, 0")
    for i in range(128): a(f"v_accvgpr_write_b32 a{aO+i}, 0")
    a(f"s_mov_b32 s80, 0\ns_add_u32 s81, s83, {LB}")
    a("L_fb_loop:")
    for part in range(4):
        a(f"s_add_u32 m0, s81, {part*4096}\ns_nop 0")
        a(f"buffer_load_dwordx4 v{FK+2*part}, s[{rK}:{rK+3}], s80 offen lds\nbuffer_load_dwordx4 v{FK+2*part+1}, s[{rK}:{rK+3}], s80 offen offset:1024 lds")
        a(f"buffer_load_dwordx4 v{FV+2*part}, s[{rV}:{rV+3}], s80 offen offset:2048 lds\nbuffer_load_dwordx4 v{FV+2*part+1}, s[{rV}:{rV+3}], s80 offen offset:3072 lds")
    a("s_waitcnt vmcnt(0)")
    for x in kreads(0):
        for s in range(4): x = x.replace(f", v{vKA+s} ", f", v{KA2+s} ")
        a(x)
    a("s_waitcnt lgkmcnt(0)")
    for db in range(8):
        for jj in range(2): a(f"ds_read_b64_tr_b16 a[{aVF+db*4+2*jj}:{aVF+db*4+2*jj+1}], v{VA2[db]} offset:{jj*8192}")
    for x in qk(0, '0'): a(x)
    a("s_nop 7\ns_waitcnt lgkmcnt(0)")
    for qb in range(4):
        b0 = vS[0] + qb*8; T = TM[qb]
        a(f"v_max3_f32 v{T}, v{b0}, v{b0+1}, v{b0+2}\nv_max3_f32 v{T}, v{T}, v{b0+3}, v{b0+4}\nv_max3_f32 v{T}, v{T}, v{b0+5}, v{b0+6}\nv_max3_f32 v{T}, v{T}, v{b0+7}, v{M[qb]}")
        xreduce(a, T, 'v_max_f32', T + 1)
        a(f"v_sub_f32 v{AL[qb]}, v{M[qb]}, v{T}\nv_mov_b32 v{M[qb]}, v{T}\nv_exp_f32 v{AL[qb]}, v{AL[qb]}")
        for i in range(8): a(f"v_sub_f32 v{b0+i}, v{b0+i}, v{T}")
        for i in range(8): a(f"v_exp_f32 v{b0+i}, v{b0+i}")
        a(f"v_mul_f32 v{vL+qb}, v{vL+qb}, v{AL[qb]}")
        for i in range(8): a(f"v_add_f32 v{vL+qb}, v{vL+qb}, v{b0+i}")
        for i in range(4): a(f"v_cvt_pk_bf16_f32 v{vP[0]+qb*4+i}, v{b0+2*i}, v{b0+2*i+1}")
        for db in range(8):
            o = aO + (db*4 + qb)*4
            for i in range(4): a(f"v_accvgpr_read_b32 v{vT+i}, a{o+i}")
            for i in range(4): a(f"v_mul_f32 v{vT+i}, v{vT+i}, v{AL[qb]}")
            for i in range(4): a(f"v_accvgpr_write_b32 a{o+i}, v{vT+i}")
    a("s_nop 1")
    for x in pv(0, False, 0): a(x)
    a("s_nop 7\ns_add_u32 s80, s80, 8192\ns_cmp_lt_u32 s80, 0x80000\ns_cbranch_scc1 L_fb_loop")
    for qb in range(4): xreduce(a, vL + qb, 'v_add_f32', vT)
    a("s_branch L_fb_ret")
    return a

def final_kernel():
    a = Prog()
    a("final_kernel:")
    a("s_cmp_ge_u32 s2, 512\ns_cbranch_scc1 L_fin_end")
    if OPT['timing']: a("s_memrealtime s[30:31]")
    a("s_load_dwordx2 s[4:5], s[0:1], 0\ns_load_dwordx2 s[6:7], s[0:1], 72\ns_load_dwordx2 s[8:9], s[0:1], 88")
    a("v_lshrrev_b32 v2, 6, v0\nv_and_b32 v0, 63, v0\nv_readfirstlane_b32 s3, v2\nv_lshlrev_b32 v1, 4, v0")
    a("s_lshl_b32 s10, s2, 2\ns_nop 2\ns_add_u32 s10, s10, s3")
    a("s_waitcnt lgkmcnt(0)")
    srd(a, 12, 4, 2048*1024); srd(a, 16, 6, 2048*1024); srd(a, 20, 8, 0x2000000)
    a("s_lshl_b32 s11, s10, 10")
    for t in range(2):
        for g in range(8):
            a(f"s_add_u32 s24, s11, {t*0x1000000 + g*0x200000}")
            r = 8 + (t*8 + g)*4
            a(f"buffer_load_dwordx4 v[{r}:{r+3}], v1, s[20:23], s24 offen ; @T:l{t}{g}")
    a("s_lshr_b32 s25, s10, 6\ns_lshl_b32 s25, s25, 16\ns_and_b32 s26, s10, 3\ns_lshl_b32 s26, s26, 14\ns_add_u32 s25, s25, s26")
    a("s_bfe_u32 s26, s10, 0x40002\ns_lshl_b32 s26, s26, 6\ns_add_u32 s25, s25, s26")
    a("v_and_b32 v2, 15, v0\nv_lshlrev_b32 v2, 10, v2\nv_lshrrev_b32 v3, 4, v0\nv_lshl_add_u32 v2, v3, 3, v2")
    a("buffer_load_dwordx2 v[4:5], v2, s[12:15], s25 offen ; @T:x\nbuffer_load_dwordx2 v[6:7], v2, s[12:15], s25 offen offset:32 ; @T:x")
    acc = [72, 80]
    for t in range(2):
        for g in range(8):
            r = 8 + (t*8 + g)*4
            a(f"s_waitcnt vmcnt(@l{t}{g})")
            for i in range(4):
                if g == 0:
                    a(f"v_lshlrev_b32 v{acc[t]+2*i}, 16, v{r+i}\nv_and_b32 v{acc[t]+2*i+1}, 0xffff0000, v{r+i}")
                else:
                    a(f"v_lshlrev_b32 v88, 16, v{r+i}\nv_and_b32 v89, 0xffff0000, v{r+i}\nv_pk_add_f32 v[{acc[t]+2*i}:{acc[t]+2*i+1}], v[{acc[t]+2*i}:{acc[t]+2*i+1}], v[88:89]")
    for i in range(8): a(f"v_mul_f32 v{8+i}, {hx(-math.log2(math.e))}, v{80+i}")
    for i in range(8): a(f"v_exp_f32 v{8+i}, v{8+i}")
    for i in range(8): a(f"v_add_f32 v{8+i}, 1.0, v{8+i}")
    for i in range(8): a(f"v_rcp_f32 v{8+i}, v{8+i}")
    for i in range(8): a(f"v_mul_f32 v{8+i}, v{8+i}, v{80+i}")
    a("s_waitcnt vmcnt(@x)")
    for i in range(4): a(f"v_lshlrev_b32 v{16+2*i}, 16, v{4+i}\nv_and_b32 v{17+2*i}, 0xffff0000, v{4+i}")
    for i in range(8): a(f"v_fmac_f32 v{16+i}, v{8+i}, v{72+i}")
    for i in range(4): a(f"v_cvt_pk_bf16_f32 v{4+i}, v{16+2*i}, v{17+2*i}")
    a("buffer_store_dwordx2 v[4:5], v2, s[16:19], s25 offen\nbuffer_store_dwordx2 v[6:7], v2, s[16:19], s25 offen offset:32")
    if OPT['timing']:
        a("s_waitcnt vmcnt(0)\ns_memrealtime s[32:33]\ns_waitcnt lgkmcnt(0)\ns_mov_b32 s22, 0x4000000\ns_lshl_b32 s11, s10, 3\ns_add_u32 s11, s11, 0x3100000")
        a("v_mov_b32 v4, s30\nv_mov_b32 v5, s32\nv_mov_b32 v2, 0\nbuffer_store_dwordx2 v[4:5], v2, s[20:23], s11 offen")
    a("L_fin_end:\ns_endpgm")
    return a

def kd(name, vgpr, acc):
    return f""".section .rodata,"a"
.p2align 6
.amdhsa_kernel {name}
  .amdhsa_next_free_vgpr {vgpr}
  .amdhsa_next_free_sgpr 102
  .amdhsa_accum_offset {acc}
  .amdhsa_group_segment_fixed_size 0
  .amdhsa_kernarg_size 96
  .amdhsa_user_sgpr_count 2
  .amdhsa_user_sgpr_kernarg_segment_ptr 1
  .amdhsa_system_sgpr_workgroup_id_x 1
.end_amdhsa_kernel
"""

def build(opts=None):
    if opts: OPT.update(opts)
    m = main_kernel(); f = final_kernel()
    lo, hi = m.loop
    L1 = resolve_waits(m.L)
    dbl = m.L[:hi] + m.L[lo:hi] + m.L[hi:]
    L2 = resolve_waits(dbl)
    def loopseg(L, k):
        idx = [i for i, x in enumerate(L) if x.startswith('L_attn_loop')][0] + 1
        n = len(L2) - len(L1)
        return L[idx + k*n: idx + (k+1)*n]
    assert loopseg(L2, 0) == loopseg(L2, 1), "loop waits differ between trips"
    assert L2[-200:] == L1[-200:]
    probs = check_stream(L2, 'main')
    FB = resolve_waits(m.fb.L); probs += check_stream(FB + FB, 'fallback')
    ID = resolve_waits(m.idle.L); probs += check_stream(ID, 'idle')
    F1 = resolve_waits(f.L); probs += check_stream(F1, 'final')
    strip = lambda L: [re.sub(r'\s*;.*', '', x) for x in L]
    txt = HEADER
    if OPT['single']:
        name = KNAME + '_kernel'
        txt += "; @launch grid=(256,1,1) block=(256,1,1) lds=163840\n"
    else:
        name = 'main_kernel'
        txt += "; @launch kernel=main_kernel grid=(256,1,1) block=(256,1,1) lds=163840\n; @launch kernel=final_kernel grid=(512,1,1) block=(256,1,1) lds=0\n"
    txt += '.amdgcn_target "amdgcn-amd-amdhsa--gfx950"\n.text\n'
    L1[0] = name + ':'
    txt += f".globl {name}\n.p2align 8\n.type {name},@function\n" + "\n".join(strip(L1)) + "\n" + "\n".join(strip(ID)) + "\nL_code_end:\n" + "\n".join(strip(FB)) + "\n"
    if not OPT['single']:
        txt += ".globl final_kernel\n.p2align 8\n.type final_kernel,@function\n" + "\n".join(strip(F1)) + "\n"
    txt += kd(name, 512, 256) + ('' if OPT['single'] else kd('final_kernel', 96, 96))
    return txt, probs

if __name__ == '__main__':
    opts = eval(sys.argv[2]) if len(sys.argv) > 2 else None
    txt, probs = build(opts)
    open(sys.argv[1], 'w').write(txt)
    print(len(txt), 'bytes;', len(probs), 'hazard problems')
    for p in probs[:30]: print(p)
```

```python
import sys, re, math, struct
from asmlib import Ins, check_stream, cost
from sp import SP

KNAME = 'recurrent_scan__gqa_block_cached__geglu_ffn__prompt'
MF = 'v_mfma_f32_16x16x32_bf16'
def f2u(x): return struct.unpack('<I', struct.pack('<f', x))[0]
def hx(x): return '0x%08x' % f2u(x)

OPT = dict(barnofill=1, fend=0, late2=1, npre=16, ocap=16, lnm=1, early=0, lnevery=16, map=4, xdma=1, psleep=8, single=1, spin=30000, msum=2, stflags=' sc1', prefetch=1, codepf=1, timing=0, stamps=[0,1,2,3,4,5,6,7], fthresh=24, filler_cap=48)

sW, sG, sRB, sNU, sU0 = 3, 4, 5, 6, 7
sRBX = sRB
rK, rV, rWG, rWU, rWQ, rWD, rWO, rX, rWS = 8, 12, 16, 20, 24, 28, 32, 36, 40
rOUT, rDBG = 64, 68
sLATE, sSHOFF, sXOFF, sDONE, sTODO, sBITS = 61, 62, 63, 84, 85, 1
sKO = 44
sKVM0, sCNT, sRING, sJ, sOFF0, sOFF1, sROT = 48, 49, 50, 51, 52, 53, 54
sCOG, sCOQ, sCOD, sCOD3, sCOO, sSLAB = 55, 56, 57, 58, 59, 60
sT = 72
sTS = 86
vFA, vL16 = 0, 1
vWA, vWI = 2, 6
vDG, vDQ, vDO = 10, 14, 18
vDK, vDV = 22, 24
vT = 26
vGB, vPF = 30, 31
vW = 32
bA, bB, bC = 64, 128, 192
vKA = 10
vVAl = [2, 3, 4, 5, 14, 15, 16, 17]
vQ = bB; vS = [bC, bC + 32]; vP = [32, 48]
vNEGM, vONES, vLM, vL = 96, 112, 116, 124
aO, aKF, aVF = 0, 192, 224
RING = 0
LB = 98304

HEADER = """; Kernarg layout (96 bytes, ptrs only, base s[0:1]):
;   0 A_x (1,2048,512) bf16 | 8 A_k_cache (1,8,2048,128) bf16 | 16 A_v_cache (1,8,2048,128) bf16 | 24 A_wq (512,4096) bf16
; One fused kernel, 256 workgroups x 4 waves (one per SIMD, 512 registers), workgroup = (64-row block rb, kv head g):
; Written with my own generator script (register allocation, MFMA-gap scheduling and s_waitcnt counting).
"""

class Prog:
    def __init__(self): self.L = []
    def __call__(self, s):
        for x in s.split('\n'):
            x = x.strip()
            if x: self.L.append(x)

def srd(a, r, lo, size, add=None, sub=None):
    a(f"s_mov_b32 s{r}, s{lo}\ns_mov_b32 s{r+1}, s{lo+1}")
    if add: a(f"s_add_u32 s{r}, s{r}, {add}\ns_addc_u32 s{r+1}, s{r+1}, 0")
    if sub: a(f"s_sub_u32 s{r}, s{r}, {sub}\ns_subb_u32 s{r+1}, s{r+1}, 0")
    a(f"s_mov_b32 s{r+2}, {size}\ns_mov_b32 s{r+3}, 0x20000")

def stampl(name):
    if OPT['timing'] and name in OPT['stamps']:
        i = OPT['stamps'].index(name)
        return [f"s_memtime s[{sTS+2*i}:{sTS+2*i+1}]", "s_waitcnt lgkmcnt(0)"]
    return []
def stamp(a, name):
    for x in stampl(name): a(x)

def resolve_waits(lines):
    parsed = []
    for l in lines:
        t = l.split(';')[0].strip()
        parsed.append(None if (not t or t.endswith(':') or t.startswith('.')) else Ins(t))
    out = list(lines)
    vmq = []; dsq = []
    for i, l in enumerate(lines):
        I = parsed[i]
        if I is None: continue
        tag = None
        m = re.search(r'@T:(\w+)', l)
        if m: tag = m.group(1)
        if I.op == 's_waitcnt':
            parts = []
            m = re.search(r'vmcnt\(([^)]*)\)', l)
            if m:
                x = m.group(1)
                if x.startswith('@'):
                    idx = [k for k, e in enumerate(vmq) if e[0] in x[1:].split('|')]
                    n = len(vmq) - 1 - idx[-1] if idx else None
                else: n = int(x)
                if n is not None:
                    n = min(n, 63); parts.append(f"vmcnt({n})")
                    while len(vmq) > n: vmq.pop(0)
            m = re.search(r'lgkmcnt\(([^)]*)\)', l)
            if m:
                ns = []
                for x in m.group(1).split('+'):
                    if x == '@auto':
                        need = -1
                        for j in range(i + 1, len(lines)):
                            J = parsed[j]
                            if J is None: continue
                            if J.op == 's_waitcnt' and ('@auto' in lines[j] or 'lgkmcnt(0)' in lines[j]): break
                            tch = set(J.r) | set(J.w)
                            for k, e in enumerate(dsq):
                                if tch & e[1]: need = max(need, k)
                        if need >= 0: ns.append(len(dsq) - 1 - need)
                    elif x.startswith('@'):
                        idx = [k for k, e in enumerate(dsq) if e[0] == x[1:]]
                        if idx: ns.append(len(dsq) - 1 - idx[-1])
                    else: ns.append(int(x))
                if ns:
                    n = min(min(ns), 15); parts.append(f"lgkmcnt({n})")
                    while len(dsq) > n: dsq.pop(0)
            out[i] = ("s_waitcnt " + " ".join(parts) + (" ; @BR" if '@BR' in l else "")) if parts else None
        elif I.kind in ('dsr', 'dsw'): dsq.append((tag, set(I.w)))
        elif I.kind == 'smem':
            dsq.append((tag, set(I.w))); dsq.append((tag, set(I.w)))
        elif I.kind in ('vld', 'vst', 'dma') and '@X' not in l: vmq.append((tag, set(I.w)))
    return [x for x in out if x is not None]

class Panel:
    def __init__(self, name, srd, dv, rs, co, acc, first, bfrag, inter, rot, row0=0):
        self.name = name; self.srd = srd; self.dv = dv; self.rs = rs; self.co = co; self.acc = acc
        self.first = first; self.bfrag = bfrag; self.inter = inter; self.rot = rot; self.row0 = row0

def panel_dma(P, idx):
    sl = idx % 3
    s0 = []
    if P.rot:
        s0 += [f"s_add_u32 s{sJ}, s{sJ}, 1", f"s_and_b32 s{sJ}, s{sJ}, 7", f"s_mul_i32 s{sOFF0}, s{sJ}, {64*P.rs}", f"s_add_u32 s{sOFF0}, s{sOFF0}, {P.co}"]
        if P.row0: s0.append(f"s_add_u32 s{sOFF0}, s{sOFF0}, {P.row0}")
    elif P.name[0] == 'O':
        s0 += [f"s_add_u32 s{sOFF0}, s{44 + P.j % 4}, {P.row0}"]
    else:
        s0 += [f"s_add_u32 s{sOFF0}, {P.co}, {P.row0}"]
    s0 += [f"s_add_u32 m0, s{sRING}, {sl*8192}"]
    s1 = [f"s_add_u32 s{sOFF1}, s{sOFF0}, {32*P.rs}", f"s_add_u32 m0, s{sRING}, {sl*8192 + 4096}"]
    d = []
    for i in range(8):
        so = sOFF0 if i < 4 else sOFF1
        off = f" offset:{1024*(i%4)}" if i % 4 else ""
        d.append(f"buffer_load_dwordx4 v{P.dv + i%4}, s[{P.srd}:{P.srd+3}], s{so} offen{off}{OPT.get('wfl', '')} lds ; @T:w{idx}")
    return s0, s1, d

def wreads(P, idx, nb):
    sl = idx % 3; out = []
    for ks in range(2):
        for jj in range(2):
            r = vW + nb*8 + ks*4 + jj*2
            if P.inter: ad = vWI + nb; off = sl*8192 + ks*4096 + jj*2048
            else: ad = vWA + (nb ^ (2*jj)); off = sl*8192 + ks*4096 + jj*512
            out.append(f"ds_read_b64_tr_b16 v[{r}:{r+1}], v{ad} offset:{off} ; @T:wr{idx}_{nb}")
    return out

def panel_mfmas(P):
    out = []
    for nb in range(4):
        for qb in range(4):
            for ks in range(2):
                d = P.acc + (nb*4 + qb)*4; w = vW + nb*8 + ks*4; b = P.bfrag(ks, qb)
                c = '0' if (P.first and ks == 0) else f"v[{d}:{d+3}]"
                out.append(f"{MF} v[{d}:{d+3}], v[{w}:{w+3}], a[{b}:{b+3}], {c}")
    return out

def emit_stream(a, panels, base, fillers, extra_mem, extra_shadow, nxt=None, must_empty=(), quiet=None, cap=None, late=None):
    allp = panels + (nxt or [])
    q = []; pend = []; lastst = -99
    for pos, P in enumerate(panels):
        idx = base + pos
        if pos in must_empty: assert not q, (pos, len(q))
        q += fillers.get(pos, [])
        if idx == 16 and OPT.get('skip', 0): a("L_join16:")
        stamp(a, f'p{idx}')
        ms = panel_mfmas(P)
        shadow = [[] for _ in range(32)]; mem = [[] for _ in range(32)]; dma = {}
        r3 = wreads(P, idx, 3)
        mem[0] += r3[:2]; mem[1] += r3[2:]
        hasn = pos + 1 < len(allp)
        if hasn:
            N = allp[pos+1]
            shadow[7].append(f"s_waitcnt vmcnt(@w{idx+1}) lgkmcnt(@auto+@wr{idx}_3)")
            for nb in range(3):
                r = wreads(N, idx+1, nb); g = 8*nb + 8
                mem[g] += r[:2]; mem[g+2] += r[2:]
        else:
            shadow[7].append(f"s_waitcnt lgkmcnt(@auto)")
        shadow[15].append("s_waitcnt lgkmcnt(@auto)"); shadow[23].append("s_waitcnt lgkmcnt(@auto)"); shadow[31].append("s_waitcnt lgkmcnt(@auto)")
        if pos + 3 < len(allp):
            s0, s1, d = panel_dma(allp[pos+3], idx+3)
            for k, x in enumerate(s0): shadow[8 - len(s0) + k - (1 if 8 - len(s0) + k <= 7 else 0)].append(x)
            gaps = [9, 11, 13, 17, 19, 21, 25, 27]
            shadow[16].append(s1[0]); shadow[18].append(s1[1])
            for x, g in zip(d, gaps): dma[g] = x
        for (p2, g), x in extra_mem.items():
            if p2 == pos:
                assert g not in dma, (pos, g)
                mem[g] += x
        for (p2, g), x in extra_shadow.items():
            if p2 == pos: shadow[g] += x
        budget = (cap or {}).get(pos, OPT['filler_cap'])
        free = [g for g in range(32) if g not in dma]
        base_room = sum(max(0, 2 - len(mem[g])) for g in free)
        want = min(budget, sum(cost(x) for x in q))
        extra = max(0, want - base_room); acc = 0.0
        for g in range(32):
            a(ms[g])
            for x in shadow[g]: a(x)
            if g in dma:
                a(dma[g]); continue
            for x in mem[g]:
                if x: a(x)
            room = 2 - len(mem[g])
            acc += extra / len(free)
            if late and (pos, g) in late:
                q += late[(pos, g)]
            while q:
                x = q[0]
                if x.startswith('ds_') or x.startswith('buffer'):
                    pend.append(q.pop(0)); continue
                c = cost(x)
                if pend and (set(Ins(x.split(';')[0]).w) & set(sum((Ins(y.split(';')[0]).r for y in pend), []))): break
                if c <= room: room -= c
                elif (c - room) <= acc + (0.75 if room > 0 and extra > 0 else 0): acc -= (c - max(room, 0)); room = 0
                else: break
                a(q.pop(0))
            if pend and g + 1 < 32 and (g + 1) not in dma and len(mem[g+1]) <= (1 if quiet else 0) and ((g + 1) in (quiet or OPT.get('quiet', (4, 6, 22, 28, 30))) or not dma):
                if pend[0].startswith('buffer') and pos*32 + g - lastst < OPT.get('stgap', 4): pass
                else:
                    if pend[0].startswith('buffer'): lastst = pos*32 + g
                    mem[g+1] += [pend.pop(0), None]
        if (pos + 1) in must_empty and not q:
            for x in pend: a(x)
            pend = []
        q = pend + q; pend = []
    return q

def gelu_stage1(G):
    A = -2.0 * math.log2(math.e) * math.sqrt(2.0 / math.pi)
    ops = []
    for blk in range(16):
        x = [G + blk*4 + i for i in range(4)]; t = [vT + i for i in range(4)]
        ops += [f"v_mul_f32 v{t[i]}, v{x[i]}, v{x[i]}" for i in range(4)]
        ops += [f"v_fmaak_f32 v{t[i]}, v{vGB}, v{t[i]}, {hx(A)}" for i in range(4)]
        ops += [f"v_mul_f32 v{t[i]}, v{t[i]}, v{x[i]}" for i in range(4)]
        ops += [f"v_exp_f32 v{t[i]}, v{t[i]}" for i in range(4)]
        ops += [f"v_add_f32 v{t[i]}, 1.0, v{t[i]}" for i in range(4)]
        ops += [f"v_rcp_f32 v{t[i]}, v{t[i]}" for i in range(4)]
        ops += [f"v_mul_f32 v{x[i]}, v{x[i]}, v{t[i]}" for i in range(4)]
    return ops

def geglu_stage2(G, U):
    mul = [f"v_mul_f32 v{U+i}, v{G+i}, v{U+i}" for i in range(64)]
    ops = []
    for sp in range(2):
        for qb in range(4):
            b0 = U + ((2*sp)*4 + qb)*4; b1 = U + ((2*sp+1)*4 + qb)*4
            ops += [f"v_cvt_pk_bf16_f32 v{b0}, v{b0}, v{b0+1}", f"v_cvt_pk_bf16_f32 v{b0+1}, v{b0+2}, v{b0+3}",
                    f"v_cvt_pk_bf16_f32 v{b0+2}, v{b1}, v{b1+1}", f"v_cvt_pk_bf16_f32 v{b0+3}, v{b1+2}, v{b1+3}"]
            if OPT.get('hglob', 0): ops += [f"buffer_store_dwordx4 v[{b0}:{b0+3}], v{vL16}, s[{rWS}:{rWS+3}], s{61 + sp} offen offset:{qb*1024} ; @T:hs"]
            else: ops += [f"ds_write_b128 v{vPF}, v[{b0}:{b0+3}] offset:{(sp*4 + qb)*1024} ; @T:hw"]
    return mul, ops

def qpack(acc, half):
    c = math.log2(math.e) / math.sqrt(128.0)
    ops = []; late = []
    for sp in range(2):
        for qb in range(4):
            b0 = acc + ((2*sp)*4 + qb)*4; b1 = acc + ((2*sp+1)*4 + qb)*4
            for b in (b0, b1):
                ops += [f"v_mul_f32 v{b+i}, {hx(c)}, v{b+i}" for i in range(4)]
            ops += late; late = []
            d = vQ + (qb*4 + 2*half + sp)*4
            ops += [f"v_cvt_pk_bf16_f32 v{d}, v{b0}, v{b0+1}", f"v_cvt_pk_bf16_f32 v{d+1}, v{b0+2}, v{b0+3}",
                    f"v_cvt_pk_bf16_f32 v{d+2}, v{b1}, v{b1+1}", f"v_cvt_pk_bf16_f32 v{d+3}, v{b1+2}, v{b1+3}"]
            late = [f"v_permlane32_swap_b32 v{d}, v{d+2}", f"v_permlane32_swap_b32 v{d+1}, v{d+3}", "s_nop 0",
                    f"v_permlane16_swap_b32 v{d}, v{d+2}", f"v_permlane16_swap_b32 v{d+1}, v{d+3}"]
    return ops + ["s_nop 1"] + late

def slab_store(acc, t, hf):
    ops = []
    for sp in range(2):
        for qb in range(4):
            b0 = acc + ((2*sp)*4 + qb)*4; b1 = acc + ((2*sp+1)*4 + qb)*4
            ops += [f"v_cvt_pk_bf16_f32 v{b0}, v{b0}, v{b0+1}", f"v_cvt_pk_bf16_f32 v{b0+1}, v{b0+2}, v{b0+3}",
                    f"v_cvt_pk_bf16_f32 v{b0+2}, v{b1}, v{b1+1}", f"v_cvt_pk_bf16_f32 v{b0+3}, v{b1+2}, v{b1+3}"]
            f = hf*8 + sp*4 + qb
            so = sT + (t*4 + f // 4)
            ops += [f"buffer_store_dwordx4 v[{b0}:{b0+3}], v{vL16}, s[{rWS}:{rWS+3}], s{so} offen offset:{(f%4)*1024}{OPT['stflags']} ; @T:st"]
    return ops

def park(acc, dst):
    ops = []
    for sp in range(2):
        for qb in range(4):
            b0 = acc + ((2*sp)*4 + qb)*4; b1 = acc + ((2*sp+1)*4 + qb)*4
            ops += [f"v_cvt_pk_bf16_f32 v{b0}, v{b0}, v{b0+1}", f"v_cvt_pk_bf16_f32 v{b0+1}, v{b0+2}, v{b0+3}",
                    f"v_cvt_pk_bf16_f32 v{b0+2}, v{b1}, v{b1+1}", f"v_cvt_pk_bf16_f32 v{b0+3}, v{b1+2}, v{b1+3}"]
            ops += [f"v_accvgpr_write_b32 a{dst + (sp*4+qb)*4 + i}, v{b0+i}" for i in range(4)]
    return ops
def parked_store(f):
    return f"buffer_store_dwordx4 a[{128+4*f}:{131+4*f}], v{vL16}, s[{rWS}:{rWS+3}], s{sT + 4 + f//4} offen offset:{(f%4)*1024}{OPT['stflags']}"

def qk(b, cinit='negm'):
    out = []
    for qb in range(4):
        for kb in range(2):
            for s in range(4):
                r = vS[b] + (qb*2 + kb)*4; d = f"v[{r}:{r+3}]"
                c = d if s else (f"v[{vNEGM+4*qb}:{vNEGM+4*qb+3}]" if cinit == 'negm' else '0')
                k = aKF + (kb*4 + s)*4; q = vQ + (qb*4 + s)*4
                out.append(f"{MF} {d}, a[{k}:{k+3}], v[{q}:{q+3}], {c}")
    return out
def pv(b, first=False, nsum=None, aVF=aVF):
    nsum = OPT['msum'] if nsum is None else nsum
    out = []
    for qb in range(4):
        p = vP[b] + qb*4
        for db in range(8):
            o = aO + (db*4 + qb)*4; v = aVF + db*4
            c = '0' if first else f"a[{o}:{o+3}]"
            out.append(f"{MF} a[{o}:{o+3}], a[{v}:{v+3}], v[{p}:{p+3}], {c}")
        if qb < nsum:
            l = vLM + 4*qb
            out.append(f"{MF} v[{l}:{l+3}], v[{vONES}:{vONES+3}], v[{p}:{p+3}], {'0' if first else f'v[{l}:{l+3}]'}")
    return out
def kreads(sl):
    return [f"ds_read_b128 a[{aKF+(kb*4+s)*4}:{aKF+(kb*4+s)*4+3}], v{vKA+s} offset:{sl*16384 + kb*8192}" for kb in range(2) for s in range(4)]
def vreads(sl, aVF=aVF):
    return [f"ds_read_b64_tr_b16 a[{aVF+db*4+2*jj}:{aVF+db*4+2*jj+1}], v{vVAl[db]} offset:{sl*16384 + jj*8192}" for db in range(8) for jj in range(2)]
def kvdma(sl, kidx, vidx, dok=True, dov=True):
    sc = [f"s_add_u32 m0, s{sKVM0}, {sl*16384}"]; d = []
    if dok:
        ks = sKO + kidx % 4; kp = sKO + (kidx - 1) % 4
        sc += [f"s_add_u32 s{ks}, s{kp}, 8192", f"s_and_b32 s{ks}, s{ks}, 0x7ffff"]
        d += [f"buffer_load_dwordx4 v{vDK}, s[{rK}:{rK+3}], s{ks} offen{OPT.get('kvfl', '')} lds ; @T:kv{sl}",
              f"buffer_load_dwordx4 v{vDK+1}, s[{rK}:{rK+3}], s{ks} offen offset:1024{OPT.get('kvfl', '')} lds ; @T:kv{sl}"]
    if dov:
        vs = sKO + vidx % 4
        d += [f"buffer_load_dwordx4 v{vDV}, s[{rV}:{rV+3}], s{vs} offen offset:2048{OPT.get('kvfl', '')} lds ; @T:kv{sl}",
              f"buffer_load_dwordx4 v{vDV+1}, s[{rV}:{rV+3}], s{vs} offen offset:3072{OPT.get('kvfl', '')} lds ; @T:kv{sl}"]
    return sc, d
def smq(b):
    nsum = OPT['msum']; E = []; Sg = []
    for qb in range(4):
        for i in range(4):
            s0 = vS[b] + qb*8 + 2*i
            E += [f"v_exp_f32 v{s0}, v{s0}", f"v_exp_f32 v{s0+1}, v{s0+1}"]; k = len(E)
            if qb >= nsum:
                Sg += [(k-1, f"v_add_f32 v{vL+qb}, v{vL+qb}, v{s0}"), (k, f"v_add_f32 v{vL+qb}, v{vL+qb}, v{s0+1}")]
            Sg += [(k, f"v_cvt_pk_bf16_f32 v{vP[b]+qb*4+i}, v{s0}, v{s0+1}")]
    return E, Sg

def check_p(m, *queues):
    rd = set(Ins(m).ab)
    for q in queues:
        for x in (q or []): assert not (set(Ins(x[1]).w) & rd), (m, x)

def period(p, carry, dok=True, dov=True, first=False, kread=True, xdma=None, alsowait=None, nofill=(), kvg=([2, 3, 4], [27, 39, 47, 59]), vnext=None):
    sl = p % 4
    ms = qk((p+1) % 2) + pv(p % 2, first)
    N = len(ms); H = 32
    shadow = [None]*N
    shadow[N-1] = f"s_waitcnt vmcnt(@kv{(p+1)%4}{'|' + alsowait if alsowait else ''}) lgkmcnt(0)"
    shadow[H-1] = "s_waitcnt lgkmcnt(0)"
    shadow[0] = "s_barrier"
    mem = []
    vr = vreads(sl)
    for i, x in enumerate(vr): mem.append((1 + (i*24) // len(vr), x))
    if kread:
        kr = kreads(sl)
        for i, x in enumerate(kr): mem.append((33 + (i*24) // len(kr), x))
    if vnext:
        for i, x in enumerate(vnext): mem.append((33 + (i*26) // len(vnext), x))
    dmag = {}
    if dok or dov:
        sc, dd = kvdma((p + 3) % 4, p + 5, p + 3, dok, dov)
        for x, g in zip(sc, kvg[0]): shadow[g] = x
        for x, g in zip(dd, kvg[1]): dmag[g] = x
    if xdma:
        for (g, x) in xdma:
            if x.startswith('buffer'):
                assert g not in dmag and not shadow[g]; dmag[g] = x
            else:
                assert not shadow[g] and g not in dmag, (g, x); shadow[g] = x
    mem.sort(key=lambda t: t[0])
    st = 34
    cE, cS, cdone = carry
    nE, nS = smq((p+1) % 2)
    lines = []
    E = list(cE); Sq = list(cS); edone = cdone
    mi = 0
    extra = max(0, 64 + len(mem) + len(nS) + 2*len(dmag) + 2*len(nofill) - 2*N)
    acc = 0.0; old_S = None
    for g in range(N):
        check_p(ms[g], old_S, Sq if g <= st else None)
        lines.append(ms[g])
        if shadow[g]: lines.append(shadow[g])
        if g == st:
            assert not E, (p, len(E))
            old_S = Sq; E = nE; Sq = nS; edone = 0
        acc += extra / N
        if g in dmag:
            lines.append(dmag[g]); continue
        if g in nofill: continue
        room = 2
        if acc >= 1.0 - 1e-9: room += 1; acc -= 1.0
        gm = []; gv = []
        e_prev = edone
        left = (st - g) if g < st else (N - g + st)
        navail = (1 if (mi < len(mem) and mem[mi][0] <= g) else 0) + (len(old_S) if old_S else 0) + sum(1 for x in Sq if x[0] <= e_prev)
        if E and (len(E) * 2 >= left or navail < 2):
            gv.append(E.pop(0)); room -= 2; edone += 1
        while room > 0:
            if mi < len(mem) and mem[mi][0] <= g: gm.append(mem[mi][1]); mi += 1; room -= 1
            elif old_S: gv.append(old_S.pop(0)[1]); room -= 1
            elif Sq and Sq[0][0] <= e_prev: gv.append(Sq.pop(0)[1]); room -= 1
            elif mi < len(mem) and mem[mi][0] <= g + 3: gm.append(mem[mi][1]); mi += 1; room -= 1
            else: break
        lines += gm + gv
    assert mi == len(mem) and not old_S, (mi, len(mem), old_S)
    return lines, (E, Sq, edone)

def xreduce(a, reg, op, tmp):
    a(f"v_mov_b32 v{tmp}, v{reg}\ns_nop 1\nv_permlane16_swap_b32 v{reg}, v{tmp}\ns_nop 1\n{op} v{reg}, v{reg}, v{tmp}")
    a(f"v_mov_b32 v{tmp}, v{reg}\ns_nop 1\nv_permlane32_swap_b32 v{reg}, v{tmp}\ns_nop 1\n{op} v{reg}, v{reg}, v{tmp}")

def attn_addr_ops():
    o = []
    t0, t1, t2, t3 = vT, vT+1, vT+2, vT+3
    o += [f"v_bfe_u32 v{t0}, v{vL16}, 4, 4", f"v_lshrrev_b32 v{t1}, 8, v{vL16}"]
    o += [f"v_lshrrev_b32 v{t2}, 3, v{t0}", f"v_lshlrev_b32 v{t2}, 12, v{t2}", f"v_and_b32 v{t3}, 7, v{t0}", f"v_lshlrev_b32 v{t3}, 8, v{t3}",
          f"v_add_u32 v{t2}, v{t2}, v{t3}", f"v_add_u32 v{t2}, {LB}, v{t2}"]
    for s in range(4):
        o += [f"v_add_u32 v{t3}, {4*s}, v{t1}", f"v_xor_b32 v{t3}, v{t3}, v{t0}", f"v_lshl_add_u32 v{vKA+s}, v{t3}, 4, v{t2}"]
    o2 = []
    o2 += [f"v_bfe_u32 v{t0}, v{vL16}, 6, 3", f"v_lshrrev_b32 v{t2}, 9, v{vL16}", f"v_lshlrev_b32 v{t2}, 12, v{t2}",
           f"v_lshl_add_u32 v{t2}, v{t0}, 8, v{t2}", f"v_add_u32 v{t2}, {LB + 2048}, v{t2}", f"v_bfe_u32 v{t3}, v{vL16}, 4, 2", f"v_lshl_add_u32 v{t2}, v{t3}, 3, v{t2}"]
    for db in range(8):
        o2 += [f"v_xor_b32 v{t3}, {db}, v{t0}", f"v_lshl_add_u32 v{vVAl[db]}, v{t3}, 5, v{t2}"]
    return o, o2

def pf_addr(st, vt):
    if OPT['map'] == 8:
        return [f"s_lshl_b32 {st}, s{sRB}, 2", f"s_add_u32 {st}, {st}, s{sW}", f"s_lshl_b32 {st}, {st}, 12", f"v_and_b32 v{vPF}, 0x1f0, v{vL16}", f"v_lshlrev_b32 v{vPF}, 3, v{vPF}",
                f"v_lshrrev_b32 v{vt}, 9, v{vL16}", f"v_lshl_add_u32 v{vPF}, v{vt}, 6, v{vPF}", f"v_add_u32 v{vPF}, {st}, v{vPF}"]
    if OPT.get('pfh') and st == 's0':
        return [f"s_and_b32 {st}, s{sRB}, 15", f"s_lshl_b32 {st}, {st}, 2", f"s_add_u32 {st}, {st}, s{sW}", f"s_lshl_b32 {st}, {st}, 13", f"v_and_b32 v{vPF}, 0x1f0, v{vL16}", f"v_lshlrev_b32 v{vPF}, 3, v{vPF}",
                f"v_lshrrev_b32 v{vt}, 9, v{vL16}", f"v_lshl_add_u32 v{vPF}, v{vt}, 6, v{vPF}", f"v_add_u32 v{vPF}, {st}, v{vPF}", "s_add_u32 s80, s81, 4096"]
    return [f"s_and_b32 {st}, s{sRB}, 15", f"s_lshl_b32 {st}, {st}, 2", f"s_add_u32 {st}, {st}, s{sW}", f"s_lshl_b32 {st}, {st}, 13", f"v_lshlrev_b32 v{vPF}, 3, v{vL16}", f"v_add_u32 v{vPF}, {st}, v{vPF}"]

def interleave(a, base, extra, every, start=0):
    k = 0
    for n, x in enumerate(base):
        a(x)
        if n >= start and (n + 1 - start) % every == 0 and k < len(extra) and not x.startswith('s_memtime'):
            for y in extra[k]: a(y)
            k += 1
    for g in extra[k:]:
        for y in g: a(y)

def unpack_sum(dst, srcs, t0):
    ops = []
    for n, r in enumerate(srcs):
        for i in range(4):
            if n == 0:
                ops += [f"v_lshlrev_b32 v{dst+2*i}, 16, v{r+i}", f"v_and_b32 v{dst+2*i+1}, 0xffff0000, v{r+i}"]
            else:
                ta, tb = t0 + 2*(i % 2), t0 + 2*(i % 2) + 1
                ops += [f"v_lshlrev_b32 v{ta}, 16, v{r+i}", f"v_and_b32 v{tb}, 0xffff0000, v{r+i}",
                        f"v_add_f32 v{dst+2*i}, v{dst+2*i}, v{ta}", f"v_add_f32 v{dst+2*i+1}, v{dst+2*i+1}, v{tb}"]
    return ops

def silu_ops(r, n, tmp):
    ops = []
    for b in range(0, n, 4):
        ops += [f"v_mul_f32 v{tmp+i}, {hx(-math.log2(math.e))}, v{r+b+i}" for i in range(4)]
        ops += [f"v_exp_f32 v{tmp+i}, v{tmp+i}" for i in range(4)]
        ops += [f"v_add_f32 v{tmp+i}, 1.0, v{tmp+i}" for i in range(4)]
        ops += [f"v_rcp_f32 v{tmp+i}, v{tmp+i}" for i in range(4)]
        ops += [f"v_mul_f32 v{r+b+i}, v{r+b+i}, v{tmp+i}" for i in range(4)]
    return ops

def share_offsets(sh, sW=sW):
    return [f"s_lshl_b32 s{sSHOFF}, s{sRB}, 3", f"s_add_u32 s{sSHOFF}, s{sSHOFF}, {sh}", f"s_lshl_b32 s{sSHOFF}, s{sSHOFF}, 2", f"s_add_u32 s{sSHOFF}, s{sSHOFF}, s{sW}", f"s_lshl_b32 s{sSHOFF}, s{sSHOFF}, 11",
            f"s_lshl_b32 s{sXOFF}, {sh}, 1", f"s_lshr_b32 s0, s{sW}, 1", f"s_add_u32 s{sXOFF}, s{sXOFF}, s0", f"s_lshl_b32 s{sXOFF}, s{sXOFF}, 6",
            f"s_and_b32 s0, s{sW}, 1", f"s_lshl_b32 s0, s0, 15", f"s_add_u32 s{sXOFF}, s{sXOFF}, s0", f"s_lshl_b32 s0, s{sRB}, 16", f"s_add_u32 s{sXOFF}, s{sXOFF}, s0"]

def ploads(dst, t, g, base):
    return [f"s_add_u32 s0, {base}, {t*0x1000000 + g*0x200000}",
            f"buffer_load_dwordx4 v[{dst[0]+g*4}:{dst[0]+g*4+3}], v{vL16}, s[{rWS}:{rWS+3}], s0 offen sc1 ; @T:pl",
            f"buffer_load_dwordx4 v[{dst[1]+g*4}:{dst[1]+g*4+3}], v{vL16}, s[{rWS}:{rWS+3}], s0 offen offset:1024 sc1 ; @T:pl"]
FPE, FPL, SPR = (192, 224), (192, 224), (128, 160)

vOA = 120
vDK2 = 12
vXO, vSIG, vXD, vGV = 10, 11, 2, 128
xregs = [2, 4, 12, 14]
def xloads():
    o = []
    for i in range(2):
        o.append(f"s_add_u32 s0, s{sXOFF}, {i*16384}")
        for e in range(2):
            r = xregs[2*i+e]
            o.append(f"buffer_load_dwordx2 v[{r}:{r+1}], v{vXO}, s[{rX}:{rX+3}], s0 offen offset:{32*e} ; @T:xl")
    return o
def f_reduce_ops():
    ops = []
    ops += unpack_sum(vGA, [128 + 4*g for g in range(8)], vT)
    ops += unpack_sum(vGA + 8, [160 + 4*g for g in range(8)], vT)
    ops += silu_ops(vGA, 16, vT)
    return ops
vGA = 96

def main_kernel():
    global vGA
    a = Prog()
    a(f"main_kernel:")
    a("s_cmp_ge_u32 s2, 256\ns_cbranch_scc1 L_main_end")
    stamp(a, 0)
    if OPT['timing']: a("s_memrealtime s[100:101]\ns_waitcnt lgkmcnt(0)")
    a("s_load_dwordx16 s[64:79], s[0:1], 0\ns_load_dwordx8 s[80:87], s[0:1], 64") if not OPT['timing'] else a("s_load_dwordx16 s[64:79], s[0:1], 0\ns_load_dwordx4 s[80:83], s[0:1], 64\ns_load_dwordx2 s[84:85], s[0:1], 80\ns_load_dwordx2 s[44:45], s[0:1], 88")
    WSP = 86 if not OPT['timing'] else 44
    a(f"v_lshrrev_b32 v2, 6, v0\nv_and_b32 v0, 63, v0\nv_readfirstlane_b32 s{sW}, v2")
    a(f"v_lshlrev_b32 v{vL16}, 4, v0")
    if OPT['map'] == 8:
        a(f"s_and_b32 s{sG}, s2, 7\ns_lshr_b32 s{sRB}, s2, 3")
    else:
        a(f"s_and_b32 s{sG}, s2, 3\ns_lshl_b32 s{sG}, s{sG}, 1\ns_bfe_u32 s{sRB}, s2, 0x10003\ns_add_u32 s{sG}, s{sG}, s{sRB}")
        a(f"s_bfe_u32 s{sRB}, s2, 0x10002\ns_lshl_b32 s{sRB}, s{sRB}, 4\ns_lshr_b32 s{sROT}, s2, 4\ns_add_u32 s{sRB}, s{sRB}, s{sROT}")
    if OPT['xdma']:
        a(f"s_and_b32 s{sROT}, s{sRB}, 3\ns_lshl_b32 s{sROT}, s{sROT}, 1")
        a(f"v_lshrrev_b32 v6, 4, v0\nv_and_b32 v5, 15, v0")
        for rg in range(4):
            a(f"v_add_u32 v7, {4*rg}, v6\nv_xor_b32 v7, v7, v5\nv_lshlrev_b32 v7, 4, v7\nv_add_u32 v8, {3*rg}, v6\nv_lshl_add_u32 v{32+rg}, v8, 10, v7")
        a(f"s_lshl_b32 s62, s{sRB}, 16\ns_lshl_b32 s63, s{sW}, 14\ns_add_u32 s62, s62, s63\ns_add_u32 s60, s63, {LB}\ns_lshl_b32 s63, s{sROT}, 7")
    else:
        a(f"s_and_b32 s{sROT}, s{sRB}, 7")
        a(f"v_and_b32 v5, 15, v0\nv_lshlrev_b32 v5, 10, v5\nv_lshrrev_b32 v6, 4, v0\nv_lshl_add_u32 v5, v6, 4, v5")
        a(f"s_lshl_b32 s62, s{sRB}, 16\ns_lshl_b32 s63, s{sW}, 14\ns_add_u32 s62, s62, s63\ns_lshl_b32 s63, s{sROT}, 7")
    for x in pf_addr('s61', 3): a(x)
    if OPT['codepf']:
        a("s_getpc_b64 s[46:47]\nL_pc0:")
        a(f"v_min_u32 v7, L_code_end-L_pc0-4, v{vPF}")
        a(f"global_load_dword v{vGB}, v7, s[46:47] ; @T:pf")
    a("s_waitcnt lgkmcnt(0)")
    stamp(a, 'karg')
    srd(a, rX, 64, 2048*1024)
    if OPT['xdma']:
        for c4 in range(4):
            a(f"s_add_u32 s61, s63, {c4*256}\ns_and_b32 s61, s61, 0x3ff\ns_add_u32 m0, s60, {c4*4096}\ns_add_u32 s61, s61, s62")
            for rg in range(4): a(f"buffer_load_dwordx4 v{32+rg}, s[{rX}:{rX+3}], s61 offen offset:{rg*1024} lds ; @T:x{c4}")
        for sx in range(4):
            a(f"v_add_u32 v7, {4*sx}, v6\nv_xor_b32 v7, v7, v5\nv_lshlrev_b32 v7, 4, v7\nv_lshl_add_u32 v7, v5, 8, v7\nv_add_u32 v{50+sx}, s60, v7")
    else:
        for k in range(16):
            a(f"s_add_u32 s61, s63, {k*64}\ns_and_b32 s61, s61, 0x3ff\ns_add_u32 s61, s61, s62")
            a(f"buffer_load_dwordx4 v[{bA+4*k}:{bA+4*k+3}], v5, s[{rX}:{rX+3}], s61 offen ; @T:x{k}")
    stamp(a, 'xissued')
    a(f"s_add_u32 s62, s{sG}, s{sRB}\ns_and_b32 s62, s62, 1\ns_sub_u32 s{sNU}, 4, s62")
    a(f"s_lshr_b32 s62, s{sG}, 1\ns_mul_i32 s{sU0}, s62, 7\ns_sub_u32 s63, 7, s{sNU}\ns_and_b32 s61, s{sG}, 1\ns_mul_i32 s63, s63, s61\ns_add_u32 s{sU0}, s{sU0}, s63")
    a(f"s_add_u32 s62, s{sU0}, s{sW}\ns_lshl_b32 s{sCOG}, s62, 7\ns_cmp_lt_u32 s{sW}, s{sNU}\ns_cselect_b32 s{sCOG}, s{sCOG}, 0x40000000")
    a(f"s_lshl_b32 s62, s{sG}, 10\ns_lshl_b32 s63, s{sW}, 8\ns_add_u32 s{sCOQ}, s62, s63")
    a(f"s_lshl_b32 s62, s{sU0}, 16\ns_add_u32 s{sCOD}, s62, s63\ns_cmp_eq_u32 s{sNU}, 4\ns_cselect_b32 s{sCOD3}, s{sCOD}, 0x40000000")
    a(f"s_lshl_b32 s62, s{sG}, 19\ns_add_u32 s{sCOO}, s62, s63")
    a(f"s_mul_i32 s{sRING}, s{sW}, 24576\ns_lshl_b32 s{sKVM0}, s{sW}, 12\ns_add_u32 s{sKVM0}, s{sKVM0}, {LB}")
    srd(a, rWG, 76, 512*3584)
    a("v_lshrrev_b32 v6, 3, v0\nv_bfe_u32 v7, v0, 4, 1\nv_lshlrev_b32 v7, 1, v7\nv_bfe_u32 v8, v0, 5, 1\nv_lshl_add_u32 v7, v8, 2, v7\nv_and_b32 v8, 7, v0\nv_xor_b32 v7, v7, v8")
    a("v_lshlrev_b32 v7, 4, v7\nv_xor_b32 v8, 64, v7")
    for dv, rs in ((vDG, 3584), (vDQ, 8192), (vDO, 1024)):
        a(f"v_mul_u32_u24 v9, {rs}, v6")
        for j in range(4):
            a(f"v_add_u32 v{dv+j}, v9, v{7 + (j & 1)}")
            if j: a(f"v_add_u32 v{dv+j}, {j*(8*rs - 1024)}, v{dv+j}")
    X = lambda ks0: (lambda ks, qb: ((ks0 + ks)*4 + qb)*4)
    mk = lambda name, r, dv, rs, co, acc, n, inter, rot, row0: [Panel(name, r, dv, rs, co(j), acc, j == 0, X(2*j), inter, rot, row0(j)) for j in range(n)]
    pG = mk('G', rWG, vDG, 3584, lambda j: f"s{sCOG}", bA, 8, False, True, lambda j: 0)
    pU = mk('U', rWU, vDG, 3584, lambda j: f"s{sCOG}", bB, 8, False, True, lambda j: 0)
    pQa = mk('Qa', rWQ, vDQ, 8192, lambda j: f"s{sCOQ}", bC, 8, False, True, lambda j: 0)
    pQb = mk('Qb', rWQ, vDQ, 8192, lambda j: f"s{sCOQ}", bA, 8, False, True, lambda j: 128)
    pD0 = mk('D0', rWD, vDO, 1024, lambda j: f"s{sCOD3 if j == 3 else sCOD}", bC, 4, True, False, lambda j: j*65536)
    pD1 = mk('D1', rWD, vDO, 1024, lambda j: f"s{sCOD3 if j == 3 else sCOD}", bA, 4, True, False, lambda j: j*65536 + 128)
    pO0 = mk('O0', rWO, vDO, 1024, lambda j: None, bB, 8, True, False, lambda j: (j//4)*65536)
    pO1 = mk('O1', rWO, vDO, 1024, lambda j: None, bA, 8, True, False, lambda j: (j//4)*65536 + OPT.get('o1off', 128))
    oreg = lambda j, ks, qb: 32*j + (ks*4 + qb)*4
    for j in range(8):
        for P in (pO0[j], pO1[j]): P.j = j; P.bfrag = (lambda j: (lambda ks, qb: oreg(j, ks, qb)))(j)
    S1 = pG + pU + pQa + pQb + pD0 + pD1
    a(f"s_sub_u32 s{sJ}, s{sROT}, 1")
    for i in range(OPT.get('early', 1)):
        s0, s1, d = panel_dma(S1[i], i)
        for x in s0 + ["s_nop 0"] + d[:4] + s1 + ["s_nop 0"] + d[4:]: a(x)
    if OPT['prefetch']:
        srd(a, rWD, 80, 1792*1024)
        a(f"s_lshr_b32 s62, s{sG}, 1\ns_mul_i32 s62, s62, 7\ns_and_b32 s61, s{sG}, 1\ns_mul_i32 s61, s61, 3\ns_add_u32 s62, s62, s61\ns_lshl_b32 s62, s62, 16")
        a(f"v_cmp_gt_u32 vcc, 0x40000, v{vPF}\nv_mov_b32 v9, 0x40000000\ns_nop 0\nv_cndmask_b32 v9, v9, v{vPF}, vcc")
        a(f"v_mov_b32 v54, v9\ns_mov_b32 s44, s62") if not OPT['timing'] else a(f"v_mov_b32 v54, v9\ns_mov_b32 s46, s62")
    lndma = []
    late_dma = []
    if OPT.get('late2'):
        pass
    for i in range(OPT.get('early', 1), 3):
        s0, s1, d = panel_dma(S1[i], i)
        if i >= 3 - OPT.get('late2', 0):
            late_dma += s0 + ['s_nop 0'] + d[:4] + s1 + ['s_nop 0'] + d[4:]; continue
        lndma += [s0 + ["s_nop 0", d[0]]] + [[x] for x in d[1:4]] + [s1 + ["s_nop 0", d[4]]] + [[x] for x in d[5:]]
    if OPT['prefetch'] and not OPT.get('wdpos'): lndma += [[f"buffer_load_dword v{vGB}, v54, s[{rWD}:{rWD+3}], s{44 if not OPT['timing'] else 46} offen{' offset:64' if h else ''} ; @T:pf"] for h in range(OPT.get('pf2', 1))]
    stamp(a, 'dmaissued')
    srd(a, rWU, 78, 512*3584); srd(a, rWQ, 70, 512*8192); srd(a, rWO, 72, 4096*1024)
    if not OPT['prefetch']: srd(a, rWD, 80, 1792*1024)
    a(f"s_lshl_b32 s62, s{sG}, 19")
    srd(a, rK, 66, 0x80000, add='s62'); srd(a, rV, 68, 0x80800, add='s62', sub=2048)
    srd(a, rWS, WSP, 0x2900000)
    srd(a, rOUT, 82, 2048*1024); srd(a, rDBG, 84, 256)
    a(f"s_lshl_b32 s81, s{sG}, 19\ns_lshl_b32 s82, s{sW}, 13\ns_lshl_b32 s83, s{sW}, 14")
    a(f"s_lshl_b32 s{sSLAB}, s{sG}, 5\ns_add_u32 s{sSLAB}, s{sSLAB}, s{sRB}\ns_lshl_b32 s{sSLAB}, s{sSLAB}, 2\ns_add_u32 s{sSLAB}, s{sSLAB}, s{sW}\ns_lshl_b32 s{sSLAB}, s{sSLAB}, 14")
    for t in range(2):
        for k in range(4): a(f"s_add_u32 s{sT+t*4+k}, s{sSLAB}, {t*0x1000000 + k*4096}")
    a("v_bfe_u32 v5, v0, 2, 2\nv_lshrrev_b32 v6, 4, v0\nv_and_b32 v7, 3, v0\nv_lshlrev_b32 v7, 3, v7")
    a(f"v_add_u32 v7, s{sRING}, v7")
    a("v_lshrrev_b32 v8, 1, v5\nv_and_b32 v9, 1, v6\nv_lshl_add_u32 v9, v9, 1, v8")
    a("v_lshl_add_u32 v26, v6, 3, v5\nv_lshl_add_u32 v26, v26, 7, v7")
    a("v_lshrrev_b32 v27, 1, v6\nv_xor_b32 v27, v27, v6\nv_and_b32 v27, 1, v27\nv_lshl_add_u32 v27, v27, 1, v8")
    a("v_lshl_add_u32 v28, v6, 2, v5\nv_lshl_add_u32 v28, v28, 7, v7")
    a(f"s_lshl_b32 s62, s{sW}, 3\nv_add_u32 v29, s62, v6\nv_and_b32 v5, 15, v0")
    for i in range(2):
        a(f"v_add_u32 v8, {4*i}, v29\nv_and_b32 v8, 15, v8\nv_xor_b32 v8, v8, v5\nv_lshlrev_b32 v8, 4, v8\nv_lshl_add_u32 v{vDK+i}, v29, 8, v8")
        a(f"v_add_u32 v8, {4*i}, v6\nv_lshlrev_b32 v8, 1, v8\nv_xor_b32 v8, v8, v5\nv_lshlrev_b32 v8, 4, v8\nv_lshl_add_u32 v{vDV+i}, v29, 8, v8")
    a("v_mov_b32 v29, v9")
    for nb in range(4):
        a(f"v_xor_b32 v{vWA+nb}, {nb}, v29\nv_lshl_add_u32 v{vWA+nb}, v{vWA+nb}, 5, v26")
        a(f"v_xor_b32 v{vWI+nb}, {nb}, v27\nv_lshl_add_u32 v{vWI+nb}, v{vWI+nb}, 5, v28")
    a(f"v_add_u32 v{vFA}, {LB}, v{vL16}")
    a(f"v_add_u32 v44, s83, v{vFA}")
    stamp(a, 'setup')
    F = bB
    if OPT['lnm']:
        b = Prog()
        b("s_mov_b32 s45, 0xffff0000" if not OPT['timing'] else "s_mov_b32 s47, 0xffff0000")
        MK = 45 if not OPT['timing'] else 47
        for i in range(4): b(f"v_mov_b32 v{32+i}, 0x3f803f80")
        b(f"v_bfe_u32 v45, v{vL16}, 4, 2\nv_bfe_u32 v46, v{vL16}, 6, 2\nv_lshrrev_b32 v47, 8, v{vL16}")
        b("s_waitcnt vmcnt(@x0)")
        for sx in range(4): b(f"ds_read_b128 v[{bA+4*sx}:{bA+4*sx+3}], v{50+sx} ; @T:q0")
        for c4 in range(4):
            if c4 < 3:
                b(f"s_waitcnt vmcnt(@x{c4+1})")
                for sx in range(4): b(f"ds_read_b128 v[{bA+16*(c4+1)+4*sx}:{bA+16*(c4+1)+4*sx+3}], v{50+sx} offset:{(c4+1)*4096} ; @T:q{c4+1}")
            b(f"s_waitcnt lgkmcnt(@q{c4})")
            for k in range(4*c4, 4*c4 + 4):
                x = f"v[{bA+4*k}:{bA+4*k+3}]"
                un = [[f"v_lshlrev_b32 v{F+2*i}, 16, v{bA+i}", f"v_and_b32 v{F+2*i+1}, s{MK}, v{bA+i}"] for i in range(4*k, 4*k+4)]
                last = (c4 == 3)
                b(f"{MF} v[36:39], v[32:35], {x}, {'0' if k == 0 else 'v[36:39]'}")
                if not last:
                    for y in un[0] + un[1]: b(y)
                b(f"{MF} v[40:43], {x}, {x}, {'0' if k == 0 else 'v[40:43]'}")
                if not last:
                    for y in un[2] + un[3]: b(y)
        late = [y for i in range(48, 64) for y in (f"v_lshlrev_b32 v{F+2*i}, 16, v{bA+i}", f"v_and_b32 v{F+2*i+1}, s{MK}, v{bA+i}")]
        for x in stampl(1): b(x)
        st = []
        st += ["v_cmp_eq_u32 vcc, 1, v45", None, None, "v_cndmask_b32 v40, v40, v41, vcc", "v_cmp_eq_u32 vcc, 2, v45", None, None, "v_cndmask_b32 v40, v40, v42, vcc",
               "v_cmp_eq_u32 vcc, 3, v45", None, None, "v_cndmask_b32 v40, v40, v43, vcc", "v_cmp_eq_u32 vcc, v46, v47", None, None, "v_cndmask_b32 v40, 0, v40, vcc"]
        st += [f"v_mul_f32 v36, {hx(1/512)}, v36", "v_mov_b32 v41, v40", "v_cvt_pk_bf16_f32 v37, v36, v36", None, "v_permlane16_swap_b32 v40, v41", "v_lshlrev_b32 v37, 16, v37", "v_add_f32 v40, v40, v41",
               "v_mov_b32 v41, v40", None, None, "v_permlane32_swap_b32 v40, v41", None, "v_add_f32 v40, v40, v41",
               f"v_mul_f32 v40, {hx(1/512)}, v40", "v_fma_f32 v40, -v36, v36, v40", "v_max_f32 v40, 0, v40",
               "v_cvt_pk_bf16_f32 v40, v40, v40", "v_lshlrev_b32 v40, 16, v40", f"v_add_f32 v40, {hx(1e-5)}, v40", "v_cvt_pk_bf16_f32 v40, v40, v40", "v_lshlrev_b32 v40, 16, v40",
               "v_sqrt_f32 v40, v40", None, "v_cvt_pk_bf16_f32 v40, v40, v40", "v_lshlrev_b32 v40, 16, v40", "v_rcp_f32 v42, v40", None, "v_mul_f32 v43, v37, v42"]
        for y in late[:10]: b(y)
        late = late[10:]
        for y in st:
            if y is None: b(late.pop(0) if late else "s_nop 0")
            else: b(y)
        for y in late: b(y)
        for k in range(16):
            for i in range(4*k, 4*k+4): b(f"v_pk_fma_f32 v[{F+2*i}:{F+2*i+1}], v[{F+2*i}:{F+2*i+1}], v[42:43], v[42:43] op_sel:[0,0,1] op_sel_hi:[1,0,1] neg_lo:[0,0,1] neg_hi:[0,0,1]")
            if k: b(f"ds_write_b128 v44, v[{bA+4*k-4}:{bA+4*k-1}] offset:{(k-1)*1024}")
            for i in range(4*k, 4*k+4): b(f"v_cvt_pk_bf16_f32 v{bA+i}, v{F+2*i}, v{F+2*i+1}")
        b(f"ds_write_b128 v44, v[{bA+60}:{bA+63}] offset:{15*1024}")
    else:
        b = Prog()
        for k in range(16):
            if OPT['xdma']:
                if k == 0:
                    b("s_waitcnt vmcnt(@x0)")
                    for sx in range(4): b(f"ds_read_b128 v[{bA+4*sx}:{bA+4*sx+3}], v{50+sx} ; @T:q0")
                if k % 4 == 0:
                    c4 = k // 4
                    if c4 < 3:
                        b(f"s_waitcnt vmcnt(@x{c4+1})")
                        for sx in range(4): b(f"ds_read_b128 v[{bA+16*(c4+1)+4*sx}:{bA+16*(c4+1)+4*sx+3}], v{50+sx} offset:{(c4+1)*4096} ; @T:q{c4+1}")
                    b(f"s_waitcnt lgkmcnt(@q{c4})")
            else: b(f"s_waitcnt vmcnt(@x{k})")
            for i in range(4*k, 4*k+4):
                b(f"v_lshlrev_b32 v{F+2*i}, 16, v{bA+i}\nv_and_b32 v{F+2*i+1}, 0xffff0000, v{bA+i}")
            for i in range(4*k, 4*k+4):
                if k == 0: b(f"v_mov_b32 v{32+2*i}, v{F+2*i}\nv_mov_b32 v{33+2*i}, v{F+2*i+1}")
                else: b(f"v_pk_add_f32 v[{32+2*(i%4)}:{33+2*(i%4)}], v[{32+2*(i%4)}:{33+2*(i%4)}], v[{F+2*i}:{F+2*i+1}]")
        for x in stampl(1): b(x)
        b("v_pk_add_f32 v[32:33], v[32:33], v[34:35]\nv_pk_add_f32 v[36:37], v[36:37], v[38:39]\nv_pk_add_f32 v[32:33], v[32:33], v[36:37]\nv_add_f32 v32, v32, v33")
        xreduce(b, 32, 'v_add_f32', 33)
        b(f"v_mul_f32 v32, {hx(1/512)}, v32\nv_cvt_pk_bf16_f32 v33, v32, v32\nv_lshlrev_b32 v34, 16, v33\nv_sub_f32 v40, v32, v34")
        for i in range(64):
            b(f"v_pk_add_f32 v[{F+2*i}:{F+2*i+1}], v[{F+2*i}:{F+2*i+1}], v[34:35] op_sel_hi:[1,0] neg_lo:[0,1] neg_hi:[0,1]")
            if i >= 2:
                j = i - 2; r = 46 + 2*(j % 4)
                b(f"v_pk_mul_f32 v[{r}:{r+1}], v[{F+2*j}:{F+2*j+1}], v[{F+2*j}:{F+2*j+1}]" if j < 4 else f"v_pk_fma_f32 v[{r}:{r+1}], v[{F+2*j}:{F+2*j+1}], v[{F+2*j}:{F+2*j+1}], v[{r}:{r+1}]")
        for j in (62, 63):
            r = 46 + 2*(j % 4); b(f"v_pk_fma_f32 v[{r}:{r+1}], v[{F+2*j}:{F+2*j+1}], v[{F+2*j}:{F+2*j+1}], v[{r}:{r+1}]")
        b("v_pk_add_f32 v[46:47], v[46:47], v[48:49]\nv_pk_add_f32 v[50:51], v[50:51], v[52:53]\nv_pk_add_f32 v[46:47], v[46:47], v[50:51]\nv_add_f32 v42, v46, v47")
        xreduce(b, 42, 'v_add_f32', 43)
        b(f"v_mul_f32 v42, {hx(1/512)}, v42\nv_fma_f32 v42, -v40, v40, v42\nv_max_f32 v42, 0, v42")
        rb16 = lambda r: f"v_cvt_pk_bf16_f32 v{r}, v{r}, v{r}\nv_lshlrev_b32 v{r}, 16, v{r}"
        b(rb16(42)); b(f"v_add_f32 v42, {hx(1e-5)}, v42"); b(rb16(42)); b("v_sqrt_f32 v42, v42\ns_nop 0"); b(rb16(42)); b("v_rcp_f32 v42, v42\ns_nop 0")
        for k in range(16):
            for i in range(4*k, 4*k+4): b(f"v_pk_mul_f32 v[{F+2*i}:{F+2*i+1}], v[{F+2*i}:{F+2*i+1}], v[42:43] op_sel_hi:[1,0]")
            if k: b(f"ds_write_b128 v44, v[{bA+4*k-4}:{bA+4*k-1}] offset:{(k-1)*1024}")
            for i in range(4*k, 4*k+4): b(f"v_cvt_pk_bf16_f32 v{bA+i}, v{F+2*i}, v{F+2*i+1}")
        b(f"ds_write_b128 v44, v[{bA+60}:{bA+63}] offset:{15*1024}")
    interleave(a, b.L, lndma, OPT.get('lnevery', 10), OPT.get('lnstart', 0))
    stamp(a, 'lndone')
    a("s_waitcnt vmcnt(@w0) lgkmcnt(0)\ns_barrier")
    stamp(a, 'lnbar')
    xr = lambda ks, qb, tag, lay: f"ds_read_b128 a[{(ks*4+qb)*4}:{(ks*4+qb)*4+3}], v{vFA} offset:{lay(ks, qb)*1024} ; @T:{tag}"
    layX = lambda ks, qb: qb*16 + ks
    layF = lambda ks, qb: ks*4 + qb
    def stream_head(P, idx, tag, lay, extra=()):
        for x in wreads(P, idx, 0): a(x)
        for ks in range(2):
            for qb in range(4): a(xr(ks, qb, tag, lay))
        for nb in (1, 2):
            for x in wreads(P, idx, nb): a(x)
        for x in extra: a(x)
        a("s_waitcnt lgkmcnt(@auto)")
    RG = [2, 3, 4, 5, 6, 12, 14, 20]
    def frag_reads(xm, pos, ks0, tag, lay):
        for k in range(8): xm.setdefault((pos, RG[k]), []).append(xr(ks0 + k % 2, k // 2, tag, lay))
    idle = Prog()
    if OPT.get('skip', 0):
        a(f"s_cmp_ge_u32 s{sW}, s{sNU}\ns_cbranch_scc1 L_idle")
        idle("L_idle:")
        for ks in range(16):
            for qb in range(4): idle(xr(ks, qb, 'xr', layX))
        for i in range(128): idle(f"v_mov_b32 v{bA+i}, 0")
        for i in range(4): idle(f"v_mov_b32 v{vT+i}, 1.0")
        idle(f"v_add_u32 v{vPF}, s82, v{vFA}\ns_add_u32 s{sJ}, s{sJ}, {(16 - (3 - OPT.get('late2', 0))) % 8}")
        idle("s_waitcnt vmcnt(0) lgkmcnt(0)")
        idle(f"v_mov_b32 v{vGB}, {hx(-2.0 * math.log2(math.e) * math.sqrt(2.0 / math.pi) * 0.044715)}\ns_barrier")
        for i in (16, 17, 18):
            s0, s1, d = panel_dma(S1[i], i)
            for x in s0 + ["s_nop 0"] + d[:4] + s1 + ["s_nop 0"] + d[4:]: idle(x)
        idle("s_waitcnt vmcnt(@w16)")
        for nb in range(3):
            for x in wreads(S1[16], 16, nb): idle(x)
        idle("s_waitcnt lgkmcnt(0)\ns_branch L_join16")
    a.idle = idle
    stream_head(S1[0], 0, 'xr', layX, late_dma)
    stamp(a, 2)
    fill = {}; xm = {}; xs = {}
    for j in range(7): frag_reads(xm, j, 2*j + 2, 'xr', layX)
    o1, o2 = attn_addr_ops()
    if OPT['prefetch'] and OPT.get('wdpos', 0) > 1:
        wp = OPT['wdpos']; SW = 44 if not OPT['timing'] else 46
        xs[(wp, 28)] = [f"s_and_b32 s0, s{sRB}, 15", f"s_lshl_b32 s0, s0, 2", f"s_add_u32 s0, s0, s{sW}", f"s_lshl_b32 s0, s0, 12", f"s_add_u32 s0, s0, s{SW}",
                        f"v_and_b32 v{vDK2}, 0x1f0, v{vL16}", f"v_lshlrev_b32 v{vDK2}, 3, v{vDK2}", f"v_lshrrev_b32 v{vDK2+1}, 9, v{vL16}", f"v_lshl_add_u32 v{vDK2}, v{vDK2+1}, 6, v{vDK2}"]
        xm[(wp, 30)] = [f"buffer_load_dword v{vDK2}, v{vDK2}, s[{rWD}:{rWD+3}], s0 offen", None]
    xs[(9, 0)] = ["s_barrier"]
    fill[8] = [f"v_add_u32 v{vPF}, s82, v{vFA}", f"v_mov_b32 v{vGB}, {hx(-2.0 * math.log2(math.e) * math.sqrt(2.0 / math.pi) * 0.044715)}"] + gelu_stage1(bA)
    g2a, g2b = geglu_stage2(bA, bB)
    if OPT.get('hglob', 0):
        fill[16] = g2a + g2b; fill[24] = qpack(bC, 0) + o1
        xs[(14, 28)] = [f"s_lshl_b32 s61, s2, 2", f"s_add_u32 s61, s61, s{sW}", f"s_lshl_b32 s61, s61, 13"]
        xs[(14, 29)] = [f"s_add_u32 s61, s61, 0x2100000", f"s_add_u32 s62, s61, 4096", f"s_add_u32 s63, s82, {LB}"]
        for sp in range(2):
            xs[(25 + sp, 28)] = (["s_waitcnt vmcnt(@hs)"] if sp == 0 else []) + [f"s_add_u32 m0, s63, {sp*4096}"]
            for k, g in enumerate([29, 30, 31, 31]):
                xm.setdefault((25 + sp, g), []).extend([f"buffer_load_dwordx4 v{vL16}, s[{rWS}:{rWS+3}], s{61 + sp} offen offset:{k*1024} lds ; @T:hd"] + ([None] if k != 2 else []))
        xs[(28, 0)] = ["s_waitcnt vmcnt(@hd)", "s_barrier"]
    elif OPT.get('g2late', 0):
        fill[16] = g2a; fill[24] = g2b + o1; fill[26] = qpack(bC, 0)
        xs[(27, 12)] = ["s_waitcnt lgkmcnt(@hw)", "s_barrier"]
    else:
        if OPT.get('hbatch', 1):
            fill[16] = g2a + [x for x in g2b if not x.startswith('ds_')]; fill[24] = o1 + qpack(bC, 0)
            hb = OPT.get('hbpos', (24, 3))
            xm[hb] = [x for x in g2b if x.startswith('ds_')]
        else:
            fill[16] = g2a + g2b; fill[24] = qpack(bC, 0) + o1
        xs[(26, 0)] = ["s_waitcnt lgkmcnt(@hw)", "s_barrier"]
    for j in range(4): frag_reads(xm, 28 + j, 2*j, 'hr', layF)
    fill[32] = qpack(bA, 1)
    fill[36] = park(bC, 128) + o2
    xs[(32, 3)] = ["s_waitcnt lgkmcnt(@hr)", "s_barrier"]
    kvs = [kvdma(2, 0, 0, True, False), kvdma(3, 1, 0, True, False), kvdma(0, 2, 0), kvdma(1, 3, 1)]
    xs[(32, 10)] = [f"s_lshl_b32 s{sKO+3}, s{sRB}, {14 if OPT['map'] == 8 else 15}"]; xs[(32, 12)] = [f"s_sub_u32 s{sKO+3}, s{sKO+3}, 8192"]
    for i, (sc, dd) in enumerate(kvs):
        pos = [33, 34, 37, 38][i]
        if i < 2:
            xs.setdefault((pos, 20), []).append(sc[1]); xs.setdefault((pos, 22), []).append(sc[2]); xs.setdefault((pos, 28), []).append(sc[0])
            for x, g in zip(dd, [29, 30]): xm.setdefault((pos, g), []).extend([x, None])
        else:
            xs.setdefault((pos, 9), []).append(sc[1]); xs.setdefault((pos, 10), []).append(sc[2]); xs.setdefault((pos, 11), []).append(sc[0])
            for x, g in zip(dd, [13, 17, 21, 27]): xm.setdefault((pos, g), []).extend([x, None])
    xs[(39, 3)] = ["s_waitcnt vmcnt(@kv3)", "s_barrier"]
    for x, g in zip(kreads(2), [8, 9, 10, 11, 12, 13, 14, 16]): xm.setdefault((39, g), []).append(x)
    left = emit_stream(a, S1, 0, fill, xm, xs, must_empty=(24, 26, 32, 36) if (OPT.get('g2late', 0) and not OPT.get('hglob', 0)) else (24, 32, 36), cap=dict((k, OPT.get('gcap', 41 if (OPT.get('g2late', 0) and not OPT.get('hglob', 0)) else 44)) for k in range(8, 24)))
    assert not left
    stamp(a, 3)
    X_ = SP(dict(S=vS, P=[32, 48, 64, 80], NEGM=vNEGM, ONES=vONES, LM=vLM, L=vL, KA=vKA, VA=vVAl, KF=aKF, VF=aVF, Q=vQ, Qf='v', O=aO), OPT)
    def with_fill(ms, q, memat, start=0, room0=2):
        for g, m in enumerate(ms):
            a(m)
            room = room0
            for x in memat.get(g, []):
                a(x); room -= (2 if x.startswith('buffer') else 0 if x.startswith('s_') else 1)
            while g >= start and q and room >= 1:
                x = q.pop(0); a(x); room -= cost(x)
    st = park(bA, 160)
    k10, k11 = X_.kreads(3, 0), X_.kreads(3, 1)
    with_fill(X_.qk(0, '0'), st, {16: k10[:2], 17: k10[2:]}, start=3)
    for x in k11 + st: a(x)
    for i in range(4): a(f"v_mov_b32 v{vONES+i}, 0x3f803f80\nv_mov_b32 v{vL+i}, 0")
    T = [88 + 2*qb for qb in range(4)]
    for k in range(4):
        for qb in range(4):
            b0 = vS[0] + qb*8
            a([f"v_max3_f32 v{T[qb]}, v{b0}, v{b0+1}, v{b0+2}", f"v_max3_f32 v{T[qb]}, v{T[qb]}, v{b0+3}, v{b0+4}", f"v_max3_f32 v{T[qb]}, v{T[qb]}, v{b0+5}, v{b0+6}", f"v_max_f32 v{T[qb]}, v{T[qb]}, v{b0+7}"][k])
    for sw in ('v_permlane16_swap_b32', 'v_permlane32_swap_b32'):
        for qb in range(4): a(f"v_mov_b32 v{T[qb]+1}, v{T[qb]}")
        for qb in range(4): a(f"{sw} v{T[qb]}, v{T[qb]+1}")
        for qb in range(4): a(f"v_max_f32 v{T[qb]}, v{T[qb]}, v{T[qb]+1}")
    for qb in range(4):
        for i in range(4): a(f"v_sub_f32 v{vNEGM+qb*4+i}, 0, v{T[qb]}")
    a("s_waitcnt vmcnt(@kv1) lgkmcnt(0)\ns_barrier")
    subs = [f"v_sub_f32 v{X_.sblk(0, kb, qb)+i}, v{X_.sblk(0, kb, qb)+i}, v{T[qb]}" for kb in range(2) for qb in range(4) for i in range(4)]
    E0, S0 = X_.smq(0, 0)
    q0 = subs[:8]; si = 0
    for k, e in enumerate(E0):
        q0.append(e)
        if 8 + k < 32 and k % 4 == 3: q0 += subs[8 + k - 3: 8 + k + 1]
        while si < len(S0) and S0[si][0] <= k: q0.append(S0[si][1]); si += 1
    q0 += ["s_nop 0"] + [x[1] for x in S0[si:]]
    q0 += [f"s_lshl_b32 s0, s{sRB}, 3", f"v_mov_b32 v{vT}, s0", f"s_lshl_b32 s0, 0x100, s{sG}", f"v_mov_b32 v{vT+1}, s0"] + pf_addr('s0', vT+3)
    if OPT.get('flags'): q0 += flag_off(sLATE) + [f"v_mov_b32 v{vT+2}, 0"]
    q0 += [f"s_cmp_eq_u32 s{sW}, 0", "s_cselect_b32 s0, 1, 0", "s_mov_b32 s1, 0"]
    sc, dd = kvdma(2, 4, 2)
    k20, k21 = X_.kreads(0, 0), X_.kreads(0, 1)
    with_fill(X_.qk(1), q0, {0: [sc[0]], 1: [sc[1]], 2: [sc[2]], 4: [dd[0]], 9: [dd[1]], 16: k20[:2], 17: k20[2:], 21: [dd[2]], 26: [dd[3]]}, room0=OPT.get('proom', 3))
    for x in k21 + q0: a(x)
    c = ([], [], 32)
    for j_ in (1, 2, 3): _, c = X_.sp(j_, c, kvdma)
    E1, S1_ = X_.smq(1, 1); rem = set(c[0]) | set(x[1] for x in c[1])
    for x in E1 + [y[1] for y in S1_]:
        if x not in rem: a(x)
    cp = lambda c: (list(c[0]), list(c[1]), c[2])
    a("s_waitcnt lgkmcnt(0)")
    sts = [parked_store(f) + " ; @T:st" for f in range(16)]
    carry = cp(c)
    for j_ in range(4):
        kw = {}
        if j_ < 3:
            n = [6, 5, 5][j_]; kw['xauto'] = [(36, 100, sts[:n])]; sts = sts[n:]
            if j_ == 0 and OPT.get('flags'): kw['postbar'] = f"s_mov_b64 exec, 1\nbuffer_store_dword v{vT+2}, off, s[{rWS}:{rWS+3}], s{sLATE} sc1 ; @T:st\ns_mov_b64 exec, -1"
        else:
            kw['alsowait'] = 'st'
            if OPT['prefetch'] and OPT.get('pfearly'): kw['xauto'] = [(40, 70, [f"buffer_load_dword v{vT+3}, v{vPF}, s[{rWO}:{rWO+3}], s81 offen{' offset:64' if h else ''} ; @X" for h in range(OPT.get('pf2', 1))])]
            if OPT['single']: kw['postbar'] = f"s_mov_b64 exec, s[0:1]\nbuffer_atomic_or v{vT+1}, v{vT}, s[{rDBG}:{rDBG+3}], 0 offen ; @X\ns_mov_b64 exec, -1"
        body, carry = X_.sp(j_, carry, kvdma, first=(j_ == 0), **kw)
        for x in body: a(x)
    for _ in range(2):
        _, c = X_.sp(4, c, kvdma, postbar=("x" if OPT['single'] else None)); _, c = X_.sp(5, c, kvdma, postbar=("x" if OPT['prefetch'] and OPT.get('pfloop', 0) else None))
    assert set(c[0]) <= set(carry[0]) and set(c[1]) <= set(carry[1]), (carry, c)
    for x in [x for x in carry[0] if x not in c[0]] + ["s_nop 0"] + [x[1] for x in carry[1] if x not in c[1]]: a(x)
    carry = cp(c)
    stamp(a, 'loop0')
    a(f"s_mov_b32 s{sCNT}, 12")
    c0 = cp(carry); loop = []
    for j_ in (4, 5):
        pb = f"buffer_load_dword v{vT+2}, v{vT}, s[{rDBG}:{rDBG+3}], 0 offen sc1 ; @T:poll" if (j_ == 4 and OPT['single']) else None
        if j_ == 5 and OPT['prefetch'] and OPT.get('pfloop', 0): pb = f"buffer_load_dword v{vT+3}, v{vPF}, s[{rWO}:{rWO+3}], s81 offen ; @T:pfo"
        body, carry = X_.sp(j_, carry, kvdma, postbar=pb)
        loop += body
    assert cp(carry) == c0
    if OPT.get('rotloop', 1):
        mi = [i for i, x in enumerate(loop) if x.startswith('v_mfma')]
        free = [k for k in range(len(mi) - 8, len(mi) - 1) if not loop[mi[k] + 1].startswith('s_') and not loop[mi[k] + 1].startswith('buffer')]
        assert not any(x.startswith('s_add') or x.startswith('s_and') for x in loop[mi[free[-2]]:])
        tailf = loop[mi[-1] + 2:]
        assert loop[mi[-1] + 1].startswith('s_waitcnt') and all(x.startswith('v_') for x in tailf)
        loop = loop[:mi[free[-2]] + 1] + [f"s_sub_u32 s{sCNT}, s{sCNT}, 1"] + loop[mi[free[-2]] + 1:mi[free[-1]] + 1] + [f"s_cmp_lg_u32 s{sCNT}, 0"] + loop[mi[free[-1]] + 1:mi[-1] + 2]
        a("s_branch L_attn_mid\n.p2align 6\nL_attn_head:")
        a.headf = len(a.L)
        for x in tailf: a(x + " ; @X")
        a("L_attn_mid:\nL_attn_loop:")
        a.loop = (len(a.L), len(a.L) + len(loop) + len(tailf))
        for x in loop: a(x)
        a.brpos = len(a.L)
        for x in tailf: a(x)
    else:
        a(".p2align 6\nL_attn_loop:")
        a.loop = (len(a.L), len(a.L) + len(loop))
        for x in loop: a(x)
        a(f"s_sub_u32 s{sCNT}, s{sCNT}, 1\ns_cmp_lg_u32 s{sCNT}, 0\ns_cbranch_scc1 L_attn_loop")
    stamp(a, 'loop1')
    S2 = pO0 + pO1; base2 = len(S1)
    AV2 = 128
    woff = lambda h: f"s_add_u32 s0, s{sW}, {h}\ns_and_b32 s0, s0, 3\ns_lshl_b32 s0, s0, 17\ns_add_u32 s{44+h}, s0, s{sCOO}"
    def wd(k):
        s0, s1, d = panel_dma(S2[k], base2 + k)
        return [woff(k)] + s0 + d[:4] + s1 + d[4:]
    for j_ in (28, 29, 30):
        kw = {}
        if j_ == 28 and OPT['single']:
            so = share_offsets(f"s{sG}") + [f"s_bfe_u32 s{sBITS}, s{sBITS}, 0x80008", f"s_cmp_lg_u32 s{sBITS}, 0xff", f"s_cselect_b32 s{sLATE}, 1, 0", f"s_cselect_b32 s{sBITS}, 0x40000000, s{sSHOFF}"]
            a(f"v_readfirstlane_b32 s{sBITS}, v{vT+2}")
            fl = []
            for g in range(8):
                pl = ploads(FPE, 1, g, f"s{sBITS}"); fl += [pl[0], pl[2].replace(f"v[{FPE[1]+4*g}:{FPE[1]+4*g+3}]", f"a[{160+4*g}:{163+4*g}]")]
            kw['xauto'] = [(30, 56, so)] + ([] if (OPT['fend'] or OPT.get('f30', 0)) else [(56, 104, fl)])
            fl30 = fl
            if OPT.get('fpf'):
                a(f"v_lshrrev_b32 v{vGB}, 7, v{vL16}\nv_lshlrev_b32 v{vGB}, 21, v{vGB}\nv_bfe_u32 v{vT+2}, v{vL16}, 4, 3\nv_lshl_add_u32 v{vGB}, v{vT+2}, 7, v{vGB}")
                kw['xauto'] = [(6, 30, so), (34, 60, [f"s_add_u32 s0, s{sBITS}, 0x1000000", f"buffer_load_dword v{vT+2}, v{vGB}, s[{rWS}:{rWS+3}], s0 offen offset:1024", f"buffer_load_dword v{vT+2}, v{vGB}, s[{rWS}:{rWS+3}], s0 offen"])]
                fl29 = fl
        if j_ == OPT.get('pfsp', 30) and OPT['prefetch'] and not OPT.get('pfloop', 0) and not OPT.get('pfearly'):
            pfo = f"buffer_load_dword v{vGB}, v{vPF}, s[{rWO}:{rWO+3}], s81 offen"
            if OPT.get('pfg', 13) < 0: kw['postbar'] = pfo
            else: kw['xd'] = [(OPT.get('pfg', 13), pfo)] + ([(OPT.get('pfg', 13) + 1, pfo + " offset:64")] if OPT.get('pf2', 1) == 2 else []) + ([(OPT.get('pfg', 13) + 1, pfo.replace('s81', 's80'))] if OPT.get('pfh') else [])
        if j_ == 29:
            kw['dma'] = (True, True, False, True); kw['xauto'] = [(34, 100, wd(0) + wd(1))]
            if OPT.get('fpf') and OPT['single']: kw['xauto'] = [(30, 66, wd(0)), (66, 104, fl29)]
        if j_ == 30:
            kw['dma'] = (False, True, False, False); kw['knext'] = False
            kw['xauto'] = [(30, 100, (wd(1) if OPT.get('fpf') else []) + wd(2) + [woff(3)])]
            if OPT.get('f30', 0) and OPT['single'] and not OPT['fend']: kw['xauto'] = [(12, 44, wd(2) + [woff(3)]), (44, 104, fl30)]
            kw['vlast'] = sum((X_.vreads(2, db, aKF + 4*db) for db in range(8)), []) + sum((X_.vreads(3, db, AV2 + 4*db) for db in range(8)), [])
        body, carry = X_.sp(j_, carry, kvdma, **kw)
        for x in body: a(x)
    E, Sq, edone = list(carry[0]), list(carry[1]), carry[2]
    post = []
    lq = [qb for qb in range(4) if qb >= OPT['msum']]
    for sw in ('v_permlane16_swap_b32', 'v_permlane32_swap_b32'):
        post += [f"v_mov_b32 v{96+qb}, v{vL+qb}" for qb in lq] + ["s_nop 1"] + [f"{sw} v{vL+qb}, v{96+qb}" for qb in lq] + [f"v_add_f32 v{vL+qb}, v{vL+qb}, v{96+qb}" for qb in lq]
    post += [f"v_add_u32 v{vPF}, s83, v{vFA}"]
    if OPT['single']:
        post += [f"v_mov_b32 v{vSIG}, v{vT}", f"v_bfe_u32 v{vXO}, v{vL16}, 4, 4", f"v_lshlrev_b32 v{vXO}, 10, v{vXO}", f"v_lshrrev_b32 v{vT+3}, 8, v{vL16}", f"v_lshl_add_u32 v{vXO}, v{vT+3}, 3, v{vXO}"]
    ex0 = []
    if OPT['single'] and not OPT['fend']:
        for g in range(8):
            pl = ploads(FPE, 1, g, f"s{sBITS}"); ex0 += [pl[0], pl[1], None]
        xl = xloads(); ex0 += [xl[0] + "\n" + xl[1], None, xl[2], xl[3], xl[4], None, xl[5]]
    for g, m in enumerate(X_.pv1(2, aKF) + X_.pv1(3, AV2)):
        check_p(m, Sq)
        a(m)
        if g == 2: a("s_waitcnt lgkmcnt(0)\ns_barrier")
        if not E and not Sq and not post and ex0:
            x = ex0.pop(0)
            if x: a(x)
            continue
        room = 2; e_prev = edone
        nav = sum(1 for x in Sq if x[0] <= e_prev)
        if E and (nav < room or g % 2 == 0): a(E.pop(0)); edone += 1; room -= 2
        while room > 0:
            if Sq and Sq[0][0] <= e_prev: a(Sq.pop(0)[1]); room -= 1
            elif not E and not Sq and post: x = post.pop(0); a(x); room -= cost(x)
            else: break
    assert not E and not Sq
    for x in post + [x for x in ex0 if x]: a(x)
    stamp(a, 4)
    for h in range(4): a(f"s_add_u32 s{80+h%2}, s{sW}, {h}\ns_and_b32 s{80+h%2}, s{80+h%2}, 3")  if False else None
    a("s_nop 3")
    for qb in range(OPT['msum']): a(f"v_mov_b32 v{vL+qb}, v{vLM+4*qb}")
    a(f"v_add_f32 v{vT+1}, v{vL}, v{vL+1}\nv_add_f32 v{vT+2}, v{vL+2}, v{vL+3}\nv_add_f32 v{vT+1}, v{vT+1}, v{vT+2}")
    a(f"v_cmp_nge_f32 vcc, {hx(2.0**OPT['fthresh'])}, v{vT+1}\ns_nop 1\ns_cbranch_vccnz L_fallback\nL_fb_ret:")
    for qb in range(4): a(f"v_rcp_f32 v{vL+qb}, v{vL+qb}")
    for h in range(4): a(f"s_add_u32 s0, s{sW}, {h}\ns_and_b32 s0, s0, 3\ns_lshl_b32 s0, s0, 14\nv_add_u32 v{vOA+h}, s0, v{vFA}")
    def norm(sp, qb, pk):
        o_ = []; t = [64, 76, 96, 108][(sp*4 + qb) % 4]; l = vL + qb
        for e in range(2):
            o = aO + ((2*sp + e)*4 + qb)*4
            o_ += [f"v_accvgpr_read_b32 v{t+4*e+i}, a{o+i}" for i in range(4)]
        if pk:
            sel = "op_sel_hi:[1,0]" if l % 2 == 0 else "op_sel:[0,1]"
            o_ += [f"v_pk_mul_f32 v[{t+2*i}:{t+2*i+1}], v[{t+2*i}:{t+2*i+1}], v[{l - l%2}:{l - l%2 + 1}] {sel}" for i in range(4)]
        else: o_ += [f"v_mul_f32 v{t+i}, v{t+i}, v{l}" for i in range(8)]
        o_ += [f"v_cvt_pk_bf16_f32 v{t+8+i}, v{t+2*i}, v{t+2*i+1}" for i in range(4)]
        o_ += [f"ds_write_b128 v{vPF}, v[{t+8}:{t+11}] offset:{(sp*4 + qb)*1024} ; @T:ow{sp//2}"]
        return o_
    ex = []
    NPRE = OPT.get('npre', 16)
    for k in range(NPRE):
        for x in norm(k // 4, k % 4, True): a(x)
        if ex:
            for x in ex.pop(0): a(x)
    stamp(a, 'owritten')
    ord_ = lambda j, ks, qb: f"ds_read_b128 a[{oreg(j, ks, qb)}:{oreg(j, ks, qb)+3}], v{vOA + j % 4} offset:{((2*(j//4) + ks)*4 + qb)*1024}"
    a(f"s_waitcnt vmcnt(@w{base2})")
    for x in wreads(S2[0], base2, 0): a(x)
    for ks in range(2):
        for qb in range(4): a(ord_(0, ks, qb))
    for nb in (1, 2):
        for x in wreads(S2[0], base2, nb): a(x)
    a("s_waitcnt lgkmcnt(@auto)")
    stamp(a, 5)
    fill = {OPT.get('stpos', 13): slab_store(bB, 0, 0)}; xm = {}; xs = {}
    fill[0] = sum((norm(k // 4, k % 4, False) for k in range(NPRE, 16)), [])
    xs[(0, 10)] = ["s_waitcnt lgkmcnt(@ow0)", "s_barrier"]
    if NPRE < 16: xs[(3, 28)] = ["s_waitcnt lgkmcnt(@ow1)", "s_barrier"]
    else: xs[(0, 10)] = ["s_waitcnt lgkmcnt(@ow1)", "s_barrier"]
    for j in range(7):
        gaps = [12, 14, 15, 20, 22, 23, 28, 29] if j == 0 else RG
        for k in range(8): xm.setdefault((j, gaps[k]), []).append(ord_(j + 1, k % 2, k // 2))
    if OPT['single']:
        if not OPT.get('fredend', 1): xs[(3, 8)] = ["s_waitcnt vmcnt(@pl)"]
        if not OPT['fend']: fill[0] = [f'v_accvgpr_read_b32 v{FPE[1]+i}, a{160+i}' for i in range(32)]
        if not OPT.get('fredend', 1): fill[3] = fred_fill(FPE, (1,)); fill[8] = fred_fill(FPE, (0,))
    fin = slab_store(bA, 0, 1)
    if OPT['single'] and OPT['fend'] == 2:
        fl = []
        for g in range(8):
            pl = ploads(FPE, 1, g, f"s{sBITS}"); fl += [pl[0] + "\n" + pl[1], pl[2]]
        xl = xloads(); fl += [xl[0] + "\n" + xl[1], xl[2], xl[3] + "\n" + xl[4], xl[5]]
        slots = [(p_, g_) for p_ in range(OPT.get('flpos', 12), 16) for g_ in (3, 5, 12, 14, 20, 22, 28, 30) if not (p_ == OPT.get('flpos', 12) and p_ <= 12 and g_ < 28)]
        for x, sl_ in zip(fl, slots): xm.setdefault(sl_, []).extend([x, None])
        assert len(slots) >= len(fl)
    left = emit_stream(a, S2, base2, fill, xm, xs, late={(15, 18): fin[:20]}, must_empty=(3,), quiet=range(32), cap=dict([(k, OPT.get('ocap', 30)) for k in range(3)] + [(k, OPT.get('fcap', [32, 32, 32, 44, 40, 40, 40, 40, 40])[k-4]) for k in range(4, 13)]))
    for x in left: a(x)
    a("s_nop 5")
    for x in fin[20:]: a(x)
    stamp(a, 6)
    if OPT['timing']: a("s_memrealtime s[80:81]\ns_waitcnt lgkmcnt(0)\ns_mov_b32 s101, s80")
    if OPT['single']:
        (end_phase_flags if OPT.get('flags') else end_phase)(a)
    if OPT['timing'] and not OPT.get('dbgtime'):
        a("s_waitcnt vmcnt(0)")
        a("s_memtime s[44:45]\ns_memrealtime s[46:47]\ns_waitcnt lgkmcnt(0)")
        a(f"s_lshl_b32 s62, s2, 2\ns_add_u32 s62, s62, s{sW}\ns_lshl_b32 s62, s62, 6\ns_add_u32 s62, s62, 0x3000000")
        a(f"s_mov_b32 s{rWS+2}, 0x4000000")
        for i in range(8): a(f"v_mov_b32 v3, s{sTS+2*i if i < 7 else 44}\nv_mov_b32 v4, {4*i}\nbuffer_store_dword v3, v4, s[{rWS}:{rWS+3}], s62 offen")
        a(f"v_mov_b32 v3, s46\nv_mov_b32 v4, 32\nbuffer_store_dword v3, v4, s[{rWS}:{rWS+3}], s62 offen")
        a(f"v_mov_b32 v3, s101\nv_mov_b32 v4, 40\nbuffer_store_dword v3, v4, s[{rWS}:{rWS+3}], s62 offen")
        for k, r in enumerate((94, 98, 96)): a(f"v_mov_b32 v3, s{r}\nv_mov_b32 v4, {44+4*k}\nbuffer_store_dword v3, v4, s[{rWS}:{rWS+3}], s62 offen")
        a(f"v_mov_b32 v3, s100\nv_mov_b32 v4, 36\nbuffer_store_dword v3, v4, s[{rWS}:{rWS+3}], s62 offen")
    if OPT.get('dbgtime'):
        a(f"s_cmp_eq_u32 s2, {OPT['dbgtime']-1}\ns_cbranch_scc0 L_main_end\ns_cmp_eq_u32 s{sW}, 0\ns_cbranch_scc0 L_main_end")
        a("s_waitcnt vmcnt(0)\ns_memrealtime s[46:47]\ns_memtime s[44:45]\ns_waitcnt lgkmcnt(0)\ns_mov_b64 exec, 1")
        a(f"s_sub_u32 s0, s46, s100\nv_mov_b32 v3, s0\nv_mov_b32 v4, 4\nbuffer_store_dword v3, v4, s[{rDBG}:{rDBG+3}], 0 offen")
        st = [sTS + 2*i for i in range(7)] + [44]
        for i in range(7):
            a(f"s_sub_u32 s0, s{st[i+1]}, s{st[i]}\nv_mov_b32 v3, s0\nv_mov_b32 v4, {12 + 8*i}\nbuffer_store_dword v3, v4, s[{rDBG}:{rDBG+3}], 0 offen")
    a("L_main_end:\ns_endpgm")
    a.fb = fallback()
    return a

GV = [192 + i for i in range(8)] + [224 + i for i in range(8)]
def fred_fill(FP, which=(0, 1)):
    ops = []
    for fr in which:
        base = FP[fr]
        acc = [16, 17, 22, 23, 24, 25, 30, 31]
        for n in range(8):
            r = base + 4*n
            for i in range(4):
                if n == 0: ops += [f"v_lshlrev_b32 v{acc[2*i]}, 16, v{r+i}", f"v_and_b32 v{acc[2*i+1]}, 0xffff0000, v{r+i}"]
                else:
                    ta, tb = vT + 2*(i % 2), vT + 2*(i % 2) + 1
                    ops += [f"v_lshlrev_b32 v{ta}, 16, v{r+i}", f"v_and_b32 v{tb}, 0xffff0000, v{r+i}", f"v_add_f32 v{acc[2*i]}, v{acc[2*i]}, v{ta}", f"v_add_f32 v{acc[2*i+1]}, v{acc[2*i+1]}, v{tb}"]
        for b in range(0, 8, 4):
            ops += [f"v_mul_f32 v{vT+i}, {hx(-math.log2(math.e))}, v{acc[b+i]}" for i in range(4)]
            ops += [f"v_exp_f32 v{vT+i}, v{vT+i}" for i in range(4)]
            ops += [f"v_add_f32 v{vT+i}, 1.0, v{vT+i}" for i in range(4)]
            ops += [f"v_rcp_f32 v{vT+i}, v{vT+i}" for i in range(4)]
            ops += [f"v_mul_f32 v{GV[8*fr+b+i]}, v{acc[b+i]}, v{vT+i}" for i in range(4)]
    return ops

def fred_pk(FP):
    ops = []
    for fr in range(2):
        base = FP[fr]; acc = 40 + 8*fr
        for n in range(8):
            r = base + 4*n
            d = acc if n == 0 else 56
            for i in range(4): ops += [f"v_lshlrev_b32 v{d+2*i}, 16, v{r+i}", f"v_and_b32 v{d+2*i+1}, s44, v{r+i}"]
            if n: ops += [f"v_pk_add_f32 v[{acc+2*i}:{acc+2*i+1}], v[{acc+2*i}:{acc+2*i+1}], v[{56+2*i}:{57+2*i}]" for i in range(4)]
    for fr in range(2):
        acc = 40 + 8*fr
        ops += [f"v_mul_f32 v{56+i}, s45, v{acc+i}" for i in range(8)]
        ops += [f"v_exp_f32 v{56+i}, v{56+i}" for i in range(8)]
        ops += [f"v_add_f32 v{56+i}, 1.0, v{56+i}" for i in range(8)]
        ops += [f"v_rcp_f32 v{56+i}, v{56+i}" for i in range(8)]
        ops += [f"v_mul_f32 v{GV[8*fr+i]}, v{acc+i}, v{56+i}" for i in range(8)]
    return [f"s_mov_b32 s44, 0xffff0000", f"s_mov_b32 s45, {hx(-math.log2(math.e))}"] + ops

def end_phase(a):
    if OPT['fend']: pass
    elif OPT.get('fredend', 1):
        for x in fred_pk(FPE): a(x)
    a("v_mov_b32 v32, 0\nv_mov_b32 v33, 0")
    a(f"s_cmp_lg_u32 s{sW}, 0\ns_cbranch_scc1 L_e_nz\nds_write_b32 v32, v33\nL_e_nz:")
    a("s_waitcnt vmcnt(@st) lgkmcnt(0)\ns_barrier")
    stamp(a, 'drained')
    if OPT.get('rt2'): a('s_memrealtime s[94:95]\ns_waitcnt lgkmcnt(0)')
    a(f"s_mov_b32 s{sDONE}, 0\ns_mov_b32 s{sTODO}, 0\ns_mov_b32 s{sCNT}, 0\ns_lshl_b32 s46, s{sRB}, 3")
    a(f"s_lshl_b32 s47, 1, s{sG}\nv_mov_b32 v34, s47\ns_cmp_lg_u32 s{sW}, 0\ns_cbranch_scc1 L_e_nosig\ns_mov_b64 exec, 1\nbuffer_atomic_or v34, v{vSIG}, s[{rDBG}:{rDBG+3}], 0 offen sc0 ; @X\ns_mov_b64 exec, -1\nL_e_nosig:")
    if OPT['fend'] == 1:
        for g in range(8):
            for x in ploads(FPE, 1, g, f"s{sBITS}"): a(x)
        for x in xloads(): a(x)
        a(f"s_cmp_lg_u32 s{sW}, 0\ns_cbranch_scc1 L_e_nw\ns_waitcnt vmcnt(20)\nv_readfirstlane_b32 s0, v34\ns_nop 0\ns_or_b32 s0, s0, s47\ns_and_b32 s0, s0, 0xff\nv_mov_b32 v33, s0\nL_e_nw:")
    a(f"s_mov_b32 s83, 0\ns_waitcnt vmcnt(0)\ns_cmp_lg_u32 s{sW}, 0\ns_cbranch_scc1 L_e_other")
    a(f"v_readfirstlane_b32 s{sBITS}, v34\ns_nop 0")
    a(f"s_or_b32 s{sBITS}, s{sBITS}, s47\ns_and_b32 s47, s{sBITS}, 0xff\ns_cmp_eq_u32 s47, 0xff\ns_cbranch_scc1 L_e_pub")
    a(f"L_e_w0:\ns_nop 0\ns_or_b32 s{sBITS}, s{sBITS}, s{sDONE}\ns_and_b32 s{sBITS}, s{sBITS}, 0xff")
    a(f"L_e_pub:\ns_and_b32 s{sBITS}, s{sBITS}, 0xff00ff\nv_mov_b32 v33, s{sBITS}\nds_write_b32 v32, v33\ns_branch L_e_have")
    a(f"L_e_other:\nds_read_b32 v33, v32\ns_waitcnt lgkmcnt(0)\nv_readfirstlane_b32 s{sBITS}, v33\ns_nop 0\ns_bitcmp1_b32 s{sBITS}, 31\ns_cbranch_scc1 L_e_exit")
    a(f"L_e_have:\ns_andn2_b32 s47, s{sBITS}, s{sDONE}")
    for g in range(8):
        a(f"s_bitcmp1_b32 s47, {g}\ns_cbranch_scc0 L_e_s{g}")
        for x in ploads(SPR, 0, g, f"s{sSHOFF}"): a(x)
        a(f"L_e_s{g}:")
    if OPT['fend']:
        a("s_cmp_eq_u32 s83, 0\ns_cbranch_scc0 L_e_fd\ns_mov_b32 s83, 1")
        for x in fred_pk(FPE): a(x)
        a("L_e_fd:")
    a(f"s_or_b32 s{sDONE}, s{sDONE}, s{sBITS}\ns_and_b32 s47, s{sDONE}, 0xff\ns_cmp_eq_u32 s47, 0xff\ns_cbranch_scc1 L_e_all")
    a(f"s_cmp_lg_u32 s{sW}, 0\ns_cbranch_scc0 L_e_poll\ns_sleep 1\ns_branch L_e_other")
    a(f"L_e_poll:\ns_add_u32 s{sCNT}, s{sCNT}, 1\ns_cmp_gt_u32 s{sCNT}, {OPT['spin']}\ns_cbranch_scc1 L_e_abandon")
    PD = OPT.get('pdepth', 1)
    if PD == 1:
        a(f"s_sleep {OPT.get('psleep', 2)}\nbuffer_load_dword v34, off, s[{rDBG}:{rDBG+3}], s46 sc1\ns_waitcnt vmcnt(0)\nv_readfirstlane_b32 s{sBITS}, v34\ns_branch L_e_w0")
    else:
        a(f"s_sleep {OPT.get('psleep', 2)}\ns_and_b32 s47, s{sCNT}, {PD-1}")
        for k in range(PD):
            a(f"s_cmp_eq_u32 s47, {k}\ns_cbranch_scc0 L_e_p{k}\nbuffer_load_dword v{36+k}, off, s[{rDBG}:{rDBG+3}], s46 sc1\ns_waitcnt vmcnt({PD-1})\nv_readfirstlane_b32 s{sBITS}, v{36+(k+1)%PD}\ns_branch L_e_w0\nL_e_p{k}:")
    a(f"L_e_abandon:\ns_lshl_b32 s47, 0x10000, s{sG}\nv_mov_b32 v34, s47\ns_mov_b64 exec, 1\nbuffer_atomic_or v34, v{vSIG}, s[{rDBG}:{rDBG+3}], 0 offen sc0\ns_waitcnt vmcnt(0)\nv_readfirstlane_b32 s{sBITS}, v34\ns_mov_b64 exec, -1")
    a(f"s_nop 0\ns_and_b32 s47, s{sBITS}, 0xff\ns_cmp_eq_u32 s47, 0xff\ns_cbranch_scc1 L_e_w0")
    a(f"v_mov_b32 v33, 0x80000000\nds_write_b32 v32, v33\ns_waitcnt lgkmcnt(0)\ns_branch L_e_exit")
    a(f"L_e_all:\ns_lshr_b32 s{sTODO}, s{sBITS}, 16")
    stamp(a, 'allseen')
    if OPT.get('rt2'): a('s_memrealtime s[98:99]\ns_waitcnt lgkmcnt(0)')
    a(f"L_e_fin:\ns_cmp_eq_u32 s{sLATE}, 0\ns_cbranch_scc1 L_e_nolate")
    for g in range(8):
        for x in ploads(FPL, 1, g, f"s{sSHOFF}"): a(x)
    for x in xloads(): a(x)
    a("s_waitcnt vmcnt(0)")
    for x in fred_pk(FPL): a(x)
    a("L_e_nolate:\ns_mov_b32 s44, 0xffff0000\ns_waitcnt vmcnt(0)")
    if OPT.get('rt2'): a('s_memrealtime s[96:97]\ns_waitcnt lgkmcnt(0)')
    for fr in range(2):
        d = 64 + 8*fr
        for n in range(8):
            r = SPR[fr] + 4*n
            for i in range(4):
                if n == 0: a(f"v_lshlrev_b32 v{d+2*i}, 16, v{r+i}\nv_and_b32 v{d+2*i+1}, s44, v{r+i}")
                else: a(f"v_lshlrev_b32 v{80+2*i}, 16, v{r+i}\nv_and_b32 v{81+2*i}, s44, v{r+i}")
            if n:
                for i in range(4): a(f"v_pk_add_f32 v[{d+2*i}:{d+2*i+1}], v[{d+2*i}:{d+2*i+1}], v[{80+2*i}:{81+2*i}]")
        a(f"s_add_u32 s0, s{sXOFF}, {fr*16384}")
        for e in range(2):
            xr_ = xregs[2*fr+e]
            for i in range(2): a(f"v_lshlrev_b32 v{80+2*i}, 16, v{xr_+i}\nv_and_b32 v{81+2*i}, 0xffff0000, v{xr_+i}")
            for i in range(4): a(f"v_fmac_f32 v{80+i}, v{d+4*e+i}, v{GV[8*fr+4*e+i]}")
            a(f"v_cvt_pk_bf16_f32 v{88+4*fr+2*e}, v80, v81\nv_cvt_pk_bf16_f32 v{89+4*fr+2*e}, v82, v83")
            a(f"buffer_store_dwordx2 v[{88+4*fr+2*e}:{89+4*fr+2*e}], v{vXO}, s[{rOUT}:{rOUT+3}], s0 offen offset:{32*e}{OPT.get('outflags', '')}")
    a(f"s_cmp_eq_u32 s{sTODO}, 0\ns_cbranch_scc1 L_e_exit")
    a(f"s_ff1_i32_b32 s47, s{sTODO}\ns_bitset0_b32 s{sTODO}, s47\ns_mov_b32 s{sLATE}, 1")
    for x in share_offsets("s47"): a(x)
    for g in range(8):
        for x in ploads(SPR, 0, g, f"s{sSHOFF}"): a(x)
    a("s_branch L_e_fin\nL_e_exit:")

def flag_off(d):
    return [f"s_lshl_b32 s{d}, s{sRB}, 3", f"s_add_u32 s{d}, s{d}, s{sG}", f"s_lshl_b32 s{d}, s{d}, 2", f"s_add_u32 s{d}, s{d}, s{sW}", f"s_lshl_b32 s{d}, s{d}, 2", f"s_add_u32 s{d}, s{d}, 0x2000000"]

def end_phase_flags(a):
    for x in fred_pk(FPE): a(x)
    sWX = 83
    a("v_mov_b32 v32, 0\nv_mov_b32 v33, 0\nv_mov_b32 v36, 1\nv_mov_b32 v48, 0\nv_mov_b32 v49, 0\nv_mov_b32 v50, 0\nv_mov_b32 v51, 0")
    for x in flag_off(47): a(x)
    a(f"s_lshl_b32 s46, s{sRB}, 7\ns_lshr_b32 s0, s{sG}, 1\ns_lshl_b32 s0, s0, 2\ns_add_u32 s46, s46, s0\ns_add_u32 s82, s46, 0x2000000\ns_lshl_b32 s46, s{sRB}, 3")
    a(f"s_cmp_lg_u32 s{sW}, 0\ns_cbranch_scc1 L_e_nz\nds_write_b32 v32, v33\nL_e_nz:")
    a(f"s_waitcnt vmcnt(0)\ns_mov_b64 exec, 1\nbuffer_store_dword v36, off, s[{rWS}:{rWS+3}], s47 sc1\ns_mov_b64 exec, -1\ns_waitcnt lgkmcnt(0)\ns_barrier")
    stamp(a, 'drained')
    if OPT.get('rt2'): a('s_memrealtime s[80:81]\ns_waitcnt lgkmcnt(0)\ns_mov_b32 s94, s80')
    a(f"s_mov_b32 s{sDONE}, 0\ns_mov_b32 s{sTODO}, 0\ns_mov_b32 s{sCNT}, 0\nv_mov_b32 v35, 0")
    a(f"s_cmp_eq_u32 s{sW}, 0\ns_cbranch_scc1 L_e_poll1\ns_cmp_eq_u32 s{sW}, 1\ns_cbranch_scc0 L_e_other")
    a(f"s_lshl_b32 s47, 1, s{sG}\nv_mov_b32 v35, s47\ns_mov_b64 exec, 1\nbuffer_atomic_or v35, v{vSIG}, s[{rDBG}:{rDBG+3}], 0 offen sc0\ns_mov_b64 exec, -1")
    a(f"L_e_other:\nds_read_b32 v33, v32\ns_waitcnt lgkmcnt(0)\nv_readfirstlane_b32 s{sBITS}, v33\ns_nop 0\ns_bitcmp1_b32 s{sBITS}, 31\ns_cbranch_scc1 L_e_gaveup")
    a(f"L_e_have:\ns_andn2_b32 s47, s{sBITS}, s{sDONE}")
    for g in range(8):
        a(f"s_bitcmp1_b32 s47, {g}\ns_cbranch_scc0 L_e_s{g}")
        for x in ploads(SPR, 0, g, f"s{sSHOFF}"): a(x)
        a(f"L_e_s{g}:")
    a(f"s_or_b32 s{sDONE}, s{sDONE}, s{sBITS}\ns_cmp_eq_u32 s{sDONE}, 0xff\ns_cbranch_scc1 L_e_all")
    a(f"s_cmp_lg_u32 s{sW}, 0\ns_cbranch_scc0 L_e_poll\ns_sleep 1\ns_branch L_e_other")
    a(f"L_e_poll:\ns_add_u32 s{sCNT}, s{sCNT}, 1\ns_cmp_gt_u32 s{sCNT}, {OPT['spin']}\ns_cbranch_scc1 L_e_abandon\ns_sleep {OPT.get('psleep', 2)}")
    a(f"L_e_poll1:\ns_cmp_eq_u32 s{sLATE}, 0\ns_cbranch_scc0 L_e_polld")
    PD = OPT.get('pdepth', 1)
    a(f"s_mov_b64 exec, 0xff\ns_and_b32 s47, s{sCNT}, {PD-1}")
    for k in range(PD):
        a(f"s_cmp_eq_u32 s47, {k}\ns_cbranch_scc0 L_e_p{k}\nbuffer_load_dword v{48+k}, v{vL16}, s[{rWS}:{rWS+3}], s82 offen sc1\ns_waitcnt vmcnt({PD-1})\nv_cmp_eq_u32 vcc, 1, v{48+(k+1)%PD}\ns_branch L_e_pq\nL_e_p{k}:")
    a(f"L_e_pq:\ns_nop 1\ns_mov_b64 exec, -1\ns_or_b32 s{sBITS}, vcc_lo, s{sDONE}\ns_lshl_b32 s47, 1, s{sG}\ns_or_b32 s{sBITS}, s{sBITS}, s47\ns_and_b32 s{sBITS}, s{sBITS}, 0xff\ns_branch L_e_pub")
    a(f"L_e_polld:\nbuffer_load_dword v34, off, s[{rDBG}:{rDBG+3}], s46 sc1\ns_waitcnt vmcnt(0)\nv_readfirstlane_b32 s{sBITS}, v34")
    a(f"L_e_w0:\ns_nop 0\ns_and_b32 s{sBITS}, s{sBITS}, 0xff")
    a(f"L_e_pub:\nv_mov_b32 v33, s{sBITS}\nds_write_b32 v32, v33\ns_branch L_e_have")
    a(f"L_e_abandon:\ns_lshl_b32 s47, 0x10000, s{sG}\nv_mov_b32 v34, s47\ns_mov_b64 exec, 1\nbuffer_atomic_or v34, v{vSIG}, s[{rDBG}:{rDBG+3}], 0 offen sc0\ns_waitcnt vmcnt(0)\nv_readfirstlane_b32 s{sBITS}, v34\ns_mov_b64 exec, -1")
    a(f"s_nop 0\ns_and_b32 s47, s{sBITS}, 0xff\ns_cmp_eq_u32 s47, 0xff\ns_cbranch_scc1 L_e_w0")
    a(f"v_mov_b32 v33, 0x80000000\nds_write_b32 v32, v33\ns_waitcnt lgkmcnt(0)\ns_branch L_e_exit")
    a(f"L_e_all:\ns_mov_b32 s{sWX}, 99")
    stamp(a, 'allseen')
    if OPT.get('rt2'): a('s_memrealtime s[98:99]\ns_waitcnt lgkmcnt(0)')
    a(f"L_e_fin:\ns_cmp_eq_u32 s{sLATE}, 0\ns_cbranch_scc1 L_e_nolate")
    for g in range(8):
        for x in ploads(FPL, 1, g, f"s{sSHOFF}"): a(x)
    for x in xloads(): a(x)
    a("s_waitcnt vmcnt(0)")
    for x in fred_pk(FPL): a(x)
    a(f's_mov_b32 s82, s44' if False else 's_nop 0')
    a("L_e_nolate:\ns_waitcnt vmcnt(0)")
    if OPT.get('rt2'): a('s_memrealtime s[96:97]\ns_waitcnt lgkmcnt(0)')
    for fr in range(2):
        d = 64 + 8*fr
        for n in range(8):
            r = SPR[fr] + 4*n
            for i in range(4):
                if n == 0: a(f"v_lshlrev_b32 v{d+2*i}, 16, v{r+i}\nv_and_b32 v{d+2*i+1}, 0xffff0000, v{r+i}")
                else: a(f"v_lshlrev_b32 v{80+2*i}, 16, v{r+i}\nv_and_b32 v{81+2*i}, 0xffff0000, v{r+i}")
            if n:
                for i in range(4): a(f"v_pk_add_f32 v[{d+2*i}:{d+2*i+1}], v[{d+2*i}:{d+2*i+1}], v[{80+2*i}:{81+2*i}]")
        a(f"s_add_u32 s0, s{sXOFF}, {fr*16384}")
        for e in range(2):
            xr_ = xregs[2*fr+e]
            for i in range(2): a(f"v_lshlrev_b32 v{80+2*i}, 16, v{xr_+i}\nv_and_b32 v{81+2*i}, 0xffff0000, v{xr_+i}")
            for i in range(4): a(f"v_fmac_f32 v{80+i}, v{d+4*e+i}, v{GV[8*fr+4*e+i]}")
            a(f"v_cvt_pk_bf16_f32 v{88+4*fr+2*e}, v80, v81\nv_cvt_pk_bf16_f32 v{89+4*fr+2*e}, v82, v83")
            a(f"buffer_store_dwordx2 v[{88+4*fr+2*e}:{89+4*fr+2*e}], v{vXO}, s[{rOUT}:{rOUT+3}], s0 offen offset:{32*e}{OPT.get('outflags', '')}")
    a(f"s_branch L_e_duty\nL_e_gaveup:\ns_waitcnt vmcnt(0)\ns_mov_b32 s{sWX}, 99\nL_e_duty:")
    a(f"s_cmp_eq_u32 s{sW}, 1\ns_cbranch_scc0 L_e_exit")
    a(f"s_cmp_eq_u32 s{sWX}, 99\ns_cbranch_scc0 L_e_next")
    a(f"v_readfirstlane_b32 s47, v35\ns_lshl_b32 s0, 1, s{sG}\ns_nop 0\ns_or_b32 s0, s0, s47\ns_and_b32 s0, s0, 0xff\ns_cmp_eq_u32 s0, 0xff\ns_cbranch_scc0 L_e_exit")
    a(f"s_bfe_u32 s{sTODO}, s47, 0x80010\ns_mov_b32 s{sWX}, 3")
    a(f"L_e_next:\ns_add_u32 s{sWX}, s{sWX}, 1\ns_cmp_lt_u32 s{sWX}, 4\ns_cbranch_scc1 L_e_same")
    a(f"s_cmp_eq_u32 s{sTODO}, 0\ns_cbranch_scc1 L_e_exit")
    a(f"s_ff1_i32_b32 s82, s{sTODO}\ns_bitset0_b32 s{sTODO}, s82\ns_mov_b32 s{sWX}, 0")
    a(f"L_e_same:\ns_mov_b32 s{sLATE}, 1")
    for x in share_offsets("s82", sWX): a(x)
    for g in range(8):
        for x in ploads(SPR, 0, g, f"s{sSHOFF}"): a(x)
    a("s_branch L_e_fin\nL_e_exit:")

def fallback():
    a = Prog()
    a("L_fallback:")
    M = [64 + qb for qb in range(4)]; AL = [68 + qb for qb in range(4)]; TM = [72 + 2*qb for qb in range(4)]
    FK, FV = 80, 88
    a(f"s_waitcnt vmcnt(0) lgkmcnt(0)\ns_mov_b32 s{sLATE}, 1")
    o1, o2 = attn_addr_ops()
    KA2 = 96; VA2 = [100 + i for i in range(8)]
    for x in o1:
        for s in range(4): x = x.replace(f"v_lshl_add_u32 v{vKA+s},", f"v_lshl_add_u32 v{KA2+s},")
        a(x)
    for x in o2:
        for db in range(8): x = x.replace(f"v_lshl_add_u32 v{vVAl[db]}, v{vT+3}, 5", f"v_lshl_add_u32 v{VA2[db]}, v{vT+3}, 5")
        a(x)
    for r in [KA2 + s for s in range(4)] + VA2: a(f"v_add_u32 v{r}, s83, v{r}")
    a(f"v_lshrrev_b32 v{vT}, 8, v{vL16}\nv_bfe_u32 v{vT+1}, v{vL16}, 4, 4")
    for part in range(4):
        for i in range(2):
            a(f"v_add_u32 v{vT+2}, {8*part + 4*i}, v{vT}\nv_and_b32 v{vT+2}, 15, v{vT+2}\nv_xor_b32 v{vT+2}, v{vT+2}, v{vT+1}\nv_lshlrev_b32 v{vT+2}, 4, v{vT+2}\nv_add_u32 v{vT+3}, {8*part}, v{vT}\nv_lshl_add_u32 v{FK+2*part+i}, v{vT+3}, 8, v{vT+2}")
            a(f"v_add_u32 v{vT+2}, {4*i}, v{vT}\nv_lshlrev_b32 v{vT+2}, 1, v{vT+2}\nv_xor_b32 v{vT+2}, v{vT+2}, v{vT+1}\nv_lshlrev_b32 v{vT+2}, 4, v{vT+2}\nv_lshl_add_u32 v{FV+2*part+i}, v{vT+3}, 8, v{vT+2}")
    for qb in range(4): a(f"v_mov_b32 v{M[qb]}, 0xff7fffff\nv_mov_b32 v{vL+qb}, 0")
    for i in range(128): a(f"v_accvgpr_write_b32 a{aO+i}, 0")
    a(f"s_mov_b32 s80, 0\ns_add_u32 s81, s83, {LB}")
    a("L_fb_loop:")
    for part in range(4):
        a(f"s_add_u32 m0, s81, {part*4096}\ns_nop 0")
        a(f"buffer_load_dwordx4 v{FK+2*part}, s[{rK}:{rK+3}], s80 offen lds\nbuffer_load_dwordx4 v{FK+2*part+1}, s[{rK}:{rK+3}], s80 offen offset:1024 lds")
        a(f"buffer_load_dwordx4 v{FV+2*part}, s[{rV}:{rV+3}], s80 offen offset:2048 lds\nbuffer_load_dwordx4 v{FV+2*part+1}, s[{rV}:{rV+3}], s80 offen offset:3072 lds")
    a("s_waitcnt vmcnt(0)")
    for x in kreads(0):
        for s in range(4): x = x.replace(f", v{vKA+s} ", f", v{KA2+s} ")
        a(x)
    a("s_waitcnt lgkmcnt(0)")
    for db in range(8):
        for jj in range(2): a(f"ds_read_b64_tr_b16 a[{aVF+db*4+2*jj}:{aVF+db*4+2*jj+1}], v{VA2[db]} offset:{jj*8192}")
    for x in qk(0, '0'): a(x)
    a("s_nop 7\ns_waitcnt lgkmcnt(0)")
    for qb in range(4):
        b0 = vS[0] + qb*8; T = TM[qb]
        a(f"v_max3_f32 v{T}, v{b0}, v{b0+1}, v{b0+2}\nv_max3_f32 v{T}, v{T}, v{b0+3}, v{b0+4}\nv_max3_f32 v{T}, v{T}, v{b0+5}, v{b0+6}\nv_max3_f32 v{T}, v{T}, v{b0+7}, v{M[qb]}")
        xreduce(a, T, 'v_max_f32', T + 1)
        a(f"v_sub_f32 v{AL[qb]}, v{M[qb]}, v{T}\nv_mov_b32 v{M[qb]}, v{T}\nv_exp_f32 v{AL[qb]}, v{AL[qb]}")
        for i in range(8): a(f"v_sub_f32 v{b0+i}, v{b0+i}, v{T}")
        for i in range(8): a(f"v_exp_f32 v{b0+i}, v{b0+i}")
        a(f"v_mul_f32 v{vL+qb}, v{vL+qb}, v{AL[qb]}")
        for i in range(8): a(f"v_add_f32 v{vL+qb}, v{vL+qb}, v{b0+i}")
        for i in range(4): a(f"v_cvt_pk_bf16_f32 v{vP[0]+qb*4+i}, v{b0+2*i}, v{b0+2*i+1}")
        for db in range(8):
            o = aO + (db*4 + qb)*4
            for i in range(4): a(f"v_accvgpr_read_b32 v{vT+i}, a{o+i}")
            for i in range(4): a(f"v_mul_f32 v{vT+i}, v{vT+i}, v{AL[qb]}")
            for i in range(4): a(f"v_accvgpr_write_b32 a{o+i}, v{vT+i}")
    a("s_nop 1")
    for x in pv(0, False, 0): a(x)
    a("s_nop 7\ns_add_u32 s80, s80, 8192\ns_cmp_lt_u32 s80, 0x80000\ns_cbranch_scc1 L_fb_loop")
    for qb in range(4): xreduce(a, vL + qb, 'v_add_f32', vT)
    a("s_branch L_fb_ret")
    return a

def final_kernel():
    a = Prog()
    a("final_kernel:")
    a("s_cmp_ge_u32 s2, 512\ns_cbranch_scc1 L_fin_end")
    if OPT['timing']: a("s_memrealtime s[30:31]")
    a("s_load_dwordx2 s[4:5], s[0:1], 0\ns_load_dwordx2 s[6:7], s[0:1], 72\ns_load_dwordx2 s[8:9], s[0:1], 88")
    a("v_lshrrev_b32 v2, 6, v0\nv_and_b32 v0, 63, v0\nv_readfirstlane_b32 s3, v2\nv_lshlrev_b32 v1, 4, v0")
    a("s_lshl_b32 s10, s2, 2\ns_nop 2\ns_add_u32 s10, s10, s3")
    a("s_waitcnt lgkmcnt(0)")
    srd(a, 12, 4, 2048*1024); srd(a, 16, 6, 2048*1024); srd(a, 20, 8, 0x2000000)
    a("s_lshl_b32 s11, s10, 10")
    for t in range(2):
        for g in range(8):
            a(f"s_add_u32 s24, s11, {t*0x1000000 + g*0x200000}")
            r = 8 + (t*8 + g)*4
            a(f"buffer_load_dwordx4 v[{r}:{r+3}], v1, s[20:23], s24 offen ; @T:l{t}{g}")
    a("s_lshr_b32 s25, s10, 6\ns_lshl_b32 s25, s25, 16\ns_and_b32 s26, s10, 3\ns_lshl_b32 s26, s26, 14\ns_add_u32 s25, s25, s26")
    a("s_bfe_u32 s26, s10, 0x40002\ns_lshl_b32 s26, s26, 6\ns_add_u32 s25, s25, s26")
    a("v_and_b32 v2, 15, v0\nv_lshlrev_b32 v2, 10, v2\nv_lshrrev_b32 v3, 4, v0\nv_lshl_add_u32 v2, v3, 3, v2")
    a("buffer_load_dwordx2 v[4:5], v2, s[12:15], s25 offen ; @T:x\nbuffer_load_dwordx2 v[6:7], v2, s[12:15], s25 offen offset:32 ; @T:x")
    acc = [72, 80]
    for t in range(2):
        for g in range(8):
            r = 8 + (t*8 + g)*4
            a(f"s_waitcnt vmcnt(@l{t}{g})")
            for i in range(4):
                if g == 0:
                    a(f"v_lshlrev_b32 v{acc[t]+2*i}, 16, v{r+i}\nv_and_b32 v{acc[t]+2*i+1}, 0xffff0000, v{r+i}")
                else:
                    a(f"v_lshlrev_b32 v88, 16, v{r+i}\nv_and_b32 v89, 0xffff0000, v{r+i}\nv_pk_add_f32 v[{acc[t]+2*i}:{acc[t]+2*i+1}], v[{acc[t]+2*i}:{acc[t]+2*i+1}], v[88:89]")
    for i in range(8): a(f"v_mul_f32 v{8+i}, {hx(-math.log2(math.e))}, v{80+i}")
    for i in range(8): a(f"v_exp_f32 v{8+i}, v{8+i}")
    for i in range(8): a(f"v_add_f32 v{8+i}, 1.0, v{8+i}")
    for i in range(8): a(f"v_rcp_f32 v{8+i}, v{8+i}")
    for i in range(8): a(f"v_mul_f32 v{8+i}, v{8+i}, v{80+i}")
    a("s_waitcnt vmcnt(@x)")
    for i in range(4): a(f"v_lshlrev_b32 v{16+2*i}, 16, v{4+i}\nv_and_b32 v{17+2*i}, 0xffff0000, v{4+i}")
    for i in range(8): a(f"v_fmac_f32 v{16+i}, v{8+i}, v{72+i}")
    for i in range(4): a(f"v_cvt_pk_bf16_f32 v{4+i}, v{16+2*i}, v{17+2*i}")
    a("buffer_store_dwordx2 v[4:5], v2, s[16:19], s25 offen\nbuffer_store_dwordx2 v[6:7], v2, s[16:19], s25 offen offset:32")
    if OPT['timing']:
        a("s_waitcnt vmcnt(0)\ns_memrealtime s[32:33]\ns_waitcnt lgkmcnt(0)\ns_mov_b32 s22, 0x4000000\ns_lshl_b32 s11, s10, 3\ns_add_u32 s11, s11, 0x3100000")
        a("v_mov_b32 v4, s30\nv_mov_b32 v5, s32\nv_mov_b32 v2, 0\nbuffer_store_dwordx2 v[4:5], v2, s[20:23], s11 offen")
    a("L_fin_end:\ns_endpgm")
    return a

def kd(name, vgpr, acc):
    return f""".section .rodata,"a"
.p2align 6
.amdhsa_kernel {name}
  .amdhsa_next_free_vgpr {vgpr}
  .amdhsa_next_free_sgpr 102
  .amdhsa_accum_offset {acc}
  .amdhsa_group_segment_fixed_size 0
  .amdhsa_kernarg_size 96
  .amdhsa_user_sgpr_count 2
  .amdhsa_user_sgpr_kernarg_segment_ptr 1
  .amdhsa_system_sgpr_workgroup_id_x 1
.end_amdhsa_kernel
"""

def build(opts=None):
    if opts: OPT.update(opts)
    m = main_kernel(); f = final_kernel()
    lo, hi = m.loop
    if hasattr(m, 'brpos'): m.L[m.brpos - 1] += " ; @BR"
    L1 = resolve_waits(m.L)
    dbl = m.L[:hi] + m.L[lo:hi] + m.L[hi:]
    L2 = resolve_waits(dbl)
    def loopseg(L, k):
        idx = [i for i, x in enumerate(L) if x.startswith('L_attn_loop')][0] + 1
        n = len(L2) - len(L1)
        return L[idx + k*n: idx + (k+1)*n]
    assert loopseg(L2, 0) == loopseg(L2, 1), "loop waits differ between trips"
    assert L2[-200:] == L1[-200:]
    probs = check_stream(L2, 'main')
    FB = resolve_waits(m.fb.L); probs += check_stream(FB + FB, 'fallback')
    ID = resolve_waits(m.idle.L); probs += check_stream(ID, 'idle')
    F1 = resolve_waits(f.L); probs += check_stream(F1, 'final')
    strip = lambda L: [re.sub(r'\s*;.*', '', x) + ("\ns_cbranch_scc1 L_attn_head" if '@BR' in x else "") for x in L]
    txt = HEADER
    if OPT['single']:
        name = KNAME + '_kernel'
        txt += "; @launch grid=(256,1,1) block=(256,1,1) lds=163840\n"
    else:
        name = 'main_kernel'
        txt += "; @launch kernel=main_kernel grid=(256,1,1) block=(256,1,1) lds=163840\n; @launch kernel=final_kernel grid=(512,1,1) block=(256,1,1) lds=0\n"
    txt += '.amdgcn_target "amdgcn-amd-amdhsa--gfx950"\n.text\n'
    L1[0] = name + ':'
    txt += f".globl {name}\n.p2align 8\n.type {name},@function\n" + "\n".join(strip(L1)) + "\n" + "\n".join(strip(ID)) + "\nL_code_end:\n" + "\n".join(strip(FB)) + "\n"
    if not OPT['single']:
        txt += ".globl final_kernel\n.p2align 8\n.type final_kernel,@function\n" + "\n".join(strip(F1)) + "\n"
    txt += kd(name, 512, 256) + ('' if OPT['single'] else kd('final_kernel', 96, 96))
    return txt, probs

if __name__ == '__main__':
    opts = eval(sys.argv[2]) if len(sys.argv) > 2 else None
    txt, probs = build(opts)
    open(sys.argv[1], 'w').write(txt)
    print(len(txt), 'bytes;', len(probs), 'hazard problems')
    for p in probs[:30]: print(p)
```

```python
import sys, re, math, struct
from asmlib import Ins, check_stream, cost
from sp import SP

KNAME = 'recurrent_scan__gqa_block_cached__geglu_ffn__prompt'
MF = 'v_mfma_f32_16x16x32_bf16'
def f2u(x): return struct.unpack('<I', struct.pack('<f', x))[0]
def hx(x): return '0x%08x' % f2u(x)

OPT = dict(barnofill=1, fend=0, late2=1, npre=16, ocap=16, lnm=1, early=0, lnevery=16, map=4, xdma=1, psleep=8, single=1, spin=30000, msum=2, stflags=' sc1', prefetch=1, codepf=1, timing=0, stamps=[0,1,2,3,4,5,6,7], fthresh=24, filler_cap=48)

sW, sG, sRB, sNU, sU0 = 3, 4, 5, 6, 7
sRBX = sRB
rK, rV, rWG, rWU, rWQ, rWD, rWO, rX, rWS = 8, 12, 16, 20, 24, 28, 32, 36, 40
rOUT, rDBG = 64, 68
sLATE, sSHOFF, sXOFF, sDONE, sTODO, sBITS = 61, 62, 63, 84, 85, 1
sKO = 44
sKVM0, sCNT, sRING, sJ, sOFF0, sOFF1, sROT = 48, 49, 50, 51, 52, 53, 54
sCOG, sCOQ, sCOD, sCOD3, sCOO, sSLAB = 55, 56, 57, 58, 59, 60
sT = 72
sTS = 86
vFA, vL16 = 0, 1
vWA, vWI = 2, 6
vDG, vDQ, vDO = 10, 14, 18
vDK, vDV = 22, 24
vT = 26
vGB, vPF = 30, 31
vW = 32
bA, bB, bC = 64, 128, 192
vKA = 10
vVAl = [2, 3, 4, 5, 14, 15, 16, 17]
vQ = bB; vS = [bC, bC + 32]; vP = [32, 48]
vNEGM, vONES, vLM, vL = 96, 112, 116, 124
aO, aKF, aVF = 0, 192, 224
RING = 0
LB = 98304

HEADER = """; Kernarg layout (96 bytes, ptrs only, base s[0:1]):
;   0 A_x (1,2048,512) bf16 | 8 A_k_cache (1,8,2048,128) bf16 | 16 A_v_cache (1,8,2048,128) bf16 | 24 A_wq (512,4096) bf16
; One fused kernel, 256 workgroups x 4 waves (one per SIMD, 512 registers), workgroup = (64-row block rb, kv head g):
; Written with my own generator script (register allocation, MFMA-gap scheduling and s_waitcnt counting).
"""

class Prog:
    def __init__(self): self.L = []
    def __call__(self, s):
        for x in s.split('\n'):
            x = x.strip()
            if x: self.L.append(x)

def srd(a, r, lo, size, add=None, sub=None):
    a(f"s_mov_b32 s{r}, s{lo}\ns_mov_b32 s{r+1}, s{lo+1}")
    if add: a(f"s_add_u32 s{r}, s{r}, {add}\ns_addc_u32 s{r+1}, s{r+1}, 0")
    if sub: a(f"s_sub_u32 s{r}, s{r}, {sub}\ns_subb_u32 s{r+1}, s{r+1}, 0")
    a(f"s_mov_b32 s{r+2}, {size}\ns_mov_b32 s{r+3}, 0x20000")

def stampl(name):
    if OPT['timing'] and name in OPT['stamps']:
        i = OPT['stamps'].index(name)
        return [f"s_memtime s[{sTS+2*i}:{sTS+2*i+1}]", "s_waitcnt lgkmcnt(0)"]
    return []
def stamp(a, name):
    for x in stampl(name): a(x)

def resolve_waits(lines):
    parsed = []
    for l in lines:
        t = l.split(';')[0].strip()
        parsed.append(None if (not t or t.endswith(':') or t.startswith('.')) else Ins(t))
    out = list(lines)
    vmq = []; dsq = []
    for i, l in enumerate(lines):
        I = parsed[i]
        if I is None: continue
        tag = None
        m = re.search(r'@T:(\w+)', l)
        if m: tag = m.group(1)
        if I.op == 's_waitcnt':
            parts = []
            m = re.search(r'vmcnt\(([^)]*)\)', l)
            if m:
                x = m.group(1)
                if x.startswith('@'):
                    idx = [k for k, e in enumerate(vmq) if e[0] in x[1:].split('|')]
                    n = len(vmq) - 1 - idx[-1] if idx else None
                else: n = int(x)
                if n is not None:
                    n = min(n, 63); parts.append(f"vmcnt({n})")
                    while len(vmq) > n: vmq.pop(0)
            m = re.search(r'lgkmcnt\(([^)]*)\)', l)
            if m:
                ns = []
                for x in m.group(1).split('+'):
                    if x == '@auto':
                        need = -1
                        for j in range(i + 1, len(lines)):
                            J = parsed[j]
                            if J is None: continue
                            if J.op == 's_waitcnt' and ('@auto' in lines[j] or 'lgkmcnt(0)' in lines[j]): break
                            tch = set(J.r) | set(J.w)
                            for k, e in enumerate(dsq):
                                if tch & e[1]: need = max(need, k)
                        if need >= 0: ns.append(len(dsq) - 1 - need)
                    elif x.startswith('@'):
                        idx = [k for k, e in enumerate(dsq) if e[0] == x[1:]]
                        if idx: ns.append(len(dsq) - 1 - idx[-1])
                    else: ns.append(int(x))
                if ns:
                    n = min(min(ns), 15); parts.append(f"lgkmcnt({n})")
                    while len(dsq) > n: dsq.pop(0)
            out[i] = ("s_waitcnt " + " ".join(parts) + (" ; @BR" if '@BR' in l else "")) if parts else None
        elif I.kind in ('dsr', 'dsw'): dsq.append((tag, set(I.w)))
        elif I.kind == 'smem':
            dsq.append((tag, set(I.w))); dsq.append((tag, set(I.w)))
        elif I.kind in ('vld', 'vst', 'dma') and '@X' not in l: vmq.append((tag, set(I.w)))
    return [x for x in out if x is not None]

class Panel:
    def __init__(self, name, srd, dv, rs, co, acc, first, bfrag, inter, rot, row0=0):
        self.name = name; self.srd = srd; self.dv = dv; self.rs = rs; self.co = co; self.acc = acc
        self.first = first; self.bfrag = bfrag; self.inter = inter; self.rot = rot; self.row0 = row0

def panel_dma(P, idx):
    sl = idx % 3
    s0 = []
    if P.rot:
        s0 += [f"s_add_u32 s{sJ}, s{sJ}, 1", f"s_and_b32 s{sJ}, s{sJ}, 7", f"s_mul_i32 s{sOFF0}, s{sJ}, {64*P.rs}", f"s_add_u32 s{sOFF0}, s{sOFF0}, {P.co}"]
        if P.row0: s0.append(f"s_add_u32 s{sOFF0}, s{sOFF0}, {P.row0}")
    elif P.name[0] == 'O':
        s0 += [f"s_add_u32 s{sOFF0}, s{44 + P.j % 4}, {P.row0}"]
    else:
        s0 += [f"s_add_u32 s{sOFF0}, {P.co}, {P.row0}"]
    s0 += [f"s_add_u32 m0, s{sRING}, {sl*8192}"]
    s1 = [f"s_add_u32 s{sOFF1}, s{sOFF0}, {32*P.rs}", f"s_add_u32 m0, s{sRING}, {sl*8192 + 4096}"]
    d = []
    for i in range(8):
        so = sOFF0 if i < 4 else sOFF1
        off = f" offset:{1024*(i%4)}" if i % 4 else ""
        d.append(f"buffer_load_dwordx4 v{P.dv + i%4}, s[{P.srd}:{P.srd+3}], s{so} offen{off}{OPT.get('wfl', '')} lds ; @T:w{idx}")
    return s0, s1, d

def wreads(P, idx, nb):
    sl = idx % 3; out = []
    for ks in range(2):
        for jj in range(2):
            r = vW + nb*8 + ks*4 + jj*2
            if P.inter: ad = vWI + nb; off = sl*8192 + ks*4096 + jj*2048
            else: ad = vWA + (nb ^ (2*jj)); off = sl*8192 + ks*4096 + jj*512
            out.append(f"ds_read_b64_tr_b16 v[{r}:{r+1}], v{ad} offset:{off} ; @T:wr{idx}_{nb}")
    return out

def panel_mfmas(P):
    out = []
    for nb in range(4):
        for qb in range(4):
            for ks in range(2):
                d = P.acc + (nb*4 + qb)*4; w = vW + nb*8 + ks*4; b = P.bfrag(ks, qb)
                c = '0' if (P.first and ks == 0) else f"v[{d}:{d+3}]"
                out.append(f"{MF} v[{d}:{d+3}], v[{w}:{w+3}], a[{b}:{b+3}], {c}")
    return out

def emit_stream(a, panels, base, fillers, extra_mem, extra_shadow, nxt=None, must_empty=(), quiet=None, cap=None, late=None):
    allp = panels + (nxt or [])
    q = []; pend = []; lastst = -99
    for pos, P in enumerate(panels):
        idx = base + pos
        if pos in must_empty: assert not q, (pos, len(q))
        q += fillers.get(pos, [])
        if idx == 16 and OPT.get('skip', 0): a("L_join16:")
        stamp(a, f'p{idx}')
        ms = panel_mfmas(P)
        shadow = [[] for _ in range(32)]; mem = [[] for _ in range(32)]; dma = {}
        r3 = wreads(P, idx, 3)
        mem[0] += r3[:2]; mem[1] += r3[2:]
        hasn = pos + 1 < len(allp)
        if hasn:
            N = allp[pos+1]
            shadow[7].append(f"s_waitcnt vmcnt(@w{idx+1}) lgkmcnt(@auto+@wr{idx}_3)")
            for nb in range(3):
                r = wreads(N, idx+1, nb); g = 8*nb + 8
                mem[g] += r[:2]; mem[g+2] += r[2:]
        else:
            shadow[7].append(f"s_waitcnt lgkmcnt(@auto)")
        shadow[15].append("s_waitcnt lgkmcnt(@auto)"); shadow[23].append("s_waitcnt lgkmcnt(@auto)"); shadow[31].append("s_waitcnt lgkmcnt(@auto)")
        if pos + 3 < len(allp):
            s0, s1, d = panel_dma(allp[pos+3], idx+3)
            for k, x in enumerate(s0): shadow[8 - len(s0) + k - (1 if 8 - len(s0) + k <= 7 else 0)].append(x)
            gaps = [9, 11, 13, 17, 19, 21, 25, 27]
            shadow[16].append(s1[0]); shadow[18].append(s1[1])
            for x, g in zip(d, gaps): dma[g] = x
        for (p2, g), x in extra_mem.items():
            if p2 == pos:
                assert g not in dma, (pos, g)
                mem[g] += x
        for (p2, g), x in extra_shadow.items():
            if p2 == pos: shadow[g] += x
        budget = (cap or {}).get(pos, OPT['filler_cap'])
        free = [g for g in range(32) if g not in dma]
        base_room = sum(max(0, 2 - len(mem[g])) for g in free)
        want = min(budget, sum(cost(x) for x in q))
        extra = max(0, want - base_room); acc = 0.0
        for g in range(32):
            a(ms[g])
            for x in shadow[g]: a(x)
            if g in dma:
                a(dma[g]); continue
            for x in mem[g]:
                if x: a(x)
            room = 2 - len(mem[g])
            acc += extra / len(free)
            if late and (pos, g) in late:
                q += late[(pos, g)]
            while q:
                x = q[0]
                if x.startswith('ds_') or x.startswith('buffer'):
                    pend.append(q.pop(0)); continue
                c = cost(x)
                if pend and (set(Ins(x.split(';')[0]).w) & set(sum((Ins(y.split(';')[0]).r for y in pend), []))): break
                if c <= room: room -= c
                elif (c - room) <= acc + (0.75 if room > 0 and extra > 0 else 0): acc -= (c - max(room, 0)); room = 0
                else: break
                a(q.pop(0))
            if pend and g + 1 < 32 and (g + 1) not in dma and len(mem[g+1]) <= (1 if quiet else 0) and ((g + 1) in (quiet or OPT.get('quiet', (4, 6, 22, 28, 30))) or not dma):
                if pend[0].startswith('buffer') and pos*32 + g - lastst < OPT.get('stgap', 4): pass
                else:
                    if pend[0].startswith('buffer'): lastst = pos*32 + g
                    mem[g+1] += [pend.pop(0), None]
        if (pos + 1) in must_empty and not q:
            for x in pend: a(x)
            pend = []
        q = pend + q; pend = []
    return q

def gelu_stage1(G):
    A = -2.0 * math.log2(math.e) * math.sqrt(2.0 / math.pi)
    ops = []
    for blk in range(16):
        x = [G + blk*4 + i for i in range(4)]; t = [vT + i for i in range(4)]
        ops += [f"v_mul_f32 v{t[i]}, v{x[i]}, v{x[i]}" for i in range(4)]
        ops += [f"v_fmaak_f32 v{t[i]}, v{vGB}, v{t[i]}, {hx(A)}" for i in range(4)]
        ops += [f"v_mul_f32 v{t[i]}, v{t[i]}, v{x[i]}" for i in range(4)]
        ops += [f"v_exp_f32 v{t[i]}, v{t[i]}" for i in range(4)]
        ops += [f"v_add_f32 v{t[i]}, 1.0, v{t[i]}" for i in range(4)]
        ops += [f"v_rcp_f32 v{t[i]}, v{t[i]}" for i in range(4)]
        ops += [f"v_mul_f32 v{x[i]}, v{x[i]}, v{t[i]}" for i in range(4)]
    return ops

def geglu_stage2(G, U):
    mul = [f"v_mul_f32 v{U+i}, v{G+i}, v{U+i}" for i in range(64)]
    ops = []
    for sp in range(2):
        for qb in range(4):
            b0 = U + ((2*sp)*4 + qb)*4; b1 = U + ((2*sp+1)*4 + qb)*4
            ops += [f"v_cvt_pk_bf16_f32 v{b0}, v{b0}, v{b0+1}", f"v_cvt_pk_bf16_f32 v{b0+1}, v{b0+2}, v{b0+3}",
                    f"v_cvt_pk_bf16_f32 v{b0+2}, v{b1}, v{b1+1}", f"v_cvt_pk_bf16_f32 v{b0+3}, v{b1+2}, v{b1+3}"]
            if OPT.get('hglob', 0): ops += [f"buffer_store_dwordx4 v[{b0}:{b0+3}], v{vL16}, s[{rWS}:{rWS+3}], s{61 + sp} offen offset:{qb*1024} ; @T:hs"]
            else: ops += [f"ds_write_b128 v{vPF}, v[{b0}:{b0+3}] offset:{(sp*4 + qb)*1024} ; @T:hw"]
    return mul, ops

def qpack(acc, half):
    c = math.log2(math.e) / math.sqrt(128.0)
    ops = []; late = []
    for sp in range(2):
        for qb in range(4):
            b0 = acc + ((2*sp)*4 + qb)*4; b1 = acc + ((2*sp+1)*4 + qb)*4
            for b in (b0, b1):
                ops += [f"v_mul_f32 v{b+i}, {hx(c)}, v{b+i}" for i in range(4)]
            ops += late; late = []
            d = vQ + (qb*4 + 2*half + sp)*4
            ops += [f"v_cvt_pk_bf16_f32 v{d}, v{b0}, v{b0+1}", f"v_cvt_pk_bf16_f32 v{d+1}, v{b0+2}, v{b0+3}",
                    f"v_cvt_pk_bf16_f32 v{d+2}, v{b1}, v{b1+1}", f"v_cvt_pk_bf16_f32 v{d+3}, v{b1+2}, v{b1+3}"]
            late = [f"v_permlane32_swap_b32 v{d}, v{d+2}", f"v_permlane32_swap_b32 v{d+1}, v{d+3}", "s_nop 0",
                    f"v_permlane16_swap_b32 v{d}, v{d+2}", f"v_permlane16_swap_b32 v{d+1}, v{d+3}"]
    return ops + ["s_nop 1"] + late

def slab_store(acc, t, hf):
    ops = []
    for sp in range(2):
        for qb in range(4):
            b0 = acc + ((2*sp)*4 + qb)*4; b1 = acc + ((2*sp+1)*4 + qb)*4
            ops += [f"v_cvt_pk_bf16_f32 v{b0}, v{b0}, v{b0+1}", f"v_cvt_pk_bf16_f32 v{b0+1}, v{b0+2}, v{b0+3}",
                    f"v_cvt_pk_bf16_f32 v{b0+2}, v{b1}, v{b1+1}", f"v_cvt_pk_bf16_f32 v{b0+3}, v{b1+2}, v{b1+3}"]
            f = hf*8 + sp*4 + qb
            so = sT + (t*4 + f // 4)
            ops += [f"buffer_store_dwordx4 v[{b0}:{b0+3}], v{vL16}, s[{rWS}:{rWS+3}], s{so} offen offset:{(f%4)*1024}{OPT['stflags']} ; @T:st"]
    return ops

def park(acc, dst):
    ops = []
    for sp in range(2):
        for qb in range(4):
            b0 = acc + ((2*sp)*4 + qb)*4; b1 = acc + ((2*sp+1)*4 + qb)*4
            ops += [f"v_cvt_pk_bf16_f32 v{b0}, v{b0}, v{b0+1}", f"v_cvt_pk_bf16_f32 v{b0+1}, v{b0+2}, v{b0+3}",
                    f"v_cvt_pk_bf16_f32 v{b0+2}, v{b1}, v{b1+1}", f"v_cvt_pk_bf16_f32 v{b0+3}, v{b1+2}, v{b1+3}"]
            ops += [f"v_accvgpr_write_b32 a{dst + (sp*4+qb)*4 + i}, v{b0+i}" for i in range(4)]
    return ops
def parked_store(f):
    return f"buffer_store_dwordx4 a[{128+4*f}:{131+4*f}], v{vL16}, s[{rWS}:{rWS+3}], s{sT + 4 + f//4} offen offset:{(f%4)*1024}{OPT['stflags']}"

def qk(b, cinit='negm'):
    out = []
    for qb in range(4):
        for kb in range(2):
            for s in range(4):
                r = vS[b] + (qb*2 + kb)*4; d = f"v[{r}:{r+3}]"
                c = d if s else (f"v[{vNEGM+4*qb}:{vNEGM+4*qb+3}]" if cinit == 'negm' else '0')
                k = aKF + (kb*4 + s)*4; q = vQ + (qb*4 + s)*4
                out.append(f"{MF} {d}, a[{k}:{k+3}], v[{q}:{q+3}], {c}")
    return out
def pv(b, first=False, nsum=None, aVF=aVF):
    nsum = OPT['msum'] if nsum is None else nsum
    out = []
    for qb in range(4):
        p = vP[b] + qb*4
        for db in range(8):
            o = aO + (db*4 + qb)*4; v = aVF + db*4
            c = '0' if first else f"a[{o}:{o+3}]"
            out.append(f"{MF} a[{o}:{o+3}], a[{v}:{v+3}], v[{p}:{p+3}], {c}")
        if qb < nsum:
            l = vLM + 4*qb
            out.append(f"{MF} v[{l}:{l+3}], v[{vONES}:{vONES+3}], v[{p}:{p+3}], {'0' if first else f'v[{l}:{l+3}]'}")
    return out
def kreads(sl):
    return [f"ds_read_b128 a[{aKF+(kb*4+s)*4}:{aKF+(kb*4+s)*4+3}], v{vKA+s} offset:{sl*16384 + kb*8192}" for kb in range(2) for s in range(4)]
def vreads(sl, aVF=aVF):
    return [f"ds_read_b64_tr_b16 a[{aVF+db*4+2*jj}:{aVF+db*4+2*jj+1}], v{vVAl[db]} offset:{sl*16384 + jj*8192}" for db in range(8) for jj in range(2)]
def kvdma(sl, kidx, vidx, dok=True, dov=True):
    sc = [f"s_add_u32 m0, s{sKVM0}, {sl*16384}"]; d = []
    if dok:
        ks = sKO + kidx % 4; kp = sKO + (kidx - 1) % 4
        sc += [f"s_add_u32 s{ks}, s{kp}, 8192", f"s_and_b32 s{ks}, s{ks}, 0x7ffff"]
        d += [f"buffer_load_dwordx4 v{vDK}, s[{rK}:{rK+3}], s{ks} offen{OPT.get('kvfl', '')} lds ; @T:kv{sl}",
              f"buffer_load_dwordx4 v{vDK+1}, s[{rK}:{rK+3}], s{ks} offen offset:1024{OPT.get('kvfl', '')} lds ; @T:kv{sl}"]
    if dov:
        vs = sKO + vidx % 4
        d += [f"buffer_load_dwordx4 v{vDV}, s[{rV}:{rV+3}], s{vs} offen offset:2048{OPT.get('kvfl', '')} lds ; @T:kv{sl}",
              f"buffer_load_dwordx4 v{vDV+1}, s[{rV}:{rV+3}], s{vs} offen offset:3072{OPT.get('kvfl', '')} lds ; @T:kv{sl}"]
    return sc, d
def smq(b):
    nsum = OPT['msum']; E = []; Sg = []
    for qb in range(4):
        for i in range(4):
            s0 = vS[b] + qb*8 + 2*i
            E += [f"v_exp_f32 v{s0}, v{s0}", f"v_exp_f32 v{s0+1}, v{s0+1}"]; k = len(E)
            if qb >= nsum:
                Sg += [(k-1, f"v_add_f32 v{vL+qb}, v{vL+qb}, v{s0}"), (k, f"v_add_f32 v{vL+qb}, v{vL+qb}, v{s0+1}")]
            Sg += [(k, f"v_cvt_pk_bf16_f32 v{vP[b]+qb*4+i}, v{s0}, v{s0+1}")]
    return E, Sg

def check_p(m, *queues):
    rd = set(Ins(m).ab)
    for q in queues:
        for x in (q or []): assert not (set(Ins(x[1]).w) & rd), (m, x)

def period(p, carry, dok=True, dov=True, first=False, kread=True, xdma=None, alsowait=None, nofill=(), kvg=([2, 3, 4], [27, 39, 47, 59]), vnext=None):
    sl = p % 4
    ms = qk((p+1) % 2) + pv(p % 2, first)
    N = len(ms); H = 32
    shadow = [None]*N
    shadow[N-1] = f"s_waitcnt vmcnt(@kv{(p+1)%4}{'|' + alsowait if alsowait else ''}) lgkmcnt(0)"
    shadow[H-1] = "s_waitcnt lgkmcnt(0)"
    shadow[0] = "s_barrier"
    mem = []
    vr = vreads(sl)
    for i, x in enumerate(vr): mem.append((1 + (i*24) // len(vr), x))
    if kread:
        kr = kreads(sl)
        for i, x in enumerate(kr): mem.append((33 + (i*24) // len(kr), x))
    if vnext:
        for i, x in enumerate(vnext): mem.append((33 + (i*26) // len(vnext), x))
    dmag = {}
    if dok or dov:
        sc, dd = kvdma((p + 3) % 4, p + 5, p + 3, dok, dov)
        for x, g in zip(sc, kvg[0]): shadow[g] = x
        for x, g in zip(dd, kvg[1]): dmag[g] = x
    if xdma:
        for (g, x) in xdma:
            if x.startswith('buffer'):
                assert g not in dmag and not shadow[g]; dmag[g] = x
            else:
                assert not shadow[g] and g not in dmag, (g, x); shadow[g] = x
    mem.sort(key=lambda t: t[0])
    st = 34
    cE, cS, cdone = carry
    nE, nS = smq((p+1) % 2)
    lines = []
    E = list(cE); Sq = list(cS); edone = cdone
    mi = 0
    extra = max(0, 64 + len(mem) + len(nS) + 2*len(dmag) + 2*len(nofill) - 2*N)
    acc = 0.0; old_S = None
    for g in range(N):
        check_p(ms[g], old_S, Sq if g <= st else None)
        lines.append(ms[g])
        if shadow[g]: lines.append(shadow[g])
        if g == st:
            assert not E, (p, len(E))
            old_S = Sq; E = nE; Sq = nS; edone = 0
        acc += extra / N
        if g in dmag:
            lines.append(dmag[g]); continue
        if g in nofill: continue
        room = 2
        if acc >= 1.0 - 1e-9: room += 1; acc -= 1.0
        gm = []; gv = []
        e_prev = edone
        left = (st - g) if g < st else (N - g + st)
        navail = (1 if (mi < len(mem) and mem[mi][0] <= g) else 0) + (len(old_S) if old_S else 0) + sum(1 for x in Sq if x[0] <= e_prev)
        if E and (len(E) * 2 >= left or navail < 2):
            gv.append(E.pop(0)); room -= 2; edone += 1
        while room > 0:
            if mi < len(mem) and mem[mi][0] <= g: gm.append(mem[mi][1]); mi += 1; room -= 1
            elif old_S: gv.append(old_S.pop(0)[1]); room -= 1
            elif Sq and Sq[0][0] <= e_prev: gv.append(Sq.pop(0)[1]); room -= 1
            elif mi < len(mem) and mem[mi][0] <= g + 3: gm.append(mem[mi][1]); mi += 1; room -= 1
            else: break
        lines += gm + gv
    assert mi == len(mem) and not old_S, (mi, len(mem), old_S)
    return lines, (E, Sq, edone)

def xreduce(a, reg, op, tmp):
    a(f"v_mov_b32 v{tmp}, v{reg}\ns_nop 1\nv_permlane16_swap_b32 v{reg}, v{tmp}\ns_nop 1\n{op} v{reg}, v{reg}, v{tmp}")
    a(f"v_mov_b32 v{tmp}, v{reg}\ns_nop 1\nv_permlane32_swap_b32 v{reg}, v{tmp}\ns_nop 1\n{op} v{reg}, v{reg}, v{tmp}")

def attn_addr_ops():
    o = []
    t0, t1, t2, t3 = vT, vT+1, vT+2, vT+3
    o += [f"v_bfe_u32 v{t0}, v{vL16}, 4, 4", f"v_lshrrev_b32 v{t1}, 8, v{vL16}"]
    o += [f"v_lshrrev_b32 v{t2}, 3, v{t0}", f"v_lshlrev_b32 v{t2}, 12, v{t2}", f"v_and_b32 v{t3}, 7, v{t0}", f"v_lshlrev_b32 v{t3}, 8, v{t3}",
          f"v_add_u32 v{t2}, v{t2}, v{t3}", f"v_add_u32 v{t2}, {LB}, v{t2}"]
    for s in range(4):
        o += [f"v_add_u32 v{t3}, {4*s}, v{t1}", f"v_xor_b32 v{t3}, v{t3}, v{t0}", f"v_lshl_add_u32 v{vKA+s}, v{t3}, 4, v{t2}"]
    o2 = []
    o2 += [f"v_bfe_u32 v{t0}, v{vL16}, 6, 3", f"v_lshrrev_b32 v{t2}, 9, v{vL16}", f"v_lshlrev_b32 v{t2}, 12, v{t2}",
           f"v_lshl_add_u32 v{t2}, v{t0}, 8, v{t2}", f"v_add_u32 v{t2}, {LB + 2048}, v{t2}", f"v_bfe_u32 v{t3}, v{vL16}, 4, 2", f"v_lshl_add_u32 v{t2}, v{t3}, 3, v{t2}"]
    for db in range(8):
        o2 += [f"v_xor_b32 v{t3}, {db}, v{t0}", f"v_lshl_add_u32 v{vVAl[db]}, v{t3}, 5, v{t2}"]
    return o, o2

def pf_addr(st, vt):
    if OPT['map'] == 8:
        return [f"s_lshl_b32 {st}, s{sRB}, 2", f"s_add_u32 {st}, {st}, s{sW}", f"s_lshl_b32 {st}, {st}, 12", f"v_and_b32 v{vPF}, 0x1f0, v{vL16}", f"v_lshlrev_b32 v{vPF}, 3, v{vPF}",
                f"v_lshrrev_b32 v{vt}, 9, v{vL16}", f"v_lshl_add_u32 v{vPF}, v{vt}, 6, v{vPF}", f"v_add_u32 v{vPF}, {st}, v{vPF}"]
    if OPT.get('pfh') and st == 's0':
        return [f"s_and_b32 {st}, s{sRB}, 15", f"s_lshl_b32 {st}, {st}, 2", f"s_add_u32 {st}, {st}, s{sW}", f"s_lshl_b32 {st}, {st}, 13", f"v_and_b32 v{vPF}, 0x1f0, v{vL16}", f"v_lshlrev_b32 v{vPF}, 3, v{vPF}",
                f"v_lshrrev_b32 v{vt}, 9, v{vL16}", f"v_lshl_add_u32 v{vPF}, v{vt}, 6, v{vPF}", f"v_add_u32 v{vPF}, {st}, v{vPF}", "s_add_u32 s80, s81, 4096"]
    return [f"s_and_b32 {st}, s{sRB}, 15", f"s_lshl_b32 {st}, {st}, 2", f"s_add_u32 {st}, {st}, s{sW}", f"s_lshl_b32 {st}, {st}, 13", f"v_lshlrev_b32 v{vPF}, 3, v{vL16}", f"v_add_u32 v{vPF}, {st}, v{vPF}"]

def interleave(a, base, extra, every, start=0):
    k = 0
    for n, x in enumerate(base):
        a(x)
        if n >= start and (n + 1 - start) % every == 0 and k < len(extra) and not x.startswith('s_memtime'):
            for y in extra[k]: a(y)
            k += 1
    for g in extra[k:]:
        for y in g: a(y)

def unpack_sum(dst, srcs, t0):
    ops = []
    for n, r in enumerate(srcs):
        for i in range(4):
            if n == 0:
                ops += [f"v_lshlrev_b32 v{dst+2*i}, 16, v{r+i}", f"v_and_b32 v{dst+2*i+1}, 0xffff0000, v{r+i}"]
            else:
                ta, tb = t0 + 2*(i % 2), t0 + 2*(i % 2) + 1
                ops += [f"v_lshlrev_b32 v{ta}, 16, v{r+i}", f"v_and_b32 v{tb}, 0xffff0000, v{r+i}",
                        f"v_add_f32 v{dst+2*i}, v{dst+2*i}, v{ta}", f"v_add_f32 v{dst+2*i+1}, v{dst+2*i+1}, v{tb}"]
    return ops

def silu_ops(r, n, tmp):
    ops = []
    for b in range(0, n, 4):
        ops += [f"v_mul_f32 v{tmp+i}, {hx(-math.log2(math.e))}, v{r+b+i}" for i in range(4)]
        ops += [f"v_exp_f32 v{tmp+i}, v{tmp+i}" for i in range(4)]
        ops += [f"v_add_f32 v{tmp+i}, 1.0, v{tmp+i}" for i in range(4)]
        ops += [f"v_rcp_f32 v{tmp+i}, v{tmp+i}" for i in range(4)]
        ops += [f"v_mul_f32 v{r+b+i}, v{r+b+i}, v{tmp+i}" for i in range(4)]
    return ops

def share_offsets(sh, sW=sW):
    return [f"s_lshl_b32 s{sSHOFF}, s{sRB}, 3", f"s_add_u32 s{sSHOFF}, s{sSHOFF}, {sh}", f"s_lshl_b32 s{sSHOFF}, s{sSHOFF}, 2", f"s_add_u32 s{sSHOFF}, s{sSHOFF}, s{sW}", f"s_lshl_b32 s{sSHOFF}, s{sSHOFF}, 11",
            f"s_lshl_b32 s{sXOFF}, {sh}, 1", f"s_lshr_b32 s0, s{sW}, 1", f"s_add_u32 s{sXOFF}, s{sXOFF}, s0", f"s_lshl_b32 s{sXOFF}, s{sXOFF}, 6",
            f"s_and_b32 s0, s{sW}, 1", f"s_lshl_b32 s0, s0, 15", f"s_add_u32 s{sXOFF}, s{sXOFF}, s0", f"s_lshl_b32 s0, s{sRB}, 16", f"s_add_u32 s{sXOFF}, s{sXOFF}, s0"]

def ploads(dst, t, g, base):
    return [f"s_add_u32 s0, {base}, {t*0x1000000 + g*0x200000}",
            f"buffer_load_dwordx4 v[{dst[0]+g*4}:{dst[0]+g*4+3}], v{vL16}, s[{rWS}:{rWS+3}], s0 offen sc1 ; @T:pl",
            f"buffer_load_dwordx4 v[{dst[1]+g*4}:{dst[1]+g*4+3}], v{vL16}, s[{rWS}:{rWS+3}], s0 offen offset:1024 sc1 ; @T:pl"]
FPE, FPL, SPR = (192, 224), (192, 224), (128, 160)

vOA = 120
vDK2 = 12
vXO, vSIG, vXD, vGV = 10, 11, 2, 128
xregs = [2, 4, 12, 14]
def xloads():
    o = []
    for i in range(2):
        o.append(f"s_add_u32 s0, s{sXOFF}, {i*16384}")
        for e in range(2):
            r = xregs[2*i+e]
            o.append(f"buffer_load_dwordx2 v[{r}:{r+1}], v{vXO}, s[{rX}:{rX+3}], s0 offen offset:{32*e} ; @T:xl")
    return o
def f_reduce_ops():
    ops = []
    ops += unpack_sum(vGA, [128 + 4*g for g in range(8)], vT)
    ops += unpack_sum(vGA + 8, [160 + 4*g for g in range(8)], vT)
    ops += silu_ops(vGA, 16, vT)
    return ops
vGA = 96

def main_kernel():
    global vGA, vL
    vLA = 124 if OPT['msum'] <= 2 else vGB - 3
    vL = 124 if OPT['msum'] <= 2 else vONES
    a = Prog()
    a(f"main_kernel:")
    a("s_cmp_ge_u32 s2, 256\ns_cbranch_scc1 L_main_end")
    stamp(a, 0)
    if OPT['timing']: a("s_memrealtime s[100:101]\ns_waitcnt lgkmcnt(0)")
    a("s_load_dwordx16 s[64:79], s[0:1], 0\ns_load_dwordx8 s[80:87], s[0:1], 64") if not OPT['timing'] else a("s_load_dwordx16 s[64:79], s[0:1], 0\ns_load_dwordx4 s[80:83], s[0:1], 64\ns_load_dwordx2 s[84:85], s[0:1], 80\ns_load_dwordx2 s[44:45], s[0:1], 88")
    WSP = 86 if not OPT['timing'] else 44
    a(f"v_lshrrev_b32 v2, 6, v0\nv_and_b32 v0, 63, v0\nv_readfirstlane_b32 s{sW}, v2")
    a(f"v_lshlrev_b32 v{vL16}, 4, v0")
    if OPT['map'] == 8:
        a(f"s_and_b32 s{sG}, s2, 7\ns_lshr_b32 s{sRB}, s2, 3")
    else:
        a(f"s_and_b32 s{sG}, s2, 3\ns_lshl_b32 s{sG}, s{sG}, 1\ns_bfe_u32 s{sRB}, s2, 0x10003\ns_add_u32 s{sG}, s{sG}, s{sRB}")
        a(f"s_bfe_u32 s{sRB}, s2, 0x10002\ns_lshl_b32 s{sRB}, s{sRB}, 4\ns_lshr_b32 s{sROT}, s2, 4\ns_add_u32 s{sRB}, s{sRB}, s{sROT}")
    if OPT['xdma']:
        a(f"s_and_b32 s{sROT}, s{sRB}, 3\ns_lshl_b32 s{sROT}, s{sROT}, 1")
        a(f"v_lshrrev_b32 v6, 4, v0\nv_and_b32 v5, 15, v0")
        for rg in range(4):
            a(f"v_add_u32 v7, {4*rg}, v6\nv_xor_b32 v7, v7, v5\nv_lshlrev_b32 v7, 4, v7\nv_add_u32 v8, {3*rg}, v6\nv_lshl_add_u32 v{32+rg}, v8, 10, v7")
        a(f"s_lshl_b32 s62, s{sRB}, 16\ns_lshl_b32 s63, s{sW}, 14\ns_add_u32 s62, s62, s63\ns_add_u32 s60, s63, {LB}\ns_lshl_b32 s63, s{sROT}, 7")
    else:
        a(f"s_and_b32 s{sROT}, s{sRB}, 7")
        a(f"v_and_b32 v5, 15, v0\nv_lshlrev_b32 v5, 10, v5\nv_lshrrev_b32 v6, 4, v0\nv_lshl_add_u32 v5, v6, 4, v5")
        a(f"s_lshl_b32 s62, s{sRB}, 16\ns_lshl_b32 s63, s{sW}, 14\ns_add_u32 s62, s62, s63\ns_lshl_b32 s63, s{sROT}, 7")
    for x in pf_addr('s61', 3): a(x)
    if OPT['codepf']:
        a("s_getpc_b64 s[46:47]\nL_pc0:")
        a(f"v_min_u32 v7, L_code_end-L_pc0-4, v{vPF}")
        a(f"global_load_dword v{vGB}, v7, s[46:47] ; @T:pf")
    a("s_waitcnt lgkmcnt(0)")
    stamp(a, 'karg')
    srd(a, rX, 64, 2048*1024)
    if OPT['xdma']:
        for c4 in range(4):
            a(f"s_add_u32 s61, s63, {c4*256}\ns_and_b32 s61, s61, 0x3ff\ns_add_u32 m0, s60, {c4*4096}\ns_add_u32 s61, s61, s62")
            for rg in range(4): a(f"buffer_load_dwordx4 v{32+rg}, s[{rX}:{rX+3}], s61 offen offset:{rg*1024} lds ; @T:x{c4}")
        for sx in range(4):
            a(f"v_add_u32 v7, {4*sx}, v6\nv_xor_b32 v7, v7, v5\nv_lshlrev_b32 v7, 4, v7\nv_lshl_add_u32 v7, v5, 8, v7\nv_add_u32 v{50+sx}, s60, v7")
    else:
        for k in range(16):
            a(f"s_add_u32 s61, s63, {k*64}\ns_and_b32 s61, s61, 0x3ff\ns_add_u32 s61, s61, s62")
            a(f"buffer_load_dwordx4 v[{bA+4*k}:{bA+4*k+3}], v5, s[{rX}:{rX+3}], s61 offen ; @T:x{k}")
    stamp(a, 'xissued')
    a(f"s_add_u32 s62, s{sG}, s{sRB}\ns_and_b32 s62, s62, 1\ns_sub_u32 s{sNU}, 4, s62")
    a(f"s_lshr_b32 s62, s{sG}, 1\ns_mul_i32 s{sU0}, s62, 7\ns_sub_u32 s63, 7, s{sNU}\ns_and_b32 s61, s{sG}, 1\ns_mul_i32 s63, s63, s61\ns_add_u32 s{sU0}, s{sU0}, s63")
    a(f"s_add_u32 s62, s{sU0}, s{sW}\ns_lshl_b32 s{sCOG}, s62, 7\ns_cmp_lt_u32 s{sW}, s{sNU}\ns_cselect_b32 s{sCOG}, s{sCOG}, 0x40000000")
    a(f"s_lshl_b32 s62, s{sG}, 10\ns_lshl_b32 s63, s{sW}, 8\ns_add_u32 s{sCOQ}, s62, s63")
    a(f"s_lshl_b32 s62, s{sU0}, 16\ns_add_u32 s{sCOD}, s62, s63\ns_cmp_eq_u32 s{sNU}, 4\ns_cselect_b32 s{sCOD3}, s{sCOD}, 0x40000000")
    a(f"s_lshl_b32 s62, s{sG}, 19\ns_add_u32 s{sCOO}, s62, s63")
    a(f"s_mul_i32 s{sRING}, s{sW}, 24576\ns_lshl_b32 s{sKVM0}, s{sW}, 12\ns_add_u32 s{sKVM0}, s{sKVM0}, {LB}")
    srd(a, rWG, 76, 512*3584)
    a("v_lshrrev_b32 v6, 3, v0\nv_bfe_u32 v7, v0, 4, 1\nv_lshlrev_b32 v7, 1, v7\nv_bfe_u32 v8, v0, 5, 1\nv_lshl_add_u32 v7, v8, 2, v7\nv_and_b32 v8, 7, v0\nv_xor_b32 v7, v7, v8")
    a("v_lshlrev_b32 v7, 4, v7\nv_xor_b32 v8, 64, v7")
    for dv, rs in ((vDG, 3584), (vDQ, 8192), (vDO, 1024)):
        a(f"v_mul_u32_u24 v9, {rs}, v6")
        for j in range(4):
            a(f"v_add_u32 v{dv+j}, v9, v{7 + (j & 1)}")
            if j: a(f"v_add_u32 v{dv+j}, {j*(8*rs - 1024)}, v{dv+j}")
    X = lambda ks0: (lambda ks, qb: ((ks0 + ks)*4 + qb)*4)
    mk = lambda name, r, dv, rs, co, acc, n, inter, rot, row0: [Panel(name, r, dv, rs, co(j), acc, j == 0, X(2*j), inter, rot, row0(j)) for j in range(n)]
    pG = mk('G', rWG, vDG, 3584, lambda j: f"s{sCOG}", bA, 8, False, True, lambda j: 0)
    pU = mk('U', rWU, vDG, 3584, lambda j: f"s{sCOG}", bB, 8, False, True, lambda j: 0)
    pQa = mk('Qa', rWQ, vDQ, 8192, lambda j: f"s{sCOQ}", bC, 8, False, True, lambda j: 0)
    pQb = mk('Qb', rWQ, vDQ, 8192, lambda j: f"s{sCOQ}", bA, 8, False, True, lambda j: 128)
    pD0 = mk('D0', rWD, vDO, 1024, lambda j: f"s{sCOD3 if j == 3 else sCOD}", bC, 4, True, False, lambda j: j*65536)
    pD1 = mk('D1', rWD, vDO, 1024, lambda j: f"s{sCOD3 if j == 3 else sCOD}", bA, 4, True, False, lambda j: j*65536 + 128)
    pO0 = mk('O0', rWO, vDO, 1024, lambda j: None, bB, 8, True, False, lambda j: (j//4)*65536)
    pO1 = mk('O1', rWO, vDO, 1024, lambda j: None, bA, 8, True, False, lambda j: (j//4)*65536 + OPT.get('o1off', 128))
    oreg = lambda j, ks, qb: 32*j + (ks*4 + qb)*4
    for j in range(8):
        for P in (pO0[j], pO1[j]): P.j = j; P.bfrag = (lambda j: (lambda ks, qb: oreg(j, ks, qb)))(j)
    S1 = pG + pU + pQa + pQb + pD0 + pD1
    a(f"s_sub_u32 s{sJ}, s{sROT}, 1")
    for i in range(OPT.get('early', 1)):
        s0, s1, d = panel_dma(S1[i], i)
        for x in s0 + ["s_nop 0"] + d[:4] + s1 + ["s_nop 0"] + d[4:]: a(x)
    if OPT['prefetch']:
        srd(a, rWD, 80, 1792*1024)
        a(f"s_lshr_b32 s62, s{sG}, 1\ns_mul_i32 s62, s62, 7\ns_and_b32 s61, s{sG}, 1\ns_mul_i32 s61, s61, 3\ns_add_u32 s62, s62, s61\ns_lshl_b32 s62, s62, 16")
        a(f"v_cmp_gt_u32 vcc, 0x40000, v{vPF}\nv_mov_b32 v9, 0x40000000\ns_nop 0\nv_cndmask_b32 v9, v9, v{vPF}, vcc")
        a(f"v_mov_b32 v54, v9\ns_mov_b32 s44, s62") if not OPT['timing'] else a(f"v_mov_b32 v54, v9\ns_mov_b32 s46, s62")
    lndma = []
    late_dma = []
    if OPT.get('late2'):
        pass
    for i in range(OPT.get('early', 1), 3):
        s0, s1, d = panel_dma(S1[i], i)
        if i >= 3 - OPT.get('late2', 0):
            late_dma += s0 + ['s_nop 0'] + d[:4] + s1 + ['s_nop 0'] + d[4:]; continue
        lndma += [s0 + ["s_nop 0", d[0]]] + [[x] for x in d[1:4]] + [s1 + ["s_nop 0", d[4]]] + [[x] for x in d[5:]]
    if OPT['prefetch'] and not OPT.get('wdpos'): lndma += [[f"buffer_load_dword v{vGB}, v54, s[{rWD}:{rWD+3}], s{44 if not OPT['timing'] else 46} offen{' offset:64' if h else ''} ; @T:pf"] for h in range(OPT.get('pf2', 1))]
    stamp(a, 'dmaissued')
    srd(a, rWU, 78, 512*3584); srd(a, rWQ, 70, 512*8192); srd(a, rWO, 72, 4096*1024)
    if not OPT['prefetch']: srd(a, rWD, 80, 1792*1024)
    a(f"s_lshl_b32 s62, s{sG}, 19")
    srd(a, rK, 66, 0x80000, add='s62'); srd(a, rV, 68, 0x80800, add='s62', sub=2048)
    srd(a, rWS, WSP, 0x2900000 if (OPT.get('hglob') or OPT.get('flags')) else 0x2000000)
    srd(a, rOUT, 82, 2048*1024); srd(a, rDBG, 84, 256)
    a(f"s_lshl_b32 s81, s{sG}, 19\ns_lshl_b32 s82, s{sW}, 13\ns_lshl_b32 s83, s{sW}, 14")
    a(f"s_lshl_b32 s{sSLAB}, s{sG}, 5\ns_add_u32 s{sSLAB}, s{sSLAB}, s{sRB}\ns_lshl_b32 s{sSLAB}, s{sSLAB}, 2\ns_add_u32 s{sSLAB}, s{sSLAB}, s{sW}\ns_lshl_b32 s{sSLAB}, s{sSLAB}, 14")
    for t in range(2):
        for k in range(4): a(f"s_add_u32 s{sT+t*4+k}, s{sSLAB}, {t*0x1000000 + k*4096}")
    a("v_bfe_u32 v5, v0, 2, 2\nv_lshrrev_b32 v6, 4, v0\nv_and_b32 v7, 3, v0\nv_lshlrev_b32 v7, 3, v7")
    a(f"v_add_u32 v7, s{sRING}, v7")
    a("v_lshrrev_b32 v8, 1, v5\nv_and_b32 v9, 1, v6\nv_lshl_add_u32 v9, v9, 1, v8")
    a("v_lshl_add_u32 v26, v6, 3, v5\nv_lshl_add_u32 v26, v26, 7, v7")
    a("v_lshrrev_b32 v27, 1, v6\nv_xor_b32 v27, v27, v6\nv_and_b32 v27, 1, v27\nv_lshl_add_u32 v27, v27, 1, v8")
    a("v_lshl_add_u32 v28, v6, 2, v5\nv_lshl_add_u32 v28, v28, 7, v7")
    a(f"s_lshl_b32 s62, s{sW}, 3\nv_add_u32 v29, s62, v6\nv_and_b32 v5, 15, v0")
    for i in range(2):
        a(f"v_add_u32 v8, {4*i}, v29\nv_and_b32 v8, 15, v8\nv_xor_b32 v8, v8, v5\nv_lshlrev_b32 v8, 4, v8\nv_lshl_add_u32 v{vDK+i}, v29, 8, v8")
        a(f"v_add_u32 v8, {4*i}, v6\nv_lshlrev_b32 v8, 1, v8\nv_xor_b32 v8, v8, v5\nv_lshlrev_b32 v8, 4, v8\nv_lshl_add_u32 v{vDV+i}, v29, 8, v8")
    a("v_mov_b32 v29, v9")
    for nb in range(4):
        a(f"v_xor_b32 v{vWA+nb}, {nb}, v29\nv_lshl_add_u32 v{vWA+nb}, v{vWA+nb}, 5, v26")
        a(f"v_xor_b32 v{vWI+nb}, {nb}, v27\nv_lshl_add_u32 v{vWI+nb}, v{vWI+nb}, 5, v28")
    a(f"v_add_u32 v{vFA}, {LB}, v{vL16}")
    a(f"v_add_u32 v44, s83, v{vFA}")
    stamp(a, 'setup')
    F = bB
    if OPT['lnm']:
        b = Prog()
        b("s_mov_b32 s45, 0xffff0000" if not OPT['timing'] else "s_mov_b32 s47, 0xffff0000")
        MK = 45 if not OPT['timing'] else 47
        for i in range(4): b(f"v_mov_b32 v{32+i}, 0x3f803f80")
        b(f"v_bfe_u32 v45, v{vL16}, 4, 2\nv_bfe_u32 v46, v{vL16}, 6, 2\nv_lshrrev_b32 v47, 8, v{vL16}")
        b("s_waitcnt vmcnt(@x0)")
        for sx in range(4): b(f"ds_read_b128 v[{bA+4*sx}:{bA+4*sx+3}], v{50+sx} ; @T:q0")
        for c4 in range(4):
            if c4 < 3:
                b(f"s_waitcnt vmcnt(@x{c4+1})")
                for sx in range(4): b(f"ds_read_b128 v[{bA+16*(c4+1)+4*sx}:{bA+16*(c4+1)+4*sx+3}], v{50+sx} offset:{(c4+1)*4096} ; @T:q{c4+1}")
            b(f"s_waitcnt lgkmcnt(@q{c4})")
            for k in range(4*c4, 4*c4 + 4):
                x = f"v[{bA+4*k}:{bA+4*k+3}]"
                un = [[f"v_lshlrev_b32 v{F+2*i}, 16, v{bA+i}", f"v_and_b32 v{F+2*i+1}, s{MK}, v{bA+i}"] for i in range(4*k, 4*k+4)]
                last = (c4 == 3)
                b(f"{MF} v[36:39], v[32:35], {x}, {'0' if k == 0 else 'v[36:39]'}")
                if not last:
                    for y in un[0] + un[1]: b(y)
                b(f"{MF} v[40:43], {x}, {x}, {'0' if k == 0 else 'v[40:43]'}")
                if not last:
                    for y in un[2] + un[3]: b(y)
        late = [y for i in range(48, 64) for y in (f"v_lshlrev_b32 v{F+2*i}, 16, v{bA+i}", f"v_and_b32 v{F+2*i+1}, s{MK}, v{bA+i}")]
        for x in stampl(1): b(x)
        st = []
        st += ["v_cmp_eq_u32 vcc, 1, v45", None, None, "v_cndmask_b32 v40, v40, v41, vcc", "v_cmp_eq_u32 vcc, 2, v45", None, None, "v_cndmask_b32 v40, v40, v42, vcc",
               "v_cmp_eq_u32 vcc, 3, v45", None, None, "v_cndmask_b32 v40, v40, v43, vcc", "v_cmp_eq_u32 vcc, v46, v47", None, None, "v_cndmask_b32 v40, 0, v40, vcc"]
        st += [f"v_mul_f32 v36, {hx(1/512)}, v36", "v_mov_b32 v41, v40", "v_cvt_pk_bf16_f32 v37, v36, v36", None, "v_permlane16_swap_b32 v40, v41", "v_lshlrev_b32 v37, 16, v37", "v_add_f32 v40, v40, v41",
               "v_mov_b32 v41, v40", None, None, "v_permlane32_swap_b32 v40, v41", None, "v_add_f32 v40, v40, v41",
               f"v_mul_f32 v40, {hx(1/512)}, v40", "v_fma_f32 v40, -v36, v36, v40", "v_max_f32 v40, 0, v40",
               "v_cvt_pk_bf16_f32 v40, v40, v40", "v_lshlrev_b32 v40, 16, v40", f"v_add_f32 v40, {hx(1e-5)}, v40", "v_cvt_pk_bf16_f32 v40, v40, v40", "v_lshlrev_b32 v40, 16, v40",
               "v_sqrt_f32 v40, v40", None, "v_cvt_pk_bf16_f32 v40, v40, v40", "v_lshlrev_b32 v40, 16, v40", "v_rcp_f32 v42, v40", None, "v_mul_f32 v43, v37, v42"]
        for y in late[:10]: b(y)
        late = late[10:]
        for y in st:
            if y is None: b(late.pop(0) if late else "s_nop 0")
            else: b(y)
        for y in late: b(y)
        for k in range(16):
            for i in range(4*k, 4*k+4): b(f"v_pk_fma_f32 v[{F+2*i}:{F+2*i+1}], v[{F+2*i}:{F+2*i+1}], v[42:43], v[42:43] op_sel:[0,0,1] op_sel_hi:[1,0,1] neg_lo:[0,0,1] neg_hi:[0,0,1]")
            if k: b(f"ds_write_b128 v44, v[{bA+4*k-4}:{bA+4*k-1}] offset:{(k-1)*1024}")
            for i in range(4*k, 4*k+4): b(f"v_cvt_pk_bf16_f32 v{bA+i}, v{F+2*i}, v{F+2*i+1}")
        b(f"ds_write_b128 v44, v[{bA+60}:{bA+63}] offset:{15*1024}")
    else:
        b = Prog()
        for k in range(16):
            if OPT['xdma']:
                if k == 0:
                    b("s_waitcnt vmcnt(@x0)")
                    for sx in range(4): b(f"ds_read_b128 v[{bA+4*sx}:{bA+4*sx+3}], v{50+sx} ; @T:q0")
                if k % 4 == 0:
                    c4 = k // 4
                    if c4 < 3:
                        b(f"s_waitcnt vmcnt(@x{c4+1})")
                        for sx in range(4): b(f"ds_read_b128 v[{bA+16*(c4+1)+4*sx}:{bA+16*(c4+1)+4*sx+3}], v{50+sx} offset:{(c4+1)*4096} ; @T:q{c4+1}")
                    b(f"s_waitcnt lgkmcnt(@q{c4})")
            else: b(f"s_waitcnt vmcnt(@x{k})")
            for i in range(4*k, 4*k+4):
                b(f"v_lshlrev_b32 v{F+2*i}, 16, v{bA+i}\nv_and_b32 v{F+2*i+1}, 0xffff0000, v{bA+i}")
            for i in range(4*k, 4*k+4):
                if k == 0: b(f"v_mov_b32 v{32+2*i}, v{F+2*i}\nv_mov_b32 v{33+2*i}, v{F+2*i+1}")
                else: b(f"v_pk_add_f32 v[{32+2*(i%4)}:{33+2*(i%4)}], v[{32+2*(i%4)}:{33+2*(i%4)}], v[{F+2*i}:{F+2*i+1}]")
        for x in stampl(1): b(x)
        b("v_pk_add_f32 v[32:33], v[32:33], v[34:35]\nv_pk_add_f32 v[36:37], v[36:37], v[38:39]\nv_pk_add_f32 v[32:33], v[32:33], v[36:37]\nv_add_f32 v32, v32, v33")
        xreduce(b, 32, 'v_add_f32', 33)
        b(f"v_mul_f32 v32, {hx(1/512)}, v32\nv_cvt_pk_bf16_f32 v33, v32, v32\nv_lshlrev_b32 v34, 16, v33\nv_sub_f32 v40, v32, v34")
        for i in range(64):
            b(f"v_pk_add_f32 v[{F+2*i}:{F+2*i+1}], v[{F+2*i}:{F+2*i+1}], v[34:35] op_sel_hi:[1,0] neg_lo:[0,1] neg_hi:[0,1]")
            if i >= 2:
                j = i - 2; r = 46 + 2*(j % 4)
                b(f"v_pk_mul_f32 v[{r}:{r+1}], v[{F+2*j}:{F+2*j+1}], v[{F+2*j}:{F+2*j+1}]" if j < 4 else f"v_pk_fma_f32 v[{r}:{r+1}], v[{F+2*j}:{F+2*j+1}], v[{F+2*j}:{F+2*j+1}], v[{r}:{r+1}]")
        for j in (62, 63):
            r = 46 + 2*(j % 4); b(f"v_pk_fma_f32 v[{r}:{r+1}], v[{F+2*j}:{F+2*j+1}], v[{F+2*j}:{F+2*j+1}], v[{r}:{r+1}]")
        b("v_pk_add_f32 v[46:47], v[46:47], v[48:49]\nv_pk_add_f32 v[50:51], v[50:51], v[52:53]\nv_pk_add_f32 v[46:47], v[46:47], v[50:51]\nv_add_f32 v42, v46, v47")
        xreduce(b, 42, 'v_add_f32', 43)
        b(f"v_mul_f32 v42, {hx(1/512)}, v42\nv_fma_f32 v42, -v40, v40, v42\nv_max_f32 v42, 0, v42")
        rb16 = lambda r: f"v_cvt_pk_bf16_f32 v{r}, v{r}, v{r}\nv_lshlrev_b32 v{r}, 16, v{r}"
        b(rb16(42)); b(f"v_add_f32 v42, {hx(1e-5)}, v42"); b(rb16(42)); b("v_sqrt_f32 v42, v42\ns_nop 0"); b(rb16(42)); b("v_rcp_f32 v42, v42\ns_nop 0")
        for k in range(16):
            for i in range(4*k, 4*k+4): b(f"v_pk_mul_f32 v[{F+2*i}:{F+2*i+1}], v[{F+2*i}:{F+2*i+1}], v[42:43] op_sel_hi:[1,0]")
            if k: b(f"ds_write_b128 v44, v[{bA+4*k-4}:{bA+4*k-1}] offset:{(k-1)*1024}")
            for i in range(4*k, 4*k+4): b(f"v_cvt_pk_bf16_f32 v{bA+i}, v{F+2*i}, v{F+2*i+1}")
        b(f"ds_write_b128 v44, v[{bA+60}:{bA+63}] offset:{15*1024}")
    interleave(a, b.L, lndma, OPT.get('lnevery', 10), OPT.get('lnstart', 0))
    stamp(a, 'lndone')
    a("s_waitcnt vmcnt(@w0) lgkmcnt(0)\ns_barrier")
    stamp(a, 'lnbar')
    xr = lambda ks, qb, tag, lay: f"ds_read_b128 a[{(ks*4+qb)*4}:{(ks*4+qb)*4+3}], v{vFA} offset:{lay(ks, qb)*1024} ; @T:{tag}"
    layX = lambda ks, qb: qb*16 + ks
    layF = lambda ks, qb: ks*4 + qb
    def stream_head(P, idx, tag, lay, extra=()):
        for x in wreads(P, idx, 0): a(x)
        for ks in range(2):
            for qb in range(4): a(xr(ks, qb, tag, lay))
        for nb in (1, 2):
            for x in wreads(P, idx, nb): a(x)
        for x in extra: a(x)
        a("s_waitcnt lgkmcnt(@auto)")
    RG = [2, 3, 4, 5, 6, 12, 14, 20]
    def frag_reads(xm, pos, ks0, tag, lay):
        for k in range(8): xm.setdefault((pos, RG[k]), []).append(xr(ks0 + k % 2, k // 2, tag, lay))
    idle = Prog()
    if OPT.get('skip', 0):
        a(f"s_cmp_ge_u32 s{sW}, s{sNU}\ns_cbranch_scc1 L_idle")
        idle("L_idle:")
        for ks in range(16):
            for qb in range(4): idle(xr(ks, qb, 'xr', layX))
        for i in range(128): idle(f"v_mov_b32 v{bA+i}, 0")
        for i in range(4): idle(f"v_mov_b32 v{vT+i}, 1.0")
        idle(f"v_add_u32 v{vPF}, s82, v{vFA}\ns_add_u32 s{sJ}, s{sJ}, {(16 - (3 - OPT.get('late2', 0))) % 8}")
        idle("s_waitcnt vmcnt(0) lgkmcnt(0)")
        idle(f"v_mov_b32 v{vGB}, {hx(-2.0 * math.log2(math.e) * math.sqrt(2.0 / math.pi) * 0.044715)}\ns_barrier")
        for i in (16, 17, 18):
            s0, s1, d = panel_dma(S1[i], i)
            for x in s0 + ["s_nop 0"] + d[:4] + s1 + ["s_nop 0"] + d[4:]: idle(x)
        idle("s_waitcnt vmcnt(@w16)")
        for nb in range(3):
            for x in wreads(S1[16], 16, nb): idle(x)
        idle("s_waitcnt lgkmcnt(0)\ns_branch L_join16")
    a.idle = idle
    stream_head(S1[0], 0, 'xr', layX, late_dma)
    stamp(a, 2)
    fill = {}; xm = {}; xs = {}
    for j in range(7): frag_reads(xm, j, 2*j + 2, 'xr', layX)
    o1, o2 = attn_addr_ops()
    if OPT['prefetch'] and OPT.get('wdpos', 0) > 1:
        wp = OPT['wdpos']; SW = 44 if not OPT['timing'] else 46
        xs[(wp, 28)] = [f"s_and_b32 s0, s{sRB}, 15", f"s_lshl_b32 s0, s0, 2", f"s_add_u32 s0, s0, s{sW}", f"s_lshl_b32 s0, s0, 12", f"s_add_u32 s0, s0, s{SW}",
                        f"v_and_b32 v{vDK2}, 0x1f0, v{vL16}", f"v_lshlrev_b32 v{vDK2}, 3, v{vDK2}", f"v_lshrrev_b32 v{vDK2+1}, 9, v{vL16}", f"v_lshl_add_u32 v{vDK2}, v{vDK2+1}, 6, v{vDK2}"]
        xm[(wp, 30)] = [f"buffer_load_dword v{vDK2}, v{vDK2}, s[{rWD}:{rWD+3}], s0 offen", None]
    xs[(9, 0)] = ["s_barrier"]
    fill[8] = [f"v_add_u32 v{vPF}, s82, v{vFA}", f"v_mov_b32 v{vGB}, {hx(-2.0 * math.log2(math.e) * math.sqrt(2.0 / math.pi) * 0.044715)}"] + gelu_stage1(bA)
    g2a, g2b = geglu_stage2(bA, bB)
    if OPT.get('hglob', 0):
        fill[16] = g2a + g2b; fill[24] = qpack(bC, 0) + o1
        xs[(14, 28)] = [f"s_lshl_b32 s61, s2, 2", f"s_add_u32 s61, s61, s{sW}", f"s_lshl_b32 s61, s61, 13"]
        xs[(14, 29)] = [f"s_add_u32 s61, s61, 0x2100000", f"s_add_u32 s62, s61, 4096", f"s_add_u32 s63, s82, {LB}"]
        for sp in range(2):
            xs[(25 + sp, 28)] = (["s_waitcnt vmcnt(@hs)"] if sp == 0 else []) + [f"s_add_u32 m0, s63, {sp*4096}"]
            for k, g in enumerate([29, 30, 31, 31]):
                xm.setdefault((25 + sp, g), []).extend([f"buffer_load_dwordx4 v{vL16}, s[{rWS}:{rWS+3}], s{61 + sp} offen offset:{k*1024} lds ; @T:hd"] + ([None] if k != 2 else []))
        xs[(28, 0)] = ["s_waitcnt vmcnt(@hd)", "s_barrier"]
    elif OPT.get('g2late', 0):
        fill[16] = g2a; fill[24] = g2b + o1; fill[26] = qpack(bC, 0)
        xs[(27, 12)] = ["s_waitcnt lgkmcnt(@hw)", "s_barrier"]
    else:
        if OPT.get('hbatch', 1):
            fill[16] = g2a + [x for x in g2b if not x.startswith('ds_')]; fill[24] = o1 + qpack(bC, 0)
            hb = OPT.get('hbpos', (24, 3))
            xm[hb] = [x for x in g2b if x.startswith('ds_')]
        else:
            fill[16] = g2a + g2b; fill[24] = qpack(bC, 0) + o1
        xs[(26, 0)] = ["s_waitcnt lgkmcnt(@hw)", "s_barrier"]
    for j in range(4): frag_reads(xm, 28 + j, 2*j, 'hr', layF)
    fill[32] = qpack(bA, 1)
    fill[36] = park(bC, 128) + o2
    xs[(32, 3)] = ["s_waitcnt lgkmcnt(@hr)", "s_barrier"]
    kvs = [kvdma(2, 0, 0, True, False), kvdma(3, 1, 0, True, False), kvdma(0, 2, 0), kvdma(1, 3, 1)]
    xs[(32, 10)] = [f"s_lshl_b32 s{sKO+3}, s{sRB}, {14 if OPT['map'] == 8 else 15}"]; xs[(32, 12)] = [f"s_sub_u32 s{sKO+3}, s{sKO+3}, 8192"]
    for i, (sc, dd) in enumerate(kvs):
        pos = [33, 34, 37, 38][i]
        if i < 2:
            xs.setdefault((pos, 20), []).append(sc[1]); xs.setdefault((pos, 22), []).append(sc[2]); xs.setdefault((pos, 28), []).append(sc[0])
            for x, g in zip(dd, [29, 30]): xm.setdefault((pos, g), []).extend([x, None])
        else:
            xs.setdefault((pos, 9), []).append(sc[1]); xs.setdefault((pos, 10), []).append(sc[2]); xs.setdefault((pos, 11), []).append(sc[0])
            for x, g in zip(dd, [13, 17, 21, 27]): xm.setdefault((pos, g), []).extend([x, None])
    xs[(39, 3)] = ["s_waitcnt vmcnt(@kv3)", "s_barrier"]
    for x, g in zip(kreads(2), [8, 9, 10, 11, 12, 13, 14, 16]): xm.setdefault((39, g), []).append(x)
    left = emit_stream(a, S1, 0, fill, xm, xs, must_empty=(24, 26, 32, 36) if (OPT.get('g2late', 0) and not OPT.get('hglob', 0)) else (24, 32, 36), cap=dict((k, OPT.get('gcap', 41 if (OPT.get('g2late', 0) and not OPT.get('hglob', 0)) else 44)) for k in range(8, 24)))
    assert not left
    stamp(a, 3)
    X_ = SP(dict(S=vS, P=[32, 48, 64, 80], NEGM=vNEGM, ONES=vONES, LM=vLM, L=vLA, KA=vKA, VA=vVAl, KF=aKF, VF=aVF, Q=vQ, Qf='v', O=aO), OPT)
    def with_fill(ms, q, memat, start=0, room0=2):
        for g, m in enumerate(ms):
            a(m)
            room = room0
            for x in memat.get(g, []):
                a(x); room -= (2 if x.startswith('buffer') else 0 if x.startswith('s_') else 1)
            while g >= start and q and room >= 1:
                x = q.pop(0); a(x); room -= cost(x)
    st = park(bA, 160)
    k10, k11 = X_.kreads(3, 0), X_.kreads(3, 1)
    with_fill(X_.qk(0, '0'), st, {16: k10[:2], 17: k10[2:]}, start=3)
    for x in k11 + st: a(x)
    for i in range(4): a(f"v_mov_b32 v{vONES+i}, 0x3f803f80")
    for i in range(OPT['msum'], 4): a(f"v_mov_b32 v{vLA+i}, 0")
    T = [88 + 2*qb for qb in range(4)]
    for k in range(4):
        for qb in range(4):
            b0 = vS[0] + qb*8
            a([f"v_max3_f32 v{T[qb]}, v{b0}, v{b0+1}, v{b0+2}", f"v_max3_f32 v{T[qb]}, v{T[qb]}, v{b0+3}, v{b0+4}", f"v_max3_f32 v{T[qb]}, v{T[qb]}, v{b0+5}, v{b0+6}", f"v_max_f32 v{T[qb]}, v{T[qb]}, v{b0+7}"][k])
    for sw in ('v_permlane16_swap_b32', 'v_permlane32_swap_b32'):
        for qb in range(4): a(f"v_mov_b32 v{T[qb]+1}, v{T[qb]}")
        for qb in range(4): a(f"{sw} v{T[qb]}, v{T[qb]+1}")
        for qb in range(4): a(f"v_max_f32 v{T[qb]}, v{T[qb]}, v{T[qb]+1}")
    for qb in range(4):
        for i in range(4): a(f"v_sub_f32 v{vNEGM+qb*4+i}, 0, v{T[qb]}")
    a("s_waitcnt vmcnt(@kv1) lgkmcnt(0)\ns_barrier")
    subs = [f"v_sub_f32 v{X_.sblk(0, kb, qb)+i}, v{X_.sblk(0, kb, qb)+i}, v{T[qb]}" for kb in range(2) for qb in range(4) for i in range(4)]
    E0, S0 = X_.smq(0, 0)
    q0 = subs[:8]; si = 0
    for k, e in enumerate(E0):
        q0.append(e)
        if 8 + k < 32 and k % 4 == 3: q0 += subs[8 + k - 3: 8 + k + 1]
        while si < len(S0) and S0[si][0] <= k: q0.append(S0[si][1]); si += 1
    q0 += ["s_nop 0"] + [x[1] for x in S0[si:]]
    q0 += [f"s_lshl_b32 s0, s{sRB}, 3", f"v_mov_b32 v{vT}, s0", f"s_lshl_b32 s0, 0x100, s{sG}", f"v_mov_b32 v{vT+1}, s0"] + pf_addr('s0', vT+3)
    if OPT.get('flags'): q0 += flag_off(sLATE) + [f"v_mov_b32 v{vT+2}, 0"]
    q0 += [f"s_cmp_eq_u32 s{sW}, 0", "s_cselect_b32 s0, 1, 0", "s_mov_b32 s1, 0"]
    sc, dd = kvdma(2, 4, 2)
    k20, k21 = X_.kreads(0, 0), X_.kreads(0, 1)
    with_fill(X_.qk(1), q0, {0: [sc[0]], 1: [sc[1]], 2: [sc[2]], 4: [dd[0]], 9: [dd[1]], 16: k20[:2], 17: k20[2:], 21: [dd[2]], 26: [dd[3]]}, room0=OPT.get('proom', 3))
    for x in k21 + q0: a(x)
    c = ([], [], 32)
    for j_ in (1, 2, 3): _, c = X_.sp(j_, c, kvdma)
    E1, S1_ = X_.smq(1, 1); rem = set(c[0]) | set(x[1] for x in c[1])
    for x in E1 + [y[1] for y in S1_]:
        if x not in rem: a(x)
    cp = lambda c: (list(c[0]), list(c[1]), c[2])
    a("s_waitcnt lgkmcnt(0)")
    sts = [parked_store(f) + " ; @T:st" for f in range(16)]
    carry = cp(c)
    for j_ in range(4):
        kw = {}
        if j_ < 3:
            n = [6, 5, 5][j_]; kw['xauto'] = [(36, 100, sts[:n])]; sts = sts[n:]
            if j_ == 0 and OPT.get('flags'): kw['postbar'] = f"s_mov_b64 exec, 1\nbuffer_store_dword v{vT+2}, off, s[{rWS}:{rWS+3}], s{sLATE} sc1 ; @T:st\ns_mov_b64 exec, -1"
        else:
            kw['alsowait'] = 'st'
            if OPT['prefetch'] and OPT.get('pfearly'): kw['xauto'] = [(40, 70, [f"buffer_load_dword v{vT+3}, v{vPF}, s[{rWO}:{rWO+3}], s81 offen{' offset:64' if h else ''} ; @X" for h in range(OPT.get('pf2', 1))])]
            if OPT['single']: kw['postbar'] = f"s_mov_b64 exec, s[0:1]\nbuffer_atomic_or v{vT+1}, v{vT}, s[{rDBG}:{rDBG+3}], 0 offen ; @X\ns_mov_b64 exec, -1"
        body, carry = X_.sp(j_, carry, kvdma, first=(j_ == 0), **kw)
        for x in body: a(x)
    for _ in range(2):
        _, c = X_.sp(4, c, kvdma, postbar=("x" if OPT['single'] else None)); _, c = X_.sp(5, c, kvdma, postbar=("x" if OPT['prefetch'] and OPT.get('pfloop', 0) else None))
    assert set(c[0]) <= set(carry[0]) and set(c[1]) <= set(carry[1]), (carry, c)
    for x in [x for x in carry[0] if x not in c[0]] + ["s_nop 0"] + [x[1] for x in carry[1] if x not in c[1]]: a(x)
    carry = cp(c)
    stamp(a, 'loop0')
    a(f"s_mov_b32 s{sCNT}, 12")
    c0 = cp(carry); loop = []
    for j_ in (4, 5):
        pb = f"buffer_load_dword v{vT+2}, v{vT}, s[{rDBG}:{rDBG+3}], 0 offen sc1 ; @T:poll" if (j_ == 4 and OPT['single']) else None
        if j_ == 5 and OPT['prefetch'] and OPT.get('pfloop', 0): pb = f"buffer_load_dword v{vT+3}, v{vPF}, s[{rWO}:{rWO+3}], s81 offen ; @T:pfo"
        body, carry = X_.sp(j_, carry, kvdma, postbar=pb)
        loop += body
    assert cp(carry) == c0
    if OPT.get('rotloop', 1):
        mi = [i for i, x in enumerate(loop) if x.startswith('v_mfma')]
        free = [k for k in range(len(mi) - 8, len(mi) - 1) if not loop[mi[k] + 1].startswith('s_') and not loop[mi[k] + 1].startswith('buffer')]
        assert not any(x.startswith('s_add') or x.startswith('s_and') for x in loop[mi[free[-2]]:])
        tailf = loop[mi[-1] + 2:]
        assert loop[mi[-1] + 1].startswith('s_waitcnt') and all(x.startswith('v_') for x in tailf)
        loop = loop[:mi[free[-2]] + 1] + [f"s_sub_u32 s{sCNT}, s{sCNT}, 1"] + loop[mi[free[-2]] + 1:mi[free[-1]] + 1] + [f"s_cmp_lg_u32 s{sCNT}, 0"] + loop[mi[free[-1]] + 1:mi[-1] + 2]
        a("s_branch L_attn_mid\n.p2align 6\nL_attn_head:")
        a.headf = len(a.L)
        for x in tailf: a(x + " ; @X")
        a("L_attn_mid:\nL_attn_loop:")
        a.loop = (len(a.L), len(a.L) + len(loop) + len(tailf))
        for x in loop: a(x)
        a.brpos = len(a.L)
        for x in tailf: a(x)
    else:
        a(".p2align 6\nL_attn_loop:")
        a.loop = (len(a.L), len(a.L) + len(loop))
        for x in loop: a(x)
        a(f"s_sub_u32 s{sCNT}, s{sCNT}, 1\ns_cmp_lg_u32 s{sCNT}, 0\ns_cbranch_scc1 L_attn_loop")
    stamp(a, 'loop1')
    S2 = pO0 + pO1; base2 = len(S1)
    AV2 = 128
    woff = lambda h: f"s_add_u32 s0, s{sW}, {h}\ns_and_b32 s0, s0, 3\ns_lshl_b32 s0, s0, 17\ns_add_u32 s{44+h}, s0, s{sCOO}"
    def wd(k):
        s0, s1, d = panel_dma(S2[k], base2 + k)
        return [woff(k)] + s0 + d[:4] + s1 + d[4:]
    for j_ in (28, 29, 30):
        kw = {}
        if j_ == 28 and OPT['single']:
            so = share_offsets(f"s{sG}") + [f"s_bfe_u32 s{sBITS}, s{sBITS}, 0x80008", f"s_cmp_lg_u32 s{sBITS}, 0xff", f"s_cselect_b32 s{sLATE}, 1, 0", f"s_cselect_b32 s{sBITS}, 0x40000000, s{sSHOFF}"]
            a(f"v_readfirstlane_b32 s{sBITS}, v{vT+2}")
            fl = []
            for g in range(8):
                pl = ploads(FPE, 1, g, f"s{sBITS}"); fl += [pl[0], pl[2].replace(f"v[{FPE[1]+4*g}:{FPE[1]+4*g+3}]", f"a[{160+4*g}:{163+4*g}]")]
            kw['xauto'] = [(30, 56, so)] + ([] if (OPT['fend'] or OPT.get('f30', 0)) else [(56, 104, fl)])
            fl30 = fl
            if OPT.get('fpf'):
                a(f"v_lshrrev_b32 v{vGB}, 7, v{vL16}\nv_lshlrev_b32 v{vGB}, 21, v{vGB}\nv_bfe_u32 v{vT+2}, v{vL16}, 4, 3\nv_lshl_add_u32 v{vGB}, v{vT+2}, 7, v{vGB}")
                kw['xauto'] = [(6, 30, so), (34, 60, [f"s_add_u32 s0, s{sBITS}, 0x1000000", f"buffer_load_dword v{vT+2}, v{vGB}, s[{rWS}:{rWS+3}], s0 offen offset:1024", f"buffer_load_dword v{vT+2}, v{vGB}, s[{rWS}:{rWS+3}], s0 offen"])]
                fl29 = fl
        if j_ == OPT.get('pfsp', 30) and OPT['prefetch'] and not OPT.get('pfloop', 0) and not OPT.get('pfearly'):
            pfo = f"buffer_load_dword v{vDK}, v{vPF}, s[{rWO}:{rWO+3}], s81 offen"
            if OPT.get('pfg', 13) < 0: kw['postbar'] = pfo
            else: kw['xd'] = [(OPT.get('pfg', 13), pfo)] + ([(OPT.get('pfg', 13) + 1, pfo + " offset:64")] if OPT.get('pf2', 1) == 2 else []) + ([(OPT.get('pfg', 13) + 1, pfo.replace('s81', 's80'))] if OPT.get('pfh') else [])
        if j_ == 29:
            kw['dma'] = (True, True, False, True); kw['xauto'] = [(34, 100, wd(0) + wd(1))]
            if OPT.get('fpf') and OPT['single']: kw['xauto'] = [(30, 66, wd(0)), (66, 104, fl29)]
        if j_ == 30:
            kw['dma'] = (False, True, False, False); kw['knext'] = False
            kw['xauto'] = [(30, 100, (wd(1) if OPT.get('fpf') else []) + wd(2) + [woff(3)])]
            if OPT.get('f30', 0) and OPT['single'] and not OPT['fend']: kw['xauto'] = [(12, 44, wd(2) + [woff(3)]), (44, 104, fl30)]
            kw['vlast'] = sum((X_.vreads(2, db, aKF + 4*db) for db in range(8)), []) + sum((X_.vreads(3, db, AV2 + 4*db) for db in range(8)), [])
        body, carry = X_.sp(j_, carry, kvdma, **kw)
        for x in body: a(x)
    E, Sq, edone = list(carry[0]), list(carry[1]), carry[2]
    post = []
    lq = [qb for qb in range(4) if qb >= OPT['msum']]
    for sw in ('v_permlane16_swap_b32', 'v_permlane32_swap_b32'):
        post += [f"v_mov_b32 v{96+qb}, v{vLA+qb}" for qb in lq] + ["s_nop 1"] + [f"{sw} v{vLA+qb}, v{96+qb}" for qb in lq] + (["s_nop 0"] if len(lq) < 2 else []) + [f"v_add_f32 v{vLA+qb}, v{vLA+qb}, v{96+qb}" for qb in lq]
    post += [f"v_add_u32 v{vPF}, s83, v{vFA}"]
    if OPT['single']:
        post += [f"v_mov_b32 v{vSIG}, v{vT}", f"v_bfe_u32 v{vXO}, v{vL16}, 4, 4", f"v_lshlrev_b32 v{vXO}, 10, v{vXO}", f"v_lshrrev_b32 v{vT+3}, 8, v{vL16}", f"v_lshl_add_u32 v{vXO}, v{vT+3}, 3, v{vXO}"]
    ex0 = []
    if OPT['single'] and not OPT['fend']:
        for g in range(8):
            pl = ploads(FPE, 1, g, f"s{sBITS}"); ex0 += [pl[0], pl[1], None]
        xl = xloads(); ex0 += [xl[0] + "\n" + xl[1], None, xl[2], xl[3], xl[4], None, xl[5]]
    for g, m in enumerate(X_.pv1(2, aKF) + X_.pv1(3, AV2)):
        check_p(m, Sq)
        a(m)
        if g == 2: a("s_waitcnt lgkmcnt(0)\ns_barrier")
        if not E and not Sq and not post and ex0:
            x = ex0.pop(0)
            if x: a(x)
            continue
        room = 2; e_prev = edone
        nav = sum(1 for x in Sq if x[0] <= e_prev)
        if E and (nav < room or g % 2 == 0): a(E.pop(0)); edone += 1; room -= 2
        while room > 0:
            if Sq and Sq[0][0] <= e_prev: a(Sq.pop(0)[1]); room -= 1
            elif not E and not Sq and post: x = post.pop(0); a(x); room -= cost(x)
            else: break
    assert not E and not Sq
    for x in post + [x for x in ex0 if x]: a(x)
    stamp(a, 4)
    for h in range(4): a(f"s_add_u32 s{80+h%2}, s{sW}, {h}\ns_and_b32 s{80+h%2}, s{80+h%2}, 3")  if False else None
    a("s_nop 3")
    for qb in range(OPT['msum']): a(f"v_mov_b32 v{vL+qb}, v{vLM+4*qb}")
    if vLA != vL:
        for qb in range(OPT['msum'], 4): a(f"v_mov_b32 v{vL+qb}, v{vLA+qb}")
    a(f"v_add_f32 v{vT+1}, v{vL}, v{vL+1}\nv_add_f32 v{vT+2}, v{vL+2}, v{vL+3}\nv_add_f32 v{vT+1}, v{vT+1}, v{vT+2}")
    a(f"v_cmp_nge_f32 vcc, {hx(2.0**OPT['fthresh'])}, v{vT+1}\ns_nop 1\ns_cbranch_vccnz L_fallback\nL_fb_ret:")
    for qb in range(4): a(f"v_rcp_f32 v{vL+qb}, v{vL+qb}")
    for h in range(4): a(f"s_add_u32 s0, s{sW}, {h}\ns_and_b32 s0, s0, 3\ns_lshl_b32 s0, s0, 14\nv_add_u32 v{vOA+h}, s0, v{vFA}")
    def norm(sp, qb, pk):
        o_ = []; t = [64, 76, 88, 100][(sp*4 + qb) % 4]; l = vL + qb
        for e in range(2):
            o = aO + ((2*sp + e)*4 + qb)*4
            o_ += [f"v_accvgpr_read_b32 v{t+4*e+i}, a{o+i}" for i in range(4)]
        if pk:
            sel = "op_sel_hi:[1,0]" if l % 2 == 0 else "op_sel:[0,1]"
            o_ += [f"v_pk_mul_f32 v[{t+2*i}:{t+2*i+1}], v[{t+2*i}:{t+2*i+1}], v[{l - l%2}:{l - l%2 + 1}] {sel}" for i in range(4)]
        else: o_ += [f"v_mul_f32 v{t+i}, v{t+i}, v{l}" for i in range(8)]
        o_ += [f"v_cvt_pk_bf16_f32 v{t+8+i}, v{t+2*i}, v{t+2*i+1}" for i in range(4)]
        o_ += [f"ds_write_b128 v{vPF}, v[{t+8}:{t+11}] offset:{(sp*4 + qb)*1024} ; @T:ow{sp//2}"]
        return o_
    ex = []
    NPRE = OPT.get('npre', 16)
    for k in range(NPRE):
        for x in norm(k // 4, k % 4, True): a(x)
        if ex:
            for x in ex.pop(0): a(x)
    stamp(a, 'owritten')
    ord_ = lambda j, ks, qb: f"ds_read_b128 a[{oreg(j, ks, qb)}:{oreg(j, ks, qb)+3}], v{vOA + j % 4} offset:{((2*(j//4) + ks)*4 + qb)*1024}"
    a(f"s_waitcnt vmcnt(@w{base2})")
    for x in wreads(S2[0], base2, 0): a(x)
    for ks in range(2):
        for qb in range(4): a(ord_(0, ks, qb))
    for nb in (1, 2):
        for x in wreads(S2[0], base2, nb): a(x)
    a("s_waitcnt lgkmcnt(@auto)")
    stamp(a, 5)
    fill = {OPT.get('stpos', 13): slab_store(bB, 0, 0)}; xm = {}; xs = {}
    fill[0] = sum((norm(k // 4, k % 4, False) for k in range(NPRE, 16)), [])
    xs[(0, 10)] = ["s_waitcnt lgkmcnt(@ow0)", "s_barrier"]
    if NPRE < 16: xs[(3, 28)] = ["s_waitcnt lgkmcnt(@ow1)", "s_barrier"]
    else: xs[(0, 10)] = ["s_waitcnt lgkmcnt(@ow1)", "s_barrier"]
    for j in range(7):
        gaps = [12, 14, 15, 20, 22, 23, 28, 29] if j == 0 else RG
        for k in range(8): xm.setdefault((j, gaps[k]), []).append(ord_(j + 1, k % 2, k // 2))
    if OPT['single']:
        if not OPT.get('fredend', 1): xs[(3, 8)] = ["s_waitcnt vmcnt(@pl)"]
        if not OPT['fend']: fill[0] = [f'v_accvgpr_read_b32 v{FPE[1]+i}, a{160+i}' for i in range(32)]
        if not OPT.get('fredend', 1): fill[3] = fred_fill(FPE, (1,)); fill[8] = fred_fill(FPE, (0,))
    fin = slab_store(bA, 0, 1)
    if OPT['single'] and OPT['fend'] == 2:
        fl = []
        for g in range(8):
            pl = ploads(FPE, 1, g, f"s{sBITS}"); fl += [pl[0] + "\n" + pl[1], pl[2]]
        xl = xloads(); fl += [xl[0] + "\n" + xl[1], xl[2], xl[3] + "\n" + xl[4], xl[5]]
        slots = [(p_, g_) for p_ in range(OPT.get('flpos', 12), 16) for g_ in (3, 5, 12, 14, 20, 22, 28, 30) if not (p_ == OPT.get('flpos', 12) and p_ <= 12 and g_ < 28)]
        for x, sl_ in zip(fl, slots): xm.setdefault(sl_, []).extend([x, None])
        assert len(slots) >= len(fl)
    left = emit_stream(a, S2, base2, fill, xm, xs, late={(15, 18): fin[:20]}, must_empty=(3,), quiet=range(32), cap=dict([(k, OPT.get('ocap', 30)) for k in range(3)] + [(k, OPT.get('fcap', [32, 32, 32, 44, 40, 40, 40, 40, 40])[k-4]) for k in range(4, 13)]))
    for x in left: a(x)
    a("s_nop 5")
    for x in fin[20:]: a(x)
    stamp(a, 6)
    if OPT['timing']: a("s_memrealtime s[80:81]\ns_waitcnt lgkmcnt(0)\ns_mov_b32 s101, s80")
    if OPT['single']:
        (end_phase_flags if OPT.get('flags') else end_phase)(a)
    if OPT['timing'] and not OPT.get('dbgtime'):
        a("s_waitcnt vmcnt(0)")
        a("s_memtime s[44:45]\ns_memrealtime s[46:47]\ns_waitcnt lgkmcnt(0)")
        a(f"s_lshl_b32 s62, s2, 2\ns_add_u32 s62, s62, s{sW}\ns_lshl_b32 s62, s62, 6\ns_add_u32 s62, s62, 0x3000000")
        a(f"s_mov_b32 s{rWS+2}, 0x4000000")
        for i in range(8): a(f"v_mov_b32 v3, s{sTS+2*i if i < 7 else 44}\nv_mov_b32 v4, {4*i}\nbuffer_store_dword v3, v4, s[{rWS}:{rWS+3}], s62 offen")
        a(f"v_mov_b32 v3, s46\nv_mov_b32 v4, 32\nbuffer_store_dword v3, v4, s[{rWS}:{rWS+3}], s62 offen")
        a(f"v_mov_b32 v3, s101\nv_mov_b32 v4, 40\nbuffer_store_dword v3, v4, s[{rWS}:{rWS+3}], s62 offen")
        for k, r in enumerate((94, 98, 96)): a(f"v_mov_b32 v3, s{r}\nv_mov_b32 v4, {44+4*k}\nbuffer_store_dword v3, v4, s[{rWS}:{rWS+3}], s62 offen")
        a(f"v_mov_b32 v3, s100\nv_mov_b32 v4, 36\nbuffer_store_dword v3, v4, s[{rWS}:{rWS+3}], s62 offen")
    if OPT.get('dbgtime'):
        a(f"s_cmp_eq_u32 s2, {OPT['dbgtime']-1}\ns_cbranch_scc0 L_main_end\ns_cmp_eq_u32 s{sW}, 0\ns_cbranch_scc0 L_main_end")
        a("s_waitcnt vmcnt(0)\ns_memrealtime s[46:47]\ns_memtime s[44:45]\ns_waitcnt lgkmcnt(0)\ns_mov_b64 exec, 1")
        a(f"s_sub_u32 s0, s46, s100\nv_mov_b32 v3, s0\nv_mov_b32 v4, 4\nbuffer_store_dword v3, v4, s[{rDBG}:{rDBG+3}], 0 offen")
        st = [sTS + 2*i for i in range(7)] + [44]
        for i in range(7):
            a(f"s_sub_u32 s0, s{st[i+1]}, s{st[i]}\nv_mov_b32 v3, s0\nv_mov_b32 v4, {12 + 8*i}\nbuffer_store_dword v3, v4, s[{rDBG}:{rDBG+3}], 0 offen")
    a("L_main_end:\ns_endpgm")
    a.fb = fallback()
    return a

GV = [192 + i for i in range(8)] + [224 + i for i in range(8)]
def fred_fill(FP, which=(0, 1)):
    ops = []
    for fr in which:
        base = FP[fr]
        acc = [16, 17, 22, 23, 24, 25, 30, 31]
        for n in range(8):
            r = base + 4*n
            for i in range(4):
                if n == 0: ops += [f"v_lshlrev_b32 v{acc[2*i]}, 16, v{r+i}", f"v_and_b32 v{acc[2*i+1]}, 0xffff0000, v{r+i}"]
                else:
                    ta, tb = vT + 2*(i % 2), vT + 2*(i % 2) + 1
                    ops += [f"v_lshlrev_b32 v{ta}, 16, v{r+i}", f"v_and_b32 v{tb}, 0xffff0000, v{r+i}", f"v_add_f32 v{acc[2*i]}, v{acc[2*i]}, v{ta}", f"v_add_f32 v{acc[2*i+1]}, v{acc[2*i+1]}, v{tb}"]
        for b in range(0, 8, 4):
            ops += [f"v_mul_f32 v{vT+i}, {hx(-math.log2(math.e))}, v{acc[b+i]}" for i in range(4)]
            ops += [f"v_exp_f32 v{vT+i}, v{vT+i}" for i in range(4)]
            ops += [f"v_add_f32 v{vT+i}, 1.0, v{vT+i}" for i in range(4)]
            ops += [f"v_rcp_f32 v{vT+i}, v{vT+i}" for i in range(4)]
            ops += [f"v_mul_f32 v{GV[8*fr+b+i]}, v{acc[b+i]}, v{vT+i}" for i in range(4)]
    return ops

def fred_pk(FP):
    ops = []
    for fr in range(2):
        base = FP[fr]; acc = 40 + 8*fr
        for n in range(8):
            r = base + 4*n
            d = acc if n == 0 else 56
            for i in range(4): ops += [f"v_lshlrev_b32 v{d+2*i}, 16, v{r+i}", f"v_and_b32 v{d+2*i+1}, s44, v{r+i}"]
            if n: ops += [f"v_pk_add_f32 v[{acc+2*i}:{acc+2*i+1}], v[{acc+2*i}:{acc+2*i+1}], v[{56+2*i}:{57+2*i}]" for i in range(4)]
    for fr in range(2):
        acc = 40 + 8*fr
        ops += [f"v_mul_f32 v{56+i}, s45, v{acc+i}" for i in range(8)]
        ops += [f"v_exp_f32 v{56+i}, v{56+i}" for i in range(8)]
        ops += [f"v_add_f32 v{56+i}, 1.0, v{56+i}" for i in range(8)]
        ops += [f"v_rcp_f32 v{56+i}, v{56+i}" for i in range(8)]
        ops += [f"v_mul_f32 v{GV[8*fr+i]}, v{acc+i}, v{56+i}" for i in range(8)]
    return [f"s_mov_b32 s44, 0xffff0000", f"s_mov_b32 s45, {hx(-math.log2(math.e))}"] + ops

def end_phase(a):
    if OPT['fend']: pass
    elif OPT.get('fredend', 1):
        for x in fred_pk(FPE): a(x)
    a("v_mov_b32 v32, 0\nv_mov_b32 v33, 0")
    a(f"s_cmp_lg_u32 s{sW}, 0\ns_cbranch_scc1 L_e_nz\nds_write_b32 v32, v33\nL_e_nz:")
    a("s_waitcnt vmcnt(@st) lgkmcnt(0)\ns_barrier")
    stamp(a, 'drained')
    if OPT.get('rt2'): a('s_memrealtime s[94:95]\ns_waitcnt lgkmcnt(0)')
    a(f"s_mov_b32 s{sDONE}, 0\ns_mov_b32 s{sTODO}, 0\ns_mov_b32 s{sCNT}, 0\ns_lshl_b32 s46, s{sRB}, 3")
    a(f"s_lshl_b32 s47, 1, s{sG}\nv_mov_b32 v34, s47\ns_cmp_lg_u32 s{sW}, 0\ns_cbranch_scc1 L_e_nosig\ns_mov_b64 exec, 1\nbuffer_atomic_or v34, v{vSIG}, s[{rDBG}:{rDBG+3}], 0 offen sc0 ; @X\ns_mov_b64 exec, -1\nL_e_nosig:")
    if OPT['fend'] == 1:
        for g in range(8):
            for x in ploads(FPE, 1, g, f"s{sBITS}"): a(x)
        for x in xloads(): a(x)
        a(f"s_cmp_lg_u32 s{sW}, 0\ns_cbranch_scc1 L_e_nw\ns_waitcnt vmcnt(20)\nv_readfirstlane_b32 s0, v34\ns_nop 0\ns_or_b32 s0, s0, s47\ns_and_b32 s0, s0, 0xff\nv_mov_b32 v33, s0\nL_e_nw:")
    a(f"s_mov_b32 s83, 0\ns_waitcnt vmcnt(0)\ns_cmp_lg_u32 s{sW}, 0\ns_cbranch_scc1 L_e_other")
    a(f"v_readfirstlane_b32 s{sBITS}, v34\ns_nop 0")
    a(f"s_or_b32 s{sBITS}, s{sBITS}, s47\ns_and_b32 s47, s{sBITS}, 0xff\ns_cmp_eq_u32 s47, 0xff\ns_cbranch_scc1 L_e_pub")
    a(f"L_e_w0:\ns_nop 0\ns_or_b32 s{sBITS}, s{sBITS}, s{sDONE}\ns_and_b32 s{sBITS}, s{sBITS}, 0xff")
    a(f"L_e_pub:\ns_and_b32 s{sBITS}, s{sBITS}, 0xff00ff\nv_mov_b32 v33, s{sBITS}\nds_write_b32 v32, v33\ns_branch L_e_have")
    a(f"L_e_other:\nds_read_b32 v33, v32\ns_waitcnt lgkmcnt(0)\nv_readfirstlane_b32 s{sBITS}, v33\ns_nop 0\ns_bitcmp1_b32 s{sBITS}, 31\ns_cbranch_scc1 L_e_exit")
    a(f"L_e_have:\ns_andn2_b32 s47, s{sBITS}, s{sDONE}")
    for g in range(8):
        a(f"s_bitcmp1_b32 s47, {g}\ns_cbranch_scc0 L_e_s{g}")
        for x in ploads(SPR, 0, g, f"s{sSHOFF}"): a(x)
        a(f"L_e_s{g}:")
    if OPT['fend']:
        a("s_cmp_eq_u32 s83, 0\ns_cbranch_scc0 L_e_fd\ns_mov_b32 s83, 1")
        for x in fred_pk(FPE): a(x)
        a("L_e_fd:")
    a(f"s_or_b32 s{sDONE}, s{sDONE}, s{sBITS}\ns_and_b32 s47, s{sDONE}, 0xff\ns_cmp_eq_u32 s47, 0xff\ns_cbranch_scc1 L_e_all")
    a(f"s_cmp_lg_u32 s{sW}, 0\ns_cbranch_scc0 L_e_poll\ns_sleep {OPT.get('lsleep', 1)}\ns_branch L_e_other")
    a(f"L_e_poll:\ns_add_u32 s{sCNT}, s{sCNT}, 1\ns_cmp_gt_u32 s{sCNT}, {OPT['spin']}\ns_cbranch_scc1 L_e_abandon")
    PD = OPT.get('pdepth', 1)
    if PD == 1:
        a(f"s_sleep {OPT.get('psleep', 2)}\nbuffer_load_dword v34, off, s[{rDBG}:{rDBG+3}], s46 sc1\ns_waitcnt vmcnt(0)\nv_readfirstlane_b32 s{sBITS}, v34\ns_branch L_e_w0")
    else:
        a(f"s_sleep {OPT.get('psleep', 2)}\ns_and_b32 s47, s{sCNT}, {PD-1}")
        for k in range(PD):
            a(f"s_cmp_eq_u32 s47, {k}\ns_cbranch_scc0 L_e_p{k}\nbuffer_load_dword v{36+k}, off, s[{rDBG}:{rDBG+3}], s46 sc1\ns_waitcnt vmcnt({PD-1})\nv_readfirstlane_b32 s{sBITS}, v{36+(k+1)%PD}\ns_branch L_e_w0\nL_e_p{k}:")
    a(f"L_e_abandon:\ns_lshl_b32 s47, 0x10000, s{sG}\nv_mov_b32 v34, s47\ns_mov_b64 exec, 1\nbuffer_atomic_or v34, v{vSIG}, s[{rDBG}:{rDBG+3}], 0 offen sc0\ns_waitcnt vmcnt(0)\nv_readfirstlane_b32 s{sBITS}, v34\ns_mov_b64 exec, -1")
    a(f"s_nop 0\ns_and_b32 s47, s{sBITS}, 0xff\ns_cmp_eq_u32 s47, 0xff\ns_cbranch_scc1 L_e_w0")
    a(f"v_mov_b32 v33, 0x80000000\nds_write_b32 v32, v33\ns_waitcnt lgkmcnt(0)\ns_branch L_e_exit")
    a(f"L_e_all:\ns_lshr_b32 s{sTODO}, s{sBITS}, 16")
    stamp(a, 'allseen')
    if OPT.get('rt2'): a('s_memrealtime s[98:99]\ns_waitcnt lgkmcnt(0)')
    a(f"L_e_fin:\ns_cmp_eq_u32 s{sLATE}, 0\ns_cbranch_scc1 L_e_nolate")
    for g in range(8):
        for x in ploads(FPL, 1, g, f"s{sSHOFF}"): a(x)
    for x in xloads(): a(x)
    a("s_waitcnt vmcnt(0)")
    for x in fred_pk(FPL): a(x)
    a("L_e_nolate:\ns_mov_b32 s44, 0xffff0000\ns_waitcnt vmcnt(0)")
    if OPT.get('rt2'): a('s_memrealtime s[96:97]\ns_waitcnt lgkmcnt(0)')
    for fr in range(2):
        d = 64 + 8*fr
        for n in range(8):
            r = SPR[fr] + 4*n
            for i in range(4):
                if n == 0: a(f"v_lshlrev_b32 v{d+2*i}, 16, v{r+i}\nv_and_b32 v{d+2*i+1}, s44, v{r+i}")
                else: a(f"v_lshlrev_b32 v{80+2*i}, 16, v{r+i}\nv_and_b32 v{81+2*i}, s44, v{r+i}")
            if n:
                for i in range(4): a(f"v_pk_add_f32 v[{d+2*i}:{d+2*i+1}], v[{d+2*i}:{d+2*i+1}], v[{80+2*i}:{81+2*i}]")
        a(f"s_add_u32 s0, s{sXOFF}, {fr*16384}")
        for e in range(2):
            xr_ = xregs[2*fr+e]
            for i in range(2): a(f"v_lshlrev_b32 v{80+2*i}, 16, v{xr_+i}\nv_and_b32 v{81+2*i}, 0xffff0000, v{xr_+i}")
            for i in range(4): a(f"v_fmac_f32 v{80+i}, v{d+4*e+i}, v{GV[8*fr+4*e+i]}")
            a(f"v_cvt_pk_bf16_f32 v{88+4*fr+2*e}, v80, v81\nv_cvt_pk_bf16_f32 v{89+4*fr+2*e}, v82, v83")
            a(f"buffer_store_dwordx2 v[{88+4*fr+2*e}:{89+4*fr+2*e}], v{vXO}, s[{rOUT}:{rOUT+3}], s0 offen offset:{32*e}{OPT.get('outflags', '')}")
    a(f"s_cmp_eq_u32 s{sTODO}, 0\ns_cbranch_scc1 L_e_exit")
    a(f"s_ff1_i32_b32 s47, s{sTODO}\ns_bitset0_b32 s{sTODO}, s47\ns_mov_b32 s{sLATE}, 1")
    for x in share_offsets("s47"): a(x)
    for g in range(8):
        for x in ploads(SPR, 0, g, f"s{sSHOFF}"): a(x)
    a("s_branch L_e_fin\nL_e_exit:")

def flag_off(d):
    return [f"s_lshl_b32 s{d}, s{sRB}, 3", f"s_add_u32 s{d}, s{d}, s{sG}", f"s_lshl_b32 s{d}, s{d}, 2", f"s_add_u32 s{d}, s{d}, s{sW}", f"s_lshl_b32 s{d}, s{d}, 2", f"s_add_u32 s{d}, s{d}, 0x2000000"]

def end_phase_flags(a):
    for x in fred_pk(FPE): a(x)
    sWX = 83
    a("v_mov_b32 v32, 0\nv_mov_b32 v33, 0\nv_mov_b32 v36, 1\nv_mov_b32 v48, 0\nv_mov_b32 v49, 0\nv_mov_b32 v50, 0\nv_mov_b32 v51, 0")
    for x in flag_off(47): a(x)
    a(f"s_lshl_b32 s46, s{sRB}, 7\ns_lshr_b32 s0, s{sG}, 1\ns_lshl_b32 s0, s0, 2\ns_add_u32 s46, s46, s0\ns_add_u32 s82, s46, 0x2000000\ns_lshl_b32 s46, s{sRB}, 3")
    a(f"s_cmp_lg_u32 s{sW}, 0\ns_cbranch_scc1 L_e_nz\nds_write_b32 v32, v33\nL_e_nz:")
    a(f"s_waitcnt vmcnt(0)\ns_mov_b64 exec, 1\nbuffer_store_dword v36, off, s[{rWS}:{rWS+3}], s47 sc1\ns_mov_b64 exec, -1\ns_waitcnt lgkmcnt(0)\ns_barrier")
    stamp(a, 'drained')
    if OPT.get('rt2'): a('s_memrealtime s[80:81]\ns_waitcnt lgkmcnt(0)\ns_mov_b32 s94, s80')
    a(f"s_mov_b32 s{sDONE}, 0\ns_mov_b32 s{sTODO}, 0\ns_mov_b32 s{sCNT}, 0\nv_mov_b32 v35, 0")
    a(f"s_cmp_eq_u32 s{sW}, 0\ns_cbranch_scc1 L_e_poll1\ns_cmp_eq_u32 s{sW}, 1\ns_cbranch_scc0 L_e_other")
    a(f"s_lshl_b32 s47, 1, s{sG}\nv_mov_b32 v35, s47\ns_mov_b64 exec, 1\nbuffer_atomic_or v35, v{vSIG}, s[{rDBG}:{rDBG+3}], 0 offen sc0\ns_mov_b64 exec, -1")
    a(f"L_e_other:\nds_read_b32 v33, v32\ns_waitcnt lgkmcnt(0)\nv_readfirstlane_b32 s{sBITS}, v33\ns_nop 0\ns_bitcmp1_b32 s{sBITS}, 31\ns_cbranch_scc1 L_e_gaveup")
    a(f"L_e_have:\ns_andn2_b32 s47, s{sBITS}, s{sDONE}")
    for g in range(8):
        a(f"s_bitcmp1_b32 s47, {g}\ns_cbranch_scc0 L_e_s{g}")
        for x in ploads(SPR, 0, g, f"s{sSHOFF}"): a(x)
        a(f"L_e_s{g}:")
    a(f"s_or_b32 s{sDONE}, s{sDONE}, s{sBITS}\ns_cmp_eq_u32 s{sDONE}, 0xff\ns_cbranch_scc1 L_e_all")
    a(f"s_cmp_lg_u32 s{sW}, 0\ns_cbranch_scc0 L_e_poll\ns_sleep 1\ns_branch L_e_other")
    a(f"L_e_poll:\ns_add_u32 s{sCNT}, s{sCNT}, 1\ns_cmp_gt_u32 s{sCNT}, {OPT['spin']}\ns_cbranch_scc1 L_e_abandon\ns_sleep {OPT.get('psleep', 2)}")
    a(f"L_e_poll1:\ns_cmp_eq_u32 s{sLATE}, 0\ns_cbranch_scc0 L_e_polld")
    PD = OPT.get('pdepth', 1)
    a(f"s_mov_b64 exec, 0xff\ns_and_b32 s47, s{sCNT}, {PD-1}")
    for k in range(PD):
        a(f"s_cmp_eq_u32 s47, {k}\ns_cbranch_scc0 L_e_p{k}\nbuffer_load_dword v{48+k}, v{vL16}, s[{rWS}:{rWS+3}], s82 offen sc1\ns_waitcnt vmcnt({PD-1})\nv_cmp_eq_u32 vcc, 1, v{48+(k+1)%PD}\ns_branch L_e_pq\nL_e_p{k}:")
    a(f"L_e_pq:\ns_nop 1\ns_mov_b64 exec, -1\ns_or_b32 s{sBITS}, vcc_lo, s{sDONE}\ns_lshl_b32 s47, 1, s{sG}\ns_or_b32 s{sBITS}, s{sBITS}, s47\ns_and_b32 s{sBITS}, s{sBITS}, 0xff\ns_branch L_e_pub")
    a(f"L_e_polld:\nbuffer_load_dword v34, off, s[{rDBG}:{rDBG+3}], s46 sc1\ns_waitcnt vmcnt(0)\nv_readfirstlane_b32 s{sBITS}, v34")
    a(f"L_e_w0:\ns_nop 0\ns_and_b32 s{sBITS}, s{sBITS}, 0xff")
    a(f"L_e_pub:\nv_mov_b32 v33, s{sBITS}\nds_write_b32 v32, v33\ns_branch L_e_have")
    a(f"L_e_abandon:\ns_lshl_b32 s47, 0x10000, s{sG}\nv_mov_b32 v34, s47\ns_mov_b64 exec, 1\nbuffer_atomic_or v34, v{vSIG}, s[{rDBG}:{rDBG+3}], 0 offen sc0\ns_waitcnt vmcnt(0)\nv_readfirstlane_b32 s{sBITS}, v34\ns_mov_b64 exec, -1")
    a(f"s_nop 0\ns_and_b32 s47, s{sBITS}, 0xff\ns_cmp_eq_u32 s47, 0xff\ns_cbranch_scc1 L_e_w0")
    a(f"v_mov_b32 v33, 0x80000000\nds_write_b32 v32, v33\ns_waitcnt lgkmcnt(0)\ns_branch L_e_exit")
    a(f"L_e_all:\ns_mov_b32 s{sWX}, 99")
    stamp(a, 'allseen')
    if OPT.get('rt2'): a('s_memrealtime s[98:99]\ns_waitcnt lgkmcnt(0)')
    a(f"L_e_fin:\ns_cmp_eq_u32 s{sLATE}, 0\ns_cbranch_scc1 L_e_nolate")
    for g in range(8):
        for x in ploads(FPL, 1, g, f"s{sSHOFF}"): a(x)
    for x in xloads(): a(x)
    a("s_waitcnt vmcnt(0)")
    for x in fred_pk(FPL): a(x)
    a(f's_mov_b32 s82, s44' if False else 's_nop 0')
    a("L_e_nolate:\ns_waitcnt vmcnt(0)")
    if OPT.get('rt2'): a('s_memrealtime s[96:97]\ns_waitcnt lgkmcnt(0)')
    for fr in range(2):
        d = 64 + 8*fr
        for n in range(8):
            r = SPR[fr] + 4*n
            for i in range(4):
                if n == 0: a(f"v_lshlrev_b32 v{d+2*i}, 16, v{r+i}\nv_and_b32 v{d+2*i+1}, 0xffff0000, v{r+i}")
                else: a(f"v_lshlrev_b32 v{80+2*i}, 16, v{r+i}\nv_and_b32 v{81+2*i}, 0xffff0000, v{r+i}")
            if n:
                for i in range(4): a(f"v_pk_add_f32 v[{d+2*i}:{d+2*i+1}], v[{d+2*i}:{d+2*i+1}], v[{80+2*i}:{81+2*i}]")
        a(f"s_add_u32 s0, s{sXOFF}, {fr*16384}")
        for e in range(2):
            xr_ = xregs[2*fr+e]
            for i in range(2): a(f"v_lshlrev_b32 v{80+2*i}, 16, v{xr_+i}\nv_and_b32 v{81+2*i}, 0xffff0000, v{xr_+i}")
            for i in range(4): a(f"v_fmac_f32 v{80+i}, v{d+4*e+i}, v{GV[8*fr+4*e+i]}")
            a(f"v_cvt_pk_bf16_f32 v{88+4*fr+2*e}, v80, v81\nv_cvt_pk_bf16_f32 v{89+4*fr+2*e}, v82, v83")
            a(f"buffer_store_dwordx2 v[{88+4*fr+2*e}:{89+4*fr+2*e}], v{vXO}, s[{rOUT}:{rOUT+3}], s0 offen offset:{32*e}{OPT.get('outflags', '')}")
    a(f"s_branch L_e_duty\nL_e_gaveup:\ns_waitcnt vmcnt(0)\ns_mov_b32 s{sWX}, 99\nL_e_duty:")
    a(f"s_cmp_eq_u32 s{sW}, 1\ns_cbranch_scc0 L_e_exit")
    a(f"s_cmp_eq_u32 s{sWX}, 99\ns_cbranch_scc0 L_e_next")
    a(f"v_readfirstlane_b32 s47, v35\ns_lshl_b32 s0, 1, s{sG}\ns_nop 0\ns_or_b32 s0, s0, s47\ns_and_b32 s0, s0, 0xff\ns_cmp_eq_u32 s0, 0xff\ns_cbranch_scc0 L_e_exit")
    a(f"s_bfe_u32 s{sTODO}, s47, 0x80010\ns_mov_b32 s{sWX}, 3")
    a(f"L_e_next:\ns_add_u32 s{sWX}, s{sWX}, 1\ns_cmp_lt_u32 s{sWX}, 4\ns_cbranch_scc1 L_e_same")
    a(f"s_cmp_eq_u32 s{sTODO}, 0\ns_cbranch_scc1 L_e_exit")
    a(f"s_ff1_i32_b32 s82, s{sTODO}\ns_bitset0_b32 s{sTODO}, s82\ns_mov_b32 s{sWX}, 0")
    a(f"L_e_same:\ns_mov_b32 s{sLATE}, 1")
    for x in share_offsets("s82", sWX): a(x)
    for g in range(8):
        for x in ploads(SPR, 0, g, f"s{sSHOFF}"): a(x)
    a("s_branch L_e_fin\nL_e_exit:")

def fallback():
    a = Prog()
    a("L_fallback:")
    M = [64 + qb for qb in range(4)]; AL = [68 + qb for qb in range(4)]; TM = [72 + 2*qb for qb in range(4)]
    FK, FV = 80, 88
    a(f"s_waitcnt vmcnt(0) lgkmcnt(0)\ns_mov_b32 s{sLATE}, 1")
    o1, o2 = attn_addr_ops()
    KA2 = 96; VA2 = [100 + i for i in range(8)]
    for x in o1:
        for s in range(4): x = x.replace(f"v_lshl_add_u32 v{vKA+s},", f"v_lshl_add_u32 v{KA2+s},")
        a(x)
    for x in o2:
        for db in range(8): x = x.replace(f"v_lshl_add_u32 v{vVAl[db]}, v{vT+3}, 5", f"v_lshl_add_u32 v{VA2[db]}, v{vT+3}, 5")
        a(x)
    for r in [KA2 + s for s in range(4)] + VA2: a(f"v_add_u32 v{r}, s83, v{r}")
    a(f"v_lshrrev_b32 v{vT}, 8, v{vL16}\nv_bfe_u32 v{vT+1}, v{vL16}, 4, 4")
    for part in range(4):
        for i in range(2):
            a(f"v_add_u32 v{vT+2}, {8*part + 4*i}, v{vT}\nv_and_b32 v{vT+2}, 15, v{vT+2}\nv_xor_b32 v{vT+2}, v{vT+2}, v{vT+1}\nv_lshlrev_b32 v{vT+2}, 4, v{vT+2}\nv_add_u32 v{vT+3}, {8*part}, v{vT}\nv_lshl_add_u32 v{FK+2*part+i}, v{vT+3}, 8, v{vT+2}")
            a(f"v_add_u32 v{vT+2}, {4*i}, v{vT}\nv_lshlrev_b32 v{vT+2}, 1, v{vT+2}\nv_xor_b32 v{vT+2}, v{vT+2}, v{vT+1}\nv_lshlrev_b32 v{vT+2}, 4, v{vT+2}\nv_lshl_add_u32 v{FV+2*part+i}, v{vT+3}, 8, v{vT+2}")
    for qb in range(4): a(f"v_mov_b32 v{M[qb]}, 0xff7fffff\nv_mov_b32 v{vL+qb}, 0")
    for i in range(128): a(f"v_accvgpr_write_b32 a{aO+i}, 0")
    a(f"s_mov_b32 s80, 0\ns_add_u32 s81, s83, {LB}")
    a("L_fb_loop:")
    for part in range(4):
        a(f"s_add_u32 m0, s81, {part*4096}\ns_nop 0")
        a(f"buffer_load_dwordx4 v{FK+2*part}, s[{rK}:{rK+3}], s80 offen lds\nbuffer_load_dwordx4 v{FK+2*part+1}, s[{rK}:{rK+3}], s80 offen offset:1024 lds")
        a(f"buffer_load_dwordx4 v{FV+2*part}, s[{rV}:{rV+3}], s80 offen offset:2048 lds\nbuffer_load_dwordx4 v{FV+2*part+1}, s[{rV}:{rV+3}], s80 offen offset:3072 lds")
    a("s_waitcnt vmcnt(0)")
    for x in kreads(0):
        for s in range(4): x = x.replace(f", v{vKA+s} ", f", v{KA2+s} ")
        a(x)
    a("s_waitcnt lgkmcnt(0)")
    for db in range(8):
        for jj in range(2): a(f"ds_read_b64_tr_b16 a[{aVF+db*4+2*jj}:{aVF+db*4+2*jj+1}], v{VA2[db]} offset:{jj*8192}")
    for x in qk(0, '0'): a(x)
    a("s_nop 7\ns_waitcnt lgkmcnt(0)")
    for qb in range(4):
        b0 = vS[0] + qb*8; T = TM[qb]
        a(f"v_max3_f32 v{T}, v{b0}, v{b0+1}, v{b0+2}\nv_max3_f32 v{T}, v{T}, v{b0+3}, v{b0+4}\nv_max3_f32 v{T}, v{T}, v{b0+5}, v{b0+6}\nv_max3_f32 v{T}, v{T}, v{b0+7}, v{M[qb]}")
        xreduce(a, T, 'v_max_f32', T + 1)
        a(f"v_sub_f32 v{AL[qb]}, v{M[qb]}, v{T}\nv_mov_b32 v{M[qb]}, v{T}\nv_exp_f32 v{AL[qb]}, v{AL[qb]}")
        for i in range(8): a(f"v_sub_f32 v{b0+i}, v{b0+i}, v{T}")
        for i in range(8): a(f"v_exp_f32 v{b0+i}, v{b0+i}")
        a(f"v_mul_f32 v{vL+qb}, v{vL+qb}, v{AL[qb]}")
        for i in range(8): a(f"v_add_f32 v{vL+qb}, v{vL+qb}, v{b0+i}")
        for i in range(4): a(f"v_cvt_pk_bf16_f32 v{vP[0]+qb*4+i}, v{b0+2*i}, v{b0+2*i+1}")
        for db in range(8):
            o = aO + (db*4 + qb)*4
            for i in range(4): a(f"v_accvgpr_read_b32 v{vT+i}, a{o+i}")
            for i in range(4): a(f"v_mul_f32 v{vT+i}, v{vT+i}, v{AL[qb]}")
            for i in range(4): a(f"v_accvgpr_write_b32 a{o+i}, v{vT+i}")
    a("s_nop 1")
    for x in pv(0, False, 0): a(x)
    a("s_nop 7\ns_add_u32 s80, s80, 8192\ns_cmp_lt_u32 s80, 0x80000\ns_cbranch_scc1 L_fb_loop")
    for qb in range(4): xreduce(a, vL + qb, 'v_add_f32', vT)
    a("s_branch L_fb_ret")
    return a

def final_kernel():
    a = Prog()
    a("final_kernel:")
    a("s_cmp_ge_u32 s2, 512\ns_cbranch_scc1 L_fin_end")
    if OPT['timing']: a("s_memrealtime s[30:31]")
    a("s_load_dwordx2 s[4:5], s[0:1], 0\ns_load_dwordx2 s[6:7], s[0:1], 72\ns_load_dwordx2 s[8:9], s[0:1], 88")
    a("v_lshrrev_b32 v2, 6, v0\nv_and_b32 v0, 63, v0\nv_readfirstlane_b32 s3, v2\nv_lshlrev_b32 v1, 4, v0")
    a("s_lshl_b32 s10, s2, 2\ns_nop 2\ns_add_u32 s10, s10, s3")
    a("s_waitcnt lgkmcnt(0)")
    srd(a, 12, 4, 2048*1024); srd(a, 16, 6, 2048*1024); srd(a, 20, 8, 0x2000000)
    a("s_lshl_b32 s11, s10, 10")
    for t in range(2):
        for g in range(8):
            a(f"s_add_u32 s24, s11, {t*0x1000000 + g*0x200000}")
            r = 8 + (t*8 + g)*4
            a(f"buffer_load_dwordx4 v[{r}:{r+3}], v1, s[20:23], s24 offen ; @T:l{t}{g}")
    a("s_lshr_b32 s25, s10, 6\ns_lshl_b32 s25, s25, 16\ns_and_b32 s26, s10, 3\ns_lshl_b32 s26, s26, 14\ns_add_u32 s25, s25, s26")
    a("s_bfe_u32 s26, s10, 0x40002\ns_lshl_b32 s26, s26, 6\ns_add_u32 s25, s25, s26")
    a("v_and_b32 v2, 15, v0\nv_lshlrev_b32 v2, 10, v2\nv_lshrrev_b32 v3, 4, v0\nv_lshl_add_u32 v2, v3, 3, v2")
    a("buffer_load_dwordx2 v[4:5], v2, s[12:15], s25 offen ; @T:x\nbuffer_load_dwordx2 v[6:7], v2, s[12:15], s25 offen offset:32 ; @T:x")
    acc = [72, 80]
    for t in range(2):
        for g in range(8):
            r = 8 + (t*8 + g)*4
            a(f"s_waitcnt vmcnt(@l{t}{g})")
            for i in range(4):
                if g == 0:
                    a(f"v_lshlrev_b32 v{acc[t]+2*i}, 16, v{r+i}\nv_and_b32 v{acc[t]+2*i+1}, 0xffff0000, v{r+i}")
                else:
                    a(f"v_lshlrev_b32 v88, 16, v{r+i}\nv_and_b32 v89, 0xffff0000, v{r+i}\nv_pk_add_f32 v[{acc[t]+2*i}:{acc[t]+2*i+1}], v[{acc[t]+2*i}:{acc[t]+2*i+1}], v[88:89]")
    for i in range(8): a(f"v_mul_f32 v{8+i}, {hx(-math.log2(math.e))}, v{80+i}")
    for i in range(8): a(f"v_exp_f32 v{8+i}, v{8+i}")
    for i in range(8): a(f"v_add_f32 v{8+i}, 1.0, v{8+i}")
    for i in range(8): a(f"v_rcp_f32 v{8+i}, v{8+i}")
    for i in range(8): a(f"v_mul_f32 v{8+i}, v{8+i}, v{80+i}")
    a("s_waitcnt vmcnt(@x)")
    for i in range(4): a(f"v_lshlrev_b32 v{16+2*i}, 16, v{4+i}\nv_and_b32 v{17+2*i}, 0xffff0000, v{4+i}")
    for i in range(8): a(f"v_fmac_f32 v{16+i}, v{8+i}, v{72+i}")
    for i in range(4): a(f"v_cvt_pk_bf16_f32 v{4+i}, v{16+2*i}, v{17+2*i}")
    a("buffer_store_dwordx2 v[4:5], v2, s[16:19], s25 offen\nbuffer_store_dwordx2 v[6:7], v2, s[16:19], s25 offen offset:32")
    if OPT['timing']:
        a("s_waitcnt vmcnt(0)\ns_memrealtime s[32:33]\ns_waitcnt lgkmcnt(0)\ns_mov_b32 s22, 0x4000000\ns_lshl_b32 s11, s10, 3\ns_add_u32 s11, s11, 0x3100000")
        a("v_mov_b32 v4, s30\nv_mov_b32 v5, s32\nv_mov_b32 v2, 0\nbuffer_store_dwordx2 v[4:5], v2, s[20:23], s11 offen")
    a("L_fin_end:\ns_endpgm")
    return a

def kd(name, vgpr, acc):
    return f""".section .rodata,"a"
.p2align 6
.amdhsa_kernel {name}
  .amdhsa_next_free_vgpr {vgpr}
  .amdhsa_next_free_sgpr 102
  .amdhsa_accum_offset {acc}
  .amdhsa_group_segment_fixed_size 0
  .amdhsa_kernarg_size 96
  .amdhsa_user_sgpr_count 2
  .amdhsa_user_sgpr_kernarg_segment_ptr 1
  .amdhsa_system_sgpr_workgroup_id_x 1
.end_amdhsa_kernel
"""

def build(opts=None):
    if opts: OPT.update(opts)
    m = main_kernel(); f = final_kernel()
    lo, hi = m.loop
    if hasattr(m, 'brpos'): m.L[m.brpos - 1] += " ; @BR"
    L1 = resolve_waits(m.L)
    dbl = m.L[:hi] + m.L[lo:hi] + m.L[hi:]
    L2 = resolve_waits(dbl)
    def loopseg(L, k):
        idx = [i for i, x in enumerate(L) if x.startswith('L_attn_loop')][0] + 1
        n = len(L2) - len(L1)
        return L[idx + k*n: idx + (k+1)*n]
    assert loopseg(L2, 0) == loopseg(L2, 1), "loop waits differ between trips"
    assert L2[-200:] == L1[-200:]
    probs = check_stream(L2, 'main')
    FB = resolve_waits(m.fb.L); probs += check_stream(FB + FB, 'fallback')
    ID = resolve_waits(m.idle.L); probs += check_stream(ID, 'idle')
    F1 = resolve_waits(f.L); probs += check_stream(F1, 'final')
    strip = lambda L: [re.sub(r'\s*;.*', '', x) + ("\ns_cbranch_scc1 L_attn_head" if '@BR' in x else "") for x in L]
    txt = HEADER
    if OPT['single']:
        name = KNAME + '_kernel'
        txt += "; @launch grid=(256,1,1) block=(256,1,1) lds=163840\n"
    else:
        name = 'main_kernel'
        txt += "; @launch kernel=main_kernel grid=(256,1,1) block=(256,1,1) lds=163840\n; @launch kernel=final_kernel grid=(512,1,1) block=(256,1,1) lds=0\n"
    txt += '.amdgcn_target "amdgcn-amd-amdhsa--gfx950"\n.text\n'
    L1[0] = name + ':'
    txt += f".globl {name}\n.p2align 8\n.type {name},@function\n" + "\n".join(strip(L1)) + "\n" + "\n".join(strip(ID)) + "\nL_code_end:\n" + "\n".join(strip(FB)) + "\n"
    if not OPT['single']:
        txt += ".globl final_kernel\n.p2align 8\n.type final_kernel,@function\n" + "\n".join(strip(F1)) + "\n"
    txt += kd(name, 512, 256) + ('' if OPT['single'] else kd('final_kernel', 96, 96))
    return txt, probs

if __name__ == '__main__':
    opts = eval(sys.argv[2]) if len(sys.argv) > 2 else None
    txt, probs = build(opts)
    open(sys.argv[1], 'w').write(txt)
    print(len(txt), 'bytes;', len(probs), 'hazard problems')
    for p in probs[:30]: print(p)
```
